```python
import torch

def _softmax(x, axis=-1):
    return torch.softmax(x, dim=axis)
def _gelu(x):
    return torch.nn.functional.gelu(x, approximate="tanh")
def _silu(x):
    return torch.nn.functional.silu(x)
def _sigmoid(x):
    return torch.sigmoid(x)
def _layernorm(x, axis=-1, eps=1e-5):
    m = x.mean(dim=axis, keepdim=True)
    v = x.var(dim=axis, keepdim=True, unbiased=False)
    return (x - m) / torch.sqrt(v + eps)
def _scatter_add(tgt, idx, src, axis=0):
    return tgt.clone().index_add_(axis, idx, src)
def _segment_sum(src, seg, n):
    out = torch.zeros((n,) + src.shape[1:], dtype=src.dtype)
    return out.index_add_(0, seg, src)
def _pad(x, pw):
    flat = tuple(v for pair in reversed(pw) for v in pair)
    return torch.nn.functional.pad(x, flat)

kernel_name = 'concat_heads__grouped_kv_mqa__mha_block__prompt'

def setup_inputs():

    _w = (lambda a: (lambda t: t.to(torch.bfloat16) if t.is_floating_point() else t)(torch.as_tensor(a)))
    def _A_setup():
        B, S, D, H = 1, 2048, 1024, 32
        Dh = D // H
        return {
            "x": _w((lambda *s: torch.randn(*s, dtype=torch.bfloat16) * 0.05)(B, S, D)),
            "wq": _w((lambda *s: torch.randn(*s, dtype=torch.bfloat16) * 0.8)(D, H * Dh)),
            "wk": _w((lambda *s: torch.randn(*s, dtype=torch.bfloat16) * 0.8)(D, Dh)),
            "wv": _w((lambda *s: torch.randn(*s, dtype=torch.bfloat16) * 0.1)(D, Dh)),
            "wo": _w((lambda *s: torch.randn(*s, dtype=torch.bfloat16) * 0.1)(H * Dh, D)),
        }
    _A_in = _A_setup()

    def _B_setup():
        B, S, D, H = 1, 2048, 1024, 32
        return {
            "x": _w((lambda *s: torch.randn(*s, dtype=torch.bfloat16) * 0.2)(B, S, D)),
            "wqkv": _w((lambda *s: torch.randn(*s, dtype=torch.bfloat16) * 0.2)(D, 3 * D)),
            "wo": _w((lambda *s: torch.randn(*s, dtype=torch.bfloat16) * 0.05)(D, D)),
        }
    _B_in = _B_setup()

    return {
        "A_x": _A_in["x"],
        "A_wq": _A_in["wq"],
        "A_wk": _A_in["wk"],
        "A_wv": _A_in["wv"],
        "A_wo": _A_in["wo"],
        "B_x": _B_in["x"],
        "B_wqkv": _B_in["wqkv"],
        "B_wo": _B_in["wo"],
    }

def reference(A_x, A_wq, A_wk, A_wv, A_wo, B_x, B_wqkv, B_wo):
    def _A_ref(x, wq, wk, wv, wo):
        B, S, D = x.shape
        H = 32
        Dh = D // H
        q = (lambda x, *d: x.permute(*d))((x @ wq).reshape(B, S, H, Dh), 0, 2, 1, 3)
        k = x @ wk
        v = x @ wv
        scores = torch.einsum("bhqd,bkd->bhqk", q, k) * (Dh ** -0.5)
        p = _softmax(scores, axis=-1)
        o = torch.einsum("bhqk,bkd->bhqd", p, v)
        return (lambda x, *d: x.permute(*d))(o, 0, 2, 1, 3).reshape(B, S, H * Dh) @ wo

    def _B_ref(x, wqkv, wo):
        B, S, D = x.shape
        H = 32
        Dh = D // H
        qkv = (lambda x, *d: x.permute(*d))((x @ wqkv).reshape(B, S, 3, H, Dh), 2, 0, 3, 1, 4)
        q, k, v = qkv[0], qkv[1], qkv[2]
        scores = torch.einsum("bhqd,bhkd->bhqk", q, k) * (Dh ** -0.5)
        p = _softmax(scores, axis=-1)
        o = torch.einsum("bhqk,bhkd->bhqd", p, v)
        return (lambda x, *d: x.permute(*d))(o, 0, 2, 1, 3).reshape(B, S, D) @ wo

    a = _A_ref(A_x, A_wq, A_wk, A_wv, A_wo)
    b = _B_ref(B_x, B_wqkv, B_wo)
    return torch.concatenate([a, b], axis=-1)
```

```python
from kgen import *

def gen_attn(name="attn_kernel", NSLOT=4, TPC=4, opts=None):
    o = opts or {}
    A = Asm()
    CH = TPC * 4096
    NCH = 64 // TPC
    FLAG = NSLOT * CH
    va = VAlloc(0)
    vtid = va.get("tid")
    vl16 = va.get("l16")
    vcur = va.get("cur"); vnxt = va.get("nxt")
    vdma = va.get("dma")
    vt0 = va.get("t0", 1, 4); vt1 = va.get("t1"); vt2 = va.get("t2"); vt3 = va.get("t3")
    vidx = va.get("idx")
    vm = [va.get("m0"), va.get("m1")]
    val = va.get("alpha")
    vsel = va.get("sel", 4, 4)
    Q = [[va.get(f"q{i}{h}", 4, 4) for h in range(2)] for i in range(2)]
    O = [va.get(f"o{i}", 16, 4) for i in range(2)]
    L = [va.get(f"l{i}", 4, 4) for i in range(2)]
    S = [va.get(f"s{i}", 16, 4) for i in range(2)]
    P = [va.get(f"p{i}", 8, 4) for i in range(2)]
    K = [va.get(f"k{i}", 8, 4) for i in range(2)]
    V = [va.get(f"v{i}", 8, 4) for i in range(2)]
    nv = va.next
    sWS, sKV, sW = 4, 8, 12
    sWave, sSoff, sM0, sCnt, sQ, sO, sNxt, sMode, sT0, sT1 = 16, 17, 18, 19, 20, 21, 22, 23, 24, 25
    sT2, sT3 = 26, 27

    A.raw(kernel_head(name).rstrip("\n"))
    A(f"""s_cmp_ge_u32 s2, 256
    s_cbranch_scc1 L_{name}_end
    s_load_dwordx2 s[{sWS}:{sWS+1}], s[0:1], {KA_WS}
    v_lshrrev_b32 v{vt0}, 6, v{vtid}
    v_and_b32 v{vl16}, 63, v{vtid}
    v_readfirstlane_b32 s{sWave}, v{vt0}
    v_lshlrev_b32 v{vl16}, 4, v{vl16}
    s_and_b32 s{sT0}, s2, 7
    s_lshr_b32 s{sT1}, s2, 3
    s_lshl_b32 s{sT0}, s{sT0}, 3
    s_lshr_b32 s{sT2}, s{sT1}, 2
    s_add_u32 s{sT0}, s{sT0}, s{sT2}      ; bh
    s_and_b32 s{sT1}, s{sT1}, 3           ; qb
    s_and_b32 s{sT2}, s{sT0}, 31          ; head
    s_lshr_b32 s{sT0}, s{sT0}, 5          ; branch
    s_lshl_b32 s{sT1}, s{sT1}, 4
    s_lshl_b32 s{sT3}, s{sWave}, 1
    s_add_u32 s{sT1}, s{sT1}, s{sT3}
    s_lshl_b32 s{sQ}, s{sT2}, 6
    s_add_u32 s{sQ}, s{sQ}, s{sT1}
    s_lshl_b32 s{sQ}, s{sQ}, 11           ; (head*64+T)*2048
    s_lshl_b32 s{sO}, s{sT1}, 5
    s_add_u32 s{sO}, s{sO}, s{sT2}
    s_lshl_b32 s{sO}, s{sO}, 11           ; (T*32+head)*2048
    s_mul_i32 s{sT3}, s{sT0}, {WS_QB-WS_QA}
    s_add_u32 s{sQ}, s{sQ}, s{sT3}
    s_add_u32 s{sO}, s{sO}, s{sT3}
    s_add_u32 s{sO}, s{sO}, {WS_OA}
    s_lshl_b32 s{sT2}, s{sT2}, 17         ; head*128KB
    s_add_u32 s{sT2}, s{sT2}, {WS_KB}
    s_cmp_eq_u32 s{sT0}, 0
    s_cselect_b32 s{sT2}, {WS_KA}, s{sT2}
    s_mov_b32 s{sT3}, {WS_VB-WS_KB}
    s_cselect_b32 s{sT3}, {WS_VA-WS_KA}, s{sT3}
    s_cmp_ge_u32 s{sWave}, 4
    s_cselect_b32 s{sT3}, s{sT3}, 0
    s_add_u32 s{sT2}, s{sT2}, s{sT3}
    s_waitcnt lgkmcnt(0)
    s_add_u32 s{sKV}, s{sWS}, s{sT2}
    s_addc_u32 s{sKV+1}, s{sWS+1}, 0
    s_and_b32 s{sKV+1}, s{sKV+1}, 0xffff
    s_mov_b32 s{sKV+2}, 131072
    s_mov_b32 s{sKV+3}, 0x20000
    s_mov_b32 s{sW}, s{sWS}
    s_and_b32 s{sW+1}, s{sWS+1}, 0xffff
    s_mov_b32 s{sW+2}, {WS_END}
    s_mov_b32 s{sW+3}, 0x20000
    """)
    assert WS_OB - WS_OA == WS_QB - WS_QA
    A(f"""buffer_load_dwordx4 v[{Q[0][0]}:{Q[0][0]+3}], v{vl16}, s[{sW}:{sW+3}], s{sQ} offen
    buffer_load_dwordx4 v[{Q[0][1]}:{Q[0][1]+3}], v{vl16}, s[{sW}:{sW+3}], s{sQ} offen offset:1024
    buffer_load_dwordx4 v[{Q[1][0]}:{Q[1][0]+3}], v{vl16}, s[{sW}:{sW+3}], s{sQ} offen offset:2048
    buffer_load_dwordx4 v[{Q[1][1]}:{Q[1][1]+3}], v{vl16}, s[{sW}:{sW+3}], s{sQ} offen offset:3072
    """)
    PER = CH // 8 // 1024
    A(f"""s_mul_i32 s{sT0}, s{sWave}, {PER*1024}
    s_and_b32 s{sT1}, s{sWave}, 3
    s_mul_i32 s{sT1}, s{sT1}, {PER*1024}
    v_add_u32 v{vdma}, s{sT1}, v{vl16}
    s_mov_b32 s{sM0}, s{sT0}
    s_mov_b32 s{sSoff}, 0""")
    def dma():
        A(f"s_mov_b32 m0, s{sM0}")
        A(f"s_add_u32 s{sM0}, s{sM0}, {CH}")
        for i in range(PER):
            A(f"buffer_load_dwordx4 v{vdma}, s[{sKV}:{sKV+3}], s{sSoff} offen offset:{i*1024} lds")
        A(f"s_add_u32 s{sSoff}, s{sSoff}, {CH//2}")
        A(f"s_cmp_ge_u32 s{sM0}, {NSLOT*CH}")
        A(f"s_cselect_b32 s{sT1}, {NSLOT*CH}, 0")
        A(f"s_sub_u32 s{sM0}, s{sM0}, s{sT1}")
    for c in range(NSLOT-1): dma()
    for i in range(2):
        for r in range(16): A(f"v_mov_b32 v{O[i]+r}, 0")
        for r in range(4): A(f"v_mov_b32 v{L[i]+r}, 0")
    for r in range(8):
        A(f"v_mov_b32 v{P[1]+r}, 0")
        A(f"v_mov_b32 v{V[1]+r}, 0")
    A(f"""v_lshrrev_b32 v{vt0}, 4, v{vl16}      ; lane
    v_and_b32 v{vt1}, 2, v{vt0}           ; r>=2 -> nonzero
    v_and_b32 v{vt2}, 4, v{vt0}           ; qhalf
    v_mov_b32 v{vt3}, 0x3f803f80
    v_cmp_eq_u32 vcc, 0, v{vt1}
    s_nop 1
    v_cndmask_b32 v{vt3}, 0, v{vt3}, vcc
    v_cmp_eq_u32 vcc, 0, v{vt2}
    s_nop 1
    v_cndmask_b32 v{vsel}, 0, v{vt3}, vcc
    v_cndmask_b32 v{vsel+1}, 0, v{vt3}, vcc
    v_cndmask_b32 v{vsel+2}, v{vt3}, 0, vcc
    v_cndmask_b32 v{vsel+3}, v{vt3}, 0, vcc
    v_and_b32 v{vt1}, 1, v{vt0}
    v_mov_b32 v{vt2}, 0x44444444
    v_mov_b32 v{vt3}, 0xeeeeeeee
    v_cmp_eq_u32 vcc, 0, v{vt1}
    s_nop 1
    v_cndmask_b32 v{vidx}, v{vt3}, v{vt2}, vcc
    v_mov_b32 v{vt0}, 0
    v_mov_b32 v{vt1}, {FLAG}
    ds_write_b32 v{vt1}, v{vt0}
    v_mov_b32 v{vcur}, v{vl16}
    v_add_u32 v{vnxt}, {CH}, v{vl16}
    s_mov_b32 s{sNxt}, {2*CH}
    s_mov_b32 s{sMode}, 0
    s_mov_b32 s{sCnt}, {NCH}
    s_waitcnt vmcnt({(NSLOT-2)*PER}) lgkmcnt(0)
    s_barrier
    """)
    def rdK(buf, base, t):
        A(f"ds_read_b128 v[{K[buf]}:{K[buf]+3}], v{base} offset:{t*2048}")
        A(f"ds_read_b128 v[{K[buf]+4}:{K[buf]+7}], v{base} offset:{t*2048+1024}")
    def rdV(buf, base, t):
        A(f"ds_read_b128 v[{V[buf]}:{V[buf]+3}], v{base} offset:{CH//2+t*2048}")
        A(f"ds_read_b128 v[{V[buf]+4}:{V[buf]+7}], v{base} offset:{CH//2+t*2048+1024}")
    def mf(d, a, b, c):
        cs = "0" if c is None else f"v[{c}:{c+15}]"
        return f"v_mfma_f32_32x32x16_bf16 v[{d}:{d+15}], v[{a}:{a+3}], v[{b}:{b+3}], {cs}"
    def sm(qi):
        return f"v_smfmac_f32_16x16x64_bf16 v[{L[qi]}:{L[qi]+3}], v[{vsel}:{vsel+3}], v[{P[qi]}:{P[qi]+7}], v{vidx}"
    rdK(0, vcur, 0); rdV(0, vcur, 0)
    A("s_waitcnt lgkmcnt(0)")
    A(mf(S[0], K[0], Q[0][0], None)); A(mf(S[0], K[0]+4, Q[0][1], S[0]))
    A("s_nop 7\ns_nop 3")
    if o.get("stamp"):
        A("s_memtime s[40:41]\ns_memrealtime s[42:43]\ns_waitcnt lgkmcnt(0)")
    A(f".p2align 6\nL_{name}_loop:")
    for kt in range(TPC):
        for qi in range(2):
            if qi == 0: nk, nq = kt, 1
            else:       nk, nq = kt+1, 0
            pk, pq = (kt, 0) if qi == 1 else (kt-1, 1)
            e = lambda j: f"v_exp_f32 v{S[qi]+j}, v{S[qi]+j}"
            c = lambda j: f"v_cvt_pk_bf16_f32 v{P[qi]+j}, v{S[qi]+2*j}, v{S[qi]+2*j+1}"
            Kb = K[nk % 2]; Vb = V[pk % 2]
            pre = []; rd = []
            if qi == 1:
                pre.append("s_waitcnt lgkmcnt(0)")
            if qi == 0 and kt == TPC-1:
                pre.append(f"s_waitcnt vmcnt({(NSLOT-3)*PER})")
                pre.append("s_barrier")
            save = A.lines; A.lines = []
            if qi == 0:
                if kt+1 < TPC: rdK((kt+1) % 2, vcur, kt+1)
                else: rdK((kt+1) % 2, vnxt, 0)
            else:
                if kt+1 < TPC: rdV((kt+1) % 2, vcur, kt+1)
                else: rdV((kt+1) % 2, vnxt, 0)
            rd = [l.strip() for l in A.lines]; A.lines = save
            save = A.lines; A.lines = []
            if qi == 0 and kt == TPC-1: dma()
            dm = [l.strip() for l in A.lines]; A.lines = save
            pat = o.get("pat", "Q1 e R e e Q2 e R e c c P1 e D e e P2 e e c c S e e c e e c e e c c").split()
            seq = []; ne = nc = nr = 0
            seq += pre
            for tk in pat:
                if tk == "Q1": seq.append(mf(S[nq], Kb, Q[nq][0], None))
                elif tk == "Q2": seq.append(mf(S[nq], Kb+4, Q[nq][1], S[nq]))
                elif tk == "P1": seq.append(mf(O[pq], Vb, P[pq], O[pq]))
                elif tk == "P2": seq.append(mf(O[pq], Vb+4, P[pq]+4, O[pq]))
                elif tk == "S": seq.append(sm(pq))
                elif tk == "e": seq.append(e(ne)); ne += 1
                elif tk == "c": seq.append(c(nc)); assert 2*nc+1 < ne; nc += 1
                elif tk == "R": seq.append(rd[nr]); nr += 1
                elif tk == "D": seq += dm
                elif tk.startswith("p") : seq.append(f"s_setprio {tk[1:]}")
                elif tk == "n": seq.append("s_nop 0")
                else: raise Exception(tk)
            assert ne == 16 and nc == 8 and nr == 2
            ab = o.get("ablate", "")
            def keep(l):
                if "nosm" in ab and l.startswith("v_smfmac"): return False
                if "noexp" in ab and l.startswith("v_exp"): return False
                if "nocvt" in ab and l.startswith("v_cvt"): return False
                if "nolds" in ab and l.startswith("ds_read"): return False
                if "nowait" in ab and l.startswith("s_waitcnt lgkm"): return False
                if "nobar" in ab and l.startswith("s_barrier"): return False
                if "noqk" in ab and l.startswith(f"v_mfma_f32_32x32x16_bf16 v[{S[nq]}:"): return False
                if "nopv" in ab and l.startswith(f"v_mfma_f32_32x32x16_bf16 v[{O[pq]}:"): return False
                return True
            for l in seq:
                if "qk16" in ab and l.startswith(f"v_mfma_f32_32x32x16_bf16 v[{S[nq]}:"):
                    half = 0 if l.endswith(", 0") else 1
                    for z in range(2):
                        d = S[nq] + 8*half + 4*z
                        A(f"v_mfma_f32_16x16x32_bf16 v[{d}:{d+3}], v[{Kb+4*half}:{Kb+4*half+3}], v[{Q[nq][z]}:{Q[nq][z]+3}], 0")
                    continue
                if "pv16" in ab and l.startswith(f"v_mfma_f32_32x32x16_bf16 v[{O[pq]}:"):
                    half = 0 if f"v[{Vb}:" in l else 1
                    for z in range(2):
                        d = O[pq] + 8*half + 4*z
                        A(f"v_mfma_f32_16x16x32_bf16 v[{d}:{d+3}], v[{Vb+4*z}:{Vb+4*z+3}], v[{P[pq]+4*half}:{P[pq]+4*half+3}], v[{d}:{d+3}]")
                    continue
                if keep(l): A(l)
    A(f"""v_mov_b32 v{vcur}, v{vnxt}
    v_add_u32 v{vnxt}, s{sNxt}, v{vl16}
    s_add_u32 s{sNxt}, s{sNxt}, {CH}
    s_cmp_ge_u32 s{sNxt}, {NSLOT*CH}
    s_cselect_b32 s{sT1}, {NSLOT*CH}, 0
    s_sub_u32 s{sNxt}, s{sNxt}, s{sT1}
    s_sub_u32 s{sCnt}, s{sCnt}, 1
    s_cmp_lg_u32 s{sCnt}, 0
    s_cbranch_scc1 L_{name}_loop
    """)
    if o.get("stamp"):
        A(f"""s_memtime s[44:45]
        s_memrealtime s[46:47]
        s_waitcnt lgkmcnt(0)
        s_sub_u32 s44, s44, s40
        s_sub_u32 s46, s46, s42
        s_lshl_b32 s48, s2, 3
        s_add_u32 s48, s48, s{sWave}
        s_lshl_b32 s48, s48, 4
        s_add_u32 s48, s48, {WS_END}
        v_mov_b32 v{vt0}, s44
        v_mov_b32 v{vt1}, s46
        v_mov_b32 v{vt2}, s42
        v_mov_b32 v{vt3}, 0
        v_mov_b32 v{val}, 0
        s_mov_b32 s{sW+2}, {WS_END + 65536}
        buffer_store_dwordx4 v[{vt0}:{vt0+3}], v{val}, s[{sW}:{sW+3}], s48 offen
        s_nop 1""")
    Vb = V[(TPC-1) % 2]
    A("s_nop 1")
    A(mf(O[1], Vb, P[1], O[1])); A(mf(O[1], Vb+4, P[1]+4, O[1])); A(sm(1))
    A(f"L_{name}_fin:")
    A("s_nop 7\ns_nop 7")
    A(f"v_mov_b32 v{vt3}, 0")
    for qi in range(2):
        A(f"v_add_f32 v{vt0}, v{L[qi]}, v{L[qi]+1}")
        A(f"v_rcp_f32 v{vt1}, v{vt0}")
        A(f"v_cmp_nge_f32 vcc, v{vt0}, v{vt2}" if False else f"v_mov_b32 v{vt2}, 0x35800000")
        A(f"v_cmp_nle_f32 s[{sT2}:{sT3}], v{vt2}, v{vt0}")
        A(f"v_mov_b32 v{vt2}, 0x71800000")
        A(f"v_cmp_nle_f32 vcc, v{vt0}, v{vt2}")
        A("s_nop 3")
        A(f"s_or_b64 vcc, vcc, s[{sT2}:{sT3}]")
        A(f"s_cmp_lg_u64 vcc, 0")
        A(f"s_cselect_b32 s{sT0}, 1, 0")
        if qi == 0: A(f"s_mov_b32 s{sCnt}, s{sT0}")
        else: A(f"s_or_b32 s{sCnt}, s{sCnt}, s{sT0}")
        for r in range(16):
            A(f"v_mul_f32 v{O[qi]+r}, v{O[qi]+r}, v{vt1}")
        for r in range(16):
            A(f"v_fma_f32 v{vt3}, v{O[qi]+r}, 0, v{vt3}")
        for j in range(8):
            A(f"v_cvt_pk_bf16_f32 v{S[qi]+j}, v{O[qi]+2*j}, v{O[qi]+2*j+1}")
        A(f"buffer_store_dwordx4 v[{S[qi]}:{S[qi]+3}], v{vl16}, s[{sW}:{sW+3}], s{sO} offen offset:0")
        A(f"buffer_store_dwordx4 v[{S[qi]+4}:{S[qi]+7}], v{vl16}, s[{sW}:{sW+3}], s{sO} offen offset:1024")
        if qi == 0: A(f"s_add_u32 s{sO}, s{sO}, 65536")
    A(f"s_sub_u32 s{sO}, s{sO}, 65536")
    A(f"""v_cmp_u_f32 vcc, v{vt3}, v{vt3}
    s_nop 3
    s_cmp_lg_u64 vcc, 0
    s_cselect_b32 s{sT0}, 1, 0
    s_or_b32 s{sCnt}, s{sCnt}, s{sT0}
    s_cmp_eq_u32 s{sMode}, 1
    s_cbranch_scc1 L_{name}_done
    v_mov_b32 v{vt0}, s{sCnt}
    v_mov_b32 v{vt1}, {FLAG}
    ds_or_b32 v{vt1}, v{vt0}
    s_waitcnt lgkmcnt(0)
    s_barrier
    ds_read_b32 v{vt0}, v{vt1}
    s_waitcnt lgkmcnt(0)
    v_readfirstlane_b32 s{sT0}, v{vt0}
    s_nop 3
    s_cmp_eq_u32 s{sT0}, 0
    s_cbranch_scc1 L_{name}_done
    """)
    A(f"""s_waitcnt vmcnt(0)
    s_mov_b32 s{sMode}, 1
    s_mov_b32 s{sCnt}, {NCH}
    s_mov_b32 s{sSoff}, 0
    """)
    for i in range(2):
        for r in range(16): A(f"v_mov_b32 v{O[i]+r}, 0")
        for r in range(4): A(f"v_mov_b32 v{L[i]+r}, 0")
        A(f"v_mov_b32 v{vm[i]}, 0xff7fffff")
    A(f"L_{name}_slow:")
    A(f"s_barrier")
    A(f"s_mul_i32 s{sT0}, s{sWave}, {PER*1024}")
    A(f"s_mov_b32 m0, s{sT0}")
    A("s_nop 0")
    for i in range(PER):
        A(f"buffer_load_dwordx4 v{vdma}, s[{sKV}:{sKV+3}], s{sSoff} offen offset:{i*1024} lds")
    A(f"""s_add_u32 s{sSoff}, s{sSoff}, {CH//2}
    s_waitcnt vmcnt(0)
    s_barrier
    v_mov_b32 v{vcur}, v{vl16}
    s_mov_b32 s{sNxt}, {TPC}
    L_{name}_slowt:""")
    rdK(0, vcur, 0); rdV(0, vcur, 0)
    A(f"v_add_u32 v{vcur}, 2048, v{vcur}")
    A("s_waitcnt lgkmcnt(0)")
    for qi in range(2):
        s = S[0]
        A(mf(s, K[0], Q[qi][0], None)); A(mf(s, K[0]+4, Q[qi][1], s))
        A("s_nop 7\ns_nop 3")
        A(f"v_max3_f32 v{vt0}, v{s}, v{s+1}, v{s+2}")
        for j in range(3, 15, 2): A(f"v_max3_f32 v{vt0}, v{vt0}, v{s+j}, v{s+j+1}")
        A(f"v_max_f32 v{vt0}, v{vt0}, v{s+15}")
        A(f"v_mov_b32 v{vt1}, v{vt0}")
        A("s_nop 1")
        A(f"v_permlane32_swap_b32 v{vt0}, v{vt1}")
        A(f"v_max3_f32 v{vt0}, v{vt0}, v{vt1}, v{vm[qi]}")
        A(f"v_sub_f32 v{val}, v{vm[qi]}, v{vt0}")
        A(f"v_exp_f32 v{val}, v{val}")
        A(f"v_mov_b32 v{vm[qi]}, v{vt0}")
        for r in range(16): A(f"v_sub_f32 v{s+r}, v{s+r}, v{vt0}")
        for r in range(16): A(f"v_exp_f32 v{s+r}, v{s+r}")
        for r in range(16): A(f"v_mul_f32 v{O[qi]+r}, v{O[qi]+r}, v{val}")
        for r in range(2): A(f"v_mul_f32 v{L[qi]+r}, v{L[qi]+r}, v{val}")
        for j in range(8): A(f"v_cvt_pk_bf16_f32 v{P[qi]+j}, v{s+2*j}, v{s+2*j+1}")
        A("s_nop 1")
        A(mf(O[qi], V[0], P[qi], O[qi])); A(mf(O[qi], V[0]+4, P[qi]+4, O[qi])); A(sm(qi))
        A("s_nop 7\ns_nop 7")
    A(f"""s_sub_u32 s{sNxt}, s{sNxt}, 1
    s_cmp_lg_u32 s{sNxt}, 0
    s_cbranch_scc1 L_{name}_slowt
    s_sub_u32 s{sCnt}, s{sCnt}, 1
    s_cmp_lg_u32 s{sCnt}, 0
    s_cbranch_scc1 L_{name}_slow
    s_branch L_{name}_fin
    L_{name}_done:
    s_waitcnt vmcnt(0)
    L_{name}_end:
    s_endpgm""")
    txt = A.text() + kernel_desc(name, nv)
    return txt, dict(name=name, grid=256, block=512, lds=NSLOT*CH + 64, nv=nv)
```

```python
import sys
sys.path.insert(0, "dev")
from kgen import *
import importlib
HDR = open("concat_heads__grouped_kv_mqa__mha_block__prompt.s.ref").read().split("; Override launch")[0]
def build(parts, path):
    s = HDR
    for t, i in parts:
        s += f"; @launch kernel={i['name']} grid=({i['grid']},1,1) block=({i['block']},1,1) lds={i['lds']}\n"
    s += '.amdgcn_target "amdgcn-amd-amdhsa--gfx950"\n.text\n'
    for t, i in parts: s += t
    s += 'L_code_end:\n  s_endpgm\n'
    open(path, "w").write(s)
    return s
```

```python
import re, sys
from collections import defaultdict

TRANS = ("v_exp_","v_log_","v_rcp_","v_rsq_","v_sqrt_","v_sin_","v_cos_")
def parse_reg_list(op):
    op = op.strip()
    if op.startswith("-"): op = op[1:]
    if op.startswith("abs(") : op = op[4:-1]
    if op.startswith("|") : op = op.strip("|")
    op = op.lstrip("-")
    m = re.fullmatch(r"([vsa])(\d+)", op)
    if m: return [(m.group(1), int(m.group(2)))]
    m = re.fullmatch(r"([vsa])\[(\d+):(\d+)\]", op)
    if m: return [(m.group(1), i) for i in range(int(m.group(2)), int(m.group(3))+1)]
    if op == "vcc": return [("s","vcc_lo"),("s","vcc_hi")]
    if op in ("vcc_lo","vcc_hi"): return [("s",op)]
    if op == "exec": return [("s","exec_lo"),("s","exec_hi")]
    if op in ("exec_lo","exec_hi"): return [("s",op)]
    if op == "m0": return [("s","m0")]
    if op == "scc": return [("s","scc")]
    return []

class I:
    def __init__(s, line, ln):
        s.ln = ln; s.text = line
        t = line.split(None, 1)
        s.op = t[0]
        rest = t[1] if len(t) > 1 else ""
        ops = []; cur = ""; d = 0
        for ch in rest:
            if ch in "[(": d += 1
            if ch in "])": d -= 1
            if ch == "," and d == 0: ops.append(cur.strip()); cur = ""
            else: cur += ch
        if cur.strip(): ops.append(cur.strip())
        s.mods = ""
        if ops:
            parts = ops[-1].split()
            if len(parts) > 1:
                ops[-1] = parts[0]; s.mods = " ".join(parts[1:])
        s.ops = ops
        s.classify()
    def classify(s):
        op = s.op; o = s.ops
        s.wr = []; s.rd = []; s.kind = "other"; s.passes = 0
        s.srcA = s.srcB = s.srcC = []
        R = parse_reg_list
        if op.startswith("v_mfma") or op.startswith("v_smfmac"):
            s.kind = "mfma"
            s.wr = R(o[0]); s.srcA = R(o[1]); s.srcB = R(o[2])
            if op.startswith("v_smfmac"):
                s.srcC = R(o[0]); s.idx = R(o[3]); s.rd = s.srcA + s.srcB + s.srcC + s.idx
            else:
                s.srcC = R(o[3]); s.idx = []; s.rd = s.srcA + s.srcB + s.srcC
            if "32x32x16" in op and op.startswith("v_mfma"): s.passes = 8
            elif "16x16x32" in op and op.startswith("v_mfma"): s.passes = 4
            elif "smfmac_f32_16x16x64" in op: s.passes = 4
            elif "smfmac_f32_32x32x32" in op: s.passes = 8
            else: raise Exception("unknown mfma passes " + op)
        elif op.startswith("v_"):
            s.kind = "valu"
            if op.startswith("v_cmp"):
                if op.startswith("v_cmpx"): s.wr = R(o[0]) + R("exec")
                else: s.wr = R(o[0])
                for x in o[1:]: s.rd += R(x)
            elif op.startswith("v_readfirstlane") or op.startswith("v_readlane"):
                s.wr = R(o[0]);
                for x in o[1:]: s.rd += R(x)
            elif op.startswith("v_permlane32_swap") or op.startswith("v_permlane16_swap"):
                s.wr = R(o[0]) + R(o[1]); s.rd = R(o[0]) + R(o[1])
            elif op.startswith(("v_add_co","v_sub_co","v_addc_co","v_subb_co")):
                s.wr = R(o[0]) + R(o[1])
                for x in o[2:]: s.rd += R(x)
            else:
                s.wr = R(o[0])
                for x in o[1:]: s.rd += R(x)
                if op.startswith(("v_fmac","v_dot2c","v_mac","v_writelane","v_pk_fmac")): s.rd += R(o[0])
                if op.startswith("v_cndmask") and len(o) == 3: s.rd += R("vcc")
                if "sdwa" in op and "UNUSED_PRESERVE" in s.mods: s.rd += R(o[0])
            s.trans = op.startswith(TRANS)
            s.dpp = ("dpp" in op) or ("row_" in s.mods) or ("quad_perm" in s.mods)
        elif op.startswith("ds_"):
            s.kind = "ds"
            if op.startswith(("ds_read","ds_bpermute","ds_permute","ds_swizzle")):
                s.wr = R(o[0])
                for x in o[1:]: s.rd += R(x)
            else:
                for x in o: s.rd += R(x)
        elif op.startswith(("buffer_","global_")):
            s.kind = "vmem"
            s.lds = " lds" in (" " + s.mods) or "load_lds" in op
            if "load" in op and not s.lds:
                s.wr = R(o[0])
                for x in o[1:]: s.rd += R(x)
            elif "load" in op:
                for x in o: s.rd += R(x)
                s.rd += R("m0")
            elif "atomic" in op:
                for x in o: s.rd += R(x)
                if "sc0" in s.mods: s.wr = R(o[0]) if op.startswith("buffer") else R(o[0])
            else:
                for x in o: s.rd += R(x)
                s.store = True
                s.data = R(o[0]) if op.startswith("buffer") else R(o[1])
        elif op.startswith("s_"):
            s.kind = "salu"
            if op in ("s_waitcnt","s_nop","s_barrier","s_endpgm","s_branch","s_setprio","s_sleep") or op.startswith("s_cbranch"):
                s.kind = "ctl"
                if op in ("s_cbranch_vccz","s_cbranch_vccnz"): s.rd = R("vcc")
                if op in ("s_cbranch_execz","s_cbranch_execnz"): s.rd = R("exec")
            elif op.startswith("s_cmp"):
                for x in o: s.rd += R(x)
                s.wr = R("scc")
            elif op.startswith(("s_load","s_buffer_load","s_memtime","s_memrealtime")):
                s.kind = "smem"
                s.wr = R(o[0])
                for x in o[1:]: s.rd += R(x)
            else:
                s.wr = R(o[0])
                for x in o[1:]: s.rd += R(x)
                if "saveexec" in op: s.wr += R("exec"); s.rd += R("exec")
        else:
            raise Exception("unknown instr: " + s.text)
    def states(s):
        if s.op == "s_nop": return int(s.ops[0], 0) + 1
        return 1

def parse(text):
    ins = []; labels = {}
    for ln, raw in enumerate(text.splitlines(), 1):
        line = raw.split(";")[0].split("//")[0].strip()
        if not line or line.startswith("."):
            continue
        m = re.match(r"^([\w.$]+):\s*(.*)$", line)
        if m:
            labels[m.group(1)] = len(ins)
            line = m.group(2).strip()
            if not line: continue
        ins.append(I(line, ln))
    return ins, labels

def succs(ins, labels, i):
    x = ins[i]
    if x.op == "s_endpgm": return []
    if x.op == "s_branch": return [labels[x.ops[0]]]
    if x.op.startswith("s_cbranch"): return [labels[x.ops[0]], i+1]
    return [i+1] if i+1 < len(ins) else []

XDL_D_C_OVERLAP = {2:4,4:6,8:10,16:18}
XDL_D_AB = {2:5,4:8,8:12,16:20}
XDL_D_VALU = {2:5,4:8,8:12,16:20}
XDL_C_WAR = {2:1,4:3,8:7,16:15}
def vregs(l): return set(r for r in l if r[0] in "va")
def sregs(l): return set(r for r in l if r[0] == "s")

def required(p, c):
    need = 0; why = ""
    def req(n, w):
        nonlocal need, why
        if n > need: need, why = n, w
    if p.kind == "valu":
        pw = vregs(p.wr); psw = sregs(p.wr)
        if c.kind == "mfma" and pw & set(c.rd): req(2, "VALU->MFMA operand")
        if c.kind == "valu":
            if p.trans and not c.trans and pw & set(c.rd): req(1, "trans->VALU")
            if c.op.startswith("v_permlane") and pw & set(c.rd): req(2, "VALU->permlane")
            if c.dpp and pw & set(c.rd): req(2, "VALU->DPP")
            if c.op.startswith(("v_readlane","v_readfirstlane")) and pw & set(c.rd): req(1, "VALU->readlane")
            if psw & set(c.rd) - set([("s","exec_lo"),("s","exec_hi")]): req(2, "VALU sgpr->VALU const")
            if (("s","exec_lo") in psw) and c.op.startswith(("v_readlane","v_readfirstlane","v_permlane","v_writelane")): req(4,"exec->lane op")
            if "sdwa" in p.op and pw & set(c.rd): req(1,"sdwa->VALU")
        if c.kind == "mfma" and ("s","exec_lo") in psw: req(4, "VALU exec->MFMA")
        if c.kind == "vmem" and psw & set(c.rd): req(5, "VALU sgpr->VMEM")
        if c.kind in ("salu","smem") and psw & set(c.rd): req(4, "VALU sgpr->SALU (padded)")
        if c.op in ("s_cbranch_vccz","s_cbranch_vccnz","s_cbranch_execz","s_cbranch_execnz") and psw & set(c.rd): req(5,"VALU vcc/exec -> branch")
    if p.kind == "mfma":
        D = set(p.wr)
        if c.kind == "mfma":
            if D & set(c.srcC):
                if c.srcC == p.wr and c.passes == p.passes:
                    if p.passes == 2: req(2, "XDL same D")
                else: req(XDL_D_C_OVERLAP[p.passes], "XDL D->srcC overlap")
            if D & (set(c.srcA) | set(c.srcB) | set(c.idx)): req(XDL_D_AB[p.passes], "XDL D->A/B")
            if D & set(c.wr) and not (D & set(c.srcC)): req(XDL_D_C_OVERLAP[p.passes], "XDL WAW")
        elif c.kind in ("valu","ds","vmem"):
            if D & (set(c.rd) | set(c.wr)): req(XDL_D_VALU[p.passes], "XDL D->VALU/mem")
        if c.kind == "valu" and set(p.srcC) & set(c.wr): req(XDL_C_WAR[p.passes], "XDL srcC WAR")
    if p.kind == "salu" and ("s","m0") in p.wr and c.kind == "vmem" and getattr(c,"lds",False): req(1, "m0->lds dma")
    if p.kind == "vmem" and getattr(p,"store",False) and len(p.data) >= 3:
        if c.kind == "valu" and set(p.data) & set(c.wr): req(2, "wide store WAR")
        elif c.kind in ("ds","vmem","mfma") and set(p.data) & set(c.wr): req(1, "wide store WAR")
    return need, why

def check_hazards(text, maxd=22):
    ins, labels = parse(text)
    probs = []
    for i, p in enumerate(ins):
        if p.kind not in ("valu","mfma","salu","vmem"): continue
        stack = [(j, 0) for j in succs(ins, labels, i)]
        seen = {}
        while stack:
            j, d = stack.pop()
            if j >= len(ins): continue
            if j in seen and seen[j] <= d: continue
            seen[j] = d
            c = ins[j]
            need, why = required(p, c)
            if need > d:
                probs.append(f"L{p.ln}: {p.text}  ->  L{c.ln}: {c.text} : need {need} have {d} ({why})")
            d2 = d + c.states()
            if d2 < maxd:
                for k in succs(ins, labels, j): stack.append((k, d2))
    return probs

def check_waits(text, entry, max_back=2, max_paths=4000):
    ins, labels = parse(text)
    probs = set()
    start = labels[entry]
    sys.setrecursionlimit(100000)
    stack = [(start, (), (), ())]
    npaths = 0; visited = set()
    while stack:
        pc, vm, lg, bc = stack.pop()
        bc = dict(bc)
        vm = list(vm); lg = list(lg)
        while True:
            if pc >= len(ins): break
            key = (pc, tuple(vm), tuple(lg), tuple(sorted(bc.items())))
            x = ins[pc]
            if x.op.startswith("s_cbranch") or x.op == "s_branch":
                if key in visited: break
                visited.add(key)
            if x.op == "s_waitcnt":
                for part in re.findall(r"(vmcnt|lgkmcnt)\((\d+)\)", x.text):
                    n = int(part[1])
                    if part[0] == "vmcnt":
                        while len(vm) > n: vm.pop(0)
                    else:
                        if any(t[1] for t in lg):
                            if n == 0: lg = []
                        else:
                            while len(lg) > n: lg.pop(0)
            else:
                touched = set(x.rd) | set(x.wr)
                for q, nm in ((vm, "vm"), (lg, "lgkm")):
                    for t in q:
                        if t[0] & touched and not (x.kind == "vmem" and nm=="vm" and not (t[0] & set(x.rd)) and False):
                            probs.add(f"L{x.ln}: {x.text} touches regs of outstanding {nm} op at L{t[2]}")
                if x.kind == "vmem":
                    vm.append((frozenset(x.wr), False, x.ln))
                    if len(vm) > 63: probs.add(f"L{x.ln}: vmcnt overflow")
                    vm = [(t if i >= len(vm)-64 else None) for i,t in enumerate(vm)]
                elif x.kind == "ds":
                    lg.append((frozenset(x.wr), False, x.ln))
                elif x.kind == "smem":
                    lg.append((frozenset(x.wr), True, x.ln))
            if x.op == "s_endpgm": break
            ss = succs(ins, labels, pc)
            nxt = []
            for k in ss:
                if k <= pc:
                    c = bc.get(pc, 0)
                    if c < max_back:
                        b2 = dict(bc); b2[pc] = c+1
                        nxt.append((k, b2))
                else: nxt.append((k, bc))
            if not nxt: break
            for k, b2 in nxt[1:]:
                stack.append((k, tuple(vm), tuple(lg), tuple(sorted(b2.items()))))
            pc, bc = nxt[0]
        npaths += 1
        if npaths > max_paths: probs.add("too many paths"); break
    return sorted(probs)

if __name__ == "__main__":
    t = open(sys.argv[1]).read()
    ps = check_hazards(t)
    for p in ps[:50]: print(p)
    print(len(ps), "hazards")
    for e in sys.argv[2:]:
        ws = check_waits(t, e)
        for p in ws[:50]: print(p)
        print(len(ws), "wait problems for", e)
```

```python
class Asm:
    def __init__(self):
        self.lines = []
    def __call__(self, fmt, *a):
        for l in fmt.split("\n"):
            l = l.strip()
            if l: self.lines.append(("" if l.endswith(":") else "  ") + l)
    def label(self, name): self.lines.append(name + ":")
    def raw(self, s): self.lines.append(s)
    def comment(self, s): self.lines.append("  ; " + s)
    def text(self): return "\n".join(self.lines) + "\n"

def vr(base, n=1):
    return f"v{base}" if n == 1 else f"v[{base}:{base+n-1}]"
def sr(base, n=1):
    return f"s{base}" if n == 1 else f"s[{base}:{base+n-1}]"

class VAlloc:
    def __init__(self, start=0, limit=256):
        self.next = start; self.limit = limit; self.names = {}
    def get(self, name, n=1, align=1):
        if n >= 2 and align < 2: align = 2
        b = (self.next + align - 1) // align * align
        self.next = b + n
        assert self.next <= self.limit, f"out of vgprs at {name}"
        self.names[name] = (b, n)
        return b

def kernel_desc(name, vgpr, sgpr=102, accum=None):
    if accum is None: accum = (vgpr + 3) // 4 * 4
    return f""".section .rodata,"a"
.p2align 6
.amdhsa_kernel {name}
  .amdhsa_next_free_vgpr {vgpr}
  .amdhsa_next_free_sgpr {sgpr}
  .amdhsa_accum_offset {accum}
  .amdhsa_group_segment_fixed_size 0
  .amdhsa_kernarg_size 88
  .amdhsa_user_sgpr_count 2
  .amdhsa_user_sgpr_kernarg_segment_ptr 1
  .amdhsa_system_sgpr_workgroup_id_x 1
  .amdhsa_float_denorm_mode_32 3
.end_amdhsa_kernel
.text
"""
def kernel_head(name):
    return f""".globl {name}
.p2align 8
.type {name},@function
{name}:
"""

MB = 1 << 20
WS_QA  = 0
WS_QB  = 4 * MB
WS_KB  = 8 * MB
WS_VB  = 12 * MB
WS_KA  = 16 * MB
WS_VA  = 16 * MB + 131072
WS_OA  = 17 * MB
WS_OB  = 21 * MB
WS_END = 25 * MB
KA_AX, KA_AWQ, KA_AWK, KA_AWV, KA_AWO, KA_BX, KA_BWQKV, KA_BWO, KA_OUT, KA_DBG, KA_WS = [8*i for i in range(11)]
```

```python
from kgen import *

def gen_oproj(name="oproj_kernel", NS=4, opts=None):
    o = opts or {}
    A = Asm()
    SLOT = 32768
    WOFF = 16384
    NST = 16
    OUT_BYTES = 2048*2048*2
    va = VAlloc(0)
    vtid = va.get("tid"); vt0 = va.get("t0"); vt1 = va.get("t1"); vt2 = va.get("t2"); vt3 = va.get("t3"); vt4 = va.get("t4")
    vOA = va.get("oa")
    vWA = [va.get(f"wa{i}") for i in range(4)]
    vst = va.get("st")
    acc = [[va.get(f"acc{t}{c}", 4, 4) for c in range(4)] for t in range(4)]
    of = [[va.get(f"of{b}{t}", 4, 4) for t in range(4)] for b in range(2)]
    wf = [[va.get(f"wf{b}{c}", 4, 4) for c in range(4)] for b in range(2)]
    nv = va.next
    vLO = of[0][0]; vLW = of[0][1]
    sO, sWd, sOut = 8, 12, 16
    sWave, sBr, sRB, sCB = 24, 25, 26, 27
    sT0, sT1, sT2, sT3 = 30, 31, 32, 33
    sCnt, sDelta, sSlot, sOo, sWo, sM0o, sM0w, sSt, sCneg = 34, 35, 36, 37, 38, 40, 41, 43, 45
    sP = 48
    N = name; l = vtid
    A.raw(kernel_head(name).rstrip("\n"))
    A(f"""s_cmp_ge_u32 s2, 256
    s_cbranch_scc1 L_{N}_end
    s_load_dwordx2 s[{sP}:{sP+1}], s[0:1], {KA_WS}
    s_load_dwordx2 s[{sP+2}:{sP+3}], s[0:1], {KA_AWO}
    s_load_dwordx2 s[{sP+4}:{sP+5}], s[0:1], {KA_BWO}
    s_load_dwordx2 s[{sP+6}:{sP+7}], s[0:1], {KA_OUT}
    v_lshrrev_b32 v{vt0}, 6, v{vtid}
    v_and_b32 v{vtid}, 63, v{vtid}
    v_readfirstlane_b32 s{sWave}, v{vt0}
    s_and_b32 s{sT0}, s2, 7               ; xcd
    s_lshr_b32 s{sT1}, s2, 3              ; sl
    s_lshr_b32 s{sBr}, s{sT0}, 2
    s_bfe_u32 s{sT2}, s{sT0}, 0x10001     ; rowhalf
    s_lshl_b32 s{sT2}, s{sT2}, 3
    s_and_b32 s{sRB}, s{sT1}, 7
    s_add_u32 s{sRB}, s{sRB}, s{sT2}
    s_and_b32 s{sT2}, s{sT0}, 1
    s_lshl_b32 s{sT2}, s{sT2}, 2
    s_lshr_b32 s{sCB}, s{sT1}, 3
    s_add_u32 s{sCB}, s{sCB}, s{sT2}
    s_waitcnt lgkmcnt(0)
    s_mul_i32 s{sT0}, s{sBr}, {WS_OB-WS_OA}
    s_lshl_b32 s{sT1}, s{sRB}, 18
    s_add_u32 s{sT0}, s{sT0}, s{sT1}
    s_add_u32 s{sT0}, s{sT0}, {WS_OA}
    s_add_u32 s{sO}, s{sP}, s{sT0}
    s_addc_u32 s{sO+1}, s{sP+1}, 0
    s_and_b32 s{sO+1}, s{sO+1}, 0xffff
    s_mov_b32 s{sO+2}, 262144
    s_mov_b32 s{sO+3}, 0x20000
    s_cmp_eq_u32 s{sBr}, 0
    s_cselect_b32 s{sT2}, s{sP+2}, s{sP+4}
    s_cselect_b32 s{sT3}, s{sP+3}, s{sP+5}
    s_lshl_b32 s{sT0}, s{sCB}, 8
    s_add_u32 s{sWd}, s{sT2}, s{sT0}
    s_addc_u32 s{sWd+1}, s{sT3}, 0
    s_and_b32 s{sWd+1}, s{sWd+1}, 0xffff
    s_sub_u32 s{sWd+2}, {1024*2048}, s{sT0}
    s_mov_b32 s{sWd+3}, 0x20000
    s_mov_b32 s{sOut}, s{sP+6}
    s_and_b32 s{sOut+1}, s{sP+7}, 0xffff
    s_mov_b32 s{sOut+2}, {OUT_BYTES}
    s_mov_b32 s{sOut+3}, 0x20000
    """)
    if o.get("stamp"): A("s_memtime s[60:61]\ns_memrealtime s[62:63]\ns_waitcnt lgkmcnt(0)")
    A(f"""s_cmp_ge_u32 s{sWave}, 4
    s_cbranch_scc1 L_{N}_loader
    s_lshr_b32 s{sT0}, s{sWave}, 1        ; wm
    s_and_b32 s{sT1}, s{sWave}, 1         ; wn
    v_and_b32 v{vt0}, 15, v{l}            ; n / i
    v_lshrrev_b32 v{vt1}, 4, v{l}         ; g
    v_lshlrev_b32 v{vOA}, 9, v{vt1}
    v_lshl_add_u32 v{vOA}, v{vt0}, 4, v{vOA}
    s_lshl_b32 s{sT2}, s{sT0}, 13
    v_add_u32 v{vOA}, s{sT2}, v{vOA}
    ; W address: k = 16(g>>1) + 4(g&1) + (i>>2) ; f = (4(g&1) + (i>>2))<<1
    v_lshrrev_b32 v{vt2}, 2, v{vt0}
    v_and_b32 v{vt3}, 1, v{vt1}
    v_lshl_or_b32 v{vt2}, v{vt3}, 2, v{vt2}       ; k&7
    v_lshrrev_b32 v{vt3}, 1, v{vt1}
    v_lshl_add_u32 v{vt4}, v{vt3}, 4, v{vt2}      ; k
    v_lshlrev_b32 v{vt4}, 8, v{vt4}               ; k*256
    v_lshlrev_b32 v{vt2}, 1, v{vt2}               ; f
    v_and_b32 v{vt3}, 1, v{vt0}
    v_lshl_add_u32 v{vt4}, v{vt3}, 3, v{vt4}      ; + 8*(i&1)
    v_add_u32 v{vt4}, {WOFF}, v{vt4}
    v_bfe_u32 v{vt3}, v{vt0}, 1, 1
    s_lshl_b32 s{sT2}, s{sT1}, 3
    v_add_u32 v{vt3}, s{sT2}, v{vt3}              ; 8wn + ((i&3)>>1)
    """)
    for ct in range(4):
        A(f"""v_add_u32 v{vWA[ct]}, {2*ct}, v{vt3}
        v_xor_b32 v{vWA[ct]}, v{vWA[ct]}, v{vt2}
        v_lshl_add_u32 v{vWA[ct]}, v{vWA[ct]}, 4, v{vt4}""")
    A(f"""; store: n*4096 + (g&1)*32 + (g>>1)*16
    v_and_b32 v{vt2}, 1, v{vt1}
    v_lshlrev_b32 v{vt2}, 5, v{vt2}
    v_lshrrev_b32 v{vt3}, 1, v{vt1}
    v_lshl_add_u32 v{vt2}, v{vt3}, 4, v{vt2}
    v_lshl_add_u32 v{vst}, v{vt0}, 12, v{vt2}
    s_lshl_b32 s{sSt}, s{sRB}, 19
    s_lshl_b32 s{sT2}, s{sT0}, 18
    s_add_u32 s{sSt}, s{sSt}, s{sT2}
    s_lshl_b32 s{sT2}, s{sBr}, 11
    s_add_u32 s{sSt}, s{sSt}, s{sT2}
    s_lshl_b32 s{sT2}, s{sCB}, 8
    s_add_u32 s{sSt}, s{sSt}, s{sT2}
    s_lshl_b32 s{sT2}, s{sT1}, 7
    s_add_u32 s{sSt}, s{sSt}, s{sT2}
    s_mov_b32 s{sCneg}, {(-(NS-1)*SLOT) & 0xffffffff}
    s_mov_b32 s{sSlot}, 0
    """)
    for t in range(4):
        for c in range(4):
            for r in range(4): A(f"v_mov_b32 v{acc[t][c]+r}, 0")
    A("s_barrier")
    def rdO(tt, ks, par):
        r = of[par][tt]
        return f"ds_read_b128 v[{r}:{r+3}], v{vOA} offset:{(tt>>1)*4096 + ks*2048 + (tt&1)*256}"
    def rdW(ct, q, ks, par):
        r = wf[par][ct] + 2*q
        return f"ds_read_b64_tr_b16 v[{r}:{r+1}], v{vWA[ct]} offset:{ks*8192 + q*2048}"
    def mf(d, a, b): return f"v_mfma_f32_16x16x32_bf16 v[{d}:{d+3}], v[{a}:{a+3}], v[{b}:{b+3}], v[{d}:{d+3}]"
    def step(ks, nxt, inter=()):
        par = ks; npar = ks ^ 1; nks = ks ^ 1
        reads = []
        if nxt:
            reads = [rdW(0,0,nks,npar), rdW(0,1,nks,npar), rdO(0,nks,npar), rdW(1,0,nks,npar), rdW(1,1,nks,npar), rdO(1,nks,npar),
                     rdW(2,0,nks,npar), rdW(2,1,nks,npar), rdO(2,nks,npar), rdW(3,0,nks,npar), rdW(3,1,nks,npar), rdO(3,nks,npar)]
        inter = list(inter)
        m = 0
        for tt in range(4):
            for ct in range(4):
                A(mf(acc[tt][ct], wf[par][ct], of[par][tt]))
                if m < 6:
                    for x in reads[2*m:2*m+2]: A(x)
                elif inter and m >= 8: A(inter.pop(0))
                m += 1
        for x in inter: A(x)
    for ct in range(4):
        for q in range(2): A(rdW(ct, q, 0, 0))
    for tt in range(4): A(rdO(tt, 0, 0))
    A(f"s_mov_b32 s{sCnt}, {NST-1}")
    if o.get("stamp"): A("s_memtime s[70:71]")
    A(f".p2align 6\nL_{N}_loop:")
    A("s_waitcnt lgkmcnt(0)")
    A(f"""s_add_u32 s{sSlot}, s{sSlot}, 1
    s_cmp_eq_u32 s{sSlot}, {NS}
    s_cselect_b32 s{sDelta}, s{sCneg}, {SLOT}
    s_cselect_b32 s{sSlot}, 0, s{sSlot}""")
    step(0, True, [f"v_add_u32 v{r}, s{sDelta}, v{r}" for r in [vOA] + vWA])
    A(f"s_sub_u32 s{sCnt}, s{sCnt}, 1")
    A("s_waitcnt lgkmcnt(0)\ns_barrier")
    step(1, True)
    A(f"""s_cmp_lg_u32 s{sCnt}, 0
    s_cbranch_scc1 L_{N}_loop""")
    A("s_waitcnt lgkmcnt(0)")
    step(0, True)
    A("s_waitcnt lgkmcnt(0)")
    step(1, False)
    if o.get("stamp"): A("s_memtime s[72:73]\ns_waitcnt lgkmcnt(0)")
    A("s_nop 7")
    tmp = of[0][0]
    k = 0
    for tt in range(4):
        A(f"s_add_u32 s{sT0}, s{sSt}, {tt*65536}")
        for p in range(2):
            d = tmp + 4*(k % 4); k += 1
            for z in range(2):
                s_ = acc[tt][2*p+z]
                A(f"v_cvt_pk_bf16_f32 v{d+2*z}, v{s_}, v{s_+1}")
                A(f"v_cvt_pk_bf16_f32 v{d+2*z+1}, v{s_+2}, v{s_+3}")
            A("s_nop 1")
            A(f"v_permlane16_swap_b32 v{d}, v{d+2}")
            A(f"v_permlane16_swap_b32 v{d+1}, v{d+3}")
            A(f"buffer_store_dwordx4 v[{d}:{d+3}], v{vst}, s[{sOut}:{sOut+3}], s{sT0} offen offset:{p*64}")
    A(f"s_branch L_{N}_done")
    PER = 8
    A(f"""L_{N}_loader:
    s_sub_u32 s{sWave}, s{sWave}, 4
    s_lshl_b32 s{sT0}, s{sWave}, 16
    v_lshlrev_b32 v{vLO}, 4, v{l}
    v_add_u32 v{vLO}, s{sT0}, v{vLO}
    """)
    for i in range(4):
        A(f"""v_lshrrev_b32 v{vt0}, 4, v{l}
        s_lshl_b32 s{sT0}, s{sWave}, 4
        s_add_u32 s{sT0}, s{sT0}, {4*i}
        v_add_u32 v{vt0}, s{sT0}, v{vt0}
        v_and_b32 v{vt1}, 7, v{vt0}
        v_lshlrev_b32 v{vt1}, 1, v{vt1}
        v_and_b32 v{vt2}, 15, v{l}
        v_xor_b32 v{vt1}, v{vt1}, v{vt2}
        v_lshlrev_b32 v{vt1}, 4, v{vt1}
        v_lshl_add_u32 v{vLW+i}, v{vt0}, 11, v{vt1}""")
    A(f"""s_mov_b32 s{sOo}, 0
    s_mov_b32 s{sWo}, 0
    s_lshl_b32 s{sM0o}, s{sWave}, 12
    s_add_u32 s{sM0w}, s{sM0o}, {WOFF}
    s_mov_b32 s{sSlot}, 0""")
    def dma():
        A(f"s_add_u32 m0, s{sSlot}, s{sM0o}")
        A("s_nop 0")
        for i in range(4):
            A(f"buffer_load_dwordx4 v{vLO}, s[{sO}:{sO+3}], s{sOo} offen offset:{i*1024} lds")
        A(f"s_add_u32 m0, s{sSlot}, s{sM0w}")
        for i in range(4):
            A("s_nop 0" if i == 0 else "s_add_u32 m0, m0, 1024")
            if i: A("s_nop 0")
            A(f"buffer_load_dwordx4 v{vLW+i}, s[{sWd}:{sWd+3}], s{sWo} offen lds")
        A(f"""s_add_u32 s{sOo}, s{sOo}, 4096
        s_add_u32 s{sWo}, s{sWo}, {64*2048}
        s_add_u32 s{sSlot}, s{sSlot}, {SLOT}
        s_cmp_eq_u32 s{sSlot}, {NS*SLOT}
        s_cselect_b32 s{sSlot}, 0, s{sSlot}""")
    dma()
    A("s_waitcnt vmcnt(0)\ns_barrier")
    for _ in range(NS-1): dma()
    A(f"s_mov_b32 s{sCnt}, {NST-NS}")
    A(f"L_{N}_ld_loop:")
    A(f"s_waitcnt vmcnt({(NS-2)*PER})\ns_barrier")
    dma()
    A(f"""s_sub_u32 s{sCnt}, s{sCnt}, 1
    s_cmp_lg_u32 s{sCnt}, 0
    s_cbranch_scc1 L_{N}_ld_loop""")
    for j in range(NS-1):
        A(f"s_waitcnt vmcnt({(NS-2-j)*PER})\ns_barrier")
    A(f"s_branch L_{N}_end")
    A(f"L_{N}_done:")
    if o.get("stamp"):
        A(f"""s_memtime s[64:65]
        s_memrealtime s[66:67]
        s_waitcnt lgkmcnt(0)
        s_sub_u32 s64, s64, s60
        s_sub_u32 s66, s66, s62
        s_lshl_b32 s68, s2, 3
        s_add_u32 s68, s68, s{sWave}
        s_lshl_b32 s68, s68, 4
        s_add_u32 s68, s68, {WS_END}
        s_sub_u32 s70, s70, s60
        s_sub_u32 s72, s72, s60
        s_lshr_b32 s70, s70, 2
        s_lshr_b32 s72, s72, 2
        s_lshl_b32 s72, s72, 16
        s_or_b32 s70, s70, s72
        v_mov_b32 v{wf[0][0]}, s64
        v_mov_b32 v{wf[0][0]+1}, s66
        v_mov_b32 v{wf[0][0]+2}, s62
        v_mov_b32 v{wf[0][0]+3}, s70
        v_mov_b32 v{vt0}, 0
        s_mov_b32 s{sO}, s{sP}
        s_and_b32 s{sO+1}, s{sP+1}, 0xffff
        s_mov_b32 s{sO+2}, {WS_END+65536}
        s_mov_b32 s{sO+3}, 0x20000
        buffer_store_dwordx4 v[{wf[0][0]}:{wf[0][0]+3}], v{vt0}, s[{sO}:{sO+3}], s68 offen""")
    A(f"""L_{N}_end:
    s_endpgm""")
    return A.text() + kernel_desc(name, nv), dict(name=name, grid=256, block=512, lds=NS*SLOT, nv=nv)

if __name__ == "__main__":
    import hz
    from build import build
    t, i = gen_oproj(opts=dict(stamp=True))
    print(i)
    ps = hz.check_hazards(t)
    for p in ps[:30]: print(p)
    ws = hz.check_waits(t, i["name"], max_back=1)
    for p in ws[:30]: print(p)
    print(len(ps), len(ws))
    build([(t, i)], "oproj_only.s")
```

```python
from kgen import *
import struct, math
def f2u(x): return struct.unpack("<I", struct.pack("<f", x))[0]
CSC = f2u(math.log2(math.e) / math.sqrt(32.0))

def gen_proj(name="proj_kernel", opts=None):
    o = opts or {}
    A = Asm()
    SLOT = 51200
    XOFF, WOFF, EOFF = 0, 16384, 49152
    NST = 16
    va = VAlloc(0)
    vtid = va.get("tid"); vt0 = va.get("t0"); vt1 = va.get("t1"); vt2 = va.get("t2"); vt3 = va.get("t3"); vt4 = va.get("t4")
    vXA = [va.get("xa0"), va.get("xa1")]
    vWA = [va.get(f"wa{i}") for i in range(4)]
    vXE = [va.get("xe0"), va.get("xe1")]
    vWE = [va.get("we0"), va.get("we1")]
    vst = va.get("st")
    NSP = 3
    acc = [[va.get(f"acc{t}{c}", 4, 4) for c in range(4)] for t in range(8)]
    acce = [va.get(f"acce{i}", 4, 4) for i in range(2)]
    xf = [va.get(f"xf{t}", 4, 4) for t in range(8)]
    xs = [va.get(f"xs{t}", 4, 4) for t in range(NSP)]
    wf = [[va.get(f"wf{b}{c}", 4, 4) for c in range(4)] for b in range(2)]
    xe = [va.get(f"xef{i}", 4, 4) for i in range(2)]
    we = va.get("wef", 4, 4)
    nv = va.next
    vLX = [xf[0] + i for i in range(4)]
    vLW = [xf[1] + i for i in range(4)] + [xf[2] + i for i in range(4)]
    vLE = xf[3]
    sX, sWd, sE, sWS = 8, 12, 16, 20
    sWave, sXcd, sRB, sCB, sType, sLdw = 24, 25, 26, 27, 28, 29
    sT0, sT1, sT2, sT3 = 30, 31, 32, 33
    sCnt, sDelta, sSlot, sXo, sWo, sEo, sM0x, sM0w, sM0e, sOut, sOutE, sCneg, sWstep = 34, 35, 36, 37, 38, 39, 40, 41, 42, 43, 44, 45, 46
    sC = 56
    sP = 48
    N = name
    A.raw(kernel_head(name).rstrip("\n"))
    A(f"""s_cmp_ge_u32 s2, 256
    s_cbranch_scc1 L_{N}_end
    s_and_b32 s{sXcd}, s2, 7
    s_lshr_b32 s{sT0}, s2, 3
    s_and_b32 s{sRB}, s{sT0}, 7
    s_lshr_b32 s{sCB}, s{sT0}, 3
    s_load_dwordx2 s[{sP+6}:{sP+7}], s[0:1], {KA_WS}
    v_lshrrev_b32 v{vt0}, 6, v{vtid}
    v_and_b32 v{vtid}, 63, v{vtid}
    v_readfirstlane_b32 s{sWave}, v{vt0}
    s_cmp_lt_u32 s{sXcd}, 2
    s_cbranch_scc1 L_{N}_typeA
    s_load_dwordx2 s[{sP}:{sP+1}], s[0:1], {KA_BX}
    s_load_dwordx2 s[{sP+2}:{sP+3}], s[0:1], {KA_BWQKV}
    s_load_dwordx2 s[{sP+4}:{sP+5}], s[0:1], {KA_BWQKV}
    s_sub_u32 s{sT0}, s{sXcd}, 2
    s_and_b32 s{sT1}, s{sT0}, 1
    s_lshl_b32 s{sT1}, s{sT1}, 3
    s_add_u32 s{sRB}, s{sRB}, s{sT1}
    s_lshr_b32 s{sType}, s{sT0}, 1          ; 0 Q, 1 K, 2 V
    s_mov_b32 s{sLdw}, 6144
    s_lshl_b32 s{sT2}, s{sType}, 11
    s_lshl_b32 s{sT3}, s{sCB}, 9
    s_add_u32 s{sT2}, s{sT2}, s{sT3}
    s_mov_b32 s{sT3}, {1024*6144}
    s_mov_b32 s{sEo}, 0
    s_branch L_{N}_typed
    L_{N}_typeA:
    s_load_dwordx2 s[{sP}:{sP+1}], s[0:1], {KA_AX}
    s_load_dwordx2 s[{sP+2}:{sP+3}], s[0:1], {KA_AWQ}
    s_cmp_lt_u32 s{sCB}, 2
    s_cbranch_scc1 L_{N}_typeAK
    s_load_dwordx2 s[{sP+4}:{sP+5}], s[0:1], {KA_AWV}
    s_mov_b32 s{sType}, 4
    s_branch L_{N}_typeA2
    L_{N}_typeAK:
    s_load_dwordx2 s[{sP+4}:{sP+5}], s[0:1], {KA_AWK}
    s_mov_b32 s{sType}, 3
    L_{N}_typeA2:
    s_lshl_b32 s{sT1}, s{sXcd}, 3
    s_add_u32 s{sRB}, s{sRB}, s{sT1}
    s_mov_b32 s{sLdw}, 2048
    s_lshl_b32 s{sT2}, s{sCB}, 9
    s_mov_b32 s{sT3}, {1024*2048}
    s_and_b32 s{sEo}, s{sCB}, 1
    s_lshl_b32 s{sEo}, s{sEo}, 5
    L_{N}_typed:
    s_waitcnt lgkmcnt(0)
    s_lshl_b32 s{sT1}, s{sRB}, 18
    s_add_u32 s{sX}, s{sP}, s{sT1}
    s_addc_u32 s{sX+1}, s{sP+1}, 0
    s_and_b32 s{sX+1}, s{sX+1}, 0xffff
    s_mov_b32 s{sX+2}, 262144
    s_mov_b32 s{sX+3}, 0x20000
    s_add_u32 s{sWd}, s{sP+2}, s{sT2}
    s_addc_u32 s{sWd+1}, s{sP+3}, 0
    s_and_b32 s{sWd+1}, s{sWd+1}, 0xffff
    s_sub_u32 s{sWd+2}, s{sT3}, s{sT2}
    s_mov_b32 s{sWd+3}, 0x20000
    ; SRD E
    s_mov_b32 s{sE}, s{sP+4}
    s_and_b32 s{sE+1}, s{sP+5}, 0xffff
    s_mov_b32 s{sE+2}, 65536
    s_mov_b32 s{sE+3}, 0x20000
    s_mov_b32 s{sWS}, s{sP+6}
    s_and_b32 s{sWS+1}, s{sP+7}, 0xffff
    s_mov_b32 s{sWS+2}, {WS_END + (65536 if o.get('stamp') else 0)}
    s_mov_b32 s{sWS+3}, 0x20000
    """)
    if o.get("stamp"): A("s_memtime s[60:61]\ns_memrealtime s[62:63]\ns_waitcnt lgkmcnt(0)")
    A(f"""s_cmp_ge_u32 s{sWave}, 4
    s_cbranch_scc1 L_{N}_loader""")
    l = vtid
    A(f"""v_and_b32 v{vt0}, 15, v{l}          ; n
    v_lshrrev_b32 v{vt1}, 4, v{l}         ; g
    v_lshlrev_b32 v{vst}, 9, v{vt1}
    v_lshl_add_u32 v{vst}, v{vt0}, 4, v{vst}
    v_lshrrev_b32 v{vt2}, 1, v{vt0}
    v_xor_b32 v{vt2}, v{vt2}, v{vt1}
    v_lshlrev_b32 v{vt2}, 4, v{vt2}
    v_lshl_add_u32 v{vt3}, v{vt0}, 7, v{vt2}      ; n*128 + swz*16  ( == (n>>3)*1024 + (n&7)*128 + ..)
    v_and_b32 v{vt2}, 7, v{vt0}
    v_lshrrev_b32 v{vt4}, 1, v{vt2}
    v_xor_b32 v{vt4}, v{vt4}, v{vt1}
    v_lshlrev_b32 v{vt2}, 7, v{vt2}
    v_lshrrev_b32 v{vst+0 if False else vXE[1]}, 3, v{vt0}     ; n>>3
    v_lshlrev_b32 v{vXE[0]}, 2, v{vXE[1]}
    v_xor_b32 v{vt4}, v{vt4}, v{vXE[0]}
    v_lshl_add_u32 v{vt2}, v{vt4}, 4, v{vt2}
    v_lshl_add_u32 v{vt4}, v{vXE[1]}, 11, v{vt2}
    s_lshl_b32 s{sT0}, s{sWave}, 12
    s_cmp_eq_u32 s{sType}, 2
    s_cbranch_scc1 L_{N}_xperm
    v_mov_b32 v{vXA[0]}, v{vt3}
    s_branch L_{N}_xdone
    L_{N}_xperm:
    v_mov_b32 v{vXA[0]}, v{vt4}
    L_{N}_xdone:
    v_xor_b32 v{vXA[1]}, 64, v{vXA[0]}
    s_cmp_eq_u32 s{sType}, 4
    s_cbranch_scc1 L_{N}_eperm
    v_add_u32 v{vXE[0]}, s{sT0}, v{vt3}
    s_branch L_{N}_edone
    L_{N}_eperm:
    v_add_u32 v{vXE[0]}, s{sT0}, v{vt4}
    L_{N}_edone:
    v_xor_b32 v{vXE[1]}, 64, v{vXE[0]}
    v_lshrrev_b32 v{vt2}, 2, v{vt0}               ; i>>2
    v_and_b32 v{vt3}, 1, v{vt1}
    v_lshl_or_b32 v{vt3}, v{vt3}, 2, v{vt2}
    v_lshlrev_b32 v{vt3}, 1, v{vt3}               ; f
    v_lshl_add_u32 v{vt2}, v{vt1}, 3, v{vt2}      ; row
    v_lshlrev_b32 v{vt4}, 9, v{vt2}               ; row*512
    v_and_b32 v{vWE[1]}, 1, v{vt0}
    v_lshl_add_u32 v{vt4}, v{vWE[1]}, 3, v{vt4}   ; + 8*(i&1)
    v_add_u32 v{vt4}, {WOFF}, v{vt4}
    v_bfe_u32 v{vWE[1]}, v{vt0}, 1, 1             ; (i&3)>>1
    s_lshl_b32 s{sT1}, s{sWave}, 3
    v_add_u32 v{vWE[1]}, s{sT1}, v{vWE[1]}
    """)
    for ct in range(4):
        A(f"""v_add_u32 v{vWA[ct]}, {2*ct}, v{vWE[1]}
        v_xor_b32 v{vWA[ct]}, v{vWA[ct]}, v{vt3}
        v_lshl_add_u32 v{vWA[ct]}, v{vWA[ct]}, 4, v{vt4}""")
    A(f"""; ---- WE address: EOFF + row*32 + (i&3)*8 + ((q ^ (g&1))*128)
    v_lshlrev_b32 v{vt4}, 5, v{vt2}
    v_and_b32 v{vt2}, 3, v{vt0}
    v_lshl_add_u32 v{vt4}, v{vt2}, 3, v{vt4}
    v_add_u32 v{vt4}, {EOFF}, v{vt4}
    v_and_b32 v{vt2}, 1, v{vt1}
    v_lshl_add_u32 v{vWE[0]}, v{vt2}, 7, v{vt4}
    v_xor_b32 v{vt2}, 1, v{vt2}
    v_lshl_add_u32 v{vWE[1]}, v{vt2}, 7, v{vt4}
    s_mov_b32 s{sC}, {CSC}
    s_mov_b32 s{sCneg}, {(-2*SLOT) & 0xffffffff}
    """)
    for t in range(8):
        for c in range(4):
            for r in range(4): A(f"v_mov_b32 v{acc[t][c]+r}, 0")
    for i in range(2):
        for r in range(4): A(f"v_mov_b32 v{acce[i]+r}, 0")
    A(f"s_mov_b32 s{sSlot}, 0")
    A("s_barrier")

    def xreg(tt, par):
        sp = tt - (8 - NSP)
        if sp >= 0 and par == 1: return xs[sp]
        return xf[tt]
    def rdX(tt, ks, par, perm):
        if perm: T, ab = tt >> 1, tt & 1; a = vXA[(ks ^ ab) & 1]; off = XOFF + T*4096 + ab*1024
        else: a = vXA[(ks ^ tt) & 1]; off = XOFF + tt*2048
        r = xreg(tt, par)
        return f"ds_read_b128 v[{r}:{r+3}], v{a} offset:{off}"
    def rdW(ct, q, ks, par):
        r = wf[par][ct] + 2*q
        return f"ds_read_b64_tr_b16 v[{r}:{r+1}], v{vWA[ct]} offset:{ks*16384 + q*2048}"
    def rdXE(i, ks, perm):
        a = vXE[(ks ^ i) & 1]; off = XOFF + (i*1024 if perm else i*2048)
        return f"ds_read_b128 v[{xe[i]}:{xe[i]+3}], v{a} offset:{off}"
    def rdWE(q, ks):
        return f"ds_read_b64_tr_b16 v[{we+2*q}:{we+2*q+1}], v{vWE[q]} offset:{ks*1024}"
    def mf(d, a, b): return f"v_mfma_f32_16x16x32_bf16 v[{d}:{d+3}], v[{a}:{a+3}], v[{b}:{b+3}], v[{d}:{d+3}]"

    def step(ks, vtype, extra, nxt):
        par = ks; npar = ks ^ 1; nks = ks ^ 1
        after = {}
        def put(m, s): after.setdefault(m, []).append(s)
        seq = []
        if extra:
            for i in range(2):
                seq.append(mf(acce[i], we, xe[i]) if extra == "K" else mf(acce[i], xe[i], we))
        ne = len(seq)
        for tt in range(8):
            for ct in range(4):
                x = xreg(tt, par); w = wf[par][ct]
                seq.append(mf(acc[tt][ct], x, w) if vtype else mf(acc[tt][ct], w, x))
        if nxt:
            m = 0
            if extra:
                put(1, rdWE(0, nks)); put(1, rdWE(1, nks)); put(2, rdXE(0, nks, extra == "V")); put(3, rdXE(1, nks, extra == "V"))
            for k in range(8): put(ne + k, rdW(k >> 1, k & 1, nks, npar))
            put(ne+3, rdX(0, nks, npar, vtype)); put(ne+7, rdX(1, nks, npar, vtype))
            put(ne+8, rdX(5, nks, npar, vtype)); put(ne+9, rdX(6, nks, npar, vtype)); put(ne+10, rdX(7, nks, npar, vtype))
            put(ne+11, rdX(2, nks, npar, vtype)); put(ne+15, rdX(3, nks, npar, vtype)); put(ne+19, rdX(4, nks, npar, vtype))
        for m, s in enumerate(seq):
            A(s)
            for x in after.get(m, []): A(x)

    def compute(tag, vtype, extra):
        for ct in range(4):
            for q in range(2): A(rdW(ct, q, 0, 0))
        A("s_waitcnt lgkmcnt(4)")
        for tt in range(8): A(rdX(tt, 0, 0, vtype))
        if extra:
            A("s_waitcnt lgkmcnt(8)")
            for q in range(2): A(rdWE(q, 0))
            for i in range(2): A(rdXE(i, 0, extra == "V"))
        A(f"s_mov_b32 s{sCnt}, {NST-1}")
        if o.get("stamp"): A("s_memtime s[70:71]")
        A(f".p2align 6\nL_{N}_{tag}_loop:")
        A("s_waitcnt lgkmcnt(0)")
        step(0, vtype, extra, "same")
        A(f"""s_add_u32 s{sSlot}, s{sSlot}, 1
        s_cmp_eq_u32 s{sSlot}, 3
        s_cselect_b32 s{sDelta}, s{sCneg}, {SLOT}
        s_cselect_b32 s{sSlot}, 0, s{sSlot}""")
        regs = vXA + vWA + ((vXE + vWE) if extra else [])
        for r in regs: A(f"v_add_u32 v{r}, s{sDelta}, v{r}")
        A("s_waitcnt lgkmcnt(0)\ns_barrier")
        step(1, vtype, extra, "next")
        A(f"""s_sub_u32 s{sCnt}, s{sCnt}, 1
        s_cmp_lg_u32 s{sCnt}, 0
        s_cbranch_scc1 L_{N}_{tag}_loop""")
        A("s_waitcnt lgkmcnt(0)")
        step(0, vtype, extra, "same")
        A("s_waitcnt lgkmcnt(0)")
        step(1, vtype, extra, None)
        if o.get("stamp"): A("s_memtime s[72:73]\ns_waitcnt lgkmcnt(0)")
        A("s_nop 7")

    def epilogue(kind, extra):
        tmp = xf[0]
        stride = 2048
        for hh in range(2):
            for T in range(4):
                A(f"s_add_u32 s{sT0}, s{sOut}, {(hh*64 + T)*stride}")
                for th in range(2):
                    if kind == "V": srcs = [acc[2*T][2*hh+th], acc[2*T+1][2*hh+th]]
                    else: srcs = [acc[2*T+th][2*hh], acc[2*T+th][2*hh+1]]
                    d = tmp + 4*((T*2+th) % 4)
                    if kind == "Q":
                        for s_ in srcs:
                            A(f"v_pk_mul_f32 v[{s_}:{s_+1}], v[{s_}:{s_+1}], s[{sC}:{sC+1}]")
                            A(f"v_pk_mul_f32 v[{s_+2}:{s_+3}], v[{s_+2}:{s_+3}], s[{sC}:{sC+1}]")
                    for k, s_ in enumerate(srcs):
                        A(f"v_cvt_pk_bf16_f32 v{d+2*k}, v{s_}, v{s_+1}")
                        A(f"v_cvt_pk_bf16_f32 v{d+2*k+1}, v{s_+2}, v{s_+3}")
                    A(f"buffer_store_dwordx4 v[{d}:{d+3}], v{vst}, s[{sWS}:{sWS+3}], s{sT0} offen offset:{th*256}")
        if extra == "K":
            d = wf[0][0]
            for th in range(2):
                A(f"v_cvt_pk_bf16_f32 v{d+2*th}, v{acce[th]}, v{acce[th]+1}")
                A(f"v_cvt_pk_bf16_f32 v{d+2*th+1}, v{acce[th]+2}, v{acce[th]+3}")
                A(f"buffer_store_dwordx2 v[{d+2*th}:{d+2*th+1}], v{vst}, s[{sWS}:{sWS+3}], s{sOutE} offen offset:{th*256}")
        elif extra == "V":
            d = wf[0][0]
            for k in range(2):
                A(f"v_cvt_pk_bf16_f32 v{d+2*k}, v{acce[k]}, v{acce[k]+1}")
                A(f"v_cvt_pk_bf16_f32 v{d+2*k+1}, v{acce[k]+2}, v{acce[k]+3}")
            A(f"buffer_store_dwordx4 v[{d}:{d+3}], v{vst}, s[{sWS}:{sWS+3}], s{sOutE} offen")
        A(f"s_branch L_{N}_done")

    A(f"""s_lshl_b32 s{sT0}, s{sCB}, 3
    s_lshl_b32 s{sT1}, s{sWave}, 1
    s_add_u32 s{sT0}, s{sT0}, s{sT1}        ; head0
    s_lshl_b32 s{sT0}, s{sT0}, 6
    s_lshl_b32 s{sT1}, s{sRB}, 2
    s_add_u32 s{sT0}, s{sT0}, s{sT1}        ; head0*64 + T0
    s_add_u32 s{sT1}, s{sT1}, s{sWave}
    s_lshl_b32 s{sOutE}, s{sT1}, 11
    s_add_u32 s{sOutE}, s{sOutE}, {WS_KA}
    s_mov_b32 s{sC+1}, s{sC}
    s_cmp_eq_u32 s{sType}, 0
    s_cbranch_scc1 L_{N}_cBQ
    s_cmp_eq_u32 s{sType}, 1
    s_cbranch_scc1 L_{N}_cBK
    s_cmp_eq_u32 s{sType}, 2
    s_cbranch_scc1 L_{N}_cBV
    s_lshl_b32 s{sOut}, s{sT0}, 11
    s_add_u32 s{sOut}, s{sOut}, {WS_QA}
    s_cmp_eq_u32 s{sType}, 3
    s_cbranch_scc1 L_{N}_cAK
    s_lshl_b32 s{sT1}, s{sEo}, 3
    s_add_u32 s{sOutE}, s{sOutE}, s{sT1}
    s_add_u32 s{sOutE}, s{sOutE}, {WS_VA-WS_KA}""")
    compute("av", False, "V"); epilogue("Q", "V")
    A(f"""L_{N}_cAK:
    s_lshr_b32 s{sT1}, s{sEo}, 2
    s_add_u32 s{sOutE}, s{sOutE}, s{sT1}""")
    compute("ak", False, "K"); epilogue("Q", "K")
    A(f"""L_{N}_cBQ:
    s_lshl_b32 s{sOut}, s{sT0}, 11
    s_add_u32 s{sOut}, s{sOut}, {WS_QB}""")
    A(f"s_branch L_{N}_cBQK")
    A(f"""L_{N}_cBK:
    s_lshl_b32 s{sOut}, s{sT0}, 11
    s_add_u32 s{sOut}, s{sOut}, {WS_KB}
    L_{N}_cBQK:""")
    compute("bqk", False, None)
    A(f"""s_cmp_eq_u32 s{sType}, 1
    s_cbranch_scc1 L_{N}_eBK""")
    epilogue("Q", None)
    A(f"L_{N}_eBK:")
    epilogue("K", None)
    A(f"""L_{N}_cBV:
    s_lshl_b32 s{sOut}, s{sT0}, 11
    s_add_u32 s{sOut}, s{sOut}, {WS_VB}""")
    compute("bv", True, None); epilogue("V", None)

    A(f"L_{N}_loader:")
    A(f"s_sub_u32 s{sWave}, s{sWave}, 4")
    for i in range(4):
        A(f"""s_lshl_b32 s{sT0}, s{sWave}, 5
        s_add_u32 s{sT0}, s{sT0}, {8*i}
        v_lshrrev_b32 v{vt0}, 3, v{l}
        v_add_u32 v{vt0}, s{sT0}, v{vt0}       ; row
        v_bfe_u32 v{vt1}, v{vt0}, 1, 3
        v_bfe_u32 v{vt2}, v{vt0}, 4, 1
        v_lshlrev_b32 v{vt2}, 2, v{vt2}
        v_xor_b32 v{vt1}, v{vt1}, v{vt2}
        v_and_b32 v{vt2}, 7, v{l}
        v_xor_b32 v{vt1}, v{vt1}, v{vt2}
        v_lshlrev_b32 v{vt1}, 4, v{vt1}
        v_lshl_add_u32 v{vLX[i]}, v{vt0}, 11, v{vt1}""")
    for i in range(8):
        A(f"""s_lshl_b32 s{sT0}, s{sWave}, 4
        s_add_u32 s{sT0}, s{sT0}, {2*i}       ; k base
        v_lshrrev_b32 v{vt0}, 5, v{l}
        v_add_u32 v{vt0}, s{sT0}, v{vt0}       ; k
        v_and_b32 v{vt1}, 3, v{vt0}
        v_bfe_u32 v{vt2}, v{vt0}, 3, 1
        v_lshl_or_b32 v{vt1}, v{vt2}, 2, v{vt1}
        v_lshlrev_b32 v{vt1}, 1, v{vt1}        ; f
        v_and_b32 v{vt2}, 31, v{l}
        v_xor_b32 v{vt1}, v{vt1}, v{vt2}
        v_lshlrev_b32 v{vt1}, 4, v{vt1}
        v_mul_lo_u32 v{vt0}, v{vt0}, s{sLdw}
        v_add_u32 v{vLW[i]}, v{vt0}, v{vt1}""")
    A(f"""s_lshl_b32 s{sT0}, s{sWave}, 4
    v_lshrrev_b32 v{vt0}, 1, v{l}
    v_and_b32 v{vt0}, 15, v{vt0}
    v_add_u32 v{vt0}, s{sT0}, v{vt0}           ; position p
    v_lshrrev_b32 v{vt1}, 1, v{vt0}
    v_and_b32 v{vt1}, 4, v{vt1}
    v_xor_b32 v{vt0}, v{vt0}, v{vt1}
    v_and_b32 v{vt1}, 1, v{l}
    v_lshlrev_b32 v{vt1}, 4, v{vt1}
    v_lshl_add_u32 v{vLE}, v{vt0}, 6, v{vt1}
    v_add_u32 v{vLE}, s{sEo}, v{vLE}
    s_mov_b32 s{sXo}, 0
    s_mov_b32 s{sWo}, 0
    s_mov_b32 s{sEo}, 0
    s_lshl_b32 s{sWstep}, s{sLdw}, 6
    s_lshl_b32 s{sM0x}, s{sWave}, 12
    s_lshl_b32 s{sM0w}, s{sWave}, 13
    s_add_u32 s{sM0w}, s{sM0w}, {WOFF}
    s_lshl_b32 s{sM0e}, s{sWave}, 9
    s_add_u32 s{sM0e}, s{sM0e}, {EOFF}
    s_mov_b32 s{sSlot}, 0
    s_cmp_ge_u32 s{sType}, 3
    s_cbranch_scc1 L_{N}_ldA""")
    def dma(extra):
        A(f"s_add_u32 m0, s{sSlot}, s{sM0x}")
        for i in range(4):
            A("s_nop 0" if i == 0 else "s_add_u32 m0, m0, 1024")
            if i: A("s_nop 0")
            A(f"buffer_load_dwordx4 v{vLX[i]}, s[{sX}:{sX+3}], s{sXo} offen lds")
        A(f"s_add_u32 m0, s{sSlot}, s{sM0w}")
        for i in range(8):
            A("s_nop 0" if i == 0 else "s_add_u32 m0, m0, 1024")
            if i: A("s_nop 0")
            A(f"buffer_load_dwordx4 v{vLW[i]}, s[{sWd}:{sWd+3}], s{sWo} offen lds")
        if extra:
            A(f"s_add_u32 m0, s{sSlot}, s{sM0e}")
            A("s_mov_b32 exec_hi, 0")
            A(f"buffer_load_dwordx4 v{vLE}, s[{sE}:{sE+3}], s{sEo} offen lds")
            A("s_mov_b32 exec_hi, -1")
            A(f"s_add_u32 s{sEo}, s{sEo}, 4096")
        A(f"""s_add_u32 s{sXo}, s{sXo}, 128
        s_add_u32 s{sWo}, s{sWo}, s{sWstep}
        s_add_u32 s{sSlot}, s{sSlot}, {SLOT}
        s_cmp_eq_u32 s{sSlot}, {3*SLOT}
        s_cselect_b32 s{sSlot}, 0, s{sSlot}""")
    for tag, extra in (("ldB", False), ("ldA", True)):
        PER = 13 if extra else 12
        if tag == "ldA": A(f"L_{N}_ldA:")
        dma(extra)
        A(f"s_waitcnt vmcnt(0)\ns_barrier")
        dma(extra); dma(extra)
        A(f"s_mov_b32 s{sCnt}, {NST-3}")
        A(f"L_{N}_{tag}_loop:")
        A(f"s_waitcnt vmcnt({PER})\ns_barrier")
        dma(extra)
        A(f"""s_sub_u32 s{sCnt}, s{sCnt}, 1
        s_cmp_lg_u32 s{sCnt}, 0
        s_cbranch_scc1 L_{N}_{tag}_loop
        s_waitcnt vmcnt({PER})
        s_barrier
        s_waitcnt vmcnt(0)
        s_barrier
        s_branch L_{N}_lend""")
    A(f"L_{N}_done:")
    if o.get("stamp"):
        A(f"""s_memtime s[64:65]
        s_memrealtime s[66:67]
        s_waitcnt lgkmcnt(0)
        s_sub_u32 s64, s64, s60
        s_sub_u32 s66, s66, s62
        s_lshl_b32 s68, s2, 3
        s_add_u32 s68, s68, s{sWave}
        s_lshl_b32 s68, s68, 4
        s_add_u32 s68, s68, {WS_END}
        v_mov_b32 v{xs[0]}, s64
        v_mov_b32 v{xs[0]+1}, s66
        v_mov_b32 v{xs[0]+2}, s62
        s_sub_u32 s70, s70, s60
        s_sub_u32 s72, s72, s60
        s_lshr_b32 s70, s70, 2
        s_lshr_b32 s72, s72, 2
        s_lshl_b32 s72, s72, 16
        s_or_b32 s70, s70, s72
        v_mov_b32 v{xs[0]+3}, s70
        v_mov_b32 v{vt0}, 0
        buffer_store_dwordx4 v[{xs[0]}:{xs[0]+3}], v{vt0}, s[{sWS}:{sWS+3}], s68 offen""")
    A(f"""s_waitcnt vmcnt(0)
    L_{N}_lend:
    L_{N}_end:
    s_endpgm""")
    return A.text() + kernel_desc(name, nv), dict(name=name, grid=256, block=512, lds=3*SLOT, nv=nv)

if __name__ == "__main__":
    import hz
    from build import build
    t, i = gen_proj(opts=dict(stamp=True))
    print(i)
    ps = hz.check_hazards(t)
    for p in ps[:30]: print(p)
    ws = hz.check_waits(t, i["name"], max_back=1)
    for p in ws[:30]: print(p)
    print(len(ps), len(ws))
    build([(t, i)], "proj_only.s")
```

```python
import sys; sys.path.insert(0,"dev")
from build import build
import hz, importlib
import proj, attn, oproj
def make(path, stamp=False, po=None, ao=None, oo=None, check=True):
    po = dict(po or {}); ao = dict(ao or {}); oo = dict(oo or {})
    if stamp: po["stamp"] = ao["stamp"] = oo["stamp"] = True
    parts = [proj.gen_proj(opts=po), attn.gen_attn(opts=ao), oproj.gen_oproj(opts=oo)]
    if check:
        for t, i in parts:
            ps = hz.check_hazards(t); ws = hz.check_waits(t, i["name"], max_back=1)
            for p in (ps + ws)[:20]: print("!!", p)
            print(i, "hazards", len(ps), "waits", len(ws))
    build(parts, path)
if __name__ == "__main__":
    make("concat_heads__grouped_kv_mqa__mha_block__prompt.s")
    make("all_stamp.s", stamp=True, check=False)
```

```python
from kgen import *

def gen_attn(name="attn_kernel", NSLOT=4, TPC=4, opts=None):
    o = opts or {}
    A = Asm()
    CH = TPC * 4096
    NCH = 64 // TPC
    FLAG = NSLOT * CH
    va = VAlloc(0)
    vtid = va.get("tid")
    vl16 = va.get("l16")
    vcur = va.get("cur"); vnxt = va.get("nxt")
    vdma = va.get("dma")
    vt0 = va.get("t0", 1, 4); vt1 = va.get("t1"); vt2 = va.get("t2"); vt3 = va.get("t3")
    vidx = va.get("idx")
    vm = [va.get("m0"), va.get("m1")]
    val = va.get("alpha")
    vdum = va.get("dummy")
    vsel = va.get("sel", 4, 4)
    Q = [[va.get(f"q{i}{h}", 4, 4) for h in range(2)] for i in range(2)]
    O = [va.get(f"o{i}", 16, 4) for i in range(2)]
    L = [va.get(f"l{i}", 4, 4) for i in range(2)]
    S = [va.get(f"s{i}", 16, 4) for i in range(2)]
    P = [va.get(f"p{i}", 8, 4) for i in range(2)]
    K = [va.get(f"k{i}", 8, 4) for i in range(2)]
    V = [va.get(f"v{i}", 8, 4) for i in range(2)]
    nv = va.next
    sWS, sKV, sW = 4, 8, 12
    sWave, sSoff, sM0, sCnt, sQ, sO, sNxt, sMode, sT0, sT1 = 16, 17, 18, 19, 20, 21, 22, 23, 24, 25
    sT2, sT3 = 26, 27

    A.raw(kernel_head(name).rstrip("\n"))
    A(f"""s_cmp_ge_u32 s2, 256
    s_cbranch_scc1 L_{name}_end
    s_load_dwordx2 s[{sWS}:{sWS+1}], s[0:1], {KA_WS}
    v_lshrrev_b32 v{vt0}, 6, v{vtid}
    v_and_b32 v{vl16}, 63, v{vtid}
    v_readfirstlane_b32 s{sWave}, v{vt0}
    v_lshlrev_b32 v{vl16}, 4, v{vl16}
    s_and_b32 s{sT0}, s2, 7
    s_lshr_b32 s{sT1}, s2, 3
    s_lshl_b32 s{sT0}, s{sT0}, 3
    s_lshr_b32 s{sT2}, s{sT1}, 2
    s_add_u32 s{sT0}, s{sT0}, s{sT2}      ; bh
    s_and_b32 s{sT1}, s{sT1}, 3           ; qb
    s_and_b32 s{sT2}, s{sT0}, 31          ; head
    s_lshr_b32 s{sT0}, s{sT0}, 5          ; branch
    s_lshl_b32 s{sT1}, s{sT1}, 4
    s_lshl_b32 s{sT3}, s{sWave}, 1
    s_add_u32 s{sT1}, s{sT1}, s{sT3}
    s_lshl_b32 s{sQ}, s{sT2}, 6
    s_add_u32 s{sQ}, s{sQ}, s{sT1}
    s_lshl_b32 s{sQ}, s{sQ}, 11           ; (head*64+T)*2048
    s_lshl_b32 s{sO}, s{sT1}, 5
    s_add_u32 s{sO}, s{sO}, s{sT2}
    s_lshl_b32 s{sO}, s{sO}, 11           ; (T*32+head)*2048
    s_mul_i32 s{sT3}, s{sT0}, {WS_QB-WS_QA}
    s_add_u32 s{sQ}, s{sQ}, s{sT3}
    s_add_u32 s{sO}, s{sO}, s{sT3}
    s_add_u32 s{sO}, s{sO}, {WS_OA}
    s_lshl_b32 s{sT2}, s{sT2}, 17         ; head*128KB
    s_add_u32 s{sT2}, s{sT2}, {WS_KB}
    s_cmp_eq_u32 s{sT0}, 0
    s_cselect_b32 s{sT2}, {WS_KA}, s{sT2}
    s_mov_b32 s{sT3}, {WS_VB-WS_KB}
    s_cselect_b32 s{sT3}, {WS_VA-WS_KA}, s{sT3}
    s_cmp_ge_u32 s{sWave}, 4
    s_cselect_b32 s{sT3}, s{sT3}, 0
    s_add_u32 s{sT2}, s{sT2}, s{sT3}
    s_waitcnt lgkmcnt(0)
    s_add_u32 s{sKV}, s{sWS}, s{sT2}
    s_addc_u32 s{sKV+1}, s{sWS+1}, 0
    s_and_b32 s{sKV+1}, s{sKV+1}, 0xffff
    s_mov_b32 s{sKV+2}, 131072
    s_mov_b32 s{sKV+3}, 0x20000
    s_mov_b32 s{sW}, s{sWS}
    s_and_b32 s{sW+1}, s{sWS+1}, 0xffff
    s_mov_b32 s{sW+2}, {WS_END}
    s_mov_b32 s{sW+3}, 0x20000
    """)
    assert WS_OB - WS_OA == WS_QB - WS_QA
    if o.get("stamp"): A("s_memtime s[40:41]\ns_memrealtime s[42:43]\ns_waitcnt lgkmcnt(0)")
    A(f"""buffer_load_dwordx4 v[{Q[0][0]}:{Q[0][0]+3}], v{vl16}, s[{sW}:{sW+3}], s{sQ} offen
    buffer_load_dwordx4 v[{Q[0][1]}:{Q[0][1]+3}], v{vl16}, s[{sW}:{sW+3}], s{sQ} offen offset:1024
    buffer_load_dwordx4 v[{Q[1][0]}:{Q[1][0]+3}], v{vl16}, s[{sW}:{sW+3}], s{sQ} offen offset:2048
    buffer_load_dwordx4 v[{Q[1][1]}:{Q[1][1]+3}], v{vl16}, s[{sW}:{sW+3}], s{sQ} offen offset:3072
    """)
    PER = CH // 8 // 1024
    A(f"""s_mul_i32 s{sT0}, s{sWave}, {PER*1024}
    s_and_b32 s{sT1}, s{sWave}, 3
    s_mul_i32 s{sT1}, s{sT1}, {PER*1024}
    v_add_u32 v{vdma}, s{sT1}, v{vl16}
    s_mov_b32 s{sM0}, s{sT0}
    s_mov_b32 s{sSoff}, 0""")
    def dma():
        A(f"s_mov_b32 m0, s{sM0}")
        A(f"s_add_u32 s{sM0}, s{sM0}, {CH}")
        for i in range(PER):
            A(f"buffer_load_dwordx4 v{vdma}, s[{sKV}:{sKV+3}], s{sSoff} offen offset:{i*1024} lds")
        A(f"s_add_u32 s{sSoff}, s{sSoff}, {CH//2}")
        A(f"s_cmp_ge_u32 s{sM0}, {NSLOT*CH}")
        A(f"s_cselect_b32 s{sT1}, {NSLOT*CH}, 0")
        A(f"s_sub_u32 s{sM0}, s{sM0}, s{sT1}")
    for c in range(NSLOT-1): dma()
    for i in range(2):
        for r in range(16): A(f"v_mov_b32 v{O[i]+r}, 0")
        for r in range(4): A(f"v_mov_b32 v{L[i]+r}, 0")
    for r in range(8):
        A(f"v_mov_b32 v{P[1]+r}, 0")
        A(f"v_mov_b32 v{V[1]+r}, 0")
    A(f"""v_lshrrev_b32 v{vt0}, 4, v{vl16}      ; lane
    v_and_b32 v{vt1}, 2, v{vt0}           ; r>=2 -> nonzero
    v_and_b32 v{vt2}, 4, v{vt0}           ; qhalf
    v_mov_b32 v{vt3}, 0x3f803f80
    v_cmp_eq_u32 vcc, 0, v{vt1}
    s_nop 1
    v_cndmask_b32 v{vt3}, 0, v{vt3}, vcc
    v_cmp_eq_u32 vcc, 0, v{vt2}
    s_nop 1
    v_cndmask_b32 v{vsel}, 0, v{vt3}, vcc
    v_cndmask_b32 v{vsel+1}, 0, v{vt3}, vcc
    v_cndmask_b32 v{vsel+2}, v{vt3}, 0, vcc
    v_cndmask_b32 v{vsel+3}, v{vt3}, 0, vcc
    v_and_b32 v{vt1}, 1, v{vt0}
    v_mov_b32 v{vt2}, 0x44444444
    v_mov_b32 v{vt3}, 0xeeeeeeee
    v_cmp_eq_u32 vcc, 0, v{vt1}
    s_nop 1
    v_cndmask_b32 v{vidx}, v{vt3}, v{vt2}, vcc
    v_mov_b32 v{vt0}, 0
    v_mov_b32 v{vt1}, {FLAG}
    ds_write_b32 v{vt1}, v{vt0}
    v_mov_b32 v{vcur}, v{vl16}
    v_add_u32 v{vnxt}, {CH}, v{vl16}
    s_mov_b32 s{sNxt}, {2*CH}
    s_mov_b32 s{sMode}, 0
    s_mov_b32 s{sCnt}, {NCH}
    s_waitcnt vmcnt({(NSLOT-2)*PER}) lgkmcnt(0)
    s_barrier
    """)
    def rdK(buf, base, t):
        A(f"ds_read_b128 v[{K[buf]}:{K[buf]+3}], v{base} offset:{t*2048}")
        A(f"ds_read_b128 v[{K[buf]+4}:{K[buf]+7}], v{base} offset:{t*2048+1024}")
    def rdV(buf, base, t):
        A(f"ds_read_b128 v[{V[buf]}:{V[buf]+3}], v{base} offset:{CH//2+t*2048}")
        A(f"ds_read_b128 v[{V[buf]+4}:{V[buf]+7}], v{base} offset:{CH//2+t*2048+1024}")
    def mf(d, a, b, c):
        cs = "0" if c is None else f"v[{c}:{c+15}]"
        return f"v_mfma_f32_32x32x16_bf16 v[{d}:{d+15}], v[{a}:{a+3}], v[{b}:{b+3}], {cs}"
    def sm(qi):
        return f"v_smfmac_f32_16x16x64_bf16 v[{L[qi]}:{L[qi]+3}], v[{vsel}:{vsel+3}], v[{P[qi]}:{P[qi]+7}], v{vidx}"
    if o.get("prefetch", True):
        sPW = 56
        A(f"""s_cmp_ge_u32 s{sWave}, 2
        s_cbranch_scc1 L_{name}_pfdone
        s_load_dwordx2 s[{sPW+4}:{sPW+5}], s[0:1], {KA_AWO}
        s_load_dwordx2 s[{sPW+6}:{sPW+7}], s[0:1], {KA_BWO}
        s_waitcnt lgkmcnt(0)
        s_cmp_eq_u32 s{sWave}, 0
        s_cselect_b32 s{sPW}, s{sPW+4}, s{sPW+6}
        s_cselect_b32 s{sPW+1}, s{sPW+5}, s{sPW+7}
        s_and_b32 s{sPW+1}, s{sPW+1}, 0xffff
        s_mov_b32 s{sPW+2}, {1024*2048}
        s_mov_b32 s{sPW+3}, 0x20000
        s_lshl_b32 s{sT0}, s2, 13
        v_lshlrev_b32 v{vt0}, 3, v{vl16}
        buffer_load_dword v{vdum}, v{vt0}, s[{sPW}:{sPW+3}], s{sT0} offen
        L_{name}_pfdone:""")
    rdK(0, vcur, 0); rdV(0, vcur, 0)
    A("s_waitcnt lgkmcnt(0)")
    A(mf(S[0], K[0], Q[0][0], None)); A(mf(S[0], K[0]+4, Q[0][1], S[0]))
    A("s_nop 7\ns_nop 3")
    if o.get("stamp"):
        A("s_memtime s[50:51]\ns_waitcnt lgkmcnt(0)")
    A(f".p2align 6\nL_{name}_loop:")
    for kt in range(TPC):
        for qi in range(2):
            if qi == 0: nk, nq = kt, 1
            else:       nk, nq = kt+1, 0
            pk, pq = (kt, 0) if qi == 1 else (kt-1, 1)
            e = lambda j: f"v_exp_f32 v{S[qi]+j}, v{S[qi]+j}"
            c = lambda j: f"v_cvt_pk_bf16_f32 v{P[qi]+j}, v{S[qi]+2*j}, v{S[qi]+2*j+1}"
            Kb = K[nk % 2]; Vb = V[pk % 2]
            pre = []; rd = []
            if qi == 1:
                pre.append("s_waitcnt lgkmcnt(0)")
            if qi == 0 and kt == TPC-1:
                pre.append(f"s_waitcnt vmcnt({(NSLOT-3)*PER})")
                pre.append("s_barrier")
            save = A.lines; A.lines = []
            if qi == 0:
                if kt+1 < TPC: rdK((kt+1) % 2, vcur, kt+1)
                else: rdK((kt+1) % 2, vnxt, 0)
            else:
                if kt+1 < TPC: rdV((kt+1) % 2, vcur, kt+1)
                else: rdV((kt+1) % 2, vnxt, 0)
            rd = [l.strip() for l in A.lines]; A.lines = save
            save = A.lines; A.lines = []
            if qi == 0 and kt == TPC-1: dma()
            dm = [l.strip() for l in A.lines]; A.lines = save
            pat = o.get("pat", "Q1 e R e e Q2 e R e c c P1 e D e e P2 e e c c S e e c e e c e e c c").split()
            seq = []; ne = nc = nr = 0
            seq += pre
            for tk in pat:
                if tk == "Q1": seq.append(mf(S[nq], Kb, Q[nq][0], None))
                elif tk == "Q2": seq.append(mf(S[nq], Kb+4, Q[nq][1], S[nq]))
                elif tk == "P1": seq.append(mf(O[pq], Vb, P[pq], O[pq]))
                elif tk == "P2": seq.append(mf(O[pq], Vb+4, P[pq]+4, O[pq]))
                elif tk == "S": seq.append(sm(pq))
                elif tk == "e": seq.append(e(ne)); ne += 1
                elif tk == "c": seq.append(c(nc)); assert 2*nc+1 < ne; nc += 1
                elif tk == "R": seq.append(rd[nr]); nr += 1
                elif tk == "D": seq += dm
                elif tk.startswith("p") : seq.append(f"s_setprio {tk[1:]}")
                elif tk == "n": seq.append("s_nop 0")
                else: raise Exception(tk)
            assert ne == 16 and nc == 8 and nr == 2
            ab = o.get("ablate", "")
            def keep(l):
                if "nosm" in ab and l.startswith("v_smfmac"): return False
                if "noexp" in ab and l.startswith("v_exp"): return False
                if "nocvt" in ab and l.startswith("v_cvt"): return False
                if "nolds" in ab and l.startswith("ds_read"): return False
                if "nowait" in ab and l.startswith("s_waitcnt lgkm"): return False
                if "nobar" in ab and l.startswith("s_barrier"): return False
                if "noqk" in ab and l.startswith(f"v_mfma_f32_32x32x16_bf16 v[{S[nq]}:"): return False
                if "nopv" in ab and l.startswith(f"v_mfma_f32_32x32x16_bf16 v[{O[pq]}:"): return False
                return True
            for l in seq:
                if "qk16" in ab and l.startswith(f"v_mfma_f32_32x32x16_bf16 v[{S[nq]}:"):
                    half = 0 if l.endswith(", 0") else 1
                    for z in range(2):
                        d = S[nq] + 8*half + 4*z
                        A(f"v_mfma_f32_16x16x32_bf16 v[{d}:{d+3}], v[{Kb+4*half}:{Kb+4*half+3}], v[{Q[nq][z]}:{Q[nq][z]+3}], 0")
                    continue
                if "pv16" in ab and l.startswith(f"v_mfma_f32_32x32x16_bf16 v[{O[pq]}:"):
                    half = 0 if f"v[{Vb}:" in l else 1
                    for z in range(2):
                        d = O[pq] + 8*half + 4*z
                        A(f"v_mfma_f32_16x16x32_bf16 v[{d}:{d+3}], v[{Vb+4*z}:{Vb+4*z+3}], v[{P[pq]+4*half}:{P[pq]+4*half+3}], v[{d}:{d+3}]")
                    continue
                if keep(l): A(l)
    A(f"""v_mov_b32 v{vcur}, v{vnxt}
    v_add_u32 v{vnxt}, s{sNxt}, v{vl16}
    s_add_u32 s{sNxt}, s{sNxt}, {CH}
    s_cmp_ge_u32 s{sNxt}, {NSLOT*CH}
    s_cselect_b32 s{sT1}, {NSLOT*CH}, 0
    s_sub_u32 s{sNxt}, s{sNxt}, s{sT1}
    s_sub_u32 s{sCnt}, s{sCnt}, 1
    s_cmp_lg_u32 s{sCnt}, 0
    s_cbranch_scc1 L_{name}_loop
    """)
    if o.get("stamp"):
        A("s_memtime s[52:53]\ns_waitcnt lgkmcnt(0)")
    Vb = V[(TPC-1) % 2]
    A("s_nop 1")
    A(mf(O[1], Vb, P[1], O[1])); A(mf(O[1], Vb+4, P[1]+4, O[1])); A(sm(1))
    A(f"L_{name}_fin:")
    A("s_nop 7\ns_nop 7")
    A(f"v_mov_b32 v{vt3}, 0")
    for qi in range(2):
        A(f"v_add_f32 v{vt0}, v{L[qi]}, v{L[qi]+1}")
        A(f"v_rcp_f32 v{vt1}, v{vt0}")
        A(f"v_cmp_nge_f32 vcc, v{vt0}, v{vt2}" if False else f"v_mov_b32 v{vt2}, 0x35800000")
        A(f"v_cmp_nle_f32 s[{sT2}:{sT3}], v{vt2}, v{vt0}")
        A(f"v_mov_b32 v{vt2}, 0x71800000")
        A(f"v_cmp_nle_f32 vcc, v{vt0}, v{vt2}")
        A("s_nop 3")
        A(f"s_or_b64 vcc, vcc, s[{sT2}:{sT3}]")
        A(f"s_cmp_lg_u64 vcc, 0")
        A(f"s_cselect_b32 s{sT0}, 1, 0")
        if qi == 0: A(f"s_mov_b32 s{sCnt}, s{sT0}")
        else: A(f"s_or_b32 s{sCnt}, s{sCnt}, s{sT0}")
        for r in range(16):
            A(f"v_mul_f32 v{O[qi]+r}, v{O[qi]+r}, v{vt1}")
        for r in range(16):
            A(f"v_fma_f32 v{vt3}, v{O[qi]+r}, 0, v{vt3}")
        for j in range(8):
            A(f"v_cvt_pk_bf16_f32 v{S[qi]+j}, v{O[qi]+2*j}, v{O[qi]+2*j+1}")
        A(f"buffer_store_dwordx4 v[{S[qi]}:{S[qi]+3}], v{vl16}, s[{sW}:{sW+3}], s{sO} offen offset:0")
        A(f"buffer_store_dwordx4 v[{S[qi]+4}:{S[qi]+7}], v{vl16}, s[{sW}:{sW+3}], s{sO} offen offset:1024")
        if qi == 0: A(f"s_add_u32 s{sO}, s{sO}, 65536")
    A(f"s_sub_u32 s{sO}, s{sO}, 65536")
    A(f"""v_cmp_u_f32 vcc, v{vt3}, v{vt3}
    s_nop 3
    s_cmp_lg_u64 vcc, 0
    s_cselect_b32 s{sT0}, 1, 0
    s_or_b32 s{sCnt}, s{sCnt}, s{sT0}
    s_cmp_eq_u32 s{sMode}, 1
    s_cbranch_scc1 L_{name}_done
    v_mov_b32 v{vt0}, s{sCnt}
    v_mov_b32 v{vt1}, {FLAG}
    ds_or_b32 v{vt1}, v{vt0}
    s_waitcnt lgkmcnt(0)
    s_barrier
    ds_read_b32 v{vt0}, v{vt1}
    s_waitcnt lgkmcnt(0)
    v_readfirstlane_b32 s{sT0}, v{vt0}
    s_nop 3
    s_cmp_eq_u32 s{sT0}, 0
    s_cbranch_scc1 L_{name}_done
    """)
    A(f"""s_waitcnt vmcnt(0)
    s_mov_b32 s{sMode}, 1
    s_mov_b32 s{sCnt}, {NCH}
    s_mov_b32 s{sSoff}, 0
    """)
    for i in range(2):
        for r in range(16): A(f"v_mov_b32 v{O[i]+r}, 0")
        for r in range(4): A(f"v_mov_b32 v{L[i]+r}, 0")
        A(f"v_mov_b32 v{vm[i]}, 0xff7fffff")
    A(f"L_{name}_slow:")
    A(f"s_barrier")
    A(f"s_mul_i32 s{sT0}, s{sWave}, {PER*1024}")
    A(f"s_mov_b32 m0, s{sT0}")
    A("s_nop 0")
    for i in range(PER):
        A(f"buffer_load_dwordx4 v{vdma}, s[{sKV}:{sKV+3}], s{sSoff} offen offset:{i*1024} lds")
    A(f"""s_add_u32 s{sSoff}, s{sSoff}, {CH//2}
    s_waitcnt vmcnt(0)
    s_barrier
    v_mov_b32 v{vcur}, v{vl16}
    s_mov_b32 s{sNxt}, {TPC}
    L_{name}_slowt:""")
    rdK(0, vcur, 0); rdV(0, vcur, 0)
    A(f"v_add_u32 v{vcur}, 2048, v{vcur}")
    A("s_waitcnt lgkmcnt(0)")
    for qi in range(2):
        s = S[0]
        A(mf(s, K[0], Q[qi][0], None)); A(mf(s, K[0]+4, Q[qi][1], s))
        A("s_nop 7\ns_nop 3")
        A(f"v_max3_f32 v{vt0}, v{s}, v{s+1}, v{s+2}")
        for j in range(3, 15, 2): A(f"v_max3_f32 v{vt0}, v{vt0}, v{s+j}, v{s+j+1}")
        A(f"v_max_f32 v{vt0}, v{vt0}, v{s+15}")
        A(f"v_mov_b32 v{vt1}, v{vt0}")
        A("s_nop 1")
        A(f"v_permlane32_swap_b32 v{vt0}, v{vt1}")
        A(f"v_max3_f32 v{vt0}, v{vt0}, v{vt1}, v{vm[qi]}")
        A(f"v_sub_f32 v{val}, v{vm[qi]}, v{vt0}")
        A(f"v_exp_f32 v{val}, v{val}")
        A(f"v_mov_b32 v{vm[qi]}, v{vt0}")
        for r in range(16): A(f"v_sub_f32 v{s+r}, v{s+r}, v{vt0}")
        for r in range(16): A(f"v_exp_f32 v{s+r}, v{s+r}")
        for r in range(16): A(f"v_mul_f32 v{O[qi]+r}, v{O[qi]+r}, v{val}")
        for r in range(2): A(f"v_mul_f32 v{L[qi]+r}, v{L[qi]+r}, v{val}")
        for j in range(8): A(f"v_cvt_pk_bf16_f32 v{P[qi]+j}, v{s+2*j}, v{s+2*j+1}")
        A("s_nop 1")
        A(mf(O[qi], V[0], P[qi], O[qi])); A(mf(O[qi], V[0]+4, P[qi]+4, O[qi])); A(sm(qi))
        A("s_nop 7\ns_nop 7")
    A(f"""s_sub_u32 s{sNxt}, s{sNxt}, 1
    s_cmp_lg_u32 s{sNxt}, 0
    s_cbranch_scc1 L_{name}_slowt
    s_sub_u32 s{sCnt}, s{sCnt}, 1
    s_cmp_lg_u32 s{sCnt}, 0
    s_cbranch_scc1 L_{name}_slow
    s_branch L_{name}_fin
    L_{name}_done:""")
    if o.get("stamp"):
        A(f"""s_memtime s[44:45]
        s_memrealtime s[46:47]
        s_waitcnt lgkmcnt(0)
        s_sub_u32 s44, s44, s40
        s_sub_u32 s46, s46, s42
        s_sub_u32 s50, s50, s40
        s_sub_u32 s52, s52, s40
        s_lshr_b32 s50, s50, 2
        s_lshr_b32 s52, s52, 2
        s_lshl_b32 s52, s52, 16
        s_or_b32 s50, s50, s52
        s_lshl_b32 s48, s2, 3
        s_add_u32 s48, s48, s{sWave}
        s_lshl_b32 s48, s48, 4
        s_add_u32 s48, s48, {WS_END+65536}
        v_mov_b32 v{vt0}, s44
        v_mov_b32 v{vt1}, s46
        v_mov_b32 v{vt2}, s42
        v_mov_b32 v{vt3}, s50
        v_mov_b32 v{val}, 0
        s_mov_b32 s{sW+2}, {WS_END + 262144}
        buffer_store_dwordx4 v[{vt0}:{vt0+3}], v{val}, s[{sW}:{sW+3}], s48 offen""")
    A(f"""s_waitcnt vmcnt(0)
    L_{name}_end:
    s_endpgm""")
    txt = A.text() + kernel_desc(name, nv)
    return txt, dict(name=name, grid=256, block=512, lds=NSLOT*CH + 64, nv=nv)
```

```python
from kgen import *

def gen_attn2(name="attn_kernel", NSLOT=3, TPC=8, opts=None):
    o = opts or {}
    A = Asm()
    NQ = 4
    CH = TPC * 4096
    NCH = 64 // TPC
    FLAG = NSLOT * CH
    va = VAlloc(0)
    vtid = va.get("tid")
    vl16 = va.get("l16")
    vcur = va.get("cur"); vnxt = va.get("nxt")
    vt0 = va.get("t0", 1, 4); vt1 = va.get("t1"); vt2 = va.get("t2"); vt3 = va.get("t3")
    vidx = va.get("idx")
    val = va.get("alpha")
    vdum = va.get("dummy")
    vm = [va.get(f"m{i}") for i in range(NQ)]
    vsel = va.get("sel", 4, 4)
    Q = [[va.get(f"q{i}{h}", 4, 4) for h in range(2)] for i in range(NQ)]
    O = [va.get(f"o{i}", 16, 4) for i in range(NQ)]
    L = [va.get(f"l{i}", 4, 4) for i in range(NQ)]
    S = [va.get(f"s{i}", 16, 4) for i in range(2)]
    P = [va.get(f"p{i}", 8, 4) for i in range(2)]
    K = [va.get(f"k{i}", 8, 4) for i in range(2)]
    V = [va.get(f"v{i}", 8, 4) for i in range(2)]
    nv = va.next
    vdma = Q[0][0]
    sWS, sKV, sW = 4, 8, 12
    sWave, sSoff, sM0, sCnt, sQ, sO, sNxt, sMode, sT0, sT1 = 16, 17, 18, 19, 20, 21, 22, 23, 24, 25
    sT2, sT3 = 26, 27
    N = name
    PER = CH // 4 // 1024
    A.raw(kernel_head(name).rstrip("\n"))
    if o.get("stamp"): A("s_memtime s[40:41]\ns_memrealtime s[42:43]")
    A(f"""s_cmp_ge_u32 s2, 256
    s_cbranch_scc1 L_{N}_end
    s_load_dwordx2 s[{sWS}:{sWS+1}], s[0:1], {KA_WS}
    v_lshrrev_b32 v{vt0}, 6, v{vtid}
    v_and_b32 v{vl16}, 63, v{vtid}
    v_readfirstlane_b32 s{sWave}, v{vt0}
    v_lshlrev_b32 v{vl16}, 4, v{vl16}
    s_and_b32 s{sT0}, s2, 7
    s_lshr_b32 s{sT1}, s2, 3
    s_lshl_b32 s{sT0}, s{sT0}, 3
    s_lshr_b32 s{sT2}, s{sT1}, 2
    s_add_u32 s{sT0}, s{sT0}, s{sT2}      ; bh
    s_and_b32 s{sT1}, s{sT1}, 3           ; qb
    s_and_b32 s{sT2}, s{sT0}, 31          ; head
    s_lshr_b32 s{sT0}, s{sT0}, 5          ; branch
    s_cmp_lt_u32 s{sWave}, 4
    s_cbranch_scc1 L_{N}_compute""")
    A(f"""L_{N}_loader:
    s_sub_u32 s{sWave}, s{sWave}, 4
    s_lshl_b32 s{sT2}, s{sT2}, 17         ; head*128KB
    s_add_u32 s{sT2}, s{sT2}, {WS_KB}
    s_cmp_eq_u32 s{sT0}, 0
    s_cselect_b32 s{sT2}, {WS_KA}, s{sT2}
    s_mov_b32 s{sT3}, {WS_VB-WS_KB}
    s_cselect_b32 s{sT3}, {WS_VA-WS_KA}, s{sT3}
    s_cmp_ge_u32 s{sWave}, 2
    s_cselect_b32 s{sT3}, s{sT3}, 0
    s_add_u32 s{sT2}, s{sT2}, s{sT3}
    s_and_b32 s{sT1}, s{sWave}, 1
    s_mul_i32 s{sT1}, s{sT1}, {PER*1024}
    v_add_u32 v{vdma}, s{sT1}, v{vl16}
    s_mul_i32 s{sM0}, s{sWave}, {PER*1024}
    s_mov_b32 s{sQ}, s{sM0}
    s_mov_b32 s{sSoff}, 0
    s_waitcnt lgkmcnt(0)
    s_add_u32 s{sKV}, s{sWS}, s{sT2}
    s_addc_u32 s{sKV+1}, s{sWS+1}, 0
    s_and_b32 s{sKV+1}, s{sKV+1}, 0xffff
    s_mov_b32 s{sKV+2}, 131072
    s_mov_b32 s{sKV+3}, 0x20000
    """)
    def dma(rot=True):
        A(f"s_mov_b32 m0, s{sM0}")
        if rot: A(f"s_add_u32 s{sM0}, s{sM0}, {CH}")
        else: A("s_nop 0")
        for i in range(PER):
            if i == 4:
                A("s_add_u32 m0, m0, 4096")
                A(f"s_add_u32 s{sT3}, s{sSoff}, 4096")
            A(f"buffer_load_dwordx4 v{vdma}, s[{sKV}:{sKV+3}], s{sSoff if i < 4 else sT3} offen offset:{(i&3)*1024} lds")
        A(f"s_add_u32 s{sSoff}, s{sSoff}, {CH//2}")
        if rot:
            A(f"s_cmp_ge_u32 s{sM0}, {NSLOT*CH}")
            A(f"s_cselect_b32 s{sT1}, {NSLOT*CH}, 0")
            A(f"s_sub_u32 s{sM0}, s{sM0}, s{sT1}")
    dma()
    A(f"""v_mov_b32 v{vt0}, 0
    v_mov_b32 v{vt1}, {FLAG}
    ds_write_b32 v{vt1}, v{vt0}
    s_waitcnt vmcnt(0) lgkmcnt(0)
    s_barrier""")
    for c in range(NSLOT-2): dma()
    if o.get("prefetch", True):
        sPW = 56
        A(f"""s_cmp_ge_u32 s{sWave}, 2
        s_cbranch_scc1 L_{N}_pfdone
        s_load_dwordx2 s[{sPW+4}:{sPW+5}], s[0:1], {KA_AWO}
        s_load_dwordx2 s[{sPW+6}:{sPW+7}], s[0:1], {KA_BWO}
        s_waitcnt lgkmcnt(0)
        s_cmp_eq_u32 s{sWave}, 0
        s_cselect_b32 s{sPW}, s{sPW+4}, s{sPW+6}
        s_cselect_b32 s{sPW+1}, s{sPW+5}, s{sPW+7}
        s_and_b32 s{sPW+1}, s{sPW+1}, 0xffff
        s_mov_b32 s{sPW+2}, {1024*2048}
        s_mov_b32 s{sPW+3}, 0x20000
        s_lshl_b32 s{sT0}, s2, 13
        v_lshlrev_b32 v{vt0}, 3, v{vl16}
        buffer_load_dword v{vdum}, v{vt0}, s[{sPW}:{sPW+3}], s{sT0} offen
        L_{N}_pfdone:""")
    A(f"s_mov_b32 s{sCnt}, {NCH}")
    A(f"""L_{N}_ldloop:
    s_waitcnt vmcnt({(NSLOT-3)*PER})
    {"s_nop 0" if "nobar" in o.get("ablate","") else "s_barrier"}""")
    dma()
    A(f"""s_sub_u32 s{sCnt}, s{sCnt}, 1
    s_cmp_lg_u32 s{sCnt}, 0
    s_cbranch_scc1 L_{N}_ldloop
    s_waitcnt vmcnt(0)
    s_barrier
    v_mov_b32 v{vt1}, {FLAG}
    ds_read_b32 v{vt0}, v{vt1}
    s_waitcnt lgkmcnt(0)
    v_readfirstlane_b32 s{sT0}, v{vt0}
    s_nop 3
    s_cmp_eq_u32 s{sT0}, 0
    s_cbranch_scc1 L_{N}_end
    s_mov_b32 s{sCnt}, {NCH}
    s_mov_b32 s{sSoff}, 0
    s_mov_b32 s{sM0}, s{sQ}
    L_{N}_ldslow:
    s_barrier""")
    dma(rot=False)
    A(f"""s_waitcnt vmcnt(0)
    s_barrier
    s_sub_u32 s{sCnt}, s{sCnt}, 1
    s_cmp_lg_u32 s{sCnt}, 0
    s_cbranch_scc1 L_{N}_ldslow
    s_branch L_{N}_end
""")
    A(f"""L_{N}_compute:
    s_lshl_b32 s{sT1}, s{sT1}, 4
    s_lshl_b32 s{sT3}, s{sWave}, 2
    s_add_u32 s{sT1}, s{sT1}, s{sT3}
    s_lshl_b32 s{sQ}, s{sT2}, 6
    s_add_u32 s{sQ}, s{sQ}, s{sT1}
    s_lshl_b32 s{sQ}, s{sQ}, 11           ; (head*64+T)*2048
    s_lshl_b32 s{sO}, s{sT1}, 5
    s_add_u32 s{sO}, s{sO}, s{sT2}
    s_lshl_b32 s{sO}, s{sO}, 11           ; (T*32+head)*2048
    s_mul_i32 s{sT3}, s{sT0}, {WS_QB-WS_QA}
    s_add_u32 s{sQ}, s{sQ}, s{sT3}
    s_add_u32 s{sO}, s{sO}, s{sT3}
    s_add_u32 s{sO}, s{sO}, {WS_OA}
    s_waitcnt lgkmcnt(0)
    s_mov_b32 s{sW}, s{sWS}
    s_and_b32 s{sW+1}, s{sWS+1}, 0xffff
    s_mov_b32 s{sW+2}, {WS_END + (262144 if o.get('stamp') else 0)}
    s_mov_b32 s{sW+3}, 0x20000
    """)
    assert WS_OB - WS_OA == WS_QB - WS_QA
    for i in range(NQ):
        if i == 2: A(f"s_add_u32 s{sQ}, s{sQ}, 4096")
        for h in range(2):
            A(f"buffer_load_dwordx4 v[{Q[i][h]}:{Q[i][h]+3}], v{vl16}, s[{sW}:{sW+3}], s{sQ} offen offset:{(i&1)*2048+h*1024}")
    def init_acc():
        for i in range(NQ):
            for r in range(16): A(f"v_mov_b32 v{O[i]+r}, 0")
            for r in range(2): A(f"v_mov_b32 v{L[i]+r}, 0")
    init_acc()
    for i in range(NQ):
        for r in range(2,4): A(f"v_mov_b32 v{L[i]+r}, 0")
    for r in range(8):
        A(f"v_mov_b32 v{P[1]+r}, 0")
        A(f"v_mov_b32 v{V[1]+r}, 0")
    A(f"""v_lshrrev_b32 v{vt0}, 4, v{vl16}      ; lane
    v_and_b32 v{vt1}, 2, v{vt0}           ; r>=2 -> nonzero
    v_and_b32 v{vt2}, 4, v{vt0}           ; qhalf
    v_mov_b32 v{vt3}, 0x3f803f80
    v_cmp_eq_u32 vcc, 0, v{vt1}
    s_nop 1
    v_cndmask_b32 v{vt3}, 0, v{vt3}, vcc
    v_cmp_eq_u32 vcc, 0, v{vt2}
    s_nop 1
    v_cndmask_b32 v{vsel}, 0, v{vt3}, vcc
    v_cndmask_b32 v{vsel+1}, 0, v{vt3}, vcc
    v_cndmask_b32 v{vsel+2}, v{vt3}, 0, vcc
    v_cndmask_b32 v{vsel+3}, v{vt3}, 0, vcc
    v_and_b32 v{vt1}, 1, v{vt0}
    v_mov_b32 v{vt2}, 0x44444444
    v_mov_b32 v{vt3}, 0xeeeeeeee
    v_cmp_eq_u32 vcc, 0, v{vt1}
    s_nop 1
    v_cndmask_b32 v{vidx}, v{vt3}, v{vt2}, vcc
    v_mov_b32 v{vcur}, v{vl16}
    v_add_u32 v{vnxt}, {CH}, v{vl16}
    s_mov_b32 s{sNxt}, {2*CH}
    s_mov_b32 s{sMode}, 0
    s_mov_b32 s{sCnt}, {NCH}
    s_waitcnt vmcnt(0)
    s_barrier
    """)
    def rK(buf, base, t, h): return f"ds_read_b128 v[{K[buf]+4*h}:{K[buf]+4*h+3}], v{base} offset:{t*2048+h*1024}"
    def rV(buf, base, t, h): return f"ds_read_b128 v[{V[buf]+4*h}:{V[buf]+4*h+3}], v{base} offset:{CH//2+t*2048+h*1024}"
    def mf(d, a, b, c):
        cs = "0" if c is None else f"v[{c}:{c+15}]"
        return f"v_mfma_f32_32x32x16_bf16 v[{d}:{d+15}], v[{a}:{a+3}], v[{b}:{b+3}], {cs}"
    def sm(qi, pb):
        return f"v_smfmac_f32_16x16x64_bf16 v[{L[qi]}:{L[qi]+3}], v[{vsel}:{vsel+3}], v[{P[pb]}:{P[pb]+7}], v{vidx}"
    for h in range(2): A(rK(0, vcur, 0, h))
    for h in range(2): A(rV(0, vcur, 0, h))
    A("s_waitcnt lgkmcnt(0)")
    A(mf(S[0], K[0], Q[0][0], None)); A(mf(S[0], K[0]+4, Q[0][1], S[0]))
    A("s_nop 7\ns_nop 3")
    if o.get("stamp"): A("s_memtime s[50:51]\ns_waitcnt lgkmcnt(0)")
    A(f".p2align 6\nL_{N}_loop:")
    pat = o.get("pat", "Q1 e e e P1 e e e Q2 e e c c P2 e e c c S R e e c e e c e e c c").split()
    for kt in range(TPC):
        for qi in range(NQ):
            u = kt*NQ + qi
            nk, nq = (kt, qi+1) if qi+1 < NQ else (kt+1, 0)
            pk, pq = (kt, qi-1) if qi > 0 else (kt-1, NQ-1)
            sb = u & 1; nb = sb ^ 1
            e = lambda j: f"v_exp_f32 v{S[sb]+j}, v{S[sb]+j}"
            c = lambda j: f"v_cvt_pk_bf16_f32 v{P[sb]+j}, v{S[sb]+2*j}, v{S[sb]+2*j+1}"
            Kb = K[nk % 2]; Vb = V[pk % 2]
            pre = []
            if qi == 3: pre.append("s_waitcnt lgkmcnt(0)")
            if qi == 0 and kt == TPC-1: pre.append("s_barrier")
            base, t = (vcur, kt+1) if kt+1 < TPC else (vnxt, 0)
            b2 = (kt+1) % 2
            rd = {0: [rK(b2, base, t, 0)], 1: [rK(b2, base, t, 1)], 2: [rV(b2, base, t, 0), rV(b2, base, t, 1)], 3: []}[qi]
            seq = list(pre); ne = nc = 0
            for tk in pat:
                if tk == "Q1": seq.append(mf(S[nb], Kb, Q[nq][0], None))
                elif tk == "Q2": seq.append(mf(S[nb], Kb+4, Q[nq][1], S[nb]))
                elif tk == "P1": seq.append(mf(O[pq], Vb, P[nb], O[pq]))
                elif tk == "P2": seq.append(mf(O[pq], Vb+4, P[nb]+4, O[pq]))
                elif tk == "S": seq.append(sm(pq, nb))
                elif tk == "e": seq.append(e(ne)); ne += 1
                elif tk == "c": seq.append(c(nc)); assert 2*nc+1 < ne; nc += 1
                elif tk == "R": seq += rd
                else: raise Exception(tk)
            assert ne == 16 and nc == 8
            ab = o.get("ablate", "")
            for l in seq:
                if "nosm" in ab and l.startswith("v_smfmac"): continue
                if "nolds" in ab and l.startswith("ds_read"): continue
                if "nocvt" in ab and l.startswith("v_cvt"): continue
                if "noexp" in ab and l.startswith("v_exp"): continue
                if "nopv" in ab and l.startswith(f"v_mfma_f32_32x32x16_bf16 v[{O[pq]}:"): continue
                if "noqk" in ab and l.startswith(f"v_mfma_f32_32x32x16_bf16 v[{S[nb]}:"): continue
                if "nobar" in ab and l.startswith("s_barrier"): l = "s_nop 0"
                if "expsep" in ab and l.startswith("v_exp"):
                    r = l.split()[1].rstrip(","); l = f"v_exp_f32 v{vt2}, {r}"
                A(l)
    A(f"""v_mov_b32 v{vcur}, v{vnxt}
    v_add_u32 v{vnxt}, s{sNxt}, v{vl16}
    s_add_u32 s{sNxt}, s{sNxt}, {CH}
    s_cmp_ge_u32 s{sNxt}, {NSLOT*CH}
    s_cselect_b32 s{sT1}, {NSLOT*CH}, 0
    s_sub_u32 s{sNxt}, s{sNxt}, s{sT1}
    s_sub_u32 s{sCnt}, s{sCnt}, 1
    s_cmp_lg_u32 s{sCnt}, 0
    s_cbranch_scc1 L_{N}_loop
    """)
    if o.get("stamp"): A("s_memtime s[52:53]\ns_waitcnt lgkmcnt(0)")
    lb = (TPC*NQ-1) & 1
    Vb = V[(TPC-1) % 2]
    A("s_nop 1")
    A(mf(O[NQ-1], Vb, P[lb], O[NQ-1])); A(mf(O[NQ-1], Vb+4, P[lb]+4, O[NQ-1])); A(sm(NQ-1, lb))
    A(f"L_{N}_fin:")
    A("s_nop 7\ns_nop 7")
    A(f"v_mov_b32 v{vt3}, 0")
    A(f"s_mov_b32 s{sCnt}, 0")
    for qi in range(NQ):
        A(f"v_add_f32 v{vt0}, v{L[qi]}, v{L[qi]+1}")
        A(f"v_rcp_f32 v{vt1}, v{vt0}")
        A(f"v_mov_b32 v{vt2}, 0x35800000")
        A(f"v_cmp_nle_f32 s[{sT2}:{sT3}], v{vt2}, v{vt0}")
        A(f"v_mov_b32 v{vt2}, 0x71800000")
        A(f"v_cmp_nle_f32 vcc, v{vt0}, v{vt2}")
        for r in range(16):
            A(f"v_mul_f32 v{O[qi]+r}, v{O[qi]+r}, v{vt1}")
        A(f"s_or_b64 vcc, vcc, s[{sT2}:{sT3}]")
        A(f"s_cmp_lg_u64 vcc, 0")
        A(f"s_cselect_b32 s{sT0}, 1, 0")
        A(f"s_or_b32 s{sCnt}, s{sCnt}, s{sT0}")
        for r in range(16):
            A(f"v_fma_f32 v{vt3}, v{O[qi]+r}, 0, v{vt3}")
        d = S[qi & 1] + 8*((qi >> 1) & 1)
        for j in range(8):
            A(f"v_cvt_pk_bf16_f32 v{d+j}, v{O[qi]+2*j}, v{O[qi]+2*j+1}")
        A(f"buffer_store_dwordx4 v[{d}:{d+3}], v{vl16}, s[{sW}:{sW+3}], s{sO} offen offset:0 {o.get('stflags','')}")
        A(f"buffer_store_dwordx4 v[{d+4}:{d+7}], v{vl16}, s[{sW}:{sW+3}], s{sO} offen offset:1024 {o.get('stflags','')}")
        A(f"s_add_u32 s{sO}, s{sO}, 65536")
    A(f"s_sub_u32 s{sO}, s{sO}, {NQ*65536}")
    A(f"""v_cmp_u_f32 vcc, v{vt3}, v{vt3}
    s_nop 3
    s_cmp_lg_u64 vcc, 0
    s_cselect_b32 s{sT0}, 1, 0
    s_or_b32 s{sCnt}, s{sCnt}, s{sT0}
    s_cmp_eq_u32 s{sMode}, 1
    s_cbranch_scc1 L_{N}_done
    v_mov_b32 v{vt0}, s{sCnt}
    v_mov_b32 v{vt1}, {FLAG}
    ds_or_b32 v{vt1}, v{vt0}
    s_waitcnt lgkmcnt(0)
    s_barrier
    ds_read_b32 v{vt0}, v{vt1}
    s_waitcnt lgkmcnt(0)
    v_readfirstlane_b32 s{sT0}, v{vt0}
    s_nop 3
    s_cmp_eq_u32 s{sT0}, 0
    s_cbranch_scc1 L_{N}_done
    """)
    A(f"""s_waitcnt vmcnt(0)
    s_mov_b32 s{sMode}, 1
    s_mov_b32 s{sCnt}, {NCH}
    """)
    init_acc()
    for i in range(NQ): A(f"v_mov_b32 v{vm[i]}, 0xff7fffff")
    A(f"""L_{N}_slow:
    s_barrier
    s_barrier
    v_mov_b32 v{vcur}, v{vl16}
    s_mov_b32 s{sNxt}, {TPC}
    L_{N}_slowt:""")
    for h in range(2): A(rK(0, vcur, 0, h))
    for h in range(2): A(rV(0, vcur, 0, h))
    A(f"v_add_u32 v{vcur}, 2048, v{vcur}")
    A("s_waitcnt lgkmcnt(0)")
    for qi in range(NQ):
        s = S[0]
        A(mf(s, K[0], Q[qi][0], None)); A(mf(s, K[0]+4, Q[qi][1], s))
        A("s_nop 7\ns_nop 3")
        A(f"v_max3_f32 v{vt0}, v{s}, v{s+1}, v{s+2}")
        for j in range(3, 15, 2): A(f"v_max3_f32 v{vt0}, v{vt0}, v{s+j}, v{s+j+1}")
        A(f"v_max_f32 v{vt0}, v{vt0}, v{s+15}")
        A(f"v_mov_b32 v{vt1}, v{vt0}")
        A("s_nop 1")
        A(f"v_permlane32_swap_b32 v{vt0}, v{vt1}")
        A(f"v_max3_f32 v{vt0}, v{vt0}, v{vt1}, v{vm[qi]}")
        A(f"v_sub_f32 v{val}, v{vm[qi]}, v{vt0}")
        A(f"v_exp_f32 v{val}, v{val}")
        A(f"v_mov_b32 v{vm[qi]}, v{vt0}")
        for r in range(16): A(f"v_sub_f32 v{s+r}, v{s+r}, v{vt0}")
        for r in range(16): A(f"v_exp_f32 v{s+r}, v{s+r}")
        for r in range(16): A(f"v_mul_f32 v{O[qi]+r}, v{O[qi]+r}, v{val}")
        for r in range(2): A(f"v_mul_f32 v{L[qi]+r}, v{L[qi]+r}, v{val}")
        for j in range(8): A(f"v_cvt_pk_bf16_f32 v{P[0]+j}, v{s+2*j}, v{s+2*j+1}")
        A("s_nop 1")
        A(mf(O[qi], V[0], P[0], O[qi])); A(mf(O[qi], V[0]+4, P[0]+4, O[qi])); A(sm(qi, 0))
        A("s_nop 7\ns_nop 7")
    A(f"""s_sub_u32 s{sNxt}, s{sNxt}, 1
    s_cmp_lg_u32 s{sNxt}, 0
    s_cbranch_scc1 L_{N}_slowt
    s_sub_u32 s{sCnt}, s{sCnt}, 1
    s_cmp_lg_u32 s{sCnt}, 0
    s_cbranch_scc1 L_{N}_slow
    s_branch L_{N}_fin
    """)
    A(f"""L_{N}_done:""")
    if o.get("stamp"):
        A(f"""s_memtime s[44:45]
        s_memrealtime s[46:47]
        s_waitcnt lgkmcnt(0)
        s_sub_u32 s44, s44, s40
        s_sub_u32 s46, s46, s42
        s_sub_u32 s50, s50, s40
        s_sub_u32 s52, s52, s40
        s_lshr_b32 s50, s50, 2
        s_lshr_b32 s52, s52, 2
        s_lshl_b32 s52, s52, 16
        s_or_b32 s50, s50, s52
        s_lshl_b32 s48, s2, 3
        s_add_u32 s48, s48, s{sWave}
        s_lshl_b32 s48, s48, 4
        s_add_u32 s48, s48, {WS_END+65536}
        v_mov_b32 v{vt0}, s44
        v_mov_b32 v{vt1}, s46
        v_mov_b32 v{vt2}, s42
        v_mov_b32 v{vt3}, s50
        v_mov_b32 v{val}, 0
        buffer_store_dwordx4 v[{vt0}:{vt0+3}], v{val}, s[{sW}:{sW+3}], s48 offen""")
    A(f"""L_{N}_end:
    s_endpgm""")
    txt = A.text() + kernel_desc(name, nv)
    return txt, dict(name=name, grid=256, block=512, lds=NSLOT*CH + 64, nv=nv)

if __name__ == "__main__":
    import hz
    from build import build
    t, i = gen_attn2(opts=dict(stamp=True))
    print(i)
    ps = hz.check_hazards(t)
    for p in ps[:30]: print(p)
    ws = hz.check_waits(t, i["name"], max_back=1)
    for p in ws[:30]: print(p)
    print(len(ps), len(ws))
    build([(t, i)], "attn2_only.s")
```

```python
import re, sys
from collections import defaultdict

TRANS = ("v_exp_","v_log_","v_rcp_","v_rsq_","v_sqrt_","v_sin_","v_cos_")
def parse_reg_list(op):
    op = op.strip()
    if op.startswith("-"): op = op[1:]
    if op.startswith("abs(") : op = op[4:-1]
    if op.startswith("|") : op = op.strip("|")
    op = op.lstrip("-")
    m = re.fullmatch(r"([vsa])(\d+)", op)
    if m: return [(m.group(1), int(m.group(2)))]
    m = re.fullmatch(r"([vsa])\[(\d+):(\d+)\]", op)
    if m: return [(m.group(1), i) for i in range(int(m.group(2)), int(m.group(3))+1)]
    if op == "vcc": return [("s","vcc_lo"),("s","vcc_hi")]
    if op in ("vcc_lo","vcc_hi"): return [("s",op)]
    if op == "exec": return [("s","exec_lo"),("s","exec_hi")]
    if op in ("exec_lo","exec_hi"): return [("s",op)]
    if op == "m0": return [("s","m0")]
    if op == "scc": return [("s","scc")]
    return []

class I:
    def __init__(s, line, ln):
        s.ln = ln; s.text = line
        t = line.split(None, 1)
        s.op = t[0]
        rest = t[1] if len(t) > 1 else ""
        ops = []; cur = ""; d = 0
        for ch in rest:
            if ch in "[(": d += 1
            if ch in "])": d -= 1
            if ch == "," and d == 0: ops.append(cur.strip()); cur = ""
            else: cur += ch
        if cur.strip(): ops.append(cur.strip())
        s.mods = ""
        if ops:
            parts = ops[-1].split()
            if len(parts) > 1:
                ops[-1] = parts[0]; s.mods = " ".join(parts[1:])
        s.ops = ops
        s.classify()
    def classify(s):
        op = s.op; o = s.ops
        s.wr = []; s.rd = []; s.kind = "other"; s.passes = 0
        s.srcA = s.srcB = s.srcC = []
        R = parse_reg_list
        if op.startswith("v_mfma") or op.startswith("v_smfmac"):
            s.kind = "mfma"
            s.wr = R(o[0]); s.srcA = R(o[1]); s.srcB = R(o[2])
            if op.startswith("v_smfmac"):
                s.srcC = R(o[0]); s.idx = R(o[3]); s.rd = s.srcA + s.srcB + s.srcC + s.idx
            else:
                s.srcC = R(o[3]); s.idx = []; s.rd = s.srcA + s.srcB + s.srcC
            if "32x32x16" in op and op.startswith("v_mfma"): s.passes = 8
            elif "16x16x32" in op and op.startswith("v_mfma"): s.passes = 4
            elif "4x4x4bf16" in op: s.passes = 2
            elif "smfmac_f32_16x16x64" in op: s.passes = 4
            elif "smfmac_f32_32x32x32" in op: s.passes = 8
            else: raise Exception("unknown mfma passes " + op)
        elif op.startswith("v_"):
            s.kind = "valu"
            if op.startswith("v_cmp"):
                if op.startswith("v_cmpx"): s.wr = R(o[0]) + R("exec")
                else: s.wr = R(o[0])
                for x in o[1:]: s.rd += R(x)
            elif op.startswith("v_readfirstlane") or op.startswith("v_readlane"):
                s.wr = R(o[0]);
                for x in o[1:]: s.rd += R(x)
            elif op.startswith("v_permlane32_swap") or op.startswith("v_permlane16_swap"):
                s.wr = R(o[0]) + R(o[1]); s.rd = R(o[0]) + R(o[1])
            elif op.startswith(("v_add_co","v_sub_co","v_addc_co","v_subb_co")):
                s.wr = R(o[0]) + R(o[1])
                for x in o[2:]: s.rd += R(x)
            else:
                s.wr = R(o[0])
                for x in o[1:]: s.rd += R(x)
                if op.startswith(("v_fmac","v_dot2c","v_mac","v_writelane","v_pk_fmac")): s.rd += R(o[0])
                if op.startswith("v_cndmask") and len(o) == 3: s.rd += R("vcc")
                if "sdwa" in op and "UNUSED_PRESERVE" in s.mods: s.rd += R(o[0])
            s.trans = op.startswith(TRANS)
            s.dpp = ("dpp" in op) or ("row_" in s.mods) or ("quad_perm" in s.mods)
        elif op.startswith("ds_"):
            s.kind = "ds"
            if op.startswith(("ds_read","ds_bpermute","ds_permute","ds_swizzle")):
                s.wr = R(o[0])
                for x in o[1:]: s.rd += R(x)
            else:
                for x in o: s.rd += R(x)
        elif op.startswith(("buffer_","global_")):
            s.kind = "vmem"
            s.lds = " lds" in (" " + s.mods) or "load_lds" in op
            if "load" in op and not s.lds:
                s.wr = R(o[0])
                for x in o[1:]: s.rd += R(x)
            elif "load" in op:
                for x in o: s.rd += R(x)
                s.rd += R("m0")
            elif "atomic" in op:
                for x in o: s.rd += R(x)
                if "sc0" in s.mods: s.wr = R(o[0]) if op.startswith("buffer") else R(o[0])
            else:
                for x in o: s.rd += R(x)
                s.store = True
                s.data = R(o[0]) if op.startswith("buffer") else R(o[1])
        elif op.startswith("s_"):
            s.kind = "salu"
            if op in ("s_waitcnt","s_nop","s_barrier","s_endpgm","s_branch","s_setprio","s_sleep") or op.startswith("s_cbranch"):
                s.kind = "ctl"
                if op in ("s_cbranch_vccz","s_cbranch_vccnz"): s.rd = R("vcc")
                if op in ("s_cbranch_execz","s_cbranch_execnz"): s.rd = R("exec")
            elif op.startswith("s_getpc"):
                s.wr = R(o[0])
            elif op.startswith("s_cmp") or op.startswith("s_bitcmp"):
                for x in o: s.rd += R(x)
                s.wr = R("scc")
            elif op.startswith(("s_load","s_buffer_load","s_memtime","s_memrealtime")):
                s.kind = "smem"
                s.wr = R(o[0])
                for x in o[1:]: s.rd += R(x)
            else:
                s.wr = R(o[0])
                for x in o[1:]: s.rd += R(x)
                if "saveexec" in op: s.wr += R("exec"); s.rd += R("exec")
        else:
            raise Exception("unknown instr: " + s.text)
    def states(s):
        if s.op == "s_nop": return int(s.ops[0], 0) + 1
        return 1

def parse(text):
    ins = []; labels = {}
    for ln, raw in enumerate(text.splitlines(), 1):
        line = raw.split(";")[0].split("//")[0].strip()
        if not line or line.startswith("."):
            continue
        m = re.match(r"^([\w.$]+):\s*(.*)$", line)
        if m:
            labels[m.group(1)] = len(ins)
            line = m.group(2).strip()
            if not line: continue
        ins.append(I(line, ln))
    return ins, labels

def succs(ins, labels, i):
    x = ins[i]
    if x.op == "s_endpgm": return []
    if x.op == "s_branch": return [labels[x.ops[0]]]
    if x.op.startswith("s_cbranch"): return [labels[x.ops[0]], i+1]
    return [i+1] if i+1 < len(ins) else []

XDL_D_C_OVERLAP = {2:4,4:6,8:10,16:18}
XDL_D_AB = {2:5,4:8,8:12,16:20}
XDL_D_VALU = {2:5,4:8,8:12,16:20}
XDL_C_WAR = {2:1,4:3,8:7,16:15}
def vregs(l): return set(r for r in l if r[0] in "va")
def sregs(l): return set(r for r in l if r[0] == "s")

def required(p, c):
    need = 0; why = ""
    def req(n, w):
        nonlocal need, why
        if n > need: need, why = n, w
    if p.kind == "valu":
        pw = vregs(p.wr); psw = sregs(p.wr)
        if c.kind == "mfma" and pw & set(c.rd): req(2, "VALU->MFMA operand")
        if c.kind == "valu":
            if p.trans and not c.trans and pw & set(c.rd): req(1, "trans->VALU")
            if c.op.startswith("v_permlane") and pw & set(c.rd): req(2, "VALU->permlane")
            if c.dpp and pw & set(c.rd): req(2, "VALU->DPP")
            if c.op.startswith(("v_readlane","v_readfirstlane")) and pw & set(c.rd): req(1, "VALU->readlane")
            if psw & set(c.rd) - set([("s","exec_lo"),("s","exec_hi")]): req(2, "VALU sgpr->VALU const")
            if (("s","exec_lo") in psw) and c.op.startswith(("v_readlane","v_readfirstlane","v_permlane","v_writelane")): req(4,"exec->lane op")
            if "sdwa" in p.op and pw & set(c.rd): req(1,"sdwa->VALU")
        if c.kind == "mfma" and ("s","exec_lo") in psw: req(4, "VALU exec->MFMA")
        if c.kind == "vmem" and psw & set(c.rd): req(5, "VALU sgpr->VMEM")
        if c.kind in ("salu","smem") and psw & set(c.rd): req(4, "VALU sgpr->SALU (padded)")
        if c.op in ("s_cbranch_vccz","s_cbranch_vccnz","s_cbranch_execz","s_cbranch_execnz") and psw & set(c.rd): req(5,"VALU vcc/exec -> branch")
    if p.kind == "mfma":
        D = set(p.wr)
        if c.kind == "mfma":
            if D & set(c.srcC):
                if c.srcC == p.wr and c.passes == p.passes:
                    if p.passes == 2: req(2, "XDL same D")
                else: req(XDL_D_C_OVERLAP[p.passes], "XDL D->srcC overlap")
            if D & (set(c.srcA) | set(c.srcB) | set(c.idx)): req(XDL_D_AB[p.passes], "XDL D->A/B")
            if D & set(c.wr) and not (D & set(c.srcC)): req(XDL_D_C_OVERLAP[p.passes], "XDL WAW")
        elif c.kind in ("valu","ds","vmem"):
            if D & (set(c.rd) | set(c.wr)): req(XDL_D_VALU[p.passes], "XDL D->VALU/mem")
        if c.kind == "valu" and set(p.srcC) & set(c.wr): req(XDL_C_WAR[p.passes], "XDL srcC WAR")
    if p.kind == "salu" and ("s","m0") in p.wr and c.kind == "vmem" and getattr(c,"lds",False): req(1, "m0->lds dma")
    if p.kind == "vmem" and getattr(p,"store",False) and len(p.data) >= 3:
        if c.kind == "valu" and set(p.data) & set(c.wr): req(2, "wide store WAR")
        elif c.kind in ("ds","vmem","mfma") and set(p.data) & set(c.wr): req(1, "wide store WAR")
    return need, why

def check_hazards(text, maxd=22):
    ins, labels = parse(text)
    probs = []
    for i, p in enumerate(ins):
        if p.kind not in ("valu","mfma","salu","vmem"): continue
        stack = [(j, 0) for j in succs(ins, labels, i)]
        seen = {}
        while stack:
            j, d = stack.pop()
            if j >= len(ins): continue
            if j in seen and seen[j] <= d: continue
            seen[j] = d
            c = ins[j]
            need, why = required(p, c)
            if need > d:
                probs.append(f"L{p.ln}: {p.text}  ->  L{c.ln}: {c.text} : need {need} have {d} ({why})")
            d2 = d + c.states()
            if d2 < maxd:
                for k in succs(ins, labels, j): stack.append((k, d2))
    return probs

def check_waits(text, entry, max_back=2, max_paths=4000):
    ins, labels = parse(text)
    probs = set()
    start = labels[entry]
    sys.setrecursionlimit(100000)
    stack = [(start, (), (), ())]
    npaths = 0; visited = set()
    while stack:
        pc, vm, lg, bc = stack.pop()
        bc = dict(bc)
        vm = list(vm); lg = list(lg)
        while True:
            if pc >= len(ins): break
            key = (pc, tuple(vm), tuple(lg), tuple(sorted(bc.items())))
            x = ins[pc]
            if x.op.startswith("s_cbranch") or x.op == "s_branch":
                if key in visited: break
                visited.add(key)
            if x.op == "s_waitcnt":
                for part in re.findall(r"(vmcnt|lgkmcnt)\((\d+)\)", x.text):
                    n = int(part[1])
                    if part[0] == "vmcnt":
                        while len(vm) > n: vm.pop(0)
                    else:
                        if any(t[1] for t in lg):
                            if n == 0: lg = []
                        else:
                            while len(lg) > n: lg.pop(0)
            else:
                touched = set(x.rd) | set(x.wr)
                if x.kind == "vmem" and x.op in ("buffer_load_dword", "global_load_dword"): touched = set(x.rd)
                for q, nm in ((vm, "vm"), (lg, "lgkm")):
                    for t in q:
                        if t[0] & touched and not (x.kind == "vmem" and nm=="vm" and not (t[0] & set(x.rd)) and False):
                            probs.add(f"L{x.ln}: {x.text} touches regs of outstanding {nm} op at L{t[2]}")
                if x.kind == "vmem":
                    vm.append((frozenset(x.wr), False, x.ln))
                    if len(vm) > 63: probs.add(f"L{x.ln}: vmcnt overflow")
                    vm = [(t if i >= len(vm)-64 else None) for i,t in enumerate(vm)]
                elif x.kind == "ds":
                    lg.append((frozenset(x.wr), False, x.ln))
                elif x.kind == "smem":
                    lg.append((frozenset(x.wr), True, x.ln))
            if x.op == "s_endpgm": break
            ss = succs(ins, labels, pc)
            nxt = []
            for k in ss:
                if k <= pc:
                    c = bc.get(pc, 0)
                    if c < max_back:
                        b2 = dict(bc); b2[pc] = c+1
                        nxt.append((k, b2))
                else: nxt.append((k, bc))
            if not nxt: break
            for k, b2 in nxt[1:]:
                stack.append((k, tuple(vm), tuple(lg), tuple(sorted(b2.items()))))
            pc, bc = nxt[0]
        npaths += 1
        if npaths > max_paths: probs.add("too many paths"); break
    return sorted(probs)

if __name__ == "__main__":
    t = open(sys.argv[1]).read()
    ps = check_hazards(t)
    for p in ps[:50]: print(p)
    print(len(ps), "hazards")
    for e in sys.argv[2:]:
        ws = check_waits(t, e)
        for p in ws[:50]: print(p)
        print(len(ws), "wait problems for", e)
```

```python
class Asm:
    def __init__(self):
        self.lines = []
    def __call__(self, fmt, *a):
        for l in fmt.split("\n"):
            l = l.strip()
            if l: self.lines.append(("" if l.endswith(":") else "  ") + l)
    def label(self, name): self.lines.append(name + ":")
    def raw(self, s): self.lines.append(s)
    def comment(self, s): self.lines.append("  ; " + s)
    def text(self): return "\n".join(self.lines) + "\n"

def vr(base, n=1):
    return f"v{base}" if n == 1 else f"v[{base}:{base+n-1}]"
def sr(base, n=1):
    return f"s{base}" if n == 1 else f"s[{base}:{base+n-1}]"

class VAlloc:
    def __init__(self, start=0, limit=256):
        self.next = start; self.limit = limit; self.names = {}
    def get(self, name, n=1, align=1):
        if n >= 2 and align < 2: align = 2
        b = (self.next + align - 1) // align * align
        self.next = b + n
        assert self.next <= self.limit, f"out of vgprs at {name}"
        self.names[name] = (b, n)
        return b

def kernel_desc(name, vgpr, sgpr=102, accum=None):
    if accum is None: accum = (vgpr + 3) // 4 * 4
    return f""".section .rodata,"a"
.p2align 6
.amdhsa_kernel {name}
  .amdhsa_next_free_vgpr {vgpr}
  .amdhsa_next_free_sgpr {sgpr}
  .amdhsa_accum_offset {accum}
  .amdhsa_group_segment_fixed_size 0
  .amdhsa_kernarg_size 88
  .amdhsa_user_sgpr_count 2
  .amdhsa_user_sgpr_kernarg_segment_ptr 1
  .amdhsa_system_sgpr_workgroup_id_x 1
  .amdhsa_float_denorm_mode_32 3
.end_amdhsa_kernel
.text
"""
def kernel_head(name):
    return f""".globl {name}
.p2align 8
.type {name},@function
{name}:
"""

MB = 1 << 20
WS_QA  = 0
WS_QB  = 4 * MB
WS_KB  = 8 * MB
WS_VB  = 12 * MB
WS_KA  = 16 * MB
WS_VA  = 16 * MB + 131072
WS_OA  = 17 * MB
WS_OB  = 21 * MB
WS_END = 25 * MB
KA_AX, KA_AWQ, KA_AWK, KA_AWV, KA_AWO, KA_BX, KA_BWQKV, KA_BWO, KA_OUT, KA_DBG, KA_WS = [8*i for i in range(11)]

def code_prefetch(A, tag, base_label, nbytes, blk_sgpr, vt, vdum, lane, stmp):
    A(f"""s_getpc_b64 s[{stmp}:{stmp+1}]
    L_cp_{tag}:
    s_sub_u32 s{stmp}, s{stmp}, L_cp_{tag}-{base_label}
    s_subb_u32 s{stmp+1}, s{stmp+1}, 0
    v_lshlrev_b32 v{vt}, 7, v{lane}
    v_lshl_add_u32 v{vt}, s{blk_sgpr}, 13, v{vt}
    v_min_u32 v{vt}, L_code_end-{base_label}-4, v{vt}
    global_load_dword v{vdum}, v{vt}, s[{stmp}:{stmp+1}]""")
```

```python
from kgen import *

def gen_oproj(name="oproj_kernel", NS=4, opts=None):
    o = opts or {}
    A = Asm()
    SLOT = 32768
    WOFF = 16384
    NST = 16
    OUT_BYTES = 2048*2048*2
    va = VAlloc(0)
    vtid = va.get("tid"); vt0 = va.get("t0"); vt1 = va.get("t1"); vt2 = va.get("t2"); vt3 = va.get("t3"); vt4 = va.get("t4")
    vOA = va.get("oa")
    vWA = [va.get(f"wa{i}") for i in range(4)]
    vst = va.get("st")
    acc = [[va.get(f"acc{t}{c}", 4, 4) for c in range(4)] for t in range(4)]
    of = [[va.get(f"of{b}{t}", 4, 4) for t in range(4)] for b in range(2)]
    wf = [[va.get(f"wf{b}{c}", 4, 4) for c in range(4)] for b in range(2)]
    nv = va.next
    vLO = of[0][0]; vLW = of[0][1]
    sO, sWd, sOut = 8, 12, 16
    sWave, sBr, sRB, sCB = 24, 25, 26, 27
    sT0, sT1, sT2, sT3 = 30, 31, 32, 33
    sCnt, sDelta, sSlot, sOo, sWo, sM0o, sM0w, sSt, sCneg = 34, 35, 36, 37, 38, 40, 41, 43, 45
    sP = 48
    N = name; l = vtid
    A.raw(kernel_head(name).rstrip("\n"))
    A(f"""s_cmp_ge_u32 s2, 256
    s_cbranch_scc1 L_{N}_end
    s_load_dwordx2 s[{sP}:{sP+1}], s[0:1], {KA_WS}
    s_load_dwordx2 s[{sP+2}:{sP+3}], s[0:1], {KA_AWO}
    s_load_dwordx2 s[{sP+4}:{sP+5}], s[0:1], {KA_BWO}
    s_load_dwordx2 s[{sP+6}:{sP+7}], s[0:1], {KA_OUT}
    v_lshrrev_b32 v{vt0}, 6, v{vtid}
    v_and_b32 v{vtid}, 63, v{vtid}
    v_readfirstlane_b32 s{sWave}, v{vt0}
    s_and_b32 s{sT0}, s2, 7               ; xcd
    s_lshr_b32 s{sT1}, s2, 3              ; sl
    s_lshr_b32 s{sBr}, s{sT0}, 2
    s_bfe_u32 s{sT2}, s{sT0}, 0x10001     ; rowhalf
    s_lshl_b32 s{sT2}, s{sT2}, 3
    s_and_b32 s{sRB}, s{sT1}, 7
    s_add_u32 s{sRB}, s{sRB}, s{sT2}
    s_and_b32 s{sT2}, s{sT0}, 1
    s_lshl_b32 s{sT2}, s{sT2}, 2
    s_lshr_b32 s{sCB}, s{sT1}, 3
    s_add_u32 s{sCB}, s{sCB}, s{sT2}
    s_waitcnt lgkmcnt(0)
    s_mul_i32 s{sT0}, s{sBr}, {WS_OB-WS_OA}
    s_lshl_b32 s{sT1}, s{sRB}, 18
    s_add_u32 s{sT0}, s{sT0}, s{sT1}
    s_add_u32 s{sT0}, s{sT0}, {WS_OA}
    s_add_u32 s{sO}, s{sP}, s{sT0}
    s_addc_u32 s{sO+1}, s{sP+1}, 0
    s_and_b32 s{sO+1}, s{sO+1}, 0xffff
    s_mov_b32 s{sO+2}, 262144
    s_mov_b32 s{sO+3}, 0x20000
    s_cmp_eq_u32 s{sBr}, 0
    s_cselect_b32 s{sT2}, s{sP+2}, s{sP+4}
    s_cselect_b32 s{sT3}, s{sP+3}, s{sP+5}
    s_lshl_b32 s{sT0}, s{sCB}, 8
    s_add_u32 s{sWd}, s{sT2}, s{sT0}
    s_addc_u32 s{sWd+1}, s{sT3}, 0
    s_and_b32 s{sWd+1}, s{sWd+1}, 0xffff
    s_sub_u32 s{sWd+2}, {1024*2048}, s{sT0}
    s_mov_b32 s{sWd+3}, 0x20000
    s_mov_b32 s{sOut}, s{sP+6}
    s_and_b32 s{sOut+1}, s{sP+7}, 0xffff
    s_mov_b32 s{sOut+2}, {OUT_BYTES}
    s_mov_b32 s{sOut+3}, 0x20000
    """)
    if o.get("stamp"): A("s_memtime s[60:61]\ns_memrealtime s[62:63]\ns_waitcnt lgkmcnt(0)")
    A(f"""s_cmp_lt_u32 s{sWave}, 4
    s_cbranch_scc1 L_{N}_compute""")
    PER = 8
    A(f"""L_{N}_loader:
    s_sub_u32 s{sWave}, s{sWave}, 4
    s_lshl_b32 s{sT0}, s{sWave}, 16
    v_lshlrev_b32 v{vLO}, 4, v{l}
    v_add_u32 v{vLO}, s{sT0}, v{vLO}
    """)
    for i in range(4):
        A(f"""v_lshrrev_b32 v{vt0}, 4, v{l}
        s_lshl_b32 s{sT0}, s{sWave}, 4
        s_add_u32 s{sT0}, s{sT0}, {4*i}
        v_add_u32 v{vt0}, s{sT0}, v{vt0}
        v_and_b32 v{vt1}, 7, v{vt0}
        v_lshlrev_b32 v{vt1}, 1, v{vt1}
        v_and_b32 v{vt2}, 15, v{l}
        v_xor_b32 v{vt1}, v{vt1}, v{vt2}
        v_lshlrev_b32 v{vt1}, 4, v{vt1}
        v_lshl_add_u32 v{vLW+i}, v{vt0}, 11, v{vt1}""")
    A(f"""s_mov_b32 s{sOo}, 0
    s_mov_b32 s{sWo}, 0
    s_lshl_b32 s{sM0o}, s{sWave}, 12
    s_add_u32 s{sM0w}, s{sM0o}, {WOFF}
    s_mov_b32 s{sSlot}, 0""")
    def dma():
        A(f"s_add_u32 m0, s{sSlot}, s{sM0o}")
        A("s_nop 0")
        for i in range(4):
            A(f"buffer_load_dwordx4 v{vLO}, s[{sO}:{sO+3}], s{sOo} offen offset:{i*1024} lds")
        A(f"s_add_u32 m0, s{sSlot}, s{sM0w}")
        for i in range(4):
            A("s_nop 0" if i == 0 else "s_add_u32 m0, m0, 1024")
            if i: A("s_nop 0")
            A(f"buffer_load_dwordx4 v{vLW+i}, s[{sWd}:{sWd+3}], s{sWo} offen lds")
        A(f"""s_add_u32 s{sOo}, s{sOo}, 4096
        s_add_u32 s{sWo}, s{sWo}, {64*2048}
        s_add_u32 s{sSlot}, s{sSlot}, {SLOT}
        s_cmp_eq_u32 s{sSlot}, {NS*SLOT}
        s_cselect_b32 s{sSlot}, 0, s{sSlot}""")
    dma()
    A("s_waitcnt vmcnt(0)\ns_barrier")
    for _ in range(NS-1): dma()
    A(f"s_mov_b32 s{sCnt}, {NST-NS}")
    A(f"L_{N}_ld_loop:")
    A(f"s_waitcnt vmcnt({(NS-2)*PER})\ns_barrier")
    dma()
    A(f"""s_sub_u32 s{sCnt}, s{sCnt}, 1
    s_cmp_lg_u32 s{sCnt}, 0
    s_cbranch_scc1 L_{N}_ld_loop""")
    for j in range(NS-1):
        A(f"s_waitcnt vmcnt({(NS-2-j)*PER})\ns_barrier")
    A(f"s_branch L_{N}_end")
    A(f"""L_{N}_compute:
    s_lshr_b32 s{sT0}, s{sWave}, 1        ; wm
    s_and_b32 s{sT1}, s{sWave}, 1         ; wn
    v_and_b32 v{vt0}, 15, v{l}            ; n / i
    v_lshrrev_b32 v{vt1}, 4, v{l}         ; g
    v_lshlrev_b32 v{vOA}, 9, v{vt1}
    v_lshl_add_u32 v{vOA}, v{vt0}, 4, v{vOA}
    s_lshl_b32 s{sT2}, s{sT0}, 13
    v_add_u32 v{vOA}, s{sT2}, v{vOA}
    ; W address: k = 16(g>>1) + 4(g&1) + (i>>2) ; f = (4(g&1) + (i>>2))<<1
    v_lshrrev_b32 v{vt2}, 2, v{vt0}
    v_and_b32 v{vt3}, 1, v{vt1}
    v_lshl_or_b32 v{vt2}, v{vt3}, 2, v{vt2}       ; k&7
    v_lshrrev_b32 v{vt3}, 1, v{vt1}
    v_lshl_add_u32 v{vt4}, v{vt3}, 4, v{vt2}      ; k
    v_lshlrev_b32 v{vt4}, 8, v{vt4}               ; k*256
    v_lshlrev_b32 v{vt2}, 1, v{vt2}               ; f
    v_and_b32 v{vt3}, 1, v{vt0}
    v_lshl_add_u32 v{vt4}, v{vt3}, 3, v{vt4}      ; + 8*(i&1)
    v_add_u32 v{vt4}, {WOFF}, v{vt4}
    v_bfe_u32 v{vt3}, v{vt0}, 1, 1
    s_lshl_b32 s{sT2}, s{sT1}, 3
    v_add_u32 v{vt3}, s{sT2}, v{vt3}              ; 8wn + ((i&3)>>1)
    """)
    for ct in range(4):
        A(f"""v_add_u32 v{vWA[ct]}, {2*ct}, v{vt3}
        v_xor_b32 v{vWA[ct]}, v{vWA[ct]}, v{vt2}
        v_lshl_add_u32 v{vWA[ct]}, v{vWA[ct]}, 4, v{vt4}""")
    A(f"""; store: n*4096 + (g&1)*32 + (g>>1)*16
    v_and_b32 v{vt2}, 1, v{vt1}
    v_lshlrev_b32 v{vt2}, 5, v{vt2}
    v_lshrrev_b32 v{vt3}, 1, v{vt1}
    v_lshl_add_u32 v{vt2}, v{vt3}, 4, v{vt2}
    v_lshl_add_u32 v{vst}, v{vt0}, 12, v{vt2}
    s_lshl_b32 s{sSt}, s{sRB}, 19
    s_lshl_b32 s{sT2}, s{sT0}, 18
    s_add_u32 s{sSt}, s{sSt}, s{sT2}
    s_lshl_b32 s{sT2}, s{sBr}, 11
    s_add_u32 s{sSt}, s{sSt}, s{sT2}
    s_lshl_b32 s{sT2}, s{sCB}, 8
    s_add_u32 s{sSt}, s{sSt}, s{sT2}
    s_lshl_b32 s{sT2}, s{sT1}, 7
    s_add_u32 s{sSt}, s{sSt}, s{sT2}
    s_mov_b32 s{sCneg}, {(-(NS-1)*SLOT) & 0xffffffff}
    s_mov_b32 s{sSlot}, 0
    """)
    for t in range(4):
        for c in range(4):
            for r in range(4): A(f"v_mov_b32 v{acc[t][c]+r}, 0")
    A("s_barrier")
    def rdO(tt, ks, par):
        r = of[par][tt]
        return f"ds_read_b128 v[{r}:{r+3}], v{vOA} offset:{(tt>>1)*4096 + ks*2048 + (tt&1)*256}"
    def rdW(ct, q, ks, par):
        r = wf[par][ct] + 2*q
        return f"ds_read_b64_tr_b16 v[{r}:{r+1}], v{vWA[ct]} offset:{ks*8192 + q*2048}"
    def mf(d, a, b): return f"v_mfma_f32_16x16x32_bf16 v[{d}:{d+3}], v[{a}:{a+3}], v[{b}:{b+3}], v[{d}:{d+3}]"
    def step(ks, nxt, inter=()):
        par = ks; npar = ks ^ 1; nks = ks ^ 1
        reads = []
        if nxt:
            reads = [rdW(0,0,nks,npar), rdW(0,1,nks,npar), rdO(0,nks,npar), rdW(1,0,nks,npar), rdW(1,1,nks,npar), rdO(1,nks,npar),
                     rdW(2,0,nks,npar), rdW(2,1,nks,npar), rdO(2,nks,npar), rdW(3,0,nks,npar), rdW(3,1,nks,npar), rdO(3,nks,npar)]
        inter = list(inter)
        m = 0
        for tt in range(4):
            for ct in range(4):
                A(mf(acc[tt][ct], wf[par][ct], of[par][tt]))
                if m < 6:
                    for x in reads[2*m:2*m+2]: A(x)
                elif inter and m >= 8: A(inter.pop(0))
                m += 1
        for x in inter: A(x)
    for ct in range(4):
        for q in range(2): A(rdW(ct, q, 0, 0))
    for tt in range(4): A(rdO(tt, 0, 0))
    A(f"s_mov_b32 s{sCnt}, {NST-1}")
    if o.get("stamp"): A("s_memtime s[70:71]")
    A(f".p2align 6\nL_{N}_loop:")
    A("s_waitcnt lgkmcnt(0)")
    A(f"""s_add_u32 s{sSlot}, s{sSlot}, 1
    s_cmp_eq_u32 s{sSlot}, {NS}
    s_cselect_b32 s{sDelta}, s{sCneg}, {SLOT}
    s_cselect_b32 s{sSlot}, 0, s{sSlot}""")
    step(0, True, [f"v_add_u32 v{r}, s{sDelta}, v{r}" for r in [vOA] + vWA])
    A(f"s_sub_u32 s{sCnt}, s{sCnt}, 1")
    A("s_waitcnt lgkmcnt(0)\ns_barrier")
    step(1, True)
    A(f"""s_cmp_lg_u32 s{sCnt}, 0
    s_cbranch_scc1 L_{N}_loop""")
    A("s_waitcnt lgkmcnt(0)")
    step(0, True)
    A("s_waitcnt lgkmcnt(0)")
    step(1, False)
    if o.get("stamp"): A("s_memtime s[72:73]\ns_waitcnt lgkmcnt(0)")
    A("s_nop 7")
    tmp = of[0][0]
    k = 0
    for tt in range(4):
        A(f"s_add_u32 s{sT0}, s{sSt}, {tt*65536}")
        for p in range(2):
            d = tmp + 4*(k % 4); k += 1
            for z in range(2):
                s_ = acc[tt][2*p+z]
                A(f"v_cvt_pk_bf16_f32 v{d+2*z}, v{s_}, v{s_+1}")
                A(f"v_cvt_pk_bf16_f32 v{d+2*z+1}, v{s_+2}, v{s_+3}")
            A("s_nop 1")
            A(f"v_permlane16_swap_b32 v{d}, v{d+2}")
            A(f"v_permlane16_swap_b32 v{d+1}, v{d+3}")
            A(f"buffer_store_dwordx4 v[{d}:{d+3}], v{vst}, s[{sOut}:{sOut+3}], s{sT0} offen offset:{p*64}")
    A(f"s_branch L_{N}_done")
    A(f"L_{N}_done:")
    if o.get("stamp"):
        A(f"""s_memtime s[64:65]
        s_memrealtime s[66:67]
        s_waitcnt lgkmcnt(0)
        s_sub_u32 s64, s64, s60
        s_sub_u32 s66, s66, s62
        s_lshl_b32 s68, s2, 3
        s_add_u32 s68, s68, s{sWave}
        s_lshl_b32 s68, s68, 4
        s_add_u32 s68, s68, {WS_END+131072}
        s_sub_u32 s70, s70, s60
        s_sub_u32 s72, s72, s60
        s_lshr_b32 s70, s70, 2
        s_lshr_b32 s72, s72, 2
        s_lshl_b32 s72, s72, 16
        s_or_b32 s70, s70, s72
        v_mov_b32 v{wf[0][0]}, s64
        v_mov_b32 v{wf[0][0]+1}, s66
        v_mov_b32 v{wf[0][0]+2}, s62
        v_mov_b32 v{wf[0][0]+3}, s70
        v_mov_b32 v{vt0}, 0
        s_mov_b32 s{sO}, s{sP}
        s_and_b32 s{sO+1}, s{sP+1}, 0xffff
        s_mov_b32 s{sO+2}, {WS_END+262144}
        s_mov_b32 s{sO+3}, 0x20000
        buffer_store_dwordx4 v[{wf[0][0]}:{wf[0][0]+3}], v{vt0}, s[{sO}:{sO+3}], s68 offen""")
    A(f"""L_{N}_end:
    s_endpgm""")
    return A.text() + kernel_desc(name, nv), dict(name=name, grid=256, block=512, lds=NS*SLOT, nv=nv)

if __name__ == "__main__":
    import hz
    from build import build
    t, i = gen_oproj(opts=dict(stamp=True))
    print(i)
    ps = hz.check_hazards(t)
    for p in ps[:30]: print(p)
    ws = hz.check_waits(t, i["name"], max_back=1)
    for p in ws[:30]: print(p)
    print(len(ps), len(ws))
    build([(t, i)], "oproj_only.s")
```

```python
from kgen import *
import struct, math
def f2u(x): return struct.unpack("<I", struct.pack("<f", x))[0]
CSC = f2u(math.log2(math.e) / math.sqrt(32.0))

def gen_proj(name="proj_kernel", opts=None):
    o = opts or {}
    A = Asm()
    SLOT = 51200
    XOFF, WOFF, EOFF = 0, 16384, 49152
    NST = 16
    va = VAlloc(0)
    vtid = va.get("tid"); vt0 = va.get("t0"); vt1 = va.get("t1"); vt2 = va.get("t2"); vt3 = va.get("t3"); vt4 = va.get("t4")
    vXA = [va.get("xa0"), va.get("xa1")]
    vWA = [va.get(f"wa{i}") for i in range(4)]
    vXE = [va.get("xe0"), va.get("xe1")]
    vWE = [va.get("we0"), va.get("we1")]
    vst = va.get("st")
    vdum = va.get("dummy")
    va_pf = va.get("pf", 2, 2)
    va_pfinc = va.get("pfinc")
    vstamp = va.get("stamp")
    NSP = 3
    acc = [[va.get(f"acc{t}{c}", 4, 4) for c in range(4)] for t in range(8)]
    acce = [va.get(f"acce{i}", 4, 4) for i in range(2)]
    xf = [va.get(f"xf{t}", 4, 4) for t in range(8)]
    xs = [va.get(f"xs{t}", 4, 4) for t in range(NSP)]
    wf = [[va.get(f"wf{b}{c}", 4, 4) for c in range(4)] for b in range(2)]
    xe = [va.get(f"xef{i}", 4, 4) for i in range(2)]
    we = va.get("wef", 4, 4)
    nv = va.next
    vLX = [xf[0] + i for i in range(4)]
    vLW = [xf[1] + i for i in range(4)] + [xf[2] + i for i in range(4)]
    vLE = xf[3]
    sX, sWd, sE, sWS = 8, 12, 16, 20
    sWave, sXcd, sRB, sCB, sType, sLdw = 24, 25, 26, 27, 28, 29
    sT0, sT1, sT2, sT3 = 30, 31, 32, 33
    sCnt, sDelta, sSlot, sXo, sWo, sEo, sM0x, sM0w, sM0e, sOut, sOutE, sCneg, sWstep = 34, 35, 36, 37, 38, 39, 40, 41, 42, 43, 44, 45, 46
    sC = 56
    sP = 48
    N = name
    A.raw(kernel_head(name).rstrip("\n"))
    if o.get("stamp"): A("s_memtime s[60:61]\ns_memrealtime s[62:63]")
    A(f"""s_cmp_ge_u32 s2, 256
    s_cbranch_scc1 L_{N}_end
    s_and_b32 s{sXcd}, s2, 7
    s_lshr_b32 s{sT0}, s2, 3
    s_and_b32 s{sRB}, s{sT0}, 7
    s_lshr_b32 s{sCB}, s{sT0}, 3
    s_load_dwordx2 s[{sP+6}:{sP+7}], s[0:1], {KA_WS}
    v_lshrrev_b32 v{vt0}, 6, v{vtid}
    v_and_b32 v{vtid}, 63, v{vtid}
    v_readfirstlane_b32 s{sWave}, v{vt0}
    s_cmp_lt_u32 s{sXcd}, 2
    s_cbranch_scc1 L_{N}_typeA
    s_load_dwordx2 s[{sP}:{sP+1}], s[0:1], {KA_BX}
    s_load_dwordx2 s[{sP+2}:{sP+3}], s[0:1], {KA_BWQKV}
    s_load_dwordx2 s[{sP+4}:{sP+5}], s[0:1], {KA_BWQKV}
    s_sub_u32 s{sT0}, s{sXcd}, 2
    s_and_b32 s{sT1}, s{sT0}, 1
    s_lshl_b32 s{sT1}, s{sT1}, 3
    s_add_u32 s{sRB}, s{sRB}, s{sT1}
    s_lshr_b32 s{sType}, s{sT0}, 1          ; 0 Q, 1 K, 2 V
    s_mov_b32 s{sLdw}, 6144
    s_lshl_b32 s{sT2}, s{sType}, 11
    s_lshl_b32 s{sT3}, s{sCB}, 9
    s_add_u32 s{sT2}, s{sT2}, s{sT3}
    s_mov_b32 s{sT3}, {1024*6144}
    s_mov_b32 s{sEo}, 0
    s_branch L_{N}_typed
    L_{N}_typeA:
    s_load_dwordx2 s[{sP}:{sP+1}], s[0:1], {KA_AX}
    s_load_dwordx2 s[{sP+2}:{sP+3}], s[0:1], {KA_AWQ}
    s_cmp_lt_u32 s{sCB}, 2
    s_cbranch_scc1 L_{N}_typeAK
    s_load_dwordx2 s[{sP+4}:{sP+5}], s[0:1], {KA_AWV}
    s_mov_b32 s{sType}, 4
    s_branch L_{N}_typeA2
    L_{N}_typeAK:
    s_load_dwordx2 s[{sP+4}:{sP+5}], s[0:1], {KA_AWK}
    s_mov_b32 s{sType}, 3
    L_{N}_typeA2:
    s_lshl_b32 s{sT1}, s{sXcd}, 3
    s_add_u32 s{sRB}, s{sRB}, s{sT1}
    s_mov_b32 s{sLdw}, 2048
    s_lshl_b32 s{sT2}, s{sCB}, 9
    s_mov_b32 s{sT3}, {1024*2048}
    s_and_b32 s{sEo}, s{sCB}, 1
    s_lshl_b32 s{sEo}, s{sEo}, 5
    L_{N}_typed:
    s_waitcnt lgkmcnt(0)
    s_lshl_b32 s{sT1}, s{sRB}, 18
    s_add_u32 s{sX}, s{sP}, s{sT1}
    s_addc_u32 s{sX+1}, s{sP+1}, 0
    s_and_b32 s{sX+1}, s{sX+1}, 0xffff
    s_mov_b32 s{sX+2}, 262144
    s_mov_b32 s{sX+3}, 0x20000
    s_add_u32 s{sWd}, s{sP+2}, s{sT2}
    s_addc_u32 s{sWd+1}, s{sP+3}, 0
    s_and_b32 s{sWd+1}, s{sWd+1}, 0xffff
    s_sub_u32 s{sWd+2}, s{sT3}, s{sT2}
    s_mov_b32 s{sWd+3}, 0x20000
    ; SRD E
    s_mov_b32 s{sE}, s{sP+4}
    s_and_b32 s{sE+1}, s{sP+5}, 0xffff
    s_mov_b32 s{sE+2}, 65536
    s_mov_b32 s{sE+3}, 0x20000
    s_mov_b32 s{sWS}, s{sP+6}
    s_and_b32 s{sWS+1}, s{sP+7}, 0xffff
    s_mov_b32 s{sWS+2}, {WS_END + (262144 if o.get('stamp') else 0)}
    s_mov_b32 s{sWS+3}, 0x20000
    """)
    if o.get("stamp"): A("s_memtime s[84:85]\ns_waitcnt lgkmcnt(0)")
    A(f"""s_cmp_lt_u32 s{sWave}, 4
    s_cbranch_scc1 L_{N}_compute""")
    l = vtid
    A(f"L_{N}_loader:")
    LX0, LX1 = vLX[0], vLX[1]
    A(f"""s_sub_u32 s{sWave}, s{sWave}, 4
    v_lshrrev_b32 v{vt0}, 3, v{l}
    v_lshrrev_b32 v{vt1}, 4, v{l}
    v_and_b32 v{vt2}, 7, v{l}
    v_xor_b32 v{vt1}, v{vt1}, v{vt2}
    s_lshl_b32 s{sT0}, s{sWave}, 16
    v_lshlrev_b32 v{vt1}, 4, v{vt1}
    v_lshl_add_u32 v{LX0}, v{vt0}, 11, v{vt1}
    v_add_u32 v{LX0}, s{sT0}, v{LX0}
    v_xor_b32 v{LX1}, 64, v{LX0}
    s_mov_b32 s{sXo}, 0
    s_lshl_b32 s{sM0x}, s{sWave}, 12
    s_mov_b32 s{sSlot}, 0
    v_lshrrev_b32 v{vt0}, 5, v{l}
    v_and_b32 v{vt2}, 31, v{l}
    v_lshlrev_b32 v{vt1}, 1, v{vt0}
    v_xor_b32 v{vt1}, v{vt1}, v{vt2}
    s_lshl_b32 s{sT0}, s{sWave}, 4
    v_add_u32 v{vt0}, s{sT0}, v{vt0}
    v_mul_lo_u32 v{vt0}, v{vt0}, s{sLdw}
    v_lshl_add_u32 v{vLW[0]}, v{vt1}, 4, v{vt0}
    v_xor_b32 v{vLW[1]}, 64, v{vLW[0]}
    v_xor_b32 v{vLW[2]}, 0x80, v{vLW[0]}
    v_xor_b32 v{vLW[3]}, 0xc0, v{vLW[0]}
    s_mov_b32 s{sWo}, 0
    s_lshl_b32 s{sWstep}, s{sLdw}, 6
    s_lshl_b32 s{sT3}, s{sLdw}, 1
    s_lshl_b32 s{sM0w}, s{sWave}, 13
    s_add_u32 s{sM0w}, s{sM0w}, {WOFF}
    s_cmp_ge_u32 s{sType}, 3
    s_cbranch_scc0 L_{N}_ldB
    s_lshl_b32 s{sT0}, s{sWave}, 4
    v_lshrrev_b32 v{vt0}, 1, v{l}
    v_and_b32 v{vt0}, 15, v{vt0}
    v_add_u32 v{vt0}, s{sT0}, v{vt0}           ; position p
    v_lshrrev_b32 v{vt1}, 1, v{vt0}
    v_and_b32 v{vt1}, 4, v{vt1}
    v_xor_b32 v{vt0}, v{vt0}, v{vt1}
    v_and_b32 v{vt1}, 1, v{l}
    v_lshlrev_b32 v{vt1}, 4, v{vt1}
    v_lshl_add_u32 v{vLE}, v{vt0}, 6, v{vt1}
    v_add_u32 v{vLE}, s{sEo}, v{vLE}
    s_mov_b32 s{sEo}, 0
    s_lshl_b32 s{sM0e}, s{sWave}, 9
    s_add_u32 s{sM0e}, s{sM0e}, {EOFF}
    s_branch L_{N}_ldA""")
    def dma(extra):
        A(f"s_add_u32 m0, s{sSlot}, s{sM0x}")
        for i in range(4):
            if i: A("s_add_u32 m0, m0, 1024")
            A(f"s_add_u32 s{sT0}, s{sXo}, {i*16384}")
            A(f"buffer_load_dwordx4 v{[LX0,LX1][(i ^ (i>>1)) & 1]}, s[{sX}:{sX+3}], s{sT0} offen {o.get('xfl','')} lds")
        A(f"s_add_u32 m0, s{sSlot}, s{sM0w}")
        A(f"s_mov_b32 s{sT0}, s{sWo}")
        for i in range(8):
            if i:
                A("s_add_u32 m0, m0, 1024")
                A(f"s_add_u32 s{sT0}, s{sT0}, s{sT3}")
            A(f"buffer_load_dwordx4 v{vLW[(i&1) + 2*(i>>2)]}, s[{sWd}:{sWd+3}], s{sT0} offen {o.get('wfl','')} lds")
        if extra:
            A(f"s_add_u32 m0, s{sSlot}, s{sM0e}")
            A("s_mov_b32 exec_hi, 0")
            A(f"buffer_load_dwordx4 v{vLE}, s[{sE}:{sE+3}], s{sEo} offen lds")
            A("s_mov_b32 exec_hi, -1")
            A(f"s_add_u32 s{sEo}, s{sEo}, 4096")
        A(f"""s_add_u32 s{sXo}, s{sXo}, 128
        s_add_u32 s{sWo}, s{sWo}, s{sWstep}
        s_add_u32 s{sSlot}, s{sSlot}, {SLOT}
        s_cmp_eq_u32 s{sSlot}, {3*SLOT}
        s_cselect_b32 s{sSlot}, 0, s{sSlot}""")
    for tag, extra in (("ldB", False), ("ldA", True)):
        PER = 13 if extra else 12
        A(f"L_{N}_{tag}:")
        pre = o.get("predma", 1)
        if o.get("stamp"): A("s_memtime s[86:87]")
        for _ in range(pre): dma(extra)
        if o.get("stamp"): A("s_memtime s[88:89]")
        A(f"s_waitcnt vmcnt({(pre-1)*PER})")
        if o.get("stamp"):
            A(f"""s_memtime s[90:91]
            s_waitcnt lgkmcnt(0)
            s_sub_u32 s84, s84, s60
            s_sub_u32 s86, s86, s60
            s_sub_u32 s88, s88, s60
            s_sub_u32 s90, s90, s60
            v_mov_b32 v{acc[0][0]}, s84
            v_mov_b32 v{acc[0][0]+1}, s86
            v_mov_b32 v{acc[0][0]+2}, s88
            v_mov_b32 v{acc[0][0]+3}, s90
            v_mov_b32 v{vt4}, 0
            s_lshl_b32 s68, s2, 3
            s_add_u32 s68, s68, s{sWave}
            s_add_u32 s68, s68, 4
            s_lshl_b32 s68, s68, 4
            s_add_u32 s68, s68, {WS_END}""")
        A("s_barrier")
        if o.get("stamp"): A(f"buffer_store_dwordx4 v[{acc[0][0]}:{acc[0][0]+3}], v{vt4}, s[{sWS}:{sWS+3}], s68 offen")
        for _ in range(3-pre): dma(extra)
        A(f"s_mov_b32 s{sCnt}, {NST-3}")
        A(f"L_{N}_{tag}_loop:")
        A(f"s_waitcnt vmcnt({PER})\ns_barrier")
        dma(extra)
        A(f"""s_sub_u32 s{sCnt}, s{sCnt}, 1
        s_cmp_lg_u32 s{sCnt}, 0
        s_cbranch_scc1 L_{N}_{tag}_loop
        s_waitcnt vmcnt({PER})
        s_barrier
        s_waitcnt vmcnt(0)
        s_barrier
        s_branch L_{N}_lend""")
    A(f"L_{N}_compute:")
    l = vtid
    PF = o.get("prefetch", True)
    PFD = 4
    sPfN = 79
    vpa = va_pf; vpinc = va_pfinc
    if PF:
        A(f"""s_lshr_b32 s{sT1}, s2, 3              ; j
        s_lshr_b32 s{sT0}, s{sRB}, 3
        s_lshl_b32 s{sT0}, s{sT0}, 21
        s_add_u32 s72, s{sP}, s{sT0}
        s_addc_u32 s73, s{sP+1}, 0
        s_lshl_b32 s{sT0}, s{sType}, 11
        s_cmp_ge_u32 s{sType}, 3
        s_cselect_b32 s{sT0}, 0, s{sT0}
        s_add_u32 s74, s{sP+2}, s{sT0}
        s_addc_u32 s75, s{sP+3}, 0
        s_lshl_b32 s{sT2}, s{sT1}, 5
        v_and_b32 v{vt0}, 31, v{l}
        v_add_u32 v{vt0}, s{sT2}, v{vt0}
        v_lshlrev_b32 v{vt0}, 11, v{vt0}
        s_lshl_b32 s{sT2}, s{sT1}, 1
        v_bfe_u32 v{vt1}, v{l}, 4, 1
        v_add_u32 v{vt1}, s{sT2}, v{vt1}
        v_mul_lo_u32 v{vt1}, v{vt1}, s{sLdw}
        v_and_b32 v{vt2}, 15, v{l}
        v_lshl_add_u32 v{vt1}, v{vt2}, 7, v{vt1}
        s_lshl_b32 s{sT2}, s{sLdw}, 6
        v_mov_b32 v{vpinc}, 0x80
        v_mov_b32 v{vt2}, s{sT2}
        v_mov_b32 v{vt3}, s72
        v_mov_b32 v{vt4}, s73
        v_mov_b32 v{vpa}, s74
        v_mov_b32 v{vpa+1}, s75
        v_cmp_gt_u32 vcc, 32, v{l}
        s_nop 1
        v_cndmask_b32 v{vpinc}, v{vt2}, v{vpinc}, vcc
        v_cndmask_b32 v{vt0}, v{vt1}, v{vt0}, vcc
        v_cndmask_b32 v{vpa}, v{vpa}, v{vt3}, vcc
        v_cndmask_b32 v{vpa+1}, v{vpa+1}, v{vt4}, vcc
        v_mul_lo_u32 v{vt1}, v{vpinc}, s{sWave}
        v_add_u32 v{vt0}, v{vt0}, v{vt1}
        v_add_co_u32 v{vpa}, vcc, v{vpa}, v{vt0}
        v_lshlrev_b32 v{vpinc}, 2, v{vpinc}
        s_mov_b32 s{sPfN}, 3
        v_addc_co_u32 v{vpa+1}, vcc, 0, v{vpa+1}, vcc
        s_mov_b32 s78, s{sWave}""")
    def pf_one():
        return f"""global_load_dword v{vdum}, v[{vpa}:{vpa+1}], off {o.get('pfl','')}
        v_add_co_u32 v{vpa}, vcc, v{vpa}, v{vpinc}
        s_nop 1
        v_addc_co_u32 v{vpa+1}, vcc, 0, v{vpa+1}, vcc"""
    def pf_first():
        if PF: A(pf_one())
    if o.get("pfpos", "early") == "early": pf_first()
    if o.get("codepf", True):
        A(f"s_lshr_b32 s{sT0}, s2, 3\ns_and_b32 s{sT0}, s{sT0}, 3\ns_cmp_lg_u32 s{sWave}, 3\ns_cbranch_scc1 L_{N}_nocp")
        code_prefetch(A, N, name, o.get("codebytes", 28000), sT0, vt0, vdum, l, 74)
        A(f"L_{N}_nocp:")
    def pf_inloop(tag):
        return [f"""s_cmp_lg_u32 s78, 0
        s_cbranch_scc1 L_{N}_{tag}_pfs
        s_mov_b32 s78, 4
        s_cmp_eq_u32 s{sPfN}, 0
        s_cbranch_scc1 L_{N}_{tag}_pfs
        s_sub_u32 s{sPfN}, s{sPfN}, 1
        {pf_one()}
        L_{N}_{tag}_pfs:
        s_sub_u32 s78, s78, 1"""] if PF else []
    A(f"""v_and_b32 v{vt0}, 15, v{l}          ; n
    v_lshrrev_b32 v{vt1}, 4, v{l}         ; g
    v_lshlrev_b32 v{vst}, 9, v{vt1}
    v_lshl_add_u32 v{vst}, v{vt0}, 4, v{vst}
    v_lshrrev_b32 v{vt2}, 1, v{vt0}
    v_xor_b32 v{vt2}, v{vt2}, v{vt1}
    v_lshlrev_b32 v{vt2}, 4, v{vt2}
    v_lshl_add_u32 v{vt3}, v{vt0}, 7, v{vt2}      ; n*128 + swz*16  ( == (n>>3)*1024 + (n&7)*128 + ..)
    v_and_b32 v{vt2}, 7, v{vt0}
    v_lshrrev_b32 v{vt4}, 1, v{vt2}
    v_xor_b32 v{vt4}, v{vt4}, v{vt1}
    v_lshlrev_b32 v{vt2}, 7, v{vt2}
    v_lshrrev_b32 v{vst+0 if False else vXE[1]}, 3, v{vt0}     ; n>>3
    v_lshlrev_b32 v{vXE[0]}, 2, v{vXE[1]}
    v_xor_b32 v{vt4}, v{vt4}, v{vXE[0]}
    v_lshl_add_u32 v{vt2}, v{vt4}, 4, v{vt2}
    v_lshl_add_u32 v{vt4}, v{vXE[1]}, 11, v{vt2}
    s_lshl_b32 s{sT0}, s{sWave}, 12
    s_cmp_eq_u32 s{sType}, 2
    s_cbranch_scc1 L_{N}_xperm
    v_mov_b32 v{vXA[0]}, v{vt3}
    s_branch L_{N}_xdone
    L_{N}_xperm:
    v_mov_b32 v{vXA[0]}, v{vt4}
    L_{N}_xdone:
    v_xor_b32 v{vXA[1]}, 64, v{vXA[0]}
    s_cmp_eq_u32 s{sType}, 4
    s_cbranch_scc1 L_{N}_eperm
    v_add_u32 v{vXE[0]}, s{sT0}, v{vt3}
    s_branch L_{N}_edone
    L_{N}_eperm:
    v_add_u32 v{vXE[0]}, s{sT0}, v{vt4}
    L_{N}_edone:
    v_xor_b32 v{vXE[1]}, 64, v{vXE[0]}
    v_lshrrev_b32 v{vt2}, 2, v{vt0}               ; i>>2
    v_and_b32 v{vt3}, 1, v{vt1}
    v_lshl_or_b32 v{vt3}, v{vt3}, 2, v{vt2}
    v_lshlrev_b32 v{vt3}, 1, v{vt3}               ; f
    v_lshl_add_u32 v{vt2}, v{vt1}, 3, v{vt2}      ; row
    v_lshlrev_b32 v{vt4}, 9, v{vt2}               ; row*512
    v_and_b32 v{vWE[1]}, 1, v{vt0}
    v_lshl_add_u32 v{vt4}, v{vWE[1]}, 3, v{vt4}   ; + 8*(i&1)
    v_add_u32 v{vt4}, {WOFF}, v{vt4}
    v_bfe_u32 v{vWE[1]}, v{vt0}, 1, 1             ; (i&3)>>1
    s_lshl_b32 s{sT1}, s{sWave}, 3
    v_add_u32 v{vWE[1]}, s{sT1}, v{vWE[1]}
    """)
    for ct in range(4):
        A(f"""v_add_u32 v{vWA[ct]}, {2*ct}, v{vWE[1]}
        v_xor_b32 v{vWA[ct]}, v{vWA[ct]}, v{vt3}
        v_lshl_add_u32 v{vWA[ct]}, v{vWA[ct]}, 4, v{vt4}""")
    A(f"""; ---- WE address: EOFF + row*32 + (i&3)*8 + ((q ^ (g&1))*128)
    v_lshlrev_b32 v{vt4}, 5, v{vt2}
    v_and_b32 v{vt2}, 3, v{vt0}
    v_lshl_add_u32 v{vt4}, v{vt2}, 3, v{vt4}
    v_add_u32 v{vt4}, {EOFF}, v{vt4}
    v_and_b32 v{vt2}, 1, v{vt1}
    v_lshl_add_u32 v{vWE[0]}, v{vt2}, 7, v{vt4}
    v_xor_b32 v{vt2}, 1, v{vt2}
    v_lshl_add_u32 v{vWE[1]}, v{vt2}, 7, v{vt4}
    s_mov_b32 s{sC}, {CSC}
    s_mov_b32 s{sCneg}, {(-2*SLOT) & 0xffffffff}
    """)
    for t in range(8):
        for c in range(4):
            for r in range(4): A(f"v_mov_b32 v{acc[t][c]+r}, 0")
    for i in range(2):
        for r in range(4): A(f"v_mov_b32 v{acce[i]+r}, 0")
    A(f"s_mov_b32 s{sSlot}, 0")
    if o.get("pfpos", "early") == "late": pf_first()
    A("s_barrier")

    def xreg(tt, par):
        sp = tt - (8 - NSP)
        if sp >= 0 and par == 1: return xs[sp]
        return xf[tt]
    def rdX(tt, ks, par, perm):
        if perm: T, ab = tt >> 1, tt & 1; a = vXA[(ks ^ ab) & 1]; off = XOFF + T*4096 + ab*1024
        else: a = vXA[(ks ^ tt) & 1]; off = XOFF + tt*2048
        r = xreg(tt, par)
        return f"ds_read_b128 v[{r}:{r+3}], v{a} offset:{off}"
    def rdW(ct, q, ks, par):
        r = wf[par][ct] + 2*q
        return f"ds_read_b64_tr_b16 v[{r}:{r+1}], v{vWA[ct]} offset:{ks*16384 + q*2048}"
    def rdXE(i, ks, perm):
        a = vXE[(ks ^ i) & 1]; off = XOFF + (i*1024 if perm else i*2048)
        return f"ds_read_b128 v[{xe[i]}:{xe[i]+3}], v{a} offset:{off}"
    def rdWE(q, ks):
        return f"ds_read_b64_tr_b16 v[{we+2*q}:{we+2*q+1}], v{vWE[q]} offset:{ks*1024}"
    def mf(d, a, b): return f"v_mfma_f32_16x16x32_bf16 v[{d}:{d+3}], v[{a}:{a+3}], v[{b}:{b+3}], v[{d}:{d+3}]"

    def step(ks, vtype, extra, nxt, inter=()):
        par = ks; npar = ks ^ 1; nks = ks ^ 1
        after = {}
        def put(m, s): after.setdefault(m, []).append(s)
        seq = []
        if extra:
            for i in range(2):
                seq.append(mf(acce[i], we, xe[i]) if extra == "K" else mf(acce[i], xe[i], we))
        ne = len(seq)
        for tt in range(8):
            for ct in range(4):
                x = xreg(tt, par); w = wf[par][ct]
                seq.append(mf(acc[tt][ct], x, w) if vtype else mf(acc[tt][ct], w, x))
        if nxt:
            m = 0
            if extra:
                put(1, rdWE(0, nks)); put(1, rdWE(1, nks)); put(2, rdXE(0, nks, extra == "V")); put(3, rdXE(1, nks, extra == "V"))
            for k in range(8): put(ne + k, rdW(k >> 1, k & 1, nks, npar))
            put(ne+3, rdX(0, nks, npar, vtype)); put(ne+7, rdX(1, nks, npar, vtype))
            put(ne+8, rdX(5, nks, npar, vtype)); put(ne+9, rdX(6, nks, npar, vtype)); put(ne+10, rdX(7, nks, npar, vtype))
            put(ne+11, rdX(2, nks, npar, vtype)); put(ne+15, rdX(3, nks, npar, vtype)); put(ne+19, rdX(4, nks, npar, vtype))
        inter = list(inter)
        for m, s in enumerate(seq):
            A(s)
            for x in after.get(m, []): A(x)
            if inter and m >= ne + 20: A(inter.pop(0))
        for x in inter: A(x)

    def compute(tag, vtype, extra):
        for ct in range(4):
            for q in range(2): A(rdW(ct, q, 0, 0))
        A("s_waitcnt lgkmcnt(4)")
        for tt in range(8): A(rdX(tt, 0, 0, vtype))
        if extra:
            A("s_waitcnt lgkmcnt(8)")
            for q in range(2): A(rdWE(q, 0))
            for i in range(2): A(rdXE(i, 0, extra == "V"))
        A(f"s_mov_b32 s{sCnt}, {NST-1}")
        if o.get("stamp"): A("s_memtime s[70:71]")
        A(f".p2align 6\nL_{N}_{tag}_loop:")
        A("s_waitcnt lgkmcnt(0)")
        A(f"""s_add_u32 s{sSlot}, s{sSlot}, 1
        s_cmp_eq_u32 s{sSlot}, 3
        s_cselect_b32 s{sDelta}, s{sCneg}, {SLOT}
        s_cselect_b32 s{sSlot}, 0, s{sSlot}""")
        regs = vXA + vWA + ((vXE + vWE) if extra else [])
        step(0, vtype, extra, "same", [f"v_add_u32 v{r}, s{sDelta}, v{r}" for r in regs] + pf_inloop(tag))
        A("s_waitcnt lgkmcnt(0)\ns_barrier")
        if o.get("stagestamp"):
            A(f"""s_memtime s[80:81]
            s_waitcnt lgkmcnt(0)
            s_sub_u32 s80, s80, s60
            s_sub_u32 s82, 15, s{sCnt}
            s_mov_b32 m0, s82
            v_writelane_b32 v{vdum+0 if False else vstamp}, s80, m0""")
        step(1, vtype, extra, "next", [f"s_sub_u32 s{sCnt}, s{sCnt}, 1", f"s_cmp_lg_u32 s{sCnt}, 0"])
        A(f"s_cbranch_scc1 L_{N}_{tag}_loop")
        A("s_waitcnt lgkmcnt(0)")
        step(0, vtype, extra, "same")
        A("s_waitcnt lgkmcnt(0)")
        step(1, vtype, extra, None)
        if o.get("stamp"): A("s_memtime s[72:73]\ns_waitcnt lgkmcnt(0)")
        A("s_nop 7")

    def epilogue(kind, extra):
        tmp = xf[0]
        stride = 2048
        for hh in range(2):
            for T in range(4):
                A(f"s_add_u32 s{sT0}, s{sOut}, {(hh*64 + T)*stride}")
                for th in range(2):
                    if kind == "V": srcs = [acc[2*T][2*hh+th], acc[2*T+1][2*hh+th]]
                    else: srcs = [acc[2*T+th][2*hh], acc[2*T+th][2*hh+1]]
                    d = tmp + 4*((T*2+th) % 4)
                    if kind == "Q":
                        for s_ in srcs:
                            A(f"v_pk_mul_f32 v[{s_}:{s_+1}], v[{s_}:{s_+1}], s[{sC}:{sC+1}]")
                            A(f"v_pk_mul_f32 v[{s_+2}:{s_+3}], v[{s_+2}:{s_+3}], s[{sC}:{sC+1}]")
                    for k, s_ in enumerate(srcs):
                        A(f"v_cvt_pk_bf16_f32 v{d+2*k}, v{s_}, v{s_+1}")
                        A(f"v_cvt_pk_bf16_f32 v{d+2*k+1}, v{s_+2}, v{s_+3}")
                    A(f"buffer_store_dwordx4 v[{d}:{d+3}], v{vst}, s[{sWS}:{sWS+3}], s{sT0} offen offset:{th*256} {o.get('stflags','')}")
        if extra == "K":
            d = wf[0][0]
            for th in range(2):
                A(f"v_cvt_pk_bf16_f32 v{d+2*th}, v{acce[th]}, v{acce[th]+1}")
                A(f"v_cvt_pk_bf16_f32 v{d+2*th+1}, v{acce[th]+2}, v{acce[th]+3}")
                A(f"buffer_store_dwordx2 v[{d+2*th}:{d+2*th+1}], v{vst}, s[{sWS}:{sWS+3}], s{sOutE} offen offset:{th*256}")
        elif extra == "V":
            d = wf[0][0]
            for k in range(2):
                A(f"v_cvt_pk_bf16_f32 v{d+2*k}, v{acce[k]}, v{acce[k]+1}")
                A(f"v_cvt_pk_bf16_f32 v{d+2*k+1}, v{acce[k]+2}, v{acce[k]+3}")
            A(f"buffer_store_dwordx4 v[{d}:{d+3}], v{vst}, s[{sWS}:{sWS+3}], s{sOutE} offen")
        A(f"s_branch L_{N}_done")

    A(f"""s_lshl_b32 s{sT0}, s{sCB}, 3
    s_lshl_b32 s{sT1}, s{sWave}, 1
    s_add_u32 s{sT0}, s{sT0}, s{sT1}        ; head0
    s_lshl_b32 s{sT0}, s{sT0}, 6
    s_lshl_b32 s{sT1}, s{sRB}, 2
    s_add_u32 s{sT0}, s{sT0}, s{sT1}        ; head0*64 + T0
    s_add_u32 s{sT1}, s{sT1}, s{sWave}
    s_lshl_b32 s{sOutE}, s{sT1}, 11
    s_add_u32 s{sOutE}, s{sOutE}, {WS_KA}
    s_mov_b32 s{sC+1}, s{sC}
    s_cmp_eq_u32 s{sType}, 0
    s_cbranch_scc1 L_{N}_cBQ
    s_cmp_eq_u32 s{sType}, 1
    s_cbranch_scc1 L_{N}_cBK
    s_cmp_eq_u32 s{sType}, 2
    s_cbranch_scc1 L_{N}_cBV
    s_lshl_b32 s{sOut}, s{sT0}, 11
    s_add_u32 s{sOut}, s{sOut}, {WS_QA}
    s_cmp_eq_u32 s{sType}, 3
    s_cbranch_scc1 L_{N}_cAK
    s_lshl_b32 s{sT1}, s{sEo}, 3
    s_add_u32 s{sOutE}, s{sOutE}, s{sT1}
    s_add_u32 s{sOutE}, s{sOutE}, {WS_VA-WS_KA}""")
    compute("av", False, "V"); epilogue("Q", "V")
    A(f"""L_{N}_cAK:
    s_lshr_b32 s{sT1}, s{sEo}, 2
    s_add_u32 s{sOutE}, s{sOutE}, s{sT1}""")
    compute("ak", False, "K"); epilogue("Q", "K")
    A(f"""L_{N}_cBQ:
    s_lshl_b32 s{sOut}, s{sT0}, 11
    s_add_u32 s{sOut}, s{sOut}, {WS_QB}""")
    A(f"s_branch L_{N}_cBQK")
    A(f"""L_{N}_cBK:
    s_lshl_b32 s{sOut}, s{sT0}, 11
    s_add_u32 s{sOut}, s{sOut}, {WS_KB}
    L_{N}_cBQK:""")
    compute("bqk", False, None)
    A(f"""s_cmp_eq_u32 s{sType}, 1
    s_cbranch_scc1 L_{N}_eBK""")
    epilogue("Q", None)
    A(f"L_{N}_eBK:")
    epilogue("K", None)
    A(f"""L_{N}_cBV:
    s_lshl_b32 s{sOut}, s{sT0}, 11
    s_add_u32 s{sOut}, s{sOut}, {WS_VB}""")
    compute("bv", True, None); epilogue("V", None)

    A(f"L_{N}_done:")
    if o.get("stamp"):
        A(f"""s_memtime s[64:65]
        s_memrealtime s[66:67]
        s_waitcnt lgkmcnt(0)
        s_sub_u32 s64, s64, s60
        s_sub_u32 s66, s66, s62
        s_lshl_b32 s68, s2, 3
        s_add_u32 s68, s68, s{sWave}
        s_lshl_b32 s68, s68, 4
        s_add_u32 s68, s68, {WS_END}
        v_mov_b32 v{xs[0]}, s64
        v_mov_b32 v{xs[0]+1}, s66
        v_mov_b32 v{xs[0]+2}, s62
        s_sub_u32 s70, s70, s60
        s_sub_u32 s72, s72, s60
        s_lshr_b32 s70, s70, 2
        s_lshr_b32 s72, s72, 2
        s_lshl_b32 s72, s72, 16
        s_or_b32 s70, s70, s72
        v_mov_b32 v{xs[0]+3}, s70
        v_mov_b32 v{vt0}, 0
        buffer_store_dwordx4 v[{xs[0]}:{xs[0]+3}], v{vt0}, s[{sWS}:{sWS+3}], s68 offen""")
        if o.get("stagestamp"):
            A(f"""s_lshl_b32 s68, s2, 2
            s_add_u32 s68, s68, s{sWave}
            s_lshl_b32 s68, s68, 6
            s_add_u32 s68, s68, {WS_END + 196608}
            v_lshlrev_b32 v{vt0}, 2, v{vtid}
            s_mov_b64 exec, 0xffff
            buffer_store_dword v{vstamp}, v{vt0}, s[{sWS}:{sWS+3}], s68 offen
            s_mov_b64 exec, -1""")
    A(f"""s_waitcnt vmcnt(0)
    L_{N}_lend:
    L_{N}_end:
    s_endpgm""")
    return A.text() + kernel_desc(name, nv), dict(name=name, grid=256, block=512, lds=3*SLOT, nv=nv)

if __name__ == "__main__":
    import hz
    from build import build
    t, i = gen_proj(opts=dict(stamp=True))
    print(i)
    ps = hz.check_hazards(t)
    for p in ps[:30]: print(p)
    ws = hz.check_waits(t, i["name"], max_back=1)
    for p in ws[:30]: print(p)
    print(len(ps), len(ws))
    build([(t, i)], "proj_only.s")
```

```python
import sys; sys.path.insert(0,"dev")
from build import build
import hz, importlib
import proj, attn, attn2, oproj
def make(path, stamp=False, po=None, ao=None, oo=None, check=True):
    po = dict(po or {}); ao = dict(ao or {}); oo = dict(oo or {})
    if stamp: po["stamp"] = ao["stamp"] = oo["stamp"] = True
    parts = [proj.gen_proj(opts=po), (attn.gen_attn(opts=ao) if ao.get('v1') else attn2.gen_attn2(opts=ao)), oproj.gen_oproj(opts=oo)]
    if check:
        for t, i in parts:
            ps = hz.check_hazards(t); ws = hz.check_waits(t, i["name"], max_back=1)
            for p in (ps + ws)[:20]: print("!!", p)
            print(i, "hazards", len(ps), "waits", len(ws))
    build(parts, path)
if __name__ == "__main__":
    CFG = dict(po=dict(stflags="sc0 sc1", pfl="nt", predma=2, pfpos="late"), ao=dict(), oo=dict())
    make("concat_heads__grouped_kv_mqa__mha_block__prompt.s", **CFG)
    make("all_stamp.s", stamp=True, check=False, **CFG)
```

```python
from kgen import *

def gen_attn2(name="attn_kernel", NSLOT=3, TPC=8, opts=None):
    o = opts or {}
    A = Asm()
    NQ = 4
    CH = TPC * 4096
    NCH = 64 // TPC
    FLAG = NSLOT * CH
    va = VAlloc(0)
    vtid = va.get("tid")
    vl16 = va.get("l16")
    vcur = va.get("cur"); vnxt = va.get("nxt")
    vt0 = va.get("t0", 1, 4); vt1 = va.get("t1"); vt2 = va.get("t2"); vt3 = va.get("t3")
    vidx = va.get("idx")
    val = va.get("alpha")
    vdum = va.get("dummy")
    vm = [va.get(f"m{i}") for i in range(NQ)]
    vsel = va.get("sel", 4, 4)
    Q = [[va.get(f"q{i}{h}", 4, 4) for h in range(2)] for i in range(NQ)]
    O = [va.get(f"o{i}", 16, 4) for i in range(NQ)]
    L = [va.get(f"l{i}", 4, 4) for i in range(NQ)]
    S = [va.get(f"s{i}", 16, 4) for i in range(2)]
    P = [va.get(f"p{i}", 8, 4) for i in range(2)]
    K = [va.get(f"k{i}", 8, 4) for i in range(2)]
    V = [va.get(f"v{i}", 8, 4) for i in range(2)]
    nv = va.next
    vdma = Q[0][0]
    sWS, sKV, sW = 4, 8, 12
    sWave, sSoff, sM0, sCnt, sQ, sO, sNxt, sMode, sT0, sT1 = 16, 17, 18, 19, 20, 21, 22, 23, 24, 25
    sT2, sT3 = 26, 27
    N = name
    PER = CH // 4 // 1024
    FUSED = o.get("fused")
    if not FUSED: A.raw(kernel_head(name).rstrip("\n"))
    if o.get("stamp"): A("s_memtime s[40:41]\ns_memrealtime s[42:43]")
    if FUSED:
        A(f"""s_load_dwordx2 s[{sWS}:{sWS+1}], s[0:1], {KA_WS}
        v_and_b32 v{vl16}, 63, v{vtid}
        s_mov_b32 s{sWave}, s{S_WAVE}""")
    else:
        A(f"""s_cmp_ge_u32 s2, 256
        s_cbranch_scc1 L_{N}_end
        s_load_dwordx2 s[{sWS}:{sWS+1}], s[0:1], {KA_WS}
        v_lshrrev_b32 v{vt0}, 6, v{vtid}
        v_and_b32 v{vl16}, 63, v{vtid}
        v_readfirstlane_b32 s{sWave}, v{vt0}""")
    A(f"""v_lshlrev_b32 v{vl16}, 4, v{vl16}
    s_and_b32 s{sT0}, s2, 7
    s_lshr_b32 s{sT1}, s2, 3
    s_lshl_b32 s{sT0}, s{sT0}, 3
    s_lshr_b32 s{sT2}, s{sT1}, 2
    s_add_u32 s{sT0}, s{sT0}, s{sT2}      ; bh
    s_and_b32 s{sT1}, s{sT1}, 3           ; qb
    s_and_b32 s{sT2}, s{sT0}, 31          ; head
    s_lshr_b32 s{sT0}, s{sT0}, 5          ; branch
    s_mov_b32 s28, s{sT2}
    s_mov_b32 s29, s{sT0}
    s_mov_b32 s30, s{sT1}
    s_cmp_lt_u32 s{sWave}, 4
    s_cbranch_scc1 L_{N}_compute""")
    A(f"""L_{N}_loader:
    s_sub_u32 s{sWave}, s{sWave}, 4
    s_lshl_b32 s{sT2}, s{sT2}, 17         ; head*128KB
    s_add_u32 s{sT2}, s{sT2}, {WS_KB}
    s_cmp_eq_u32 s{sT0}, 0
    s_cselect_b32 s{sT2}, {WS_KA}, s{sT2}
    s_mov_b32 s{sT3}, {WS_VB-WS_KB}
    s_cselect_b32 s{sT3}, {WS_VA-WS_KA}, s{sT3}
    s_cmp_ge_u32 s{sWave}, 2
    s_cselect_b32 s{sT3}, s{sT3}, 0
    s_add_u32 s{sT2}, s{sT2}, s{sT3}
    s_and_b32 s{sT1}, s{sWave}, 1
    s_mul_i32 s{sT1}, s{sT1}, {PER*1024}
    v_add_u32 v{vdma}, s{sT1}, v{vl16}
    s_mul_i32 s{sM0}, s{sWave}, {PER*1024}
    s_mov_b32 s{sQ}, s{sM0}
    s_mov_b32 s{sSoff}, 0
    s_waitcnt lgkmcnt(0)
    s_add_u32 s{sKV}, s{sWS}, s{sT2}
    s_addc_u32 s{sKV+1}, s{sWS+1}, 0
    s_and_b32 s{sKV+1}, s{sKV+1}, 0xffff
    s_mov_b32 s{sKV+2}, 131072
    s_mov_b32 s{sKV+3}, 0x20000
    """)
    if FUSED:
        vn, vc, vo = S[0], S[0]+2, S[0]+4
        if o.get("stamp3"): rt_stamp(A, 80)
        A(f"""s_cmp_lg_u32 s{sWave}, 0
        s_cbranch_scc1 L_{N}_nopoll""")
        read_nonce(A, vn, vt0)
        flag_srd(A, 92, sWS)
        A(f"""v_lshrrev_b32 v{vt0}, 4, v{vl16}          ; lane
        s_cmp_eq_u32 s29, 0
        s_cbranch_scc0 L_{N}_pollB
        v_and_b32 v{vt1}, 1, v{vt0}
        v_lshrrev_b32 v{vt2}, 1, v{vt0}
        v_lshl_add_u32 v{vo}, v{vt2}, 3, v{vt1}
        s_branch L_{N}_pollgo
        L_{N}_pollB:
        v_and_b32 v{vt1}, 15, v{vt0}
        s_lshl_b32 s{sT1}, s30, 2
        v_and_b32 v{vt2}, 3, v{vt0}
        v_add_u32 v{vt2}, s{sT1}, v{vt2}
        v_cmp_gt_u32 vcc, 32, v{vt0}
        s_nop 1
        v_cndmask_b32 v{vt1}, v{vt2}, v{vt1}, vcc      ; rb
        v_lshrrev_b32 v{vt2}, 4, v{vt0}                ; 0 K, 1 V, 2/3 Q
        v_lshlrev_b32 v{vt2}, 1, v{vt2}
        v_add_u32 v{vt2}, 4, v{vt2}                    ; 4, 6, ..
        v_cndmask_b32 v{vt2}, 2, v{vt2}, vcc
        v_lshrrev_b32 v{vt3}, 3, v{vt1}
        v_add_u32 v{vt2}, v{vt2}, v{vt3}               ; xcd
        v_and_b32 v{vt1}, 7, v{vt1}
        s_lshr_b32 s{sT1}, s28, 3                      ; cb
        s_lshl_b32 s{sT1}, s{sT1}, 3
        v_add_u32 v{vt1}, s{sT1}, v{vt1}               ; sl
        v_lshl_add_u32 v{vo}, v{vt1}, 3, v{vt2}
        L_{N}_pollgo:
        v_lshlrev_b32 v{vo}, 7, v{vo}""")
        flag_poll(A, N, 92, vn, vo, vc, sCnt)
        if o.get("stamp3"):
            rt_stamp(A, 81); A(f"s_mov_b32 s82, s{sCnt}")
        A(f"""L_{N}_nopoll:
        s_barrier""")
    def dma(rot=True):
        A(f"s_mov_b32 m0, s{sM0}")
        if rot: A(f"s_add_u32 s{sM0}, s{sM0}, {CH}")
        else: A("s_nop 0")
        for i in range(PER):
            if i == 4:
                A("s_add_u32 m0, m0, 4096")
                A(f"s_add_u32 s{sT3}, s{sSoff}, 4096")
            A(f"buffer_load_dwordx4 v{vdma}, s[{sKV}:{sKV+3}], s{sSoff if i < 4 else sT3} offen offset:{(i&3)*1024} lds")
        A(f"s_add_u32 s{sSoff}, s{sSoff}, {CH//2}")
        if rot:
            A(f"s_cmp_ge_u32 s{sM0}, {NSLOT*CH}")
            A(f"s_cselect_b32 s{sT1}, {NSLOT*CH}, 0")
            A(f"s_sub_u32 s{sM0}, s{sM0}, s{sT1}")
    dma()
    A(f"""v_mov_b32 v{vt0}, 0
    v_mov_b32 v{vt1}, {FLAG}
    ds_write_b32 v{vt1}, v{vt0}
    s_waitcnt vmcnt(0) lgkmcnt(0)""")
    if o.get("stamp3"): rt_stamp(A, 83)
    A("s_barrier")
    for c in range(NSLOT-2): dma()
    if o.get("prefetch", True):
        sPW = 56
        A(f"""s_load_dwordx2 s[{sPW+4}:{sPW+5}], s[0:1], {KA_AWO}
        s_load_dwordx2 s[{sPW+6}:{sPW+7}], s[0:1], {KA_BWO}
        s_lshr_b32 s{sT0}, s2, 3
        s_lshl_b32 s{sT0}, s{sT0}, 5
        s_lshl_b32 s{sT1}, s{sWave}, 3
        s_add_u32 s{sT0}, s{sT0}, s{sT1}
        s_lshl_b32 s{sT0}, s{sT0}, 11
        s_and_b32 s{sT1}, s2, 1
        s_lshl_b32 s{sT1}, s{sT1}, 10
        s_add_u32 s{sT0}, s{sT0}, s{sT1}
        v_lshrrev_b32 v{vt0}, 7, v{vl16}
        v_lshlrev_b32 v{vt0}, 11, v{vt0}
        v_bfe_u32 v{vt1}, v{vl16}, 4, 3
        v_lshl_add_u32 v{vt0}, v{vt1}, 7, v{vt0}
        s_bitcmp1_b32 s2, 2
        s_waitcnt lgkmcnt(0)
        s_cselect_b32 s{sPW}, s{sPW+6}, s{sPW+4}
        s_cselect_b32 s{sPW+1}, s{sPW+7}, s{sPW+5}
        s_and_b32 s{sPW+1}, s{sPW+1}, 0xffff
        s_mov_b32 s{sPW+2}, {1024*2048}
        s_mov_b32 s{sPW+3}, 0x20000
        buffer_load_dword v{vdum}, v{vt0}, s[{sPW}:{sPW+3}], s{sT0} offen""")
    A(f"s_mov_b32 s{sCnt}, {NCH}")
    A(f"""L_{N}_ldloop:
    s_waitcnt vmcnt({(NSLOT-3)*PER})
    {"s_nop 0" if "nobar" in o.get("ablate","") else "s_barrier"}""")
    dma()
    A(f"""s_sub_u32 s{sCnt}, s{sCnt}, 1
    s_cmp_lg_u32 s{sCnt}, 0
    s_cbranch_scc1 L_{N}_ldloop
    s_waitcnt vmcnt(0)
    s_barrier
    v_mov_b32 v{vt1}, {FLAG}
    ds_read_b32 v{vt0}, v{vt1}
    s_waitcnt lgkmcnt(0)
    v_readfirstlane_b32 s{sT0}, v{vt0}
    s_nop 3
    s_cmp_eq_u32 s{sT0}, 0
    s_cbranch_scc1 L_{N}_end
    s_mov_b32 s{sCnt}, {NCH}
    s_mov_b32 s{sSoff}, 0
    s_mov_b32 s{sM0}, s{sQ}
    L_{N}_ldslow:
    s_barrier""")
    dma(rot=False)
    A(f"""s_waitcnt vmcnt(0)
    s_barrier
    s_sub_u32 s{sCnt}, s{sCnt}, 1
    s_cmp_lg_u32 s{sCnt}, 0
    s_cbranch_scc1 L_{N}_ldslow
    {"s_barrier" if FUSED else ""}
    s_branch L_{N}_end
""")
    A(f"""L_{N}_compute:
    s_lshl_b32 s{sT1}, s{sT1}, 4
    s_lshl_b32 s{sT3}, s{sWave}, 2
    s_add_u32 s{sT1}, s{sT1}, s{sT3}
    s_lshl_b32 s{sQ}, s{sT2}, 6
    s_add_u32 s{sQ}, s{sQ}, s{sT1}
    s_lshl_b32 s{sQ}, s{sQ}, 11           ; (head*64+T)*2048
    s_lshl_b32 s{sO}, s{sT1}, 5
    s_add_u32 s{sO}, s{sO}, s{sT2}
    s_lshl_b32 s{sO}, s{sO}, 11           ; (T*32+head)*2048
    s_mul_i32 s{sT3}, s{sT0}, {WS_QB-WS_QA}
    s_add_u32 s{sQ}, s{sQ}, s{sT3}
    s_add_u32 s{sO}, s{sO}, s{sT3}
    s_add_u32 s{sO}, s{sO}, {WS_OA}
    s_waitcnt lgkmcnt(0)
    {"s_memtime s[60:61]" if o.get('stamp2') else ""}
    s_mov_b32 s{sW}, s{sWS}
    s_and_b32 s{sW+1}, s{sWS+1}, 0xffff
    s_mov_b32 s{sW+2}, {WS_END + (262144 if o.get('stamp') else 0)}
    s_mov_b32 s{sW+3}, 0x20000
    """)
    assert WS_OB - WS_OA == WS_QB - WS_QA
    def q_loads():
        for i in range(NQ):
            if i == 2: A(f"s_add_u32 s{sQ}, s{sQ}, 4096")
            for h in range(2):
                A(f"buffer_load_dwordx4 v[{Q[i][h]}:{Q[i][h]+3}], v{vl16}, s[{sW}:{sW+3}], s{sQ} offen offset:{(i&1)*2048+h*1024}")
    if not FUSED: q_loads()
    def init_acc():
        for i in range(NQ):
            for r in range(16): A(f"v_mov_b32 v{O[i]+r}, 0")
            for r in range(2): A(f"v_mov_b32 v{L[i]+r}, 0")
    init_acc()
    for i in range(NQ):
        for r in range(2,4): A(f"v_mov_b32 v{L[i]+r}, 0")
    for r in range(8):
        A(f"v_mov_b32 v{P[1]+r}, 0")
        A(f"v_mov_b32 v{V[1]+r}, 0")
    A(f"""v_lshrrev_b32 v{vt0}, 4, v{vl16}      ; lane
    v_and_b32 v{vt1}, 2, v{vt0}           ; r>=2 -> nonzero
    v_and_b32 v{vt2}, 4, v{vt0}           ; qhalf
    v_mov_b32 v{vt3}, 0x3f803f80
    v_cmp_eq_u32 vcc, 0, v{vt1}
    s_nop 1
    v_cndmask_b32 v{vt3}, 0, v{vt3}, vcc
    v_cmp_eq_u32 vcc, 0, v{vt2}
    s_nop 1
    v_cndmask_b32 v{vsel}, 0, v{vt3}, vcc
    v_cndmask_b32 v{vsel+1}, 0, v{vt3}, vcc
    v_cndmask_b32 v{vsel+2}, v{vt3}, 0, vcc
    v_cndmask_b32 v{vsel+3}, v{vt3}, 0, vcc
    v_and_b32 v{vt1}, 1, v{vt0}
    v_mov_b32 v{vt2}, 0x44444444
    v_mov_b32 v{vt3}, 0xeeeeeeee
    v_cmp_eq_u32 vcc, 0, v{vt1}
    s_nop 1
    v_cndmask_b32 v{vidx}, v{vt3}, v{vt2}, vcc
    {f"v_and_b32 v{vt1}, 3, v{vt0}" if o.get("l4") else ""}
    {f"v_mov_b32 v{vt3}, 0x3f803f80" if o.get("l4") else ""}
    {f"v_cmp_eq_u32 vcc, 0, v{vt1}" if o.get("l4") else ""}
    {"s_nop 1" if o.get("l4") else ""}
    {f"v_cndmask_b32 v{vsel}, 0, v{vt3}, vcc" if o.get("l4") else ""}
    {f"v_cndmask_b32 v{vsel+1}, 0, v{vt3}, vcc" if o.get("l4") else ""}
    v_mov_b32 v{vcur}, v{vl16}
    v_add_u32 v{vnxt}, {CH}, v{vl16}
    s_mov_b32 s{sNxt}, {2*CH}
    s_mov_b32 s{sMode}, 0
    s_mov_b32 s{sCnt}, {NCH}""")
    if FUSED:
        A("s_barrier")
        if o.get("stamp3"): rt_stamp(A, 82)
        q_loads()
        if o.get("stamp3"):
            A("s_waitcnt vmcnt(0)"); rt_stamp(A, 83)
    A(f"""{"s_memtime s[62:63]" if o.get('stamp2') else ""}
    s_waitcnt vmcnt(0)
    {"s_memtime s[64:65]" if o.get('stamp2') else ""}
    s_barrier
    {"s_memtime s[66:67]" if o.get('stamp2') else ""}
    """)
    def rK(buf, base, t, h): return f"ds_read_b128 v[{K[buf]+4*h}:{K[buf]+4*h+3}], v{base} offset:{t*2048+h*1024}"
    def rV(buf, base, t, h): return f"ds_read_b128 v[{V[buf]+4*h}:{V[buf]+4*h+3}], v{base} offset:{CH//2+t*2048+h*1024}"
    def mf(d, a, b, c):
        cs = "0" if c is None else f"v[{c}:{c+15}]"
        return f"v_mfma_f32_32x32x16_bf16 v[{d}:{d+15}], v[{a}:{a+3}], v[{b}:{b+3}], {cs}"
    def sm(qi, pb):
        if o.get("l4"):
            return "\n".join(f"v_mfma_f32_4x4x4bf16_1k v[{L[qi]}:{L[qi]+3}], v[{vsel}:{vsel+1}], v[{P[pb]+2*z}:{P[pb]+2*z+1}], v[{L[qi]}:{L[qi]+3}]\ns_nop 1" for z in range(4))
        return f"v_smfmac_f32_16x16x64_bf16 v[{L[qi]}:{L[qi]+3}], v[{vsel}:{vsel+3}], v[{P[pb]}:{P[pb]+7}], v{vidx}"
    for h in range(2): A(rK(0, vcur, 0, h))
    for h in range(2): A(rV(0, vcur, 0, h))
    A("s_waitcnt lgkmcnt(0)")
    A(mf(S[0], K[0], Q[0][0], None)); A(mf(S[0], K[0]+4, Q[0][1], S[0]))
    A("s_nop 7\ns_nop 3")
    if o.get("stamp"): A("s_memtime s[50:51]\ns_waitcnt lgkmcnt(0)")
    A(f".p2align 6\nL_{N}_loop:")
    pat = o.get("pat", "Q1 e e e P1 e e e Q2 e e c c P2 e e c c S R e e c e e c e e c c").split()
    for kt in range(TPC):
        for qi in range(NQ):
            u = kt*NQ + qi
            nk, nq = (kt, qi+1) if qi+1 < NQ else (kt+1, 0)
            pk, pq = (kt, qi-1) if qi > 0 else (kt-1, NQ-1)
            sb = u & 1; nb = sb ^ 1
            e = lambda j: f"v_exp_f32 v{S[sb]+j}, v{S[sb]+j}"
            c = lambda j: f"v_cvt_pk_bf16_f32 v{P[sb]+j}, v{S[sb]+2*j}, v{S[sb]+2*j+1}"
            Kb = K[nk % 2]; Vb = V[pk % 2]
            pre = []
            if qi == 3: pre.append("s_waitcnt lgkmcnt(0)")
            if qi == 0 and kt == TPC-1: pre.append("s_barrier")
            base, t = (vcur, kt+1) if kt+1 < TPC else (vnxt, 0)
            b2 = (kt+1) % 2
            rd = {0: [rK(b2, base, t, 0)], 1: [rK(b2, base, t, 1)], 2: [rV(b2, base, t, 0), rV(b2, base, t, 1)], 3: []}[qi]
            seq = list(pre); ne = nc = 0
            for tk in pat:
                if tk == "Q1": seq.append(mf(S[nb], Kb, Q[nq][0], None))
                elif tk == "Q2": seq.append(mf(S[nb], Kb+4, Q[nq][1], S[nb]))
                elif tk == "P1": seq.append(mf(O[pq], Vb, P[nb], O[pq]))
                elif tk == "P2": seq.append(mf(O[pq], Vb+4, P[nb]+4, O[pq]))
                elif tk == "S": seq.append(sm(pq, nb))
                elif tk in ("s0","s1","s2","s3"):
                    z = int(tk[1]); seq.append(f"v_mfma_f32_4x4x4bf16_1k v[{L[pq]}:{L[pq]+3}], v[{vsel}:{vsel+1}], v[{P[nb]+2*z}:{P[nb]+2*z+1}], v[{L[pq]}:{L[pq]+3}]")
                elif tk == "e": seq.append(e(ne)); ne += 1
                elif tk == "c": seq.append(c(nc)); assert 2*nc+1 < ne; nc += 1
                elif tk == "R": seq += rd
                else: raise Exception(tk)
            assert ne == 16 and nc == 8
            ab = o.get("ablate", "")
            for l in seq:
                if "nosm" in ab and l.startswith("v_smfmac"): continue
                if "nolds" in ab and l.startswith("ds_read"): continue
                if "nocvt" in ab and l.startswith("v_cvt"): continue
                if "noexp" in ab and l.startswith("v_exp"): continue
                if "nopv" in ab and l.startswith(f"v_mfma_f32_32x32x16_bf16 v[{O[pq]}:"): continue
                if "noqk" in ab and l.startswith(f"v_mfma_f32_32x32x16_bf16 v[{S[nb]}:"): continue
                if "nobar" in ab and l.startswith("s_barrier"): l = "s_nop 0"
                if "expsep" in ab and l.startswith("v_exp"):
                    r = l.split()[1].rstrip(","); l = f"v_exp_f32 v{vt2}, {r}"
                A(l)
    A(f"""v_mov_b32 v{vcur}, v{vnxt}
    v_add_u32 v{vnxt}, s{sNxt}, v{vl16}
    s_add_u32 s{sNxt}, s{sNxt}, {CH}
    s_cmp_ge_u32 s{sNxt}, {NSLOT*CH}
    s_cselect_b32 s{sT1}, {NSLOT*CH}, 0
    s_sub_u32 s{sNxt}, s{sNxt}, s{sT1}
    s_sub_u32 s{sCnt}, s{sCnt}, 1
    s_cmp_lg_u32 s{sCnt}, 0
    s_cbranch_scc1 L_{N}_loop
    """)
    if o.get("stamp"): A("s_memtime s[52:53]\ns_waitcnt lgkmcnt(0)")
    lb = (TPC*NQ-1) & 1
    Vb = V[(TPC-1) % 2]
    A("s_nop 1")
    A(mf(O[NQ-1], Vb, P[lb], O[NQ-1])); A(mf(O[NQ-1], Vb+4, P[lb]+4, O[NQ-1])); A(sm(NQ-1, lb))
    A(f"L_{N}_fin:")
    A("s_nop 7\ns_nop 7")
    vrc, vna, vz = K[0], K[0]+2, K[0]+4
    for r in (vna, vna+1, vz, vz+1): A(f"v_mov_b32 v{r}, 0")
    A(f"s_mov_b32 s{sCnt}, 0")
    for qi in range(NQ):
        if o.get("l4"):
            A(f"v_mov_b32 v{vt0}, v{L[qi]}")
            A(f"v_mov_b32 v{vt1}, v{L[qi]}")
            A("s_nop 1")
            A(f"v_permlane32_swap_b32 v{vt0}, v{vt1}")
            A(f"v_add_f32 v{vt0}, v{vt0}, v{vt1}")
        else:
            A(f"v_add_f32 v{vt0}, v{L[qi]}, v{L[qi]+1}")
        A(f"v_rcp_f32 v{vrc}, v{vt0}")
        A(f"v_mov_b32 v{vt2}, 0x35800000")
        A(f"v_cmp_nle_f32 s[{sT2}:{sT3}], v{vt2}, v{vt0}")
        A(f"v_mov_b32 v{vt2}, 0x71800000")
        A(f"v_cmp_nle_f32 vcc, v{vt0}, v{vt2}")
        A(f"v_mov_b32 v{vrc+1}, v{vrc}")
        for r in range(0, 16, 2):
            A(f"v_pk_mul_f32 v[{O[qi]+r}:{O[qi]+r+1}], v[{O[qi]+r}:{O[qi]+r+1}], v[{vrc}:{vrc+1}]")
        A(f"s_or_b64 vcc, vcc, s[{sT2}:{sT3}]")
        A(f"s_cmp_lg_u64 vcc, 0")
        A(f"s_cselect_b32 s{sT0}, 1, 0")
        A(f"s_or_b32 s{sCnt}, s{sCnt}, s{sT0}")
        for r in range(0, 16, 2):
            A(f"v_pk_fma_f32 v[{vna}:{vna+1}], v[{O[qi]+r}:{O[qi]+r+1}], v[{vz}:{vz+1}], v[{vna}:{vna+1}]")
        d = S[qi & 1] + 8*((qi >> 1) & 1)
        for j in range(8):
            A(f"v_cvt_pk_bf16_f32 v{d+j}, v{O[qi]+2*j}, v{O[qi]+2*j+1}")
        A(f"buffer_store_dwordx4 v[{d}:{d+3}], v{vl16}, s[{sW}:{sW+3}], s{sO} offen offset:0 {o.get('stflags','')}")
        A(f"buffer_store_dwordx4 v[{d+4}:{d+7}], v{vl16}, s[{sW}:{sW+3}], s{sO} offen offset:1024 {o.get('stflags','')}")
        A(f"s_add_u32 s{sO}, s{sO}, 65536")
    A(f"s_sub_u32 s{sO}, s{sO}, {NQ*65536}")
    A(f"""v_add_f32 v{vt3}, v{vna}, v{vna+1}
    v_cmp_u_f32 vcc, v{vt3}, v{vt3}
    s_nop 3
    s_cmp_lg_u64 vcc, 0
    s_cselect_b32 s{sT0}, 1, 0
    s_or_b32 s{sCnt}, s{sCnt}, s{sT0}
    {"s_waitcnt vmcnt(0)" if FUSED else ""}
    s_cmp_eq_u32 s{sMode}, 1
    s_cbranch_scc1 L_{N}_{"done2" if FUSED else "done"}
    v_mov_b32 v{vt0}, s{sCnt}
    v_mov_b32 v{vt1}, {FLAG}
    ds_or_b32 v{vt1}, v{vt0}
    s_waitcnt lgkmcnt(0)
    s_barrier
    ds_read_b32 v{vt0}, v{vt1}
    s_waitcnt lgkmcnt(0)
    v_readfirstlane_b32 s{sT0}, v{vt0}
    s_nop 3
    s_cmp_eq_u32 s{sT0}, 0
    s_cbranch_scc1 L_{N}_done
    """)
    A(f"""s_waitcnt vmcnt(0)
    s_mov_b32 s{sMode}, 1
    s_mov_b32 s{sCnt}, {NCH}
    """)
    init_acc()
    for i in range(NQ): A(f"v_mov_b32 v{vm[i]}, 0xff7fffff")
    A(f"""L_{N}_slow:
    s_barrier
    s_barrier
    v_mov_b32 v{vcur}, v{vl16}
    s_mov_b32 s{sNxt}, {TPC}
    L_{N}_slowt:""")
    for h in range(2): A(rK(0, vcur, 0, h))
    for h in range(2): A(rV(0, vcur, 0, h))
    A(f"v_add_u32 v{vcur}, 2048, v{vcur}")
    A("s_waitcnt lgkmcnt(0)")
    for qi in range(NQ):
        s = S[0]
        A(mf(s, K[0], Q[qi][0], None)); A(mf(s, K[0]+4, Q[qi][1], s))
        A("s_nop 7\ns_nop 3")
        A(f"v_max3_f32 v{vt0}, v{s}, v{s+1}, v{s+2}")
        for j in range(3, 15, 2): A(f"v_max3_f32 v{vt0}, v{vt0}, v{s+j}, v{s+j+1}")
        A(f"v_max_f32 v{vt0}, v{vt0}, v{s+15}")
        A(f"v_mov_b32 v{vt1}, v{vt0}")
        A("s_nop 1")
        A(f"v_permlane32_swap_b32 v{vt0}, v{vt1}")
        A(f"v_max3_f32 v{vt0}, v{vt0}, v{vt1}, v{vm[qi]}")
        A(f"v_sub_f32 v{val}, v{vm[qi]}, v{vt0}")
        A(f"v_exp_f32 v{val}, v{val}")
        A(f"v_mov_b32 v{vm[qi]}, v{vt0}")
        for r in range(16): A(f"v_sub_f32 v{s+r}, v{s+r}, v{vt0}")
        for r in range(16): A(f"v_exp_f32 v{s+r}, v{s+r}")
        for r in range(16): A(f"v_mul_f32 v{O[qi]+r}, v{O[qi]+r}, v{val}")
        for r in range(2): A(f"v_mul_f32 v{L[qi]+r}, v{L[qi]+r}, v{val}")
        for j in range(8): A(f"v_cvt_pk_bf16_f32 v{P[0]+j}, v{s+2*j}, v{s+2*j+1}")
        A("s_nop 1")
        A(mf(O[qi], V[0], P[0], O[qi])); A(mf(O[qi], V[0]+4, P[0]+4, O[qi])); A(sm(qi, 0))
        A("s_nop 7\ns_nop 7")
    A(f"""s_sub_u32 s{sNxt}, s{sNxt}, 1
    s_cmp_lg_u32 s{sNxt}, 0
    s_cbranch_scc1 L_{N}_slowt
    s_sub_u32 s{sCnt}, s{sCnt}, 1
    s_cmp_lg_u32 s{sCnt}, 0
    s_cbranch_scc1 L_{N}_slow
    s_branch L_{N}_fin
    """)
    if FUSED:
        A(f"""L_{N}_done2:
        s_barrier""")
    A(f"""L_{N}_done:""")
    if o.get("stamp"):
        A(f"""s_memtime s[44:45]
        s_memrealtime s[46:47]
        s_waitcnt lgkmcnt(0)
        s_sub_u32 s44, s44, s40
        s_sub_u32 s46, s46, s42
        s_sub_u32 s50, s50, s40
        s_sub_u32 s52, s52, s40
        s_lshr_b32 s50, s50, 2
        s_lshr_b32 s52, s52, 2
        s_lshl_b32 s52, s52, 16
        s_or_b32 s50, s50, s52
        s_lshl_b32 s48, s2, 3
        s_add_u32 s48, s48, s{sWave}
        s_lshl_b32 s48, s48, 4
        s_add_u32 s48, s48, {WS_END+65536}
        v_mov_b32 v{vt0}, s44
        v_mov_b32 v{vt1}, s46
        v_mov_b32 v{vt2}, s42
        v_mov_b32 v{vt3}, s50
        v_mov_b32 v{val}, 0
        buffer_store_dwordx4 v[{vt0}:{vt0+3}], v{val}, s[{sW}:{sW+3}], s48 offen""")
        if o.get("stamp2"):
            A(f"""s_sub_u32 s60, s60, s40
            s_sub_u32 s62, s62, s40
            s_sub_u32 s64, s64, s40
            s_sub_u32 s66, s66, s40
            s_add_u32 s48, s48, 64
            s_nop 1
            v_mov_b32 v{vt0}, s60
            v_mov_b32 v{vt1}, s62
            v_mov_b32 v{vt2}, s64
            v_mov_b32 v{vt3}, s66
            buffer_store_dwordx4 v[{vt0}:{vt0+3}], v{val}, s[{sW}:{sW+3}], s48 offen""")
    if FUSED:
        A(f"""s_cmp_lg_u32 s{S_WAVE}, 0
        s_cbranch_scc1 L_{N}_end""")
        read_nonce(A, S[0], vt0)
        flag_srd(A, 92, sWS)
        flag_store(A, 92, S[0], vt0, sT0, 32768)
        A(f"L_{N}_end:")
        if o.get("stamp3"):
            A(f"""s_lshl_b32 s84, s2, 3
            s_add_u32 s84, s84, s{S_WAVE}
            s_lshl_b32 s84, s84, 4
            s_add_u32 s84, s84, {WS_END + 196608}
            v_mov_b32 v{vt0}, s80
            v_mov_b32 v{vt1}, s81
            v_mov_b32 v{vt2}, s82
            v_mov_b32 v{vt3}, s83
            v_mov_b32 v{vt3+1}, s84
            s_mov_b64 exec, 1
            global_store_dwordx4 v{vt3+1}, v[{vt0}:{vt0+3}], s[{sWS}:{sWS+1}]
            s_mov_b64 exec, -1""")
        return A.text(), dict(name=name, nv=nv, lds=NSLOT*CH + 64)
    A(f"""L_{N}_end:
    s_endpgm""")
    txt = A.text() + kernel_desc(name, nv)
    return txt, dict(name=name, grid=256, block=512, lds=NSLOT*CH + 64, nv=nv)

if __name__ == "__main__":
    import hz
    from build import build
    t, i = gen_attn2(opts=dict(stamp=True))
    print(i)
    ps = hz.check_hazards(t)
    for p in ps[:30]: print(p)
    ws = hz.check_waits(t, i["name"], max_back=1)
    for p in ws[:30]: print(p)
    print(len(ps), len(ws))
    build([(t, i)], "attn2_only.s")
```

```python
import sys; sys.path.insert(0,"dev")
from build import build
import hz, importlib
import proj, attn, attn2, oproj
def make(path, stamp=False, po=None, ao=None, oo=None, check=True):
    po = dict(po or {}); ao = dict(ao or {}); oo = dict(oo or {})
    if stamp: po["stamp"] = ao["stamp"] = oo["stamp"] = True
    parts = [proj.gen_proj(opts=po), (attn.gen_attn(opts=ao) if ao.get('v1') else attn2.gen_attn2(opts=ao)), oproj.gen_oproj(opts=oo)]
    if check:
        for t, i in parts:
            ps = hz.check_hazards(t); ws = hz.check_waits(t, i["name"], max_back=1)
            for p in (ps + ws)[:20]: print("!!", p)
            print(i, "hazards", len(ps), "waits", len(ws))
    build(parts, path)
def make_fused(path, stamp=False, po=None, ao=None, oo=None, check=True):
    po = dict(po or {}); ao = dict(ao or {}); oo = dict(oo or {})
    for d in (po, ao, oo): d["fused"] = True
    if stamp: po["stamp"] = ao["stamp"] = oo["stamp"] = True
    KN = "fused_kernel"
    po["kname"] = KN
    tp, ip = proj.gen_proj(opts=po); ta, ia = attn2.gen_attn2(opts=ao); to, io = oproj.gen_oproj(opts=oo)
    nv = max(ip["nv"], ia["nv"], io["nv"])
    txt = tp + ta + to + "L_fused_end:\n  s_endpgm\n"
    full = txt + kernel_desc(KN, nv)
    info = dict(name=KN, grid=256, block=512, lds=NONCE_LDS + 64, nv=nv)
    if check:
        ps = hz.check_hazards(txt); ws = hz.check_waits(txt, KN, max_back=1, max_paths=20000)
        for p in (ps + ws)[:20]: print("!!", p)
        print(info, "hazards", len(ps), "waits", len(ws))
    build([(full, info)], path)
from kgen import *
if __name__ == "__main__":
    CFG = dict(po=dict(stflags="sc0 sc1", pfl="", predma=2, pfpos="late"), ao=dict(stflags="sc0 sc1"), oo=dict(stflags="nt"))
    make("concat_heads__grouped_kv_mqa__mha_block__prompt.s", **CFG)
    make("all_stamp.s", stamp=True, check=False, **CFG)
```

```python
class Asm:
    def __init__(self):
        self.lines = []
    def __call__(self, fmt, *a):
        for l in fmt.split("\n"):
            l = l.strip()
            if l: self.lines.append(("" if l.endswith(":") else "  ") + l)
    def label(self, name): self.lines.append(name + ":")
    def raw(self, s): self.lines.append(s)
    def comment(self, s): self.lines.append("  ; " + s)
    def text(self): return "\n".join(self.lines) + "\n"

def vr(base, n=1):
    return f"v{base}" if n == 1 else f"v[{base}:{base+n-1}]"
def sr(base, n=1):
    return f"s{base}" if n == 1 else f"s[{base}:{base+n-1}]"

class VAlloc:
    def __init__(self, start=0, limit=256):
        self.next = start; self.limit = limit; self.names = {}
    def get(self, name, n=1, align=1):
        if n >= 2 and align < 2: align = 2
        b = (self.next + align - 1) // align * align
        self.next = b + n
        assert self.next <= self.limit, f"out of vgprs at {name}"
        self.names[name] = (b, n)
        return b

def kernel_desc(name, vgpr, sgpr=102, accum=None):
    if accum is None: accum = (vgpr + 3) // 4 * 4
    return f""".section .rodata,"a"
.p2align 6
.amdhsa_kernel {name}
  .amdhsa_next_free_vgpr {vgpr}
  .amdhsa_next_free_sgpr {sgpr}
  .amdhsa_accum_offset {accum}
  .amdhsa_group_segment_fixed_size 0
  .amdhsa_kernarg_size 88
  .amdhsa_user_sgpr_count 2
  .amdhsa_user_sgpr_kernarg_segment_ptr 1
  .amdhsa_system_sgpr_workgroup_id_x 1
  .amdhsa_float_denorm_mode_32 3
.end_amdhsa_kernel
.text
"""
def kernel_head(name):
    return f""".globl {name}
.p2align 8
.type {name},@function
{name}:
"""

MB = 1 << 20
WS_QA  = 0
WS_QB  = 4 * MB
WS_KB  = 8 * MB
WS_VB  = 12 * MB
WS_KA  = 16 * MB
WS_VA  = 16 * MB + 131072
WS_OA  = 17 * MB
WS_OB  = 21 * MB
WS_END = 25 * MB
KA_AX, KA_AWQ, KA_AWK, KA_AWV, KA_AWO, KA_BX, KA_BWQKV, KA_BWO, KA_OUT, KA_DBG, KA_WS = [8*i for i in range(11)]

def code_prefetch(A, tag, base_label, nbytes, blk_sgpr, vt, vdum, lane, stmp):
    A(f"""s_getpc_b64 s[{stmp}:{stmp+1}]
    L_cp_{tag}:
    s_sub_u32 s{stmp}, s{stmp}, L_cp_{tag}-{base_label}
    s_subb_u32 s{stmp+1}, s{stmp+1}, 0
    v_lshlrev_b32 v{vt}, 7, v{lane}
    v_lshl_add_u32 v{vt}, s{blk_sgpr}, 13, v{vt}
    v_min_u32 v{vt}, L_code_end-{base_label}-4, v{vt}
    global_load_dword v{vdum}, v{vt}, s[{stmp}:{stmp+1}]""")

WS_FLG = 30 * MB
NONCE_LDS = 153600
S_WAVE = 3
def flag_srd(A, srd, ptr):
    A(f"""s_add_u32 s{srd}, s{ptr}, {WS_FLG}
    s_addc_u32 s{srd+1}, s{ptr+1}, 0
    s_and_b32 s{srd+1}, s{srd+1}, 0xffff
    s_mov_b32 s{srd+2}, 65536
    s_mov_b32 s{srd+3}, 0x20000""")
def read_nonce(A, vn, vt):
    A(f"""v_mov_b32 v{vt}, {NONCE_LDS}
    ds_read_b64 v[{vn}:{vn+1}], v{vt}
    s_waitcnt lgkmcnt(0)""")
def flag_store(A, srd, vn, vt, st, base):
    A(f"""s_lshl_b32 s{st}, s2, 7
    s_add_u32 s{st}, s{st}, {base}
    v_mov_b32 v{vt}, 0
    s_mov_b64 exec, 1
    buffer_store_dwordx2 v[{vn}:{vn+1}], v{vt}, s[{srd}:{srd+3}], s{st} offen sc0 sc1
    s_mov_b64 exec, -1""")
def flag_poll(A, tag, srd, vn, voff, vc, scnt):
    A(f"""s_mov_b32 s{scnt}, 400000
    L_poll_{tag}:
    buffer_load_dwordx2 v[{vc}:{vc+1}], v{voff}, s[{srd}:{srd+3}], 0 offen sc0 sc1
    s_waitcnt vmcnt(0)
    v_cmp_ne_u64 vcc, v[{vc}:{vc+1}], v[{vn}:{vn+1}]
    s_sub_u32 s{scnt}, s{scnt}, 1
    s_nop 2
    s_cmp_eq_u64 vcc, 0
    s_cbranch_scc1 L_poll_{tag}_ok
    s_cmp_lg_u32 s{scnt}, 0
    s_cbranch_scc1 L_poll_{tag}
    L_poll_{tag}_ok:""")

def rt_stamp(A, dst):
    A(f"""s_memrealtime s[88:89]
    s_waitcnt lgkmcnt(0)
    s_mov_b32 s{dst}, s88""")
```

```python
from kgen import *

def gen_oproj(name="oproj_kernel", NS=4, opts=None):
    o = opts or {}
    A = Asm()
    SLOT = 32768
    WOFF = 16384
    NST = 16
    OUT_BYTES = 2048*2048*2
    va = VAlloc(0)
    vtid = va.get("tid"); vt0 = va.get("t0"); vt1 = va.get("t1"); vt2 = va.get("t2"); vt3 = va.get("t3"); vt4 = va.get("t4")
    vOA = va.get("oa")
    vWA = [va.get(f"wa{i}") for i in range(4)]
    vst = va.get("st")
    acc = [[va.get(f"acc{t}{c}", 4, 4) for c in range(4)] for t in range(4)]
    of = [[va.get(f"of{b}{t}", 4, 4) for t in range(4)] for b in range(2)]
    wf = [[va.get(f"wf{b}{c}", 4, 4) for c in range(4)] for b in range(2)]
    nv = va.next
    vLO = of[0][0]; vLW = of[0][1]
    sO, sWd, sOut = 8, 12, 16
    sWave, sBr, sRB, sCB = 24, 25, 26, 27
    sT0, sT1, sT2, sT3 = 30, 31, 32, 33
    sCnt, sDelta, sSlot, sOo, sWo, sM0o, sM0w, sSt, sCneg = 34, 35, 36, 37, 38, 40, 41, 43, 45
    sP = 48
    N = name; l = vtid
    FUSED = o.get("fused")
    if not FUSED:
        A.raw(kernel_head(name).rstrip("\n"))
        A(f"s_cmp_ge_u32 s2, 256\ns_cbranch_scc1 L_{N}_end")
    A(f"""s_load_dwordx2 s[{sP}:{sP+1}], s[0:1], {KA_WS}
    s_load_dwordx2 s[{sP+2}:{sP+3}], s[0:1], {KA_AWO}
    s_load_dwordx2 s[{sP+4}:{sP+5}], s[0:1], {KA_BWO}
    s_load_dwordx2 s[{sP+6}:{sP+7}], s[0:1], {KA_OUT}""")
    if FUSED: A(f"s_mov_b32 s{sWave}, s{S_WAVE}")
    else:
        A(f"""v_lshrrev_b32 v{vt0}, 6, v{vtid}
        v_and_b32 v{vtid}, 63, v{vtid}
        v_readfirstlane_b32 s{sWave}, v{vt0}""")
    A(f"""
    s_and_b32 s{sT0}, s2, 7               ; xcd
    s_lshr_b32 s{sT1}, s2, 3              ; sl
    s_lshr_b32 s{sBr}, s{sT0}, 2
    s_bfe_u32 s{sT2}, s{sT0}, 0x10001     ; rowhalf
    s_lshl_b32 s{sT2}, s{sT2}, 3
    s_and_b32 s{sRB}, s{sT1}, 7
    s_add_u32 s{sRB}, s{sRB}, s{sT2}
    s_and_b32 s{sT2}, s{sT0}, 1
    s_lshl_b32 s{sT2}, s{sT2}, 2
    s_lshr_b32 s{sCB}, s{sT1}, 3
    s_add_u32 s{sCB}, s{sCB}, s{sT2}
    s_waitcnt lgkmcnt(0)
    s_mul_i32 s{sT0}, s{sBr}, {WS_OB-WS_OA}
    s_lshl_b32 s{sT1}, s{sRB}, 18
    s_add_u32 s{sT0}, s{sT0}, s{sT1}
    s_add_u32 s{sT0}, s{sT0}, {WS_OA}
    s_add_u32 s{sO}, s{sP}, s{sT0}
    s_addc_u32 s{sO+1}, s{sP+1}, 0
    s_and_b32 s{sO+1}, s{sO+1}, 0xffff
    s_mov_b32 s{sO+2}, 262144
    s_mov_b32 s{sO+3}, 0x20000
    s_cmp_eq_u32 s{sBr}, 0
    s_cselect_b32 s{sT2}, s{sP+2}, s{sP+4}
    s_cselect_b32 s{sT3}, s{sP+3}, s{sP+5}
    s_lshl_b32 s{sT0}, s{sCB}, 8
    s_add_u32 s{sWd}, s{sT2}, s{sT0}
    s_addc_u32 s{sWd+1}, s{sT3}, 0
    s_and_b32 s{sWd+1}, s{sWd+1}, 0xffff
    s_sub_u32 s{sWd+2}, {1024*2048}, s{sT0}
    s_mov_b32 s{sWd+3}, 0x20000
    s_mov_b32 s{sOut}, s{sP+6}
    s_and_b32 s{sOut+1}, s{sP+7}, 0xffff
    s_mov_b32 s{sOut+2}, {OUT_BYTES}
    s_mov_b32 s{sOut+3}, 0x20000
    """)
    if o.get("stamp"): A("s_memtime s[60:61]\ns_memrealtime s[62:63]\ns_waitcnt lgkmcnt(0)")
    A(f"""s_cmp_lt_u32 s{sWave}, 4
    s_cbranch_scc1 L_{N}_compute""")
    PER = 8
    A(f"""L_{N}_loader:
    s_sub_u32 s{sWave}, s{sWave}, 4
    s_lshl_b32 s{sT0}, s{sWave}, 16
    v_lshlrev_b32 v{vLO}, 4, v{l}
    v_add_u32 v{vLO}, s{sT0}, v{vLO}
    """)
    for i in range(4):
        A(f"""v_lshrrev_b32 v{vt0}, 4, v{l}
        s_lshl_b32 s{sT0}, s{sWave}, 4
        s_add_u32 s{sT0}, s{sT0}, {4*i}
        v_add_u32 v{vt0}, s{sT0}, v{vt0}
        v_and_b32 v{vt1}, 7, v{vt0}
        v_lshlrev_b32 v{vt1}, 1, v{vt1}
        v_and_b32 v{vt2}, 15, v{l}
        v_xor_b32 v{vt1}, v{vt1}, v{vt2}
        v_lshlrev_b32 v{vt1}, 4, v{vt1}
        v_lshl_add_u32 v{vLW+i}, v{vt0}, 11, v{vt1}""")
    A(f"""s_mov_b32 s{sOo}, 0
    s_mov_b32 s{sWo}, 0
    s_lshl_b32 s{sM0o}, s{sWave}, 12
    s_add_u32 s{sM0w}, s{sM0o}, {WOFF}
    s_mov_b32 s{sSlot}, 0""")
    def dma():
        A(f"s_add_u32 m0, s{sSlot}, s{sM0o}")
        A("s_nop 0")
        for i in range(4):
            A(f"buffer_load_dwordx4 v{vLO}, s[{sO}:{sO+3}], s{sOo} offen offset:{i*1024} lds")
        A(f"s_add_u32 m0, s{sSlot}, s{sM0w}")
        for i in range(4):
            A("s_nop 0" if i == 0 else "s_add_u32 m0, m0, 1024")
            if i: A("s_nop 0")
            A(f"buffer_load_dwordx4 v{vLW+i}, s[{sWd}:{sWd+3}], s{sWo} offen lds")
        A(f"""s_add_u32 s{sOo}, s{sOo}, 4096
        s_add_u32 s{sWo}, s{sWo}, {64*2048}
        s_add_u32 s{sSlot}, s{sSlot}, {SLOT}
        s_cmp_eq_u32 s{sSlot}, {NS*SLOT}
        s_cselect_b32 s{sSlot}, 0, s{sSlot}""")
    def dma_w(slot, st):
        A(f"s_add_u32 m0, s{sM0w}, {slot*SLOT}")
        A(f"s_mov_b32 s{sT0}, {st*64*2048}")
        for i in range(4):
            if i: A("s_add_u32 m0, m0, 1024\ns_nop 0")
            A(f"buffer_load_dwordx4 v{vLW+i}, s[{sWd}:{sWd+3}], s{sT0} offen lds")
    def dma_o(slot, st):
        A(f"s_add_u32 m0, s{sM0o}, {slot*SLOT}")
        A(f"s_mov_b32 s{sT0}, {st*4096}")
        for i in range(4):
            A(f"buffer_load_dwordx4 v{vLO}, s[{sO}:{sO+3}], s{sT0} offen offset:{i*1024} lds")
    if FUSED:
        assert NS == 4
        for st in range(NS): dma_w(st, st)
        vn, vc, vo = acc[0][0], acc[0][1], acc[0][2]
        A(f"""s_cmp_lg_u32 s{sWave}, 0
        s_cbranch_scc1 L_{N}_nopoll""")
        read_nonce(A, vn, vt0)
        flag_srd(A, 92, sP)
        A(f"""; heads h = lane&31 : bh = br*32+h ; id = (bh>>3) + 8*(((bh&7)<<2) | qb)
        v_and_b32 v{vt0}, 31, v{l}
        s_lshl_b32 s{sT0}, s{sBr}, 5
        v_add_u32 v{vt0}, s{sT0}, v{vt0}
        v_lshrrev_b32 v{vt1}, 3, v{vt0}
        v_and_b32 v{vt0}, 7, v{vt0}
        s_lshr_b32 s{sT0}, s{sRB}, 2
        v_lshl_or_b32 v{vt0}, v{vt0}, 2, s{sT0}
        v_lshl_add_u32 v{vo}, v{vt0}, 3, v{vt1}
        v_lshlrev_b32 v{vo}, 7, v{vo}
        v_add_u32 v{vo}, 0x8000, v{vo}""")
        flag_poll(A, N, 92, vn, vo, vc, sCnt)
        A(f"""L_{N}_nopoll:
        s_barrier""")
        dma_o(0, 0)
        A("s_waitcnt vmcnt(0)\ns_barrier")
        for st in range(1, NS): dma_o(st, st)
        A(f"""s_mov_b32 s{sOo}, {NS*4096}
        s_mov_b32 s{sWo}, {NS*64*2048}
        s_waitcnt vmcnt(8)
        s_barrier""")
        dma()
        A("s_waitcnt vmcnt(12)\ns_barrier")
        dma()
        A(f"s_mov_b32 s{sCnt}, {NST-NS-2}")
    else:
        dma()
        A("s_waitcnt vmcnt(0)\ns_barrier")
        for _ in range(NS-1): dma()
        A(f"s_mov_b32 s{sCnt}, {NST-NS}")
    A(f"L_{N}_ld_loop:")
    A(f"s_waitcnt vmcnt({(NS-2)*PER})\ns_barrier")
    dma()
    A(f"""s_sub_u32 s{sCnt}, s{sCnt}, 1
    s_cmp_lg_u32 s{sCnt}, 0
    s_cbranch_scc1 L_{N}_ld_loop""")
    for j in range(NS-1):
        A(f"s_waitcnt vmcnt({(NS-2-j)*PER})\ns_barrier")
    A(f"s_branch L_{N}_end")
    A(f"""L_{N}_compute:
    s_lshr_b32 s{sT0}, s{sWave}, 1        ; wm
    s_and_b32 s{sT1}, s{sWave}, 1         ; wn
    v_and_b32 v{vt0}, 15, v{l}            ; n / i
    v_lshrrev_b32 v{vt1}, 4, v{l}         ; g
    v_lshlrev_b32 v{vOA}, 9, v{vt1}
    v_lshl_add_u32 v{vOA}, v{vt0}, 4, v{vOA}
    s_lshl_b32 s{sT2}, s{sT0}, 13
    v_add_u32 v{vOA}, s{sT2}, v{vOA}
    ; W address: k = 16(g>>1) + 4(g&1) + (i>>2) ; f = (4(g&1) + (i>>2))<<1
    v_lshrrev_b32 v{vt2}, 2, v{vt0}
    v_and_b32 v{vt3}, 1, v{vt1}
    v_lshl_or_b32 v{vt2}, v{vt3}, 2, v{vt2}       ; k&7
    v_lshrrev_b32 v{vt3}, 1, v{vt1}
    v_lshl_add_u32 v{vt4}, v{vt3}, 4, v{vt2}      ; k
    v_lshlrev_b32 v{vt4}, 8, v{vt4}               ; k*256
    v_lshlrev_b32 v{vt2}, 1, v{vt2}               ; f
    v_and_b32 v{vt3}, 1, v{vt0}
    v_lshl_add_u32 v{vt4}, v{vt3}, 3, v{vt4}      ; + 8*(i&1)
    v_add_u32 v{vt4}, {WOFF}, v{vt4}
    v_bfe_u32 v{vt3}, v{vt0}, 1, 1
    s_lshl_b32 s{sT2}, s{sT1}, 3
    v_add_u32 v{vt3}, s{sT2}, v{vt3}              ; 8wn + ((i&3)>>1)
    """)
    for ct in range(4):
        A(f"""v_add_u32 v{vWA[ct]}, {2*ct}, v{vt3}
        v_xor_b32 v{vWA[ct]}, v{vWA[ct]}, v{vt2}
        v_lshl_add_u32 v{vWA[ct]}, v{vWA[ct]}, 4, v{vt4}""")
    A(f"""; store: n*4096 + (g&1)*32 + (g>>1)*16
    v_and_b32 v{vt2}, 1, v{vt1}
    v_lshlrev_b32 v{vt2}, 5, v{vt2}
    v_lshrrev_b32 v{vt3}, 1, v{vt1}
    v_lshl_add_u32 v{vt2}, v{vt3}, 4, v{vt2}
    v_lshl_add_u32 v{vst}, v{vt0}, 12, v{vt2}
    s_lshl_b32 s{sSt}, s{sRB}, 19
    s_lshl_b32 s{sT2}, s{sT0}, 18
    s_add_u32 s{sSt}, s{sSt}, s{sT2}
    s_lshl_b32 s{sT2}, s{sBr}, 11
    s_add_u32 s{sSt}, s{sSt}, s{sT2}
    s_lshl_b32 s{sT2}, s{sCB}, 8
    s_add_u32 s{sSt}, s{sSt}, s{sT2}
    s_lshl_b32 s{sT2}, s{sT1}, 7
    s_add_u32 s{sSt}, s{sSt}, s{sT2}
    s_mov_b32 s{sCneg}, {(-(NS-1)*SLOT) & 0xffffffff}
    s_mov_b32 s{sSlot}, 0
    """)
    for t in range(4):
        for c in range(4):
            for r in range(4): A(f"v_mov_b32 v{acc[t][c]+r}, 0")
    if FUSED: A("s_barrier")
    A("s_barrier")
    def rdO(tt, ks, par):
        r = of[par][tt]
        return f"ds_read_b128 v[{r}:{r+3}], v{vOA} offset:{(tt>>1)*4096 + ks*2048 + (tt&1)*256}"
    def rdW(ct, q, ks, par):
        r = wf[par][ct] + 2*q
        return f"ds_read_b64_tr_b16 v[{r}:{r+1}], v{vWA[ct]} offset:{ks*8192 + q*2048}"
    def mf(d, a, b): return f"v_mfma_f32_16x16x32_bf16 v[{d}:{d+3}], v[{a}:{a+3}], v[{b}:{b+3}], v[{d}:{d+3}]"
    def step(ks, nxt, inter=()):
        par = ks; npar = ks ^ 1; nks = ks ^ 1
        reads = []
        if nxt:
            reads = [rdW(0,0,nks,npar), rdW(0,1,nks,npar), rdO(0,nks,npar), rdW(1,0,nks,npar), rdW(1,1,nks,npar), rdO(1,nks,npar),
                     rdW(2,0,nks,npar), rdW(2,1,nks,npar), rdO(2,nks,npar), rdW(3,0,nks,npar), rdW(3,1,nks,npar), rdO(3,nks,npar)]
        inter = list(inter)
        m = 0
        for tt in range(4):
            for ct in range(4):
                A(mf(acc[tt][ct], wf[par][ct], of[par][tt]))
                if m < 6:
                    for x in reads[2*m:2*m+2]: A(x)
                elif inter and m >= 8: A(inter.pop(0))
                m += 1
        for x in inter: A(x)
    for ct in range(4):
        for q in range(2): A(rdW(ct, q, 0, 0))
    for tt in range(4): A(rdO(tt, 0, 0))
    A(f"s_mov_b32 s{sCnt}, {NST-1}")
    if o.get("stamp"): A("s_memtime s[70:71]")
    A(f".p2align 6\nL_{N}_loop:")
    A("s_waitcnt lgkmcnt(0)")
    A(f"""s_add_u32 s{sSlot}, s{sSlot}, 1
    s_cmp_eq_u32 s{sSlot}, {NS}
    s_cselect_b32 s{sDelta}, s{sCneg}, {SLOT}
    s_cselect_b32 s{sSlot}, 0, s{sSlot}""")
    step(0, True, [f"v_add_u32 v{r}, s{sDelta}, v{r}" for r in [vOA] + vWA])
    A(f"s_sub_u32 s{sCnt}, s{sCnt}, 1")
    A("s_waitcnt lgkmcnt(0)\ns_barrier")
    step(1, True)
    A(f"""s_cmp_lg_u32 s{sCnt}, 0
    s_cbranch_scc1 L_{N}_loop""")
    A("s_waitcnt lgkmcnt(0)")
    step(0, True)
    A("s_waitcnt lgkmcnt(0)")
    step(1, False)
    if o.get("stamp"): A("s_memtime s[72:73]\ns_waitcnt lgkmcnt(0)")
    A("s_nop 7")
    tmp = of[0][0]
    k = 0
    for tt in range(4):
        A(f"s_add_u32 s{sT0}, s{sSt}, {tt*65536}")
        for p in range(2):
            d = tmp + 4*(k % 4); k += 1
            for z in range(2):
                s_ = acc[tt][2*p+z]
                A(f"v_cvt_pk_bf16_f32 v{d+2*z}, v{s_}, v{s_+1}")
                A(f"v_cvt_pk_bf16_f32 v{d+2*z+1}, v{s_+2}, v{s_+3}")
            A("s_nop 1")
            A(f"v_permlane16_swap_b32 v{d}, v{d+2}")
            A(f"v_permlane16_swap_b32 v{d+1}, v{d+3}")
            A(f"buffer_store_dwordx4 v[{d}:{d+3}], v{vst}, s[{sOut}:{sOut+3}], s{sT0} offen offset:{p*64} {o.get('stflags','')}")
    A(f"s_branch L_{N}_done")
    A(f"L_{N}_done:")
    if o.get("stamp"):
        A(f"""s_memtime s[64:65]
        s_memrealtime s[66:67]
        s_waitcnt lgkmcnt(0)
        s_sub_u32 s64, s64, s60
        s_sub_u32 s66, s66, s62
        s_lshl_b32 s68, s2, 3
        s_add_u32 s68, s68, s{sWave}
        s_lshl_b32 s68, s68, 4
        s_add_u32 s68, s68, {WS_END+131072}
        s_sub_u32 s70, s70, s60
        s_sub_u32 s72, s72, s60
        s_lshr_b32 s70, s70, 2
        s_lshr_b32 s72, s72, 2
        s_lshl_b32 s72, s72, 16
        s_or_b32 s70, s70, s72
        v_mov_b32 v{wf[0][0]}, s64
        v_mov_b32 v{wf[0][0]+1}, s66
        v_mov_b32 v{wf[0][0]+2}, s62
        v_mov_b32 v{wf[0][0]+3}, s70
        v_mov_b32 v{vt0}, 0
        s_mov_b32 s{sO}, s{sP}
        s_and_b32 s{sO+1}, s{sP+1}, 0xffff
        s_mov_b32 s{sO+2}, {WS_END+262144}
        s_mov_b32 s{sO+3}, 0x20000
        buffer_store_dwordx4 v[{wf[0][0]}:{wf[0][0]+3}], v{vt0}, s[{sO}:{sO+3}], s68 offen""")
    if FUSED:
        A(f"L_{N}_end:")
        return A.text(), dict(name=name, nv=nv, lds=NS*SLOT)
    A(f"""L_{N}_end:
    s_endpgm""")
    return A.text() + kernel_desc(name, nv), dict(name=name, grid=256, block=512, lds=NS*SLOT, nv=nv)

if __name__ == "__main__":
    import hz
    from build import build
    t, i = gen_oproj(opts=dict(stamp=True))
    print(i)
    ps = hz.check_hazards(t)
    for p in ps[:30]: print(p)
    ws = hz.check_waits(t, i["name"], max_back=1)
    for p in ws[:30]: print(p)
    print(len(ps), len(ws))
    build([(t, i)], "oproj_only.s")
```

```python
from kgen import *
import struct, math
def f2u(x): return struct.unpack("<I", struct.pack("<f", x))[0]
CSC = f2u(math.log2(math.e) / math.sqrt(32.0))

def gen_proj(name="proj_kernel", opts=None):
    o = opts or {}
    A = Asm()
    SLOT = 51200
    XOFF, WOFF, EOFF = 0, 16384, 49152
    NST = 16
    va = VAlloc(0)
    vtid = va.get("tid"); vt0 = va.get("t0"); vt1 = va.get("t1"); vt2 = va.get("t2"); vt3 = va.get("t3"); vt4 = va.get("t4")
    vXA = [va.get("xa0"), va.get("xa1")]
    vWA = [va.get(f"wa{i}") for i in range(4)]
    vXE = [va.get("xe0"), va.get("xe1")]
    vWE = [va.get("we0"), va.get("we1")]
    vst = va.get("st")
    vdum = va.get("dummy")
    va_pf = va.get("pf", 2, 2)
    va_pfinc = va.get("pfinc")
    vstamp = va.get("stamp")
    vtag = va.get("tag", 4, 2) if (opts or {}).get("fused") else None
    vtagr = va.get("tagr", 2, 2) if (opts or {}).get("fused") else None
    NSP = 3
    acc = [[va.get(f"acc{t}{c}", 4, 4) for c in range(4)] for t in range(8)]
    acce = [va.get(f"acce{i}", 4, 4) for i in range(2)]
    xf = [va.get(f"xf{t}", 4, 4) for t in range(8)]
    xs = [va.get(f"xs{t}", 4, 4) for t in range(NSP)]
    wf = [[va.get(f"wf{b}{c}", 4, 4) for c in range(4)] for b in range(2)]
    xe = [va.get(f"xef{i}", 4, 4) for i in range(2)]
    we = va.get("wef", 4, 4)
    nv = va.next
    vLX = [xf[0] + i for i in range(4)]
    vLW = [xf[1] + i for i in range(4)] + [xf[2] + i for i in range(4)]
    vLE = xf[3]
    sX, sWd, sE, sWS = 8, 12, 16, 20
    sWave, sXcd, sRB, sCB, sType, sLdw = 24, 25, 26, 27, 28, 29
    sT0, sT1, sT2, sT3 = 30, 31, 32, 33
    sCnt, sDelta, sSlot, sXo, sWo, sEo, sM0x, sM0w, sM0e, sOut, sOutE, sCneg, sWstep = 34, 35, 36, 37, 38, 39, 40, 41, 42, 43, 44, 45, 46
    sC = 56
    sP = 48
    N = name
    FUSED = o.get("fused")
    A.raw(kernel_head(o.get("kname", name)).rstrip("\n"))
    if o.get("stamp"): A("s_memtime s[60:61]\ns_memrealtime s[62:63]")
    A(f"""s_cmp_ge_u32 s2, 256
    s_cbranch_scc1 {"L_fused_end" if FUSED else f"L_{N}_end"}
    s_and_b32 s{sXcd}, s2, 7
    s_lshr_b32 s{sT0}, s2, 3
    s_and_b32 s{sRB}, s{sT0}, 7
    s_lshr_b32 s{sCB}, s{sT0}, 3
    s_load_dwordx2 s[{sP+6}:{sP+7}], s[0:1], {KA_WS}
    {f"s_load_dwordx2 s[98:99], s[0:1], {KA_DBG}" if FUSED else ""}
    v_lshrrev_b32 v{vt0}, 6, v{vtid}
    v_and_b32 v{vtid}, 63, v{vtid}
    v_readfirstlane_b32 s{sWave}, v{vt0}
    s_cmp_lt_u32 s{sXcd}, 2
    s_cbranch_scc1 L_{N}_typeA
    s_load_dwordx2 s[{sP}:{sP+1}], s[0:1], {KA_BX}
    s_load_dwordx2 s[{sP+2}:{sP+3}], s[0:1], {KA_BWQKV}
    s_load_dwordx2 s[{sP+4}:{sP+5}], s[0:1], {KA_BWQKV}
    s_sub_u32 s{sT0}, s{sXcd}, 2
    s_and_b32 s{sT1}, s{sT0}, 1
    s_lshl_b32 s{sT1}, s{sT1}, 3
    s_add_u32 s{sRB}, s{sRB}, s{sT1}
    s_lshr_b32 s{sType}, s{sT0}, 1          ; 0 Q, 1 K, 2 V
    s_mov_b32 s{sLdw}, 6144
    s_lshl_b32 s{sT2}, s{sType}, 11
    s_lshl_b32 s{sT3}, s{sCB}, 9
    s_add_u32 s{sT2}, s{sT2}, s{sT3}
    s_mov_b32 s{sT3}, {1024*6144}
    s_mov_b32 s{sEo}, 0
    s_branch L_{N}_typed
    L_{N}_typeA:
    s_load_dwordx2 s[{sP}:{sP+1}], s[0:1], {KA_AX}
    s_load_dwordx2 s[{sP+2}:{sP+3}], s[0:1], {KA_AWQ}
    s_cmp_lt_u32 s{sCB}, 2
    s_cbranch_scc1 L_{N}_typeAK
    s_load_dwordx2 s[{sP+4}:{sP+5}], s[0:1], {KA_AWV}
    s_mov_b32 s{sType}, 4
    s_branch L_{N}_typeA2
    L_{N}_typeAK:
    s_load_dwordx2 s[{sP+4}:{sP+5}], s[0:1], {KA_AWK}
    s_mov_b32 s{sType}, 3
    L_{N}_typeA2:
    s_lshl_b32 s{sT1}, s{sXcd}, 3
    s_add_u32 s{sRB}, s{sRB}, s{sT1}
    s_mov_b32 s{sLdw}, 2048
    s_lshl_b32 s{sT2}, s{sCB}, 9
    s_mov_b32 s{sT3}, {1024*2048}
    s_and_b32 s{sEo}, s{sCB}, 1
    s_lshl_b32 s{sEo}, s{sEo}, 5
    L_{N}_typed:
    s_waitcnt lgkmcnt(0)
    s_lshl_b32 s{sT1}, s{sRB}, 18
    s_add_u32 s{sX}, s{sP}, s{sT1}
    s_addc_u32 s{sX+1}, s{sP+1}, 0
    s_and_b32 s{sX+1}, s{sX+1}, 0xffff
    s_mov_b32 s{sX+2}, 262144
    s_mov_b32 s{sX+3}, 0x20000
    s_add_u32 s{sWd}, s{sP+2}, s{sT2}
    s_addc_u32 s{sWd+1}, s{sP+3}, 0
    s_and_b32 s{sWd+1}, s{sWd+1}, 0xffff
    s_sub_u32 s{sWd+2}, s{sT3}, s{sT2}
    s_mov_b32 s{sWd+3}, 0x20000
    ; SRD E
    s_mov_b32 s{sE}, s{sP+4}
    s_and_b32 s{sE+1}, s{sP+5}, 0xffff
    s_mov_b32 s{sE+2}, 65536
    s_mov_b32 s{sE+3}, 0x20000
    s_mov_b32 s{sWS}, s{sP+6}
    s_and_b32 s{sWS+1}, s{sP+7}, 0xffff
    s_mov_b32 s{sWS+2}, {WS_END + (262144 if o.get('stamp') else 0)}
    s_mov_b32 s{sWS+3}, 0x20000
    """)
    if o.get("stamp"): A("s_memtime s[84:85]\ns_waitcnt lgkmcnt(0)")
    if FUSED: A(f"s_mov_b32 s{S_WAVE}, s{sWave}")
    A(f"""s_cmp_lt_u32 s{sWave}, 4
    s_cbranch_scc1 L_{N}_compute""")
    l = vtid
    A(f"L_{N}_loader:")
    LX0, LX1 = vLX[0], vLX[1]
    A(f"""s_sub_u32 s{sWave}, s{sWave}, 4
    v_lshrrev_b32 v{vt0}, 3, v{l}
    v_lshrrev_b32 v{vt1}, 4, v{l}
    v_and_b32 v{vt2}, 7, v{l}
    v_xor_b32 v{vt1}, v{vt1}, v{vt2}
    s_lshl_b32 s{sT0}, s{sWave}, 16
    v_lshlrev_b32 v{vt1}, 4, v{vt1}
    v_lshl_add_u32 v{LX0}, v{vt0}, 11, v{vt1}
    v_add_u32 v{LX0}, s{sT0}, v{LX0}
    v_xor_b32 v{LX1}, 64, v{LX0}
    s_mov_b32 s{sXo}, 0
    s_lshl_b32 s{sM0x}, s{sWave}, 12
    s_mov_b32 s{sSlot}, 0
    v_lshrrev_b32 v{vt0}, 5, v{l}
    v_and_b32 v{vt2}, 31, v{l}
    v_lshlrev_b32 v{vt1}, 1, v{vt0}
    v_xor_b32 v{vt1}, v{vt1}, v{vt2}
    s_lshl_b32 s{sT0}, s{sWave}, 4
    v_add_u32 v{vt0}, s{sT0}, v{vt0}
    v_mul_lo_u32 v{vt0}, v{vt0}, s{sLdw}
    v_lshl_add_u32 v{vLW[0]}, v{vt1}, 4, v{vt0}
    v_xor_b32 v{vLW[1]}, 64, v{vLW[0]}
    v_xor_b32 v{vLW[2]}, 0x80, v{vLW[0]}
    v_xor_b32 v{vLW[3]}, 0xc0, v{vLW[0]}
    s_mov_b32 s{sWo}, 0
    s_lshl_b32 s{sWstep}, s{sLdw}, 6
    s_lshl_b32 s{sT3}, s{sLdw}, 1
    s_lshl_b32 s{sM0w}, s{sWave}, 13
    s_add_u32 s{sM0w}, s{sM0w}, {WOFF}
    s_cmp_ge_u32 s{sType}, 3
    s_cbranch_scc0 L_{N}_ldB
    s_lshl_b32 s{sT0}, s{sWave}, 4
    v_lshrrev_b32 v{vt0}, 1, v{l}
    v_and_b32 v{vt0}, 15, v{vt0}
    v_add_u32 v{vt0}, s{sT0}, v{vt0}           ; position p
    v_lshrrev_b32 v{vt1}, 1, v{vt0}
    v_and_b32 v{vt1}, 4, v{vt1}
    v_xor_b32 v{vt0}, v{vt0}, v{vt1}
    v_and_b32 v{vt1}, 1, v{l}
    v_lshlrev_b32 v{vt1}, 4, v{vt1}
    v_lshl_add_u32 v{vLE}, v{vt0}, 6, v{vt1}
    v_add_u32 v{vLE}, s{sEo}, v{vLE}
    s_mov_b32 s{sEo}, 0
    s_lshl_b32 s{sM0e}, s{sWave}, 9
    s_add_u32 s{sM0e}, s{sM0e}, {EOFF}
    s_branch L_{N}_ldA""")
    def dma(extra):
        A(f"s_add_u32 m0, s{sSlot}, s{sM0x}")
        for i in range(4):
            if i: A("s_add_u32 m0, m0, 1024")
            A(f"s_add_u32 s{sT0}, s{sXo}, {i*16384}")
            A(f"buffer_load_dwordx4 v{[LX0,LX1][(i ^ (i>>1)) & 1]}, s[{sX}:{sX+3}], s{sT0} offen {o.get('xfl','')} lds")
        A(f"s_add_u32 m0, s{sSlot}, s{sM0w}")
        A(f"s_mov_b32 s{sT0}, s{sWo}")
        for i in range(8):
            if i:
                A("s_add_u32 m0, m0, 1024")
                A(f"s_add_u32 s{sT0}, s{sT0}, s{sT3}")
            A(f"buffer_load_dwordx4 v{vLW[(i&1) + 2*(i>>2)]}, s[{sWd}:{sWd+3}], s{sT0} offen {o.get('wfl','')} lds")
        if extra:
            A(f"s_add_u32 m0, s{sSlot}, s{sM0e}")
            A("s_mov_b32 exec_hi, 0")
            A(f"buffer_load_dwordx4 v{vLE}, s[{sE}:{sE+3}], s{sEo} offen lds")
            A("s_mov_b32 exec_hi, -1")
            A(f"s_add_u32 s{sEo}, s{sEo}, 4096")
        A(f"""s_add_u32 s{sXo}, s{sXo}, 128
        s_add_u32 s{sWo}, s{sWo}, s{sWstep}
        s_add_u32 s{sSlot}, s{sSlot}, {SLOT}
        s_cmp_eq_u32 s{sSlot}, {3*SLOT}
        s_cselect_b32 s{sSlot}, 0, s{sSlot}""")
    for tag, extra in (("ldB", False), ("ldA", True)):
        PER = 13 if extra else 12
        A(f"L_{N}_{tag}:")
        pre = o.get("predma", 1)
        if o.get("pfwait"): A("s_barrier")
        if o.get("stamp"): A("s_memtime s[86:87]")
        for _ in range(pre): dma(extra)
        if o.get("stamp"): A("s_memtime s[88:89]")
        A(f"s_waitcnt vmcnt({(pre-1)*PER})")
        if o.get("stamp"):
            A(f"""s_memtime s[90:91]
            s_waitcnt lgkmcnt(0)
            s_sub_u32 s84, s84, s60
            s_sub_u32 s86, s86, s60
            s_sub_u32 s88, s88, s60
            s_sub_u32 s90, s90, s60
            v_mov_b32 v{acc[0][0]}, s84
            v_mov_b32 v{acc[0][0]+1}, s86
            v_mov_b32 v{acc[0][0]+2}, s88
            v_mov_b32 v{acc[0][0]+3}, s90
            v_mov_b32 v{vt4}, 0
            s_lshl_b32 s68, s2, 3
            s_add_u32 s68, s68, s{sWave}
            s_add_u32 s68, s68, 4
            s_lshl_b32 s68, s68, 4
            s_add_u32 s68, s68, {WS_END}""")
        A("s_barrier")
        if o.get("stamp"): A(f"buffer_store_dwordx4 v[{acc[0][0]}:{acc[0][0]+3}], v{vt4}, s[{sWS}:{sWS+3}], s68 offen")
        for _ in range(3-pre): dma(extra)
        A(f"s_mov_b32 s{sCnt}, {NST-3}")
        A(f"L_{N}_{tag}_loop:")
        A(f"s_waitcnt vmcnt({PER})\ns_barrier")
        dma(extra)
        A(f"""s_sub_u32 s{sCnt}, s{sCnt}, 1
        s_cmp_lg_u32 s{sCnt}, 0
        s_cbranch_scc1 L_{N}_{tag}_loop
        s_waitcnt vmcnt({PER})
        s_barrier
        s_waitcnt vmcnt(0)
        s_barrier
        s_branch L_{N}_lend""")
    A(f"L_{N}_compute:")
    l = vtid
    if FUSED and o.get("nonce", "store") == "atomic":
        A(f"""s_cmp_lg_u32 s{sWave}, 1
        s_cbranch_scc1 L_{N}_notag
        s_memrealtime s[96:97]
        s_waitcnt lgkmcnt(0)
        s_or_b32 s96, s96, 1
        v_mov_b32 v{vtag}, s96
        v_mov_b32 v{vtag+1}, s97
        v_mov_b32 v{vtag+2}, 0
        v_mov_b32 v{vtag+3}, 0
        v_mov_b32 v{vt0}, 0
        s_mov_b64 exec, 1
        global_atomic_cmpswap_x2 v[{vtagr}:{vtagr+1}], v{vt0}, v[{vtag}:{vtag+3}], s[98:99] sc0
        s_mov_b64 exec, -1
        L_{N}_notag:""")
    elif FUSED:
        A(f"""v_mov_b32 v{vtag+2}, 0
        s_cmp_lg_u32 s{sWave}, 1
        s_cbranch_scc1 L_{N}_notag
        s_cmp_lg_u32 s2, 0
        s_cbranch_scc1 L_{N}_notag
        s_memrealtime s[96:97]
        s_waitcnt lgkmcnt(0)
        s_or_b32 s96, s96, 1
        v_mov_b32 v{vtag}, s96
        v_mov_b32 v{vtag+1}, s97
        s_mov_b64 exec, 1
        global_store_dwordx2 v{vtag+2}, v[{vtag}:{vtag+1}], s[98:99] sc0 sc1
        s_mov_b64 exec, -1
        L_{N}_notag:""")
    PF = o.get("prefetch", True)
    PFD = 4
    sPfN = 79
    vpa = va_pf; vpinc = va_pfinc
    if PF:
        A(f"""s_lshr_b32 s{sT1}, s2, 3              ; j
        s_lshr_b32 s{sT0}, s{sRB}, 3
        s_lshl_b32 s{sT0}, s{sT0}, 21
        s_add_u32 s72, s{sP}, s{sT0}
        s_addc_u32 s73, s{sP+1}, 0
        s_lshl_b32 s{sT0}, s{sType}, 11
        s_cmp_ge_u32 s{sType}, 3
        s_cselect_b32 s{sT0}, 0, s{sT0}
        s_add_u32 s74, s{sP+2}, s{sT0}
        s_addc_u32 s75, s{sP+3}, 0
        s_lshl_b32 s{sT2}, s{sT1}, 5
        v_and_b32 v{vt0}, 31, v{l}
        v_add_u32 v{vt0}, s{sT2}, v{vt0}
        v_lshlrev_b32 v{vt0}, 11, v{vt0}
        s_lshl_b32 s{sT2}, s{sT1}, 1
        v_bfe_u32 v{vt1}, v{l}, 4, 1
        v_add_u32 v{vt1}, s{sT2}, v{vt1}
        v_mul_lo_u32 v{vt1}, v{vt1}, s{sLdw}
        v_and_b32 v{vt2}, 15, v{l}
        v_lshl_add_u32 v{vt1}, v{vt2}, 7, v{vt1}
        s_lshl_b32 s{sT2}, s{sLdw}, 6
        v_mov_b32 v{vpinc}, 0x80
        v_mov_b32 v{vt2}, s{sT2}
        v_mov_b32 v{vt3}, s72
        v_mov_b32 v{vt4}, s73
        v_mov_b32 v{vpa}, s74
        v_mov_b32 v{vpa+1}, s75
        v_cmp_gt_u32 vcc, 32, v{l}
        s_nop 1
        v_cndmask_b32 v{vpinc}, v{vt2}, v{vpinc}, vcc
        v_cndmask_b32 v{vt0}, v{vt1}, v{vt0}, vcc
        v_cndmask_b32 v{vpa}, v{vpa}, v{vt3}, vcc
        v_cndmask_b32 v{vpa+1}, v{vpa+1}, v{vt4}, vcc
        v_mul_lo_u32 v{vt1}, v{vpinc}, s{sWave}
        v_add_u32 v{vt0}, v{vt0}, v{vt1}
        v_add_co_u32 v{vpa}, vcc, v{vpa}, v{vt0}
        v_lshlrev_b32 v{vpinc}, 2, v{vpinc}
        s_mov_b32 s{sPfN}, 3
        v_addc_co_u32 v{vpa+1}, vcc, 0, v{vpa+1}, vcc
        s_mov_b32 s78, s{sWave}""")
    def pf_one():
        return f"""global_load_dword v{vdum}, v[{vpa}:{vpa+1}], off {o.get('pfl','')}
        v_add_co_u32 v{vpa}, vcc, v{vpa}, v{vpinc}
        s_nop 1
        v_addc_co_u32 v{vpa+1}, vcc, 0, v{vpa+1}, vcc"""
    def pf_first():
        if PF and o.get("pfinit", True): A(pf_one())
        elif PF: A(f"""v_add_co_u32 v{vpa}, vcc, v{vpa}, v{vpinc}
        s_nop 1
        v_addc_co_u32 v{vpa+1}, vcc, 0, v{vpa+1}, vcc""")
    if o.get("pfpos", "early") == "early": pf_first()
    if o.get("tlb", True) and not FUSED:
        A(f"""s_cmp_lg_u32 s{sWave}, 2
        s_cbranch_scc1 L_{N}_notlb
        s_load_dwordx2 s[74:75], s[0:1], {KA_OUT}
        v_min_u32 v{vt0}, 12, v{l}
        v_lshlrev_b32 v{vt0}, 21, v{vt0}
        global_load_dword v{vdum}, v{vt0}, s[{sP+6}:{sP+7}]
        v_and_b32 v{vt0}, 3, v{l}
        v_lshlrev_b32 v{vt0}, 21, v{vt0}
        s_waitcnt lgkmcnt(0)
        global_load_dword v{vdum}, v{vt0}, s[74:75]
        L_{N}_notlb:""")
    if o.get("codepf", True):
        A(f"s_lshr_b32 s{sT0}, s2, 3\ns_and_b32 s{sT0}, s{sT0}, 3\ns_cmp_lg_u32 s{sWave}, 3\ns_cbranch_scc1 L_{N}_nocp")
        code_prefetch(A, N, o.get("kname", name), 0, sT0, vt0, vdum, l, 74)
        A(f"L_{N}_nocp:")
    def pf_inloop(tag):
        return [f"""s_cmp_lg_u32 s78, 0
        s_cbranch_scc1 L_{N}_{tag}_pfs
        s_mov_b32 s78, 4
        s_cmp_eq_u32 s{sPfN}, 0
        s_cbranch_scc1 L_{N}_{tag}_pfs
        s_sub_u32 s{sPfN}, s{sPfN}, 1
        {pf_one()}
        L_{N}_{tag}_pfs:
        s_sub_u32 s78, s78, 1"""] if PF else []
    A(f"""v_and_b32 v{vt0}, 15, v{l}          ; n
    v_lshrrev_b32 v{vt1}, 4, v{l}         ; g
    ; ---- store lane offset: (g>>1)*1024 + (g&1)*512 + n*16
    v_lshlrev_b32 v{vst}, 9, v{vt1}
    v_lshl_add_u32 v{vst}, v{vt0}, 4, v{vst}
    v_lshrrev_b32 v{vt2}, 1, v{vt0}
    v_xor_b32 v{vt2}, v{vt2}, v{vt1}
    v_lshlrev_b32 v{vt2}, 4, v{vt2}
    v_lshl_add_u32 v{vt3}, v{vt0}, 7, v{vt2}      ; n*128 + swz*16  ( == (n>>3)*1024 + (n&7)*128 + ..)
    v_and_b32 v{vt2}, 7, v{vt0}
    v_lshrrev_b32 v{vt4}, 1, v{vt2}
    v_xor_b32 v{vt4}, v{vt4}, v{vt1}
    v_lshlrev_b32 v{vt2}, 7, v{vt2}
    v_lshrrev_b32 v{vst+0 if False else vXE[1]}, 3, v{vt0}     ; n>>3
    v_lshlrev_b32 v{vXE[0]}, 2, v{vXE[1]}
    v_xor_b32 v{vt4}, v{vt4}, v{vXE[0]}
    v_lshl_add_u32 v{vt2}, v{vt4}, 4, v{vt2}
    v_lshl_add_u32 v{vt4}, v{vXE[1]}, 11, v{vt2}
    s_lshl_b32 s{sT0}, s{sWave}, 12
    s_cmp_eq_u32 s{sType}, 2
    s_cbranch_scc1 L_{N}_xperm
    v_mov_b32 v{vXA[0]}, v{vt3}
    s_branch L_{N}_xdone
    L_{N}_xperm:
    v_mov_b32 v{vXA[0]}, v{vt4}
    L_{N}_xdone:
    v_xor_b32 v{vXA[1]}, 64, v{vXA[0]}
    s_cmp_eq_u32 s{sType}, 4
    s_cbranch_scc1 L_{N}_eperm
    v_add_u32 v{vXE[0]}, s{sT0}, v{vt3}
    s_branch L_{N}_edone
    L_{N}_eperm:
    v_add_u32 v{vXE[0]}, s{sT0}, v{vt4}
    L_{N}_edone:
    v_xor_b32 v{vXE[1]}, 64, v{vXE[0]}
    v_lshrrev_b32 v{vt2}, 2, v{vt0}               ; i>>2
    v_and_b32 v{vt3}, 1, v{vt1}
    v_lshl_or_b32 v{vt3}, v{vt3}, 2, v{vt2}
    v_lshlrev_b32 v{vt3}, 1, v{vt3}               ; f
    v_lshl_add_u32 v{vt2}, v{vt1}, 3, v{vt2}      ; row
    v_lshlrev_b32 v{vt4}, 9, v{vt2}               ; row*512
    v_and_b32 v{vWE[1]}, 1, v{vt0}
    v_lshl_add_u32 v{vt4}, v{vWE[1]}, 3, v{vt4}   ; + 8*(i&1)
    v_add_u32 v{vt4}, {WOFF}, v{vt4}
    v_bfe_u32 v{vWE[1]}, v{vt0}, 1, 1             ; (i&3)>>1
    s_lshl_b32 s{sT1}, s{sWave}, 3
    v_add_u32 v{vWE[1]}, s{sT1}, v{vWE[1]}
    """)
    for ct in range(4):
        A(f"""v_add_u32 v{vWA[ct]}, {2*ct}, v{vWE[1]}
        v_xor_b32 v{vWA[ct]}, v{vWA[ct]}, v{vt3}
        v_lshl_add_u32 v{vWA[ct]}, v{vWA[ct]}, 4, v{vt4}""")
    A(f"""; ---- WE address: EOFF + row*32 + (i&3)*8 + ((q ^ (g&1))*128)
    v_lshlrev_b32 v{vt4}, 5, v{vt2}
    v_and_b32 v{vt2}, 3, v{vt0}
    v_lshl_add_u32 v{vt4}, v{vt2}, 3, v{vt4}
    v_add_u32 v{vt4}, {EOFF}, v{vt4}
    v_and_b32 v{vt2}, 1, v{vt1}
    v_lshl_add_u32 v{vWE[0]}, v{vt2}, 7, v{vt4}
    v_xor_b32 v{vt2}, 1, v{vt2}
    v_lshl_add_u32 v{vWE[1]}, v{vt2}, 7, v{vt4}
    s_mov_b32 s{sC}, {CSC}
    s_mov_b32 s{sCneg}, {(-2*SLOT) & 0xffffffff}
    """)
    for t in range(8):
        for c in range(4):
            for r in range(4): A(f"v_mov_b32 v{acc[t][c]+r}, 0")
    for i in range(2):
        for r in range(4): A(f"v_mov_b32 v{acce[i]+r}, 0")
    A(f"s_mov_b32 s{sSlot}, 0")
    if o.get("pfpos", "early") == "late": pf_first()
    if o.get("pfwait"): A("s_waitcnt vmcnt(0)\ns_barrier")
    A("s_barrier")

    def xreg(tt, par):
        sp = tt - (8 - NSP)
        if sp >= 0 and par == 1: return xs[sp]
        return xf[tt]
    def rdX(tt, ks, par, perm):
        if perm: T, ab = tt >> 1, tt & 1; a = vXA[(ks ^ ab) & 1]; off = XOFF + T*4096 + ab*1024
        else: a = vXA[(ks ^ tt) & 1]; off = XOFF + tt*2048
        r = xreg(tt, par)
        return f"ds_read_b128 v[{r}:{r+3}], v{a} offset:{off}"
    def rdW(ct, q, ks, par):
        r = wf[par][ct] + 2*q
        return f"ds_read_b64_tr_b16 v[{r}:{r+1}], v{vWA[ct]} offset:{ks*16384 + q*2048}"
    def rdXE(i, ks, perm):
        a = vXE[(ks ^ i) & 1]; off = XOFF + (i*1024 if perm else i*2048)
        return f"ds_read_b128 v[{xe[i]}:{xe[i]+3}], v{a} offset:{off}"
    def rdWE(q, ks):
        return f"ds_read_b64_tr_b16 v[{we+2*q}:{we+2*q+1}], v{vWE[q]} offset:{ks*1024}"
    def mf(d, a, b): return f"v_mfma_f32_16x16x32_bf16 v[{d}:{d+3}], v[{a}:{a+3}], v[{b}:{b+3}], v[{d}:{d+3}]"

    def step(ks, vtype, extra, nxt, inter=()):
        par = ks; npar = ks ^ 1; nks = ks ^ 1
        after = {}
        def put(m, s): after.setdefault(m, []).append(s)
        seq = []
        if extra:
            for i in range(2):
                seq.append(mf(acce[i], we, xe[i]) if extra == "K" else mf(acce[i], xe[i], we))
        ne = len(seq)
        for tt in range(8):
            for ct in range(4):
                x = xreg(tt, par); w = wf[par][ct]
                seq.append(mf(acc[tt][ct], x, w) if vtype else mf(acc[tt][ct], w, x))
        if nxt:
            m = 0
            if extra:
                put(1, rdWE(0, nks)); put(1, rdWE(1, nks)); put(2, rdXE(0, nks, extra == "V")); put(3, rdXE(1, nks, extra == "V"))
            for k in range(8): put(ne + k, rdW(k >> 1, k & 1, nks, npar))
            put(ne+3, rdX(0, nks, npar, vtype)); put(ne+7, rdX(1, nks, npar, vtype))
            put(ne+8, rdX(5, nks, npar, vtype)); put(ne+9, rdX(6, nks, npar, vtype)); put(ne+10, rdX(7, nks, npar, vtype))
            put(ne+11, rdX(2, nks, npar, vtype)); put(ne+15, rdX(3, nks, npar, vtype)); put(ne+19, rdX(4, nks, npar, vtype))
        inter = list(inter)
        for m, s in enumerate(seq):
            A(s)
            for x in after.get(m, []): A(x)
            if inter and m >= ne + 20: A(inter.pop(0))
        for x in inter: A(x)

    def compute(tag, vtype, extra):
        for ct in range(4):
            for q in range(2): A(rdW(ct, q, 0, 0))
        A("s_waitcnt lgkmcnt(4)")
        for tt in range(8): A(rdX(tt, 0, 0, vtype))
        if extra:
            A("s_waitcnt lgkmcnt(8)")
            for q in range(2): A(rdWE(q, 0))
            for i in range(2): A(rdXE(i, 0, extra == "V"))
        A(f"s_mov_b32 s{sCnt}, {NST-1}")
        if o.get("stamp"): A("s_memtime s[70:71]")
        A(f".p2align 6\nL_{N}_{tag}_loop:")
        A("s_waitcnt lgkmcnt(0)")
        A(f"""s_add_u32 s{sSlot}, s{sSlot}, 1
        s_cmp_eq_u32 s{sSlot}, 3
        s_cselect_b32 s{sDelta}, s{sCneg}, {SLOT}
        s_cselect_b32 s{sSlot}, 0, s{sSlot}""")
        regs = vXA + vWA + ((vXE + vWE) if extra else [])
        step(0, vtype, extra, "same", [f"v_add_u32 v{r}, s{sDelta}, v{r}" for r in regs] + pf_inloop(tag))
        A("s_waitcnt lgkmcnt(0)\ns_barrier")
        if o.get("stagestamp"):
            A(f"""s_memtime s[80:81]
            s_waitcnt lgkmcnt(0)
            s_sub_u32 s80, s80, s60
            s_sub_u32 s82, 15, s{sCnt}
            s_mov_b32 m0, s82
            v_writelane_b32 v{vdum+0 if False else vstamp}, s80, m0""")
        step(1, vtype, extra, "next", [f"s_sub_u32 s{sCnt}, s{sCnt}, 1", f"s_cmp_lg_u32 s{sCnt}, 0"])
        A(f"s_cbranch_scc1 L_{N}_{tag}_loop")
        if FUSED and o.get("nonce", "store") == "store":
            A(f"""s_cmp_lg_u32 s{S_WAVE}, 0
            s_cbranch_scc1 L_{N}_{tag}_notag
            global_load_dwordx2 v[{vtagr}:{vtagr+1}], v{vtag+2}, s[98:99] sc0 sc1
            L_{N}_{tag}_notag:""")
        A("s_waitcnt lgkmcnt(0)")
        step(0, vtype, extra, "same")
        A("s_waitcnt lgkmcnt(0)")
        step(1, vtype, extra, None)
        if o.get("stamp"): A("s_memtime s[72:73]\ns_waitcnt lgkmcnt(0)")
        A("s_nop 7")

    def epilogue(kind, extra):
        tmp = xf[0]
        stride = 2048
        for hh in range(2):
            for T in range(4):
                A(f"s_add_u32 s{sT0}, s{sOut}, {(hh*64 + T)*stride}")
                for th in range(2):
                    if kind == "V": srcs = [acc[2*T][2*hh+th], acc[2*T+1][2*hh+th]]
                    else: srcs = [acc[2*T+th][2*hh], acc[2*T+th][2*hh+1]]
                    d = tmp + 4*((T*2+th) % 4)
                    if kind == "Q":
                        for s_ in srcs:
                            A(f"v_pk_mul_f32 v[{s_}:{s_+1}], v[{s_}:{s_+1}], s[{sC}:{sC+1}]")
                            A(f"v_pk_mul_f32 v[{s_+2}:{s_+3}], v[{s_+2}:{s_+3}], s[{sC}:{sC+1}]")
                    for k, s_ in enumerate(srcs):
                        A(f"v_cvt_pk_bf16_f32 v{d+2*k}, v{s_}, v{s_+1}")
                        A(f"v_cvt_pk_bf16_f32 v{d+2*k+1}, v{s_+2}, v{s_+3}")
                    A(f"buffer_store_dwordx4 v[{d}:{d+3}], v{vst}, s[{sWS}:{sWS+3}], s{sT0} offen offset:{th*256} {o.get('stflags','')}")
        if extra == "K":
            d = wf[0][0]
            for th in range(2):
                A(f"v_cvt_pk_bf16_f32 v{d+2*th}, v{acce[th]}, v{acce[th]+1}")
                A(f"v_cvt_pk_bf16_f32 v{d+2*th+1}, v{acce[th]+2}, v{acce[th]+3}")
                A(f"buffer_store_dwordx2 v[{d+2*th}:{d+2*th+1}], v{vst}, s[{sWS}:{sWS+3}], s{sOutE} offen offset:{th*256} {o.get('stflags','')}")
        elif extra == "V":
            d = wf[0][0]
            for k in range(2):
                A(f"v_cvt_pk_bf16_f32 v{d+2*k}, v{acce[k]}, v{acce[k]+1}")
                A(f"v_cvt_pk_bf16_f32 v{d+2*k+1}, v{acce[k]+2}, v{acce[k]+3}")
            A(f"buffer_store_dwordx4 v[{d}:{d+3}], v{vst}, s[{sWS}:{sWS+3}], s{sOutE} offen {o.get('stflags','')}")
        A(f"s_branch L_{N}_done")

    A(f"""s_lshl_b32 s{sT0}, s{sCB}, 3
    s_lshl_b32 s{sT1}, s{sWave}, 1
    s_add_u32 s{sT0}, s{sT0}, s{sT1}        ; head0
    s_lshl_b32 s{sT0}, s{sT0}, 6
    s_lshl_b32 s{sT1}, s{sRB}, 2
    s_add_u32 s{sT0}, s{sT0}, s{sT1}        ; head0*64 + T0
    s_add_u32 s{sT1}, s{sT1}, s{sWave}
    s_lshl_b32 s{sOutE}, s{sT1}, 11
    s_add_u32 s{sOutE}, s{sOutE}, {WS_KA}
    s_mov_b32 s{sC+1}, s{sC}
    s_cmp_eq_u32 s{sType}, 0
    s_cbranch_scc1 L_{N}_cBQ
    s_cmp_eq_u32 s{sType}, 1
    s_cbranch_scc1 L_{N}_cBK
    s_cmp_eq_u32 s{sType}, 2
    s_cbranch_scc1 L_{N}_cBV
    s_lshl_b32 s{sOut}, s{sT0}, 11
    s_add_u32 s{sOut}, s{sOut}, {WS_QA}
    s_cmp_eq_u32 s{sType}, 3
    s_cbranch_scc1 L_{N}_cAK
    s_lshl_b32 s{sT1}, s{sEo}, 3
    s_add_u32 s{sOutE}, s{sOutE}, s{sT1}
    s_add_u32 s{sOutE}, s{sOutE}, {WS_VA-WS_KA}""")
    compute("av", False, "V"); epilogue("Q", "V")
    A(f"""L_{N}_cAK:
    s_lshr_b32 s{sT1}, s{sEo}, 2
    s_add_u32 s{sOutE}, s{sOutE}, s{sT1}""")
    compute("ak", False, "K"); epilogue("Q", "K")
    A(f"""L_{N}_cBQ:
    s_lshl_b32 s{sOut}, s{sT0}, 11
    s_add_u32 s{sOut}, s{sOut}, {WS_QB}""")
    A(f"s_branch L_{N}_cBQK")
    A(f"""L_{N}_cBK:
    s_lshl_b32 s{sOut}, s{sT0}, 11
    s_add_u32 s{sOut}, s{sOut}, {WS_KB}
    L_{N}_cBQK:""")
    compute("bqk", False, None)
    A(f"""s_cmp_eq_u32 s{sType}, 1
    s_cbranch_scc1 L_{N}_eBK""")
    epilogue("Q", None)
    A(f"L_{N}_eBK:")
    epilogue("K", None)
    A(f"""L_{N}_cBV:
    s_lshl_b32 s{sOut}, s{sT0}, 11
    s_add_u32 s{sOut}, s{sOut}, {WS_VB}""")
    compute("bv", True, None); epilogue("V", None)

    A(f"L_{N}_done:")
    if o.get("stamp"):
        A(f"""s_memtime s[64:65]
        s_memrealtime s[66:67]
        s_waitcnt lgkmcnt(0)
        s_sub_u32 s64, s64, s60
        s_sub_u32 s66, s66, s62
        s_lshl_b32 s68, s2, 3
        s_add_u32 s68, s68, s{sWave}
        s_lshl_b32 s68, s68, 4
        s_add_u32 s68, s68, {WS_END}
        v_mov_b32 v{xs[0]}, s64
        v_mov_b32 v{xs[0]+1}, s66
        v_mov_b32 v{xs[0]+2}, s62
        s_sub_u32 s70, s70, s60
        s_sub_u32 s72, s72, s60
        s_lshr_b32 s70, s70, 2
        s_lshr_b32 s72, s72, 2
        s_lshl_b32 s72, s72, 16
        s_or_b32 s70, s70, s72
        v_mov_b32 v{xs[0]+3}, s70
        v_mov_b32 v{vt0}, 0
        buffer_store_dwordx4 v[{xs[0]}:{xs[0]+3}], v{vt0}, s[{sWS}:{sWS+3}], s68 offen""")
        if o.get("stagestamp"):
            A(f"""s_lshl_b32 s68, s2, 2
            s_add_u32 s68, s68, s{sWave}
            s_lshl_b32 s68, s68, 6
            s_add_u32 s68, s68, {WS_END + 196608}
            v_lshlrev_b32 v{vt0}, 2, v{vtid}
            s_mov_b64 exec, 0xffff
            buffer_store_dword v{vstamp}, v{vt0}, s[{sWS}:{sWS+3}], s68 offen
            s_mov_b64 exec, -1""")
    if FUSED and o.get("nonce", "store") == "atomic":
        A(f"""s_waitcnt vmcnt(0)
        s_cmp_lg_u32 s{S_WAVE}, 1
        s_cbranch_scc1 L_{N}_lend
        v_cmp_eq_u64 vcc, 0, v[{vtagr}:{vtagr+1}]
        v_mov_b32 v{vt0}, {NONCE_LDS}
        s_nop 0
        v_cndmask_b32 v{vtag}, v{vtagr}, v{vtag}, vcc
        v_cndmask_b32 v{vtag+1}, v{vtagr+1}, v{vtag+1}, vcc
        s_mov_b64 exec, 1
        ds_write_b64 v{vt0}, v[{vtag}:{vtag+1}]
        s_mov_b64 exec, -1
        s_waitcnt lgkmcnt(0)
        L_{N}_lend:
        s_barrier
        s_cmp_lg_u32 s{S_WAVE}, 0
        s_cbranch_scc1 L_{N}_noflag""")
        read_nonce(A, vtag, vt0)
        flag_srd(A, 92, sP+6)
        flag_store(A, 92, vtag, vt0, sT0, 0)
        A(f"L_{N}_noflag:")
        return A.text(), dict(name=name, nv=nv, lds=3*SLOT)
    if FUSED:
        A("s_waitcnt vmcnt(0)")
        if o.get("stamp3"): rt_stamp(A, 80)
        A(f"""s_cmp_lg_u32 s{S_WAVE}, 0
        s_cbranch_scc1 L_{N}_lend
        s_mov_b32 s{sCnt}, 400000
        L_{N}_tagspin:
        v_cmp_eq_u64 vcc, 0, v[{vtagr}:{vtagr+1}]
        s_sub_u32 s{sCnt}, s{sCnt}, 1
        s_nop 2
        s_cmp_eq_u64 vcc, 0
        s_cbranch_scc1 L_{N}_tagok
        s_cmp_eq_u32 s{sCnt}, 0
        s_cbranch_scc1 L_{N}_tagok
        global_load_dwordx2 v[{vtagr}:{vtagr+1}], v{vtag+2}, s[98:99] sc0 sc1
        s_waitcnt vmcnt(0)
        s_branch L_{N}_tagspin
        L_{N}_tagok:
        v_mov_b32 v{vt0}, {NONCE_LDS}
        s_mov_b64 exec, 1
        ds_write_b64 v{vt0}, v[{vtagr}:{vtagr+1}]
        s_mov_b64 exec, -1""")
        A(f"""s_waitcnt lgkmcnt(0)
        L_{N}_lend:
        s_barrier
        s_cmp_lg_u32 s{S_WAVE}, 0
        s_cbranch_scc1 L_{N}_noflag""")
        flag_srd(A, 92, sP+6)
        flag_store(A, 92, vtagr, vt0, sT0, 0)
        if o.get("stamp3"): rt_stamp(A, 81)
        A(f"L_{N}_noflag:")
        return A.text(), dict(name=name, nv=nv, lds=3*SLOT)
    A(f"""s_waitcnt vmcnt(0)
    L_{N}_lend:
    L_{N}_end:
    s_endpgm""")
    return A.text() + kernel_desc(name, nv), dict(name=name, grid=256, block=512, lds=3*SLOT, nv=nv)

if __name__ == "__main__":
    import hz
    from build import build
    t, i = gen_proj(opts=dict(stamp=True))
    print(i)
    ps = hz.check_hazards(t)
    for p in ps[:30]: print(p)
    ws = hz.check_waits(t, i["name"], max_back=1)
    for p in ws[:30]: print(p)
    print(len(ps), len(ws))
    build([(t, i)], "proj_only.s")
```

```python
import sys; sys.path.insert(0,"dev")
from build_all import *
import copy
CFG = dict(po=dict(stflags="sc0 sc1", pfl="", predma=2, pfpos="late"), ao=dict(stflags="sc0 sc1"), oo=dict(stflags="nt"))
make_fused("fused.s", **CFG)
make_fused("fused_stamp.s", stamp=True, check=False, **CFG)
c2 = copy.deepcopy(CFG); c2["po"]["nonce"] = "atomic"
make_fused("fuseda.s", check=False, **c2)
make_fused("fuseda_stamp.s", stamp=True, check=False, **c2)
make("all_stamp.s", stamp=True, check=False, **CFG)
make("all.s", check=False, **CFG)
c3 = copy.deepcopy(CFG); c3["po"]["stamp3"] = True; c3["ao"]["stamp3"] = True
make_fused("fusedh_stamp.s", stamp=True, check=False, **c3)
```

```python
from kgen import *

def gen_attn2(name="attn_kernel", NSLOT=3, TPC=8, opts=None):
    o = opts or {}
    A = Asm()
    NQ = 4
    CH = TPC * 4096
    NCH = 64 // TPC
    FLAG = NSLOT * CH
    va = VAlloc(0)
    vtid = va.get("tid")
    vl16 = va.get("l16")
    vcur = va.get("cur"); vnxt = va.get("nxt")
    vt0 = va.get("t0", 1, 4); vt1 = va.get("t1"); vt2 = va.get("t2"); vt3 = va.get("t3")
    vidx = va.get("idx")
    val = va.get("alpha")
    vdum = va.get("dummy")
    vm = [va.get(f"m{i}") for i in range(NQ)]
    vsel = va.get("sel", 4, 4)
    Q = [[va.get(f"q{i}{h}", 4, 4) for h in range(2)] for i in range(NQ)]
    O = [va.get(f"o{i}", 16, 4) for i in range(NQ)]
    L = [va.get(f"l{i}", 4, 4) for i in range(NQ)]
    S = [va.get(f"s{i}", 16, 4) for i in range(2)]
    P = [va.get(f"p{i}", 8, 4) for i in range(2)]
    K = [va.get(f"k{i}", 8, 4) for i in range(2)]
    V = [va.get(f"v{i}", 8, 4) for i in range(2)]
    nv = va.next
    vdma = Q[0][0]
    sWS, sKV, sW = 4, 8, 12
    sWave, sSoff, sM0, sCnt, sQ, sO, sNxt, sMode, sT0, sT1 = 16, 17, 18, 19, 20, 21, 22, 23, 24, 25
    sT2, sT3 = 26, 27
    N = name
    PER = CH // 4 // 1024
    FUSED = o.get("fused")
    WPRE = FUSED and o.get("wpre")
    WFL = WPRE and o.get("wflag")
    O_XSLOTS, O_WSLOTS, O_WOFF = orings()
    rdn = (lambda vn, vt: nonce_from_sgpr(A, vn)) if WPRE else (lambda vn, vt: read_nonce(A, vn, vt))
    if not FUSED: A.raw(kernel_head(name).rstrip("\n"))
    if o.get("stamp"): A("s_memtime s[40:41]\ns_memrealtime s[42:43]")
    if FUSED:
        A(f"""s_load_dwordx2 s[{sWS}:{sWS+1}], s[0:1], {KA_WS}
        v_and_b32 v{vl16}, 63, v{vtid}
        s_mov_b32 s{sWave}, s{S_WAVE}""")
    else:
        A(f"""s_cmp_ge_u32 s2, 256
        s_cbranch_scc1 L_{N}_end
        s_load_dwordx2 s[{sWS}:{sWS+1}], s[0:1], {KA_WS}
        v_lshrrev_b32 v{vt0}, 6, v{vtid}
        v_and_b32 v{vl16}, 63, v{vtid}
        v_readfirstlane_b32 s{sWave}, v{vt0}""")
    A(f"""v_lshlrev_b32 v{vl16}, 4, v{vl16}
    s_and_b32 s{sT0}, s2, 7
    s_lshr_b32 s{sT1}, s2, 3
    s_lshl_b32 s{sT0}, s{sT0}, 3
    s_lshr_b32 s{sT2}, s{sT1}, 2
    s_add_u32 s{sT0}, s{sT0}, s{sT2}      ; bh
    s_and_b32 s{sT1}, s{sT1}, 3           ; qb
    s_and_b32 s{sT2}, s{sT0}, 31          ; head
    s_lshr_b32 s{sT0}, s{sT0}, 5          ; branch
    s_mov_b32 s28, s{sT2}
    s_mov_b32 s29, s{sT0}
    s_mov_b32 s30, s{sT1}
    s_cmp_lt_u32 s{sWave}, 4
    s_cbranch_scc1 L_{N}_compute""")
    A(f"""L_{N}_loader:
    s_sub_u32 s{sWave}, s{sWave}, 4
    s_lshl_b32 s{sT2}, s{sT2}, 17         ; head*128KB
    s_add_u32 s{sT2}, s{sT2}, {WS_KB}
    s_cmp_eq_u32 s{sT0}, 0
    s_cselect_b32 s{sT2}, {WS_KA}, s{sT2}
    s_mov_b32 s{sT3}, {WS_VB-WS_KB}
    s_cselect_b32 s{sT3}, {WS_VA-WS_KA}, s{sT3}
    s_cmp_ge_u32 s{sWave}, 2
    s_cselect_b32 s{sT3}, s{sT3}, 0
    s_add_u32 s{sT2}, s{sT2}, s{sT3}
    s_and_b32 s{sT1}, s{sWave}, 1
    s_mul_i32 s{sT1}, s{sT1}, {PER*1024}
    v_add_u32 v{vdma}, s{sT1}, v{vl16}
    s_mul_i32 s{sM0}, s{sWave}, {PER*1024}
    s_mov_b32 s{sQ}, s{sM0}
    s_mov_b32 s{sSoff}, 0
    s_waitcnt lgkmcnt(0)
    s_add_u32 s{sKV}, s{sWS}, s{sT2}
    s_addc_u32 s{sKV+1}, s{sWS+1}, 0
    s_and_b32 s{sKV+1}, s{sKV+1}, 0xffff
    s_mov_b32 s{sKV+2}, 131072
    s_mov_b32 s{sKV+3}, 0x20000
    """)
    if FUSED:
        vn, vc, vo = S[0], S[0]+2, S[0]+4
        if o.get("stamp3"): rt_stamp(A, 80)
        A(f"""s_cmp_lg_u32 s{sWave}, 0
        s_cbranch_scc1 L_{N}_nopoll""")
        rdn(vn, vt0)
        flag_srd(A, 92, sWS)
        A(f"""v_lshrrev_b32 v{vt0}, 4, v{vl16}          ; lane
        s_cmp_eq_u32 s29, 0
        s_cbranch_scc0 L_{N}_pollB
        v_and_b32 v{vt1}, 1, v{vt0}
        v_lshrrev_b32 v{vt2}, 1, v{vt0}
        v_lshl_add_u32 v{vo}, v{vt2}, 3, v{vt1}
        s_branch L_{N}_pollgo
        L_{N}_pollB:
        v_and_b32 v{vt1}, 15, v{vt0}
        s_lshl_b32 s{sT1}, s30, 2
        v_and_b32 v{vt2}, 3, v{vt0}
        v_add_u32 v{vt2}, s{sT1}, v{vt2}
        v_cmp_gt_u32 vcc, 32, v{vt0}
        s_nop 1
        v_cndmask_b32 v{vt1}, v{vt2}, v{vt1}, vcc      ; rb
        v_lshrrev_b32 v{vt2}, 4, v{vt0}                ; 0 K, 1 V, 2/3 Q
        v_lshlrev_b32 v{vt2}, 1, v{vt2}
        v_add_u32 v{vt2}, 4, v{vt2}                    ; 4, 6, ..
        v_cndmask_b32 v{vt2}, 2, v{vt2}, vcc
        v_lshrrev_b32 v{vt3}, 3, v{vt1}
        v_add_u32 v{vt2}, v{vt2}, v{vt3}               ; xcd
        v_and_b32 v{vt1}, 7, v{vt1}
        s_lshr_b32 s{sT1}, s28, 3                      ; cb
        s_lshl_b32 s{sT1}, s{sT1}, 3
        v_add_u32 v{vt1}, s{sT1}, v{vt1}               ; sl
        v_lshl_add_u32 v{vo}, v{vt1}, 3, v{vt2}
        L_{N}_pollgo:
        s_and_b32 s{sT1}, s2, 7
        s_lshl_b32 s{sT1}, s{sT1}, 7
        v_lshlrev_b32 v{vo}, 10, v{vo}
        v_add_u32 v{vo}, s{sT1}, v{vo}""")
        if o.get("pollr", 0): flag_poll2(A, N, 92, vn, vo, S[0]+8, sCnt, o["pollr"], lds=(NONCE_LDS if WPRE else None), nrd=o.get("pollrd", 1))
        elif o.get("poll3"): flag_poll3(A, N, 92, vn, vo, vc, sCnt, first=o.get("pollfirst"))
        else: flag_poll(A, N, 92, vn, vo, vc, sCnt, first=o.get("pollfirst"))
        if o.get("stamp3"):
            rt_stamp(A, 81); A(f"s_mov_b32 s82, s{sCnt}")
        A(f"""L_{N}_nopoll:
        s_barrier""")
    def dma(rot=True):
        A(f"s_mov_b32 m0, s{sM0}")
        if rot: A(f"s_add_u32 s{sM0}, s{sM0}, {CH}")
        else: A("s_nop 0")
        for i in range(PER):
            if i == 4:
                A("s_add_u32 m0, m0, 4096")
                A(f"s_add_u32 s{sT3}, s{sSoff}, 4096")
            A(f"buffer_load_dwordx4 v{vdma}, s[{sKV}:{sKV+3}], s{sSoff if i < 4 else sT3} offen offset:{(i&3)*1024} lds")
        A(f"s_add_u32 s{sSoff}, s{sSoff}, {CH//2}")
        if rot:
            A(f"s_cmp_ge_u32 s{sM0}, {NSLOT*CH}")
            A(f"s_cselect_b32 s{sT1}, {NSLOT*CH}, 0")
            A(f"s_sub_u32 s{sM0}, s{sM0}, s{sT1}")
    EARLY = o.get("early", 0) if WPRE else 0
    def dma_part(lo, hi):
        for i in range(lo, hi):
            if i == lo or i == 4:
                A(f"s_add_u32 m0, s{sM0}, {4096 if i >= 4 else 0}")
                A(f"s_add_u32 s{sT3}, s{sSoff}, {4096 if i >= 4 else 0}")
            A(f"buffer_load_dwordx4 v{vdma}, s[{sKV}:{sKV+3}], s{sT3} offen offset:{(i&3)*1024} lds")
    if EARLY:
        assert EARLY <= 4 and PER == 8
        A(f"s_bitcmp1_b32 s{sWave}, 0\ns_cbranch_scc1 L_{N}_odd0")
        dma_part(0, 2*EARLY)
        A("s_waitcnt vmcnt(0)")
        if o.get("stamp3"): rt_stamp(A, 83)
        A("s_barrier")
        dma_part(2*EARLY, PER)
        A(f"s_branch L_{N}_odd1\nL_{N}_odd0:\ns_barrier")
        dma_part(0, PER)
        A(f"""L_{N}_odd1:
        s_add_u32 s{sM0}, s{sM0}, {CH}
        s_add_u32 s{sSoff}, s{sSoff}, {CH//2}""")
        if o.get("early_c1", True):
            dma()
            A(f"s_waitcnt vmcnt({PER})\ns_barrier")
        else:
            A("s_waitcnt vmcnt(0)\ns_barrier")
            dma()
    else:
        dma()
        if WPRE: A("s_waitcnt vmcnt(0)")
        else: A(f"""v_mov_b32 v{vt0}, 0
        v_mov_b32 v{vt1}, {FLAG}
        ds_write_b32 v{vt1}, v{vt0}
        s_waitcnt vmcnt(0) lgkmcnt(0)""")
        if o.get("stamp3"): rt_stamp(A, 83)
        A("s_barrier")
        for c in range(NSLOT-2): dma()
    if o.get("prefetch", True):
        sPW = 56
        A(f"""s_load_dwordx2 s[{sPW+4}:{sPW+5}], s[0:1], {KA_AWO}
        s_load_dwordx2 s[{sPW+6}:{sPW+7}], s[0:1], {KA_BWO}
        s_lshr_b32 s{sT0}, s2, 3
        s_lshl_b32 s{sT0}, s{sT0}, 5
        s_lshl_b32 s{sT1}, s{sWave}, 3
        s_add_u32 s{sT0}, s{sT0}, s{sT1}
        s_lshl_b32 s{sT0}, s{sT0}, 11
        s_and_b32 s{sT1}, s2, 1
        s_lshl_b32 s{sT1}, s{sT1}, 10
        s_add_u32 s{sT0}, s{sT0}, s{sT1}
        v_lshrrev_b32 v{vt0}, 7, v{vl16}
        v_lshlrev_b32 v{vt0}, 11, v{vt0}
        v_bfe_u32 v{vt1}, v{vl16}, 4, 3
        v_lshl_add_u32 v{vt0}, v{vt1}, 7, v{vt0}
        s_bitcmp1_b32 s2, 2
        s_waitcnt lgkmcnt(0)
        s_cselect_b32 s{sPW}, s{sPW+6}, s{sPW+4}
        s_cselect_b32 s{sPW+1}, s{sPW+7}, s{sPW+5}
        s_and_b32 s{sPW+1}, s{sPW+1}, 0xffff
        s_mov_b32 s{sPW+2}, {1024*2048}
        s_mov_b32 s{sPW+3}, 0x20000
        buffer_load_dword v{vdum}, v{vt0}, s[{sPW}:{sPW+3}], s{sT0} offen""")
    if WPRE:
        sOW, vOW = 64, S[1]
        A(f"""s_load_dwordx2 s[68:69], s[0:1], {KA_AWO}
        s_load_dwordx2 s[70:71], s[0:1], {KA_BWO}
        v_lshrrev_b32 v{vOW+4}, 4, v{vl16}
        s_lshl_b32 s72, s{sWave}, 12
        s_add_u32 s72, s72, {O_WOFF}
        s_waitcnt lgkmcnt(0)""")
        ow_srd(A, sOW, 68, 70, sT0, sT1)
        ow_lanes(A, vOW, vOW+4, sWave, sT0, vt0, vt1, vt2)
    A(f"s_mov_b32 s{sCnt}, {NCH-2 if WPRE else NCH}")
    A(f"""L_{N}_ldloop:
    s_waitcnt vmcnt({(NSLOT-3)*PER})
    {"s_nop 0" if "nobar" in o.get("ablate","") else "s_barrier"}""")
    dma()
    A(f"""s_sub_u32 s{sCnt}, s{sCnt}, 1
    s_cmp_lg_u32 s{sCnt}, 0
    s_cbranch_scc1 L_{N}_ldloop""")
    if WPRE:
        A("s_waitcnt vmcnt(0)\ns_barrier")
        for st in range(O_WSLOTS): ow_dma(A, sOW, vOW, 72, sT0, st*16384, st)
        A("s_barrier")
        A(f"""s_barrier
        v_mov_b32 v{vt1}, {VOTE_LDS}
        ds_read_b128 v[{vOW+4}:{vOW+7}], v{vt1}
        s_waitcnt lgkmcnt(0)
        v_or3_b32 v{vt0}, v{vOW+4}, v{vOW+5}, v{vOW+6}
        v_or_b32 v{vt0}, v{vt0}, v{vOW+7}
        s_nop 1""")
    else:
        A(f"""s_waitcnt vmcnt(0)
        s_barrier
        v_mov_b32 v{vt1}, {FLAG}
        ds_read_b32 v{vt0}, v{vt1}
        s_waitcnt lgkmcnt(0)""")
    A(f"""v_readfirstlane_b32 s{sT0}, v{vt0}
    s_nop 3
    s_cmp_eq_u32 s{sT0}, 0
    s_cbranch_scc1 L_{N}_end
    s_mov_b32 s{sCnt}, {NCH}
    s_mov_b32 s{sSoff}, 0
    s_mov_b32 s{sM0}, s{sQ}
    L_{N}_ldslow:
    s_barrier""")
    dma(rot=False)
    A(f"""s_waitcnt vmcnt(0)
    s_barrier
    s_sub_u32 s{sCnt}, s{sCnt}, 1
    s_cmp_lg_u32 s{sCnt}, 0
    s_cbranch_scc1 L_{N}_ldslow
    {"s_barrier" if FUSED else ""}
    s_branch L_{N}_end
""")
    A(f"""L_{N}_compute:
    s_lshl_b32 s{sT1}, s{sT1}, 4
    s_lshl_b32 s{sT3}, s{sWave}, 2
    s_add_u32 s{sT1}, s{sT1}, s{sT3}
    s_lshl_b32 s{sQ}, s{sT2}, 6
    s_add_u32 s{sQ}, s{sQ}, s{sT1}
    s_lshl_b32 s{sQ}, s{sQ}, 11           ; (head*64+T)*2048
    s_lshl_b32 s{sO}, s{sT1}, 5
    s_add_u32 s{sO}, s{sO}, s{sT2}
    s_lshl_b32 s{sO}, s{sO}, 11           ; (T*32+head)*2048
    s_mul_i32 s{sT3}, s{sT0}, {WS_QB-WS_QA}
    s_add_u32 s{sQ}, s{sQ}, s{sT3}
    s_add_u32 s{sO}, s{sO}, s{sT3}
    s_add_u32 s{sO}, s{sO}, {WS_OA}
    s_waitcnt lgkmcnt(0)
    {"s_memtime s[60:61]" if o.get('stamp2') else ""}
    s_mov_b32 s{sW}, s{sWS}
    s_and_b32 s{sW+1}, s{sWS+1}, 0xffff
    s_mov_b32 s{sW+2}, {WS_END + (262144 if o.get('stamp') else 0)}
    s_mov_b32 s{sW+3}, 0x20000
    """)
    assert WS_OB - WS_OA == WS_QB - WS_QA
    def q_loads():
        for i in range(NQ):
            if i == 2: A(f"s_add_u32 s{sQ}, s{sQ}, 4096")
            for h in range(2):
                A(f"buffer_load_dwordx4 v[{Q[i][h]}:{Q[i][h]+3}], v{vl16}, s[{sW}:{sW+3}], s{sQ} offen offset:{(i&1)*2048+h*1024}")
    if not FUSED: q_loads()
    def init_acc():
        for i in range(NQ):
            for r in range(16): A(f"v_mov_b32 v{O[i]+r}, 0")
            for r in range(2): A(f"v_mov_b32 v{L[i]+r}, 0")
    init_acc()
    for i in range(NQ):
        for r in range(2,4): A(f"v_mov_b32 v{L[i]+r}, 0")
    for r in range(8):
        A(f"v_mov_b32 v{P[1]+r}, 0")
        A(f"v_mov_b32 v{V[1]+r}, 0")
    A(f"""v_lshrrev_b32 v{vt0}, 4, v{vl16}      ; lane
    v_and_b32 v{vt1}, 2, v{vt0}           ; r>=2 -> nonzero
    v_and_b32 v{vt2}, 4, v{vt0}           ; qhalf
    v_mov_b32 v{vt3}, 0x3f803f80
    v_cmp_eq_u32 vcc, 0, v{vt1}
    s_nop 1
    v_cndmask_b32 v{vt3}, 0, v{vt3}, vcc
    v_cmp_eq_u32 vcc, 0, v{vt2}
    s_nop 1
    v_cndmask_b32 v{vsel}, 0, v{vt3}, vcc
    v_cndmask_b32 v{vsel+1}, 0, v{vt3}, vcc
    v_cndmask_b32 v{vsel+2}, v{vt3}, 0, vcc
    v_cndmask_b32 v{vsel+3}, v{vt3}, 0, vcc
    v_and_b32 v{vt1}, 1, v{vt0}
    v_mov_b32 v{vt2}, 0x44444444
    v_mov_b32 v{vt3}, 0xeeeeeeee
    v_cmp_eq_u32 vcc, 0, v{vt1}
    s_nop 1
    v_cndmask_b32 v{vidx}, v{vt3}, v{vt2}, vcc
    {f"v_and_b32 v{vt1}, 3, v{vt0}" if o.get("l4") else ""}
    {f"v_mov_b32 v{vt3}, 0x3f803f80" if o.get("l4") else ""}
    {f"v_cmp_eq_u32 vcc, 0, v{vt1}" if o.get("l4") else ""}
    {"s_nop 1" if o.get("l4") else ""}
    {f"v_cndmask_b32 v{vsel}, 0, v{vt3}, vcc" if o.get("l4") else ""}
    {f"v_cndmask_b32 v{vsel+1}, 0, v{vt3}, vcc" if o.get("l4") else ""}
    v_mov_b32 v{vcur}, v{vl16}
    v_add_u32 v{vnxt}, {CH}, v{vl16}
    s_mov_b32 s{sNxt}, {2*CH}
    s_mov_b32 s{sMode}, 0
    s_mov_b32 s{sCnt}, {NCH}""")
    if FUSED:
        A("s_barrier")
        if o.get("stamp3"): rt_stamp(A, 82)
        q_loads()
        if o.get("stamp3"):
            A("s_waitcnt vmcnt(0)"); rt_stamp(A, 83)
    A(f"""{"s_memtime s[62:63]" if o.get('stamp2') else ""}
    s_waitcnt vmcnt(0)
    {"s_memtime s[64:65]" if o.get('stamp2') else ""}
    s_barrier
    {"s_memtime s[66:67]" if o.get('stamp2') else ""}
    """)
    def rK(buf, base, t, h): return f"ds_read_b128 v[{K[buf]+4*h}:{K[buf]+4*h+3}], v{base} offset:{t*2048+h*1024}"
    def rV(buf, base, t, h): return f"ds_read_b128 v[{V[buf]+4*h}:{V[buf]+4*h+3}], v{base} offset:{CH//2+t*2048+h*1024}"
    def mf(d, a, b, c):
        cs = "0" if c is None else f"v[{c}:{c+15}]"
        return f"v_mfma_f32_32x32x16_bf16 v[{d}:{d+15}], v[{a}:{a+3}], v[{b}:{b+3}], {cs}"
    def sm(qi, pb):
        if o.get("l4"):
            return "\n".join(f"v_mfma_f32_4x4x4bf16_1k v[{L[qi]}:{L[qi]+3}], v[{vsel}:{vsel+1}], v[{P[pb]+2*z}:{P[pb]+2*z+1}], v[{L[qi]}:{L[qi]+3}]\ns_nop 1" for z in range(4))
        return f"v_smfmac_f32_16x16x64_bf16 v[{L[qi]}:{L[qi]+3}], v[{vsel}:{vsel+3}], v[{P[pb]}:{P[pb]+7}], v{vidx}"
    for h in range(2): A(rK(0, vcur, 0, h))
    for h in range(2): A(rV(0, vcur, 0, h))
    A("s_waitcnt lgkmcnt(0)")
    A(mf(S[0], K[0], Q[0][0], None)); A(mf(S[0], K[0]+4, Q[0][1], S[0]))
    A("s_nop 7\ns_nop 3")
    if o.get("stamp"): A("s_memtime s[50:51]\ns_waitcnt lgkmcnt(0)")
    A(f".p2align 6\nL_{N}_loop:")
    pat = o.get("pat", "Q1 e e e P1 e e e Q2 e e c c P2 e e c c S R e e c e e c e e c c").split()
    for kt in range(TPC):
        for qi in range(NQ):
            u = kt*NQ + qi
            nk, nq = (kt, qi+1) if qi+1 < NQ else (kt+1, 0)
            pk, pq = (kt, qi-1) if qi > 0 else (kt-1, NQ-1)
            sb = u & 1; nb = sb ^ 1
            e = lambda j: f"v_exp_f32 v{S[sb]+j}, v{S[sb]+j}"
            c = lambda j: f"v_cvt_pk_bf16_f32 v{P[sb]+j}, v{S[sb]+2*j}, v{S[sb]+2*j+1}"
            Kb = K[nk % 2]; Vb = V[pk % 2]
            pre = []
            HW = o.get("hidew", 0)
            if qi == 3 and not HW: pre.append("s_waitcnt lgkmcnt(0)")
            if qi == 0 and kt == TPC-1: pre.append("s_barrier")
            if EARLY and qi == 0 and kt == EARLY-1:
                pre.append(f"s_cbranch_scc1 L_{N}_bar1"); pre.append(f"L_{N}_bar1r:")
            base, t = (vcur, kt+1) if kt+1 < TPC else (vnxt, 0)
            b2 = (kt+1) % 2
            rd = {0: [rK(b2, base, t, 0)], 1: [rK(b2, base, t, 1)], 2: [rV(b2, base, t, 0), rV(b2, base, t, 1)], 3: []}[qi]
            seq = list(pre); ne = nc = 0
            hid = []
            if o.get("hide", True) and kt == TPC-1 and qi == NQ-1:
                hid = [f"v_mov_b32 v{vcur}, v{vnxt}", f"v_add_u32 v{vnxt}, s{sNxt}, v{vl16}", f"s_add_u32 s{sNxt}, s{sNxt}, {CH}",
                       f"s_cmp_ge_u32 s{sNxt}, {NSLOT*CH}", f"s_cselect_b32 s{sT1}, {NSLOT*CH}, 0", f"s_sub_u32 s{sNxt}, s{sNxt}, s{sT1}",
                       f"s_sub_u32 s{sCnt}, s{sCnt}, 1", f"s_cmp_lg_u32 s{sCnt}, 0"]
            if EARLY and EARLY > 1 and qi == NQ-1 and kt == EARLY-2: hid = [f"s_cmp_eq_u32 s{sCnt}, {NCH}"]
            for tk in pat:
                if tk == "Q1": seq.append(mf(S[nb], Kb, Q[nq][0], None))
                elif tk == "Q2": seq.append(mf(S[nb], Kb+4, Q[nq][1], S[nb]))
                elif tk == "P1": seq.append(mf(O[pq], Vb, P[nb], O[pq]))
                elif tk == "P2": seq.append(mf(O[pq], Vb+4, P[nb]+4, O[pq]))
                elif tk == "S": seq.append(sm(pq, nb))
                elif tk in ("s0","s1","s2","s3"):
                    z = int(tk[1]); seq.append(f"v_mfma_f32_4x4x4bf16_1k v[{L[pq]}:{L[pq]+3}], v[{vsel}:{vsel+1}], v[{P[nb]+2*z}:{P[nb]+2*z+1}], v[{L[pq]}:{L[pq]+3}]")
                elif tk == "e":
                    seq.append(e(ne)); ne += 1
                    if hid and ne >= 2: seq.append(hid.pop(0))
                    if HW == 1 and qi == 2 and ne == 16: seq.append("s_waitcnt lgkmcnt(0)")
                    if HW == 2 and qi == 2 and ne == 16: seq.append("s_waitcnt lgkmcnt(2)")
                    if HW == 2 and qi == 0 and ne == 16: seq.append("s_waitcnt lgkmcnt(1)")
                elif tk == "c": seq.append(c(nc)); assert 2*nc+1 < ne; nc += 1
                elif tk == "R": seq += rd
                else: raise Exception(tk)
            assert ne == 16 and nc == 8
            ab = o.get("ablate", "")
            for l in seq:
                if "nosm" in ab and l.startswith("v_smfmac"): continue
                if "nolds" in ab and l.startswith("ds_read"): continue
                if "nocvt" in ab and l.startswith("v_cvt"): continue
                if "noexp" in ab and l.startswith("v_exp"): continue
                if "nopv" in ab and l.startswith(f"v_mfma_f32_32x32x16_bf16 v[{O[pq]}:"): continue
                if "noqk" in ab and l.startswith(f"v_mfma_f32_32x32x16_bf16 v[{S[nb]}:"): continue
                if "nobar" in ab and l.startswith("s_barrier"): l = "s_nop 0"
                if "expsep" in ab and l.startswith("v_exp"):
                    r = l.split()[1].rstrip(","); l = f"v_exp_f32 v{vt2}, {r}"
                A(l)
    if o.get("hide", True): A(f"s_cbranch_scc1 L_{N}_loop")
    else: A(f"""v_mov_b32 v{vcur}, v{vnxt}
    v_add_u32 v{vnxt}, s{sNxt}, v{vl16}
    s_add_u32 s{sNxt}, s{sNxt}, {CH}
    s_cmp_ge_u32 s{sNxt}, {NSLOT*CH}
    s_cselect_b32 s{sT1}, {NSLOT*CH}, 0
    s_sub_u32 s{sNxt}, s{sNxt}, s{sT1}
    s_sub_u32 s{sCnt}, s{sCnt}, 1
    s_cmp_lg_u32 s{sCnt}, 0
    s_cbranch_scc1 L_{N}_loop
    """)
    if EARLY:
        A(f"""s_branch L_{N}_bar2
        L_{N}_bar1:
        s_barrier
        s_branch L_{N}_bar1r
        L_{N}_bar2:""")
    if o.get("stamp"): A("s_memtime s[52:53]\ns_waitcnt lgkmcnt(0)")
    lb = (TPC*NQ-1) & 1
    Vb = V[(TPC-1) % 2]
    A("s_nop 1")
    A(mf(O[NQ-1], Vb, P[lb], O[NQ-1])); A(mf(O[NQ-1], Vb+4, P[lb]+4, O[NQ-1])); A(sm(NQ-1, lb))
    A(f"L_{N}_fin:")
    A("s_nop 7\ns_nop 7")
    vrc, vna, vz = K[0], K[0]+2, K[0]+4
    for r in (vna, vna+1, vz, vz+1): A(f"v_mov_b32 v{r}, 0")
    A(f"s_mov_b32 s{sCnt}, 0")
    for qi in range(NQ):
        if o.get("l4"):
            A(f"v_mov_b32 v{vt0}, v{L[qi]}")
            A(f"v_mov_b32 v{vt1}, v{L[qi]}")
            A("s_nop 1")
            A(f"v_permlane32_swap_b32 v{vt0}, v{vt1}")
            A(f"v_add_f32 v{vt0}, v{vt0}, v{vt1}")
        else:
            A(f"v_add_f32 v{vt0}, v{L[qi]}, v{L[qi]+1}")
        A(f"v_rcp_f32 v{vrc}, v{vt0}")
        A(f"v_mov_b32 v{vt2}, 0x35800000")
        A(f"v_cmp_nle_f32 s[{sT2}:{sT3}], v{vt2}, v{vt0}")
        A(f"v_mov_b32 v{vt2}, 0x71800000")
        A(f"v_cmp_nle_f32 vcc, v{vt0}, v{vt2}")
        A(f"v_mov_b32 v{vrc+1}, v{vrc}")
        for r in range(0, 16, 2):
            A(f"v_pk_mul_f32 v[{O[qi]+r}:{O[qi]+r+1}], v[{O[qi]+r}:{O[qi]+r+1}], v[{vrc}:{vrc+1}]")
        A(f"s_or_b64 vcc, vcc, s[{sT2}:{sT3}]")
        A(f"s_cmp_lg_u64 vcc, 0")
        A(f"s_cselect_b32 s{sT0}, 1, 0")
        A(f"s_or_b32 s{sCnt}, s{sCnt}, s{sT0}")
        if not o.get("latechk", True):
            for r in range(0, 16, 2):
                A(f"v_pk_fma_f32 v[{vna}:{vna+1}], v[{O[qi]+r}:{O[qi]+r+1}], v[{vz}:{vz+1}], v[{vna}:{vna+1}]")
        d = S[qi & 1] + 8*((qi >> 1) & 1)
        for j in range(8):
            A(f"v_cvt_pk_bf16_f32 v{d+j}, v{O[qi]+2*j}, v{O[qi]+2*j+1}")
        A(f"buffer_store_dwordx4 v[{d}:{d+3}], v{vl16}, s[{sW}:{sW+3}], s{sO} offen offset:0 {o.get('stflags','')}")
        A(f"buffer_store_dwordx4 v[{d+4}:{d+7}], v{vl16}, s[{sW}:{sW+3}], s{sO} offen offset:1024 {o.get('stflags','')}")
        A(f"s_add_u32 s{sO}, s{sO}, 65536")
    if o.get("latechk", True):
        for qi in range(NQ):
            for r in range(0, 16, 2):
                A(f"v_pk_fma_f32 v[{vna}:{vna+1}], v[{O[qi]+r}:{O[qi]+r+1}], v[{vz}:{vz+1}], v[{vna}:{vna+1}]")
    A(f"s_sub_u32 s{sO}, s{sO}, {NQ*65536}")
    A(f"""v_add_f32 v{vt3}, v{vna}, v{vna+1}
    v_cmp_u_f32 vcc, v{vt3}, v{vt3}
    s_nop 3
    s_cmp_lg_u64 vcc, 0
    s_cselect_b32 s{sT0}, 1, 0
    s_or_b32 s{sCnt}, s{sCnt}, s{sT0}
    {"s_waitcnt vmcnt(0)" if (FUSED and not WFL) else ""}
    s_cmp_eq_u32 s{sMode}, 1
    s_cbranch_scc1 L_{N}_{"done2" if FUSED else "done"}
    v_mov_b32 v{vt0}, s{sCnt}""")
    if WPRE:
        A(f"""s_lshl_b32 s{sT0}, s{sWave}, 2
        s_add_u32 s{sT0}, s{sT0}, {VOTE_LDS}
        v_mov_b32 v{vt1}, s{sT0}
        ds_write_b32 v{vt1}, v{vt0}
        v_mov_b32 v{vt1}, {VOTE_LDS}
        s_waitcnt lgkmcnt(0)
        s_barrier
        ds_read_b128 v[{K[1]}:{K[1]+3}], v{vt1}
        s_waitcnt lgkmcnt(0)
        v_or3_b32 v{vt0}, v{K[1]}, v{K[1]+1}, v{K[1]+2}
        v_or_b32 v{vt0}, v{vt0}, v{K[1]+3}
        s_nop 1""")
    else:
        A(f"""v_mov_b32 v{vt1}, {FLAG}
        ds_or_b32 v{vt1}, v{vt0}
        s_waitcnt lgkmcnt(0)
        s_barrier
        ds_read_b32 v{vt0}, v{vt1}
        s_waitcnt lgkmcnt(0)""")
    A(f"""v_readfirstlane_b32 s{sT0}, v{vt0}
    s_nop 3
    s_cmp_eq_u32 s{sT0}, 0
    s_cbranch_scc1 L_{N}_done
    """)
    A(f"""s_waitcnt vmcnt(0)
    s_mov_b32 s{sMode}, 1
    s_mov_b32 s{sCnt}, {NCH}
    """)
    init_acc()
    for i in range(NQ): A(f"v_mov_b32 v{vm[i]}, 0xff7fffff")
    A(f"""L_{N}_slow:
    s_barrier
    s_barrier
    v_mov_b32 v{vcur}, v{vl16}
    s_mov_b32 s{sNxt}, {TPC}
    L_{N}_slowt:""")
    for h in range(2): A(rK(0, vcur, 0, h))
    for h in range(2): A(rV(0, vcur, 0, h))
    A(f"v_add_u32 v{vcur}, 2048, v{vcur}")
    A("s_waitcnt lgkmcnt(0)")
    for qi in range(NQ):
        s = S[0]
        A(mf(s, K[0], Q[qi][0], None)); A(mf(s, K[0]+4, Q[qi][1], s))
        A("s_nop 7\ns_nop 3")
        A(f"v_max3_f32 v{vt0}, v{s}, v{s+1}, v{s+2}")
        for j in range(3, 15, 2): A(f"v_max3_f32 v{vt0}, v{vt0}, v{s+j}, v{s+j+1}")
        A(f"v_max_f32 v{vt0}, v{vt0}, v{s+15}")
        A(f"v_mov_b32 v{vt1}, v{vt0}")
        A("s_nop 1")
        A(f"v_permlane32_swap_b32 v{vt0}, v{vt1}")
        A(f"v_max3_f32 v{vt0}, v{vt0}, v{vt1}, v{vm[qi]}")
        A(f"v_sub_f32 v{val}, v{vm[qi]}, v{vt0}")
        A(f"v_exp_f32 v{val}, v{val}")
        A(f"v_mov_b32 v{vm[qi]}, v{vt0}")
        for r in range(16): A(f"v_sub_f32 v{s+r}, v{s+r}, v{vt0}")
        for r in range(16): A(f"v_exp_f32 v{s+r}, v{s+r}")
        for r in range(16): A(f"v_mul_f32 v{O[qi]+r}, v{O[qi]+r}, v{val}")
        for r in range(2): A(f"v_mul_f32 v{L[qi]+r}, v{L[qi]+r}, v{val}")
        for j in range(8): A(f"v_cvt_pk_bf16_f32 v{P[0]+j}, v{s+2*j}, v{s+2*j+1}")
        A("s_nop 1")
        A(mf(O[qi], V[0], P[0], O[qi])); A(mf(O[qi], V[0]+4, P[0]+4, O[qi])); A(sm(qi, 0))
        A("s_nop 7\ns_nop 7")
    A(f"""s_sub_u32 s{sNxt}, s{sNxt}, 1
    s_cmp_lg_u32 s{sNxt}, 0
    s_cbranch_scc1 L_{N}_slowt
    s_sub_u32 s{sCnt}, s{sCnt}, 1
    s_cmp_lg_u32 s{sCnt}, 0
    s_cbranch_scc1 L_{N}_slow
    s_branch L_{N}_fin
    """)
    if FUSED:
        A(f"""L_{N}_done2:
        s_barrier""")
    A(f"""L_{N}_done:""")
    if o.get("stamp"):
        A(f"""s_memtime s[44:45]
        s_memrealtime s[46:47]
        s_waitcnt lgkmcnt(0)
        s_sub_u32 s44, s44, s40
        s_sub_u32 s46, s46, s42
        s_sub_u32 s50, s50, s40
        s_sub_u32 s52, s52, s40
        s_lshr_b32 s50, s50, 2
        s_lshr_b32 s52, s52, 2
        s_lshl_b32 s52, s52, 16
        s_or_b32 s50, s50, s52
        s_lshl_b32 s48, s2, 3
        s_add_u32 s48, s48, s{sWave}
        s_lshl_b32 s48, s48, 4
        s_add_u32 s48, s48, {WS_END+65536}
        v_mov_b32 v{vt0}, s44
        v_mov_b32 v{vt1}, s46
        v_mov_b32 v{vt2}, s42
        v_mov_b32 v{vt3}, s50
        v_mov_b32 v{val}, 0
        buffer_store_dwordx4 v[{vt0}:{vt0+3}], v{val}, s[{sW}:{sW+3}], s48 offen""")
        if o.get("stamp2"):
            A(f"""s_sub_u32 s60, s60, s40
            s_sub_u32 s62, s62, s40
            s_sub_u32 s64, s64, s40
            s_sub_u32 s66, s66, s40
            s_add_u32 s48, s48, 64
            s_nop 1
            v_mov_b32 v{vt0}, s60
            v_mov_b32 v{vt1}, s62
            v_mov_b32 v{vt2}, s64
            v_mov_b32 v{vt3}, s66
            buffer_store_dwordx4 v[{vt0}:{vt0+3}], v{val}, s[{sW}:{sW+3}], s48 offen""")
    if WFL:
        rdn(P[0], vt0)
        flag_srd(A, 92, sWS)
        A(f"""s_lshl_b32 s{sT0}, s29, 4
        s_lshl_b32 s{sT1}, s30, 2
        s_add_u32 s{sT0}, s{sT0}, s{sT1}
        s_add_u32 s{sT0}, s{sT0}, s{sWave}
        s_lshl_b32 s{sT0}, s{sT0}, 5
        s_add_u32 s{sT0}, s{sT0}, s28""")
        if o.get("stamp4"):
            rt_stamp(A, 84); A("s_waitcnt vmcnt(0)"); rt_stamp(A, 85)
        flag_store(A, 92, P[0], vt0, sT0, FLG_A, 1, drain=True)
    elif FUSED:
        A(f"""s_cmp_lg_u32 s{S_WAVE}, 0
        s_cbranch_scc1 L_{N}_end""")
        rdn(S[0], vt0)
        flag_srd(A, 92, sWS)
        A(f"""s_lshl_b32 s{sT0}, s29, 2
        s_add_u32 s{sT0}, s{sT0}, s30
        s_lshl_b32 s{sT0}, s{sT0}, 5
        s_add_u32 s{sT0}, s{sT0}, s28""")
        flag_store(A, 92, S[0], vt0, sT0, FLG_A, 1)
    if FUSED:
        A(f"L_{N}_end:")
        if o.get("stamp3"):
            A(f"""s_lshl_b32 s84, s2, 3
            s_add_u32 s84, s84, s{S_WAVE}
            s_lshl_b32 s84, s84, 4
            s_add_u32 s84, s84, {WS_END + 196608}
            v_mov_b32 v{vt0}, s80
            v_mov_b32 v{vt1}, s81
            v_mov_b32 v{vt2}, s82
            v_mov_b32 v{vt3}, s83
            v_mov_b32 v{vt3+1}, s84
            s_mov_b64 exec, 1
            global_store_dwordx4 v{vt3+1}, v[{vt0}:{vt0+3}], s[{sWS}:{sWS+1}]
            s_mov_b64 exec, -1""")
        return A.text(), dict(name=name, nv=nv, lds=NSLOT*CH + 64)
    A(f"""L_{N}_end:
    s_endpgm""")
    txt = A.text() + kernel_desc(name, nv)
    return txt, dict(name=name, grid=256, block=512, lds=NSLOT*CH + 64, nv=nv)

if __name__ == "__main__":
    import hz
    from build import build
    t, i = gen_attn2(opts=dict(stamp=True))
    print(i)
    ps = hz.check_hazards(t)
    for p in ps[:30]: print(p)
    ws = hz.check_waits(t, i["name"], max_back=1)
    for p in ws[:30]: print(p)
    print(len(ps), len(ws))
    build([(t, i)], "attn2_only.s")
```

```python
class Asm:
    def __init__(self):
        self.lines = []
    def __call__(self, fmt, *a):
        for l in fmt.split("\n"):
            l = l.strip()
            if l: self.lines.append(("" if l.endswith(":") else "  ") + l)
    def label(self, name): self.lines.append(name + ":")
    def raw(self, s): self.lines.append(s)
    def comment(self, s): self.lines.append("  ; " + s)
    def text(self): return "\n".join(self.lines) + "\n"

def vr(base, n=1):
    return f"v{base}" if n == 1 else f"v[{base}:{base+n-1}]"
def sr(base, n=1):
    return f"s{base}" if n == 1 else f"s[{base}:{base+n-1}]"

class VAlloc:
    def __init__(self, start=0, limit=256):
        self.next = start; self.limit = limit; self.names = {}
    def get(self, name, n=1, align=1):
        if n >= 2 and align < 2: align = 2
        b = (self.next + align - 1) // align * align
        self.next = b + n
        assert self.next <= self.limit, f"out of vgprs at {name}"
        self.names[name] = (b, n)
        return b

def kernel_desc(name, vgpr, sgpr=102, accum=None):
    if accum is None: accum = (vgpr + 3) // 4 * 4
    return f""".section .rodata,"a"
.p2align 6
.amdhsa_kernel {name}
  .amdhsa_next_free_vgpr {vgpr}
  .amdhsa_next_free_sgpr {sgpr}
  .amdhsa_accum_offset {accum}
  .amdhsa_group_segment_fixed_size 0
  .amdhsa_kernarg_size 88
  .amdhsa_user_sgpr_count 2
  .amdhsa_user_sgpr_kernarg_segment_ptr 1
  .amdhsa_system_sgpr_workgroup_id_x 1
  .amdhsa_float_denorm_mode_32 3
.end_amdhsa_kernel
.text
"""
def kernel_head(name):
    return f""".globl {name}
.p2align 8
.type {name},@function
{name}:
"""

MB = 1 << 20
WS_QA  = 0
WS_QB  = 4 * MB
WS_KB  = 8 * MB
WS_VB  = 12 * MB
WS_KA  = 16 * MB
WS_VA  = 16 * MB + 131072
WS_OA  = 17 * MB
WS_OB  = 21 * MB
WS_END = 25 * MB
KA_AX, KA_AWQ, KA_AWK, KA_AWV, KA_AWO, KA_BX, KA_BWQKV, KA_BWO, KA_OUT, KA_DBG, KA_WS = [8*i for i in range(11)]

def code_prefetch(A, tag, base_label, nbytes, blk_sgpr, vt, vdum, lane, stmp):
    A(f"""s_getpc_b64 s[{stmp}:{stmp+1}]
    L_cp_{tag}:
    s_sub_u32 s{stmp}, s{stmp}, L_cp_{tag}-{base_label}
    s_subb_u32 s{stmp+1}, s{stmp+1}, 0
    v_lshlrev_b32 v{vt}, 7, v{lane}
    v_lshl_add_u32 v{vt}, s{blk_sgpr}, 13, v{vt}
    v_min_u32 v{vt}, L_code_end-{base_label}-4, v{vt}
    global_load_dword v{vdum}, v{vt}, s[{stmp}:{stmp+1}]""")

WS_FLG = 30 * MB
FLG_A = 262144
FLG_BYTES = FLG_A + 131072
NONCE_LDS = 153600
S_WAVE = 3
def flag_srd(A, srd, ptr):
    A(f"""s_add_u32 s{srd}, s{ptr}, {WS_FLG}
    s_addc_u32 s{srd+1}, s{ptr+1}, 0
    s_and_b32 s{srd+1}, s{srd+1}, 0xffff
    s_mov_b32 s{srd+2}, {FLG_BYTES}
    s_mov_b32 s{srd+3}, 0x20000""")
def read_nonce(A, vn, vt):
    A(f"""v_mov_b32 v{vt}, {NONCE_LDS}
    ds_read_b64 v[{vn}:{vn+1}], v{vt}
    s_waitcnt lgkmcnt(0)""")
FLAG_ST = "sc0 sc1"
FLAG_LD = "sc0 sc1"
def set_flag_policy(st, ld):
    global FLAG_ST, FLAG_LD
    FLAG_ST, FLAG_LD = st, ld
def flag_store(A, srd, vn, vt, st, base, nlines=1, drain=False):
    A(f"""s_mul_i32 s{st}, s{st}, {128*nlines}
    s_add_u32 s{st}, s{st}, {base}
    v_mbcnt_lo_u32_b32 v{vt}, -1, 0
    v_mbcnt_hi_u32_b32 v{vt}, -1, v{vt}
    v_mov_b32 v{vn+2}, v{vn}
    v_mov_b32 v{vn+3}, v{vn+1}
    v_lshlrev_b32 v{vt}, 4, v{vt}""")
    if drain: A("s_waitcnt vmcnt(0)")
    if nlines < 8: A(f"s_mov_b64 exec, {(1 << (8*nlines)) - 1}")
    A(f"buffer_store_dwordx4 v[{vn}:{vn+3}], v{vt}, s[{srd}:{srd+3}], s{st} offen {FLAG_ST}")
    if nlines < 8: A("s_mov_b64 exec, -1")
def flag_poll(A, tag, srd, vn, voff, vc, scnt, first=None):
    if first:
        A(f"""s_mov_b32 exec_lo, {first[1]}
        s_mov_b32 exec_hi, {first[0]}
        s_mov_b32 s{scnt}, 400000
        L_poll_{tag}_a:
        buffer_load_dwordx2 v[{vc}:{vc+1}], v{voff}, s[{srd}:{srd+3}], 0 offen {FLAG_LD}
        s_waitcnt vmcnt(0)
        v_cmp_ne_u64 vcc, v[{vc}:{vc+1}], v[{vn}:{vn+1}]
        s_sub_u32 s{scnt}, s{scnt}, 1
        s_nop 2
        s_cmp_eq_u64 vcc, 0
        s_cbranch_scc1 L_poll_{tag}_aok
        s_cmp_lg_u32 s{scnt}, 0
        s_cbranch_scc1 L_poll_{tag}_a
        L_poll_{tag}_aok:
        s_mov_b64 exec, -1""")
    A(f"""s_mov_b32 s{scnt}, 400000
    L_poll_{tag}:
    buffer_load_dwordx2 v[{vc}:{vc+1}], v{voff}, s[{srd}:{srd+3}], 0 offen {FLAG_LD}
    s_waitcnt vmcnt(0)
    v_cmp_ne_u64 vcc, v[{vc}:{vc+1}], v[{vn}:{vn+1}]
    s_sub_u32 s{scnt}, s{scnt}, 1
    s_nop 2
    s_cmp_eq_u64 vcc, 0
    s_cbranch_scc1 L_poll_{tag}_ok
    s_cmp_lg_u32 s{scnt}, 0
    s_cbranch_scc1 L_poll_{tag}
    L_poll_{tag}_ok:""")

def rt_stamp(A, dst):
    A(f"""s_memrealtime s[88:89]
    s_waitcnt lgkmcnt(0)
    s_mov_b32 s{dst}, s88""")

def flag_poll2(A, tag, srd, vn, voff, vres, scnt, R, lds=None, nrd=1):
    A(f"v_mov_b32 v{voff+1}, {NONCE_LDS if lds is None else lds}")
    if lds is not None:
        A(f"ds_write_b64 v{voff+1}, v[{vn}:{vn+1}]")
    for i in range(2*R): A(f"v_mov_b32 v{vres+i}, 0")
    A(f"""s_mov_b32 s{scnt}, {400000 // R}
    L_poll_{tag}:""")
    for i in range(R):
        r = vres + 2*i
        for _ in range(nrd - 1): A(f"ds_read_b64 v[{vn}:{vn+1}], v{voff+1}\ns_waitcnt lgkmcnt(0)")
        A(f"""ds_read_b64 v[{vn}:{vn+1}], v{voff+1}
        s_waitcnt vmcnt({R-1}) lgkmcnt(0)
        v_cmp_ne_u64 vcc, v[{r}:{r+1}], v[{vn}:{vn+1}]
        s_nop 3
        s_and_b64 exec, exec, vcc
        s_cbranch_scc0 L_poll_{tag}_ok
        buffer_load_dwordx2 v[{r}:{r+1}], v{voff}, s[{srd}:{srd+3}], 0 offen {FLAG_LD}""")
    A(f"""s_sub_u32 s{scnt}, s{scnt}, 1
    s_cmp_lg_u32 s{scnt}, 0
    s_cbranch_scc1 L_poll_{tag}
    L_poll_{tag}_ok:
    s_mov_b64 exec, -1""")

S_NONCE = 100
LDS_FULL = 163840
O_XSLOTS, O_WSLOTS, O_WOFF = 4, 6, 65536
def set_orings(nx, nw):
    global O_XSLOTS, O_WSLOTS, O_WOFF
    O_XSLOTS, O_WSLOTS, O_WOFF = nx, nw, nx*16384
def orings(): return O_XSLOTS, O_WSLOTS, O_WOFF
VOTE_LDS = 32768
def nonce_to_sgpr(A, vn, vt):
    A(f"""v_mov_b32 v{vt}, {NONCE_LDS}
    ds_read_b64 v[{vn}:{vn+1}], v{vt}
    s_waitcnt lgkmcnt(0)
    v_readfirstlane_b32 s{S_NONCE}, v{vn}
    v_readfirstlane_b32 s{S_NONCE+1}, v{vn+1}""")
def nonce_from_sgpr(A, vn):
    A(f"""v_mov_b32 v{vn}, s{S_NONCE}
    v_mov_b32 v{vn+1}, s{S_NONCE+1}""")
def ow_srd(A, srd, ptrA, ptrB, t0, t1):
    A(f"""s_bitcmp1_b32 s2, 2
    s_cselect_b32 s{srd}, s{ptrB}, s{ptrA}
    s_cselect_b32 s{srd+1}, s{ptrB+1}, s{ptrA+1}
    s_lshr_b32 s{t0}, s2, 6
    s_and_b32 s{t0}, s{t0}, 3
    s_and_b32 s{t1}, s2, 1
    s_lshl_b32 s{t1}, s{t1}, 2
    s_add_u32 s{t0}, s{t0}, s{t1}
    s_lshl_b32 s{t0}, s{t0}, 8
    s_add_u32 s{srd}, s{srd}, s{t0}
    s_addc_u32 s{srd+1}, s{srd+1}, 0
    s_and_b32 s{srd+1}, s{srd+1}, 0xffff
    s_sub_u32 s{srd+2}, {1024*2048}, s{t0}
    s_mov_b32 s{srd+3}, 0x20000""")
def ow_lanes(A, vLW, l, sw, st, vt0, vt1, vt2):
    for i in range(4):
        A(f"""v_lshrrev_b32 v{vt0}, 4, v{l}
        s_lshl_b32 s{st}, s{sw}, 4
        s_add_u32 s{st}, s{st}, {4*i}
        v_add_u32 v{vt0}, s{st}, v{vt0}
        v_and_b32 v{vt1}, 7, v{vt0}
        v_lshlrev_b32 v{vt1}, 1, v{vt1}
        v_and_b32 v{vt2}, 15, v{l}
        v_xor_b32 v{vt1}, v{vt1}, v{vt2}
        v_lshlrev_b32 v{vt1}, 4, v{vt1}
        v_lshl_add_u32 v{vLW+i}, v{vt0}, 11, v{vt1}""")
def ow_dma(A, srd, vLW, sm0w, st_tmp, ldsoff, stage):
    A(f"s_add_u32 m0, s{sm0w}, {ldsoff}")
    A(f"s_mov_b32 s{st_tmp}, {stage*64*2048}")
    for i in range(4):
        if i: A("s_add_u32 m0, m0, 1024\ns_nop 0")
        A(f"buffer_load_dwordx4 v{vLW+i}, s[{srd}:{srd+3}], s{st_tmp} offen lds")

def flag_poll3(A, tag, srd, vn, voff, vc, scnt, first=None):
    def loop(t):
        A(f"""s_mov_b32 s{scnt}, 400000
        L_poll_{t}:
        buffer_load_dwordx2 v[{vc}:{vc+1}], v{voff}, s[{srd}:{srd+3}], 0 offen {FLAG_LD}
        s_waitcnt vmcnt(0)
        v_cmp_ne_u64 vcc, v[{vc}:{vc+1}], v[{vn}:{vn+1}]
        s_sub_u32 s{scnt}, s{scnt}, 1
        s_nop 2
        s_and_b64 exec, exec, vcc
        s_cbranch_scc0 L_poll_{t}_ok
        s_cmp_lg_u32 s{scnt}, 0
        s_cbranch_scc1 L_poll_{t}
        L_poll_{t}_ok:""")
    if first:
        A(f"s_mov_b32 exec_lo, {first[1]}\ns_mov_b32 exec_hi, {first[0]}")
        loop(tag + "_a")
        A(f"s_mov_b32 exec_lo, {~first[1] & 0xffffffff}\ns_mov_b32 exec_hi, {~first[0] & 0xffffffff}")
    loop(tag)
    A("s_mov_b64 exec, -1")
```

```python
from kgen import *

def gen_oproj(name="oproj_kernel", NS=4, opts=None):
    o = opts or {}
    A = Asm()
    SLOT = 32768
    WOFF = 16384
    NST = 16
    OUT_BYTES = 2048*2048*2
    va = VAlloc(0)
    vtid = va.get("tid"); vt0 = va.get("t0"); vt1 = va.get("t1"); vt2 = va.get("t2"); vt3 = va.get("t3"); vt4 = va.get("t4")
    vOA = va.get("oa")
    vWA = [va.get(f"wa{i}") for i in range(4)]
    vst = va.get("st")
    vdum = va.get("dum"); vpf = va.get("pf")
    acc = [[va.get(f"acc{t}{c}", 4, 4) for c in range(4)] for t in range(4)]
    of = [[va.get(f"of{b}{t}", 4, 4) for t in range(4)] for b in range(2)]
    wf = [[va.get(f"wf{b}{c}", 4, 4) for c in range(4)] for b in range(2)]
    nv = va.next
    vLO = of[0][0]; vLW = of[0][1]
    sO, sWd, sOut = 8, 12, 16
    sWave, sBr, sRB, sCB = 24, 25, 26, 27
    sT0, sT1, sT2, sT3 = 30, 31, 32, 33
    sCnt, sDelta, sSlot, sOo, sWo, sM0o, sM0w, sSt, sCneg = 34, 35, 36, 37, 38, 40, 41, 43, 45
    sP = 48
    N = name; l = vtid
    FUSED = o.get("fused")
    WPRE = FUSED and o.get("wpre")
    O_XSLOTS, O_WSLOTS, O_WOFF = orings()
    PIPE = o.get("pipe")
    if WPRE: WOFF = O_WOFF
    if not FUSED:
        A.raw(kernel_head(name).rstrip("\n"))
        A(f"s_cmp_ge_u32 s2, 256\ns_cbranch_scc1 L_{N}_end")
    A(f"""s_load_dwordx2 s[{sP}:{sP+1}], s[0:1], {KA_WS}
    s_load_dwordx2 s[{sP+2}:{sP+3}], s[0:1], {KA_AWO}
    s_load_dwordx2 s[{sP+4}:{sP+5}], s[0:1], {KA_BWO}
    s_load_dwordx2 s[{sP+6}:{sP+7}], s[0:1], {KA_OUT}""")
    if FUSED: A(f"s_mov_b32 s{sWave}, s{S_WAVE}")
    else:
        A(f"""v_lshrrev_b32 v{vt0}, 6, v{vtid}
        v_and_b32 v{vtid}, 63, v{vtid}
        v_readfirstlane_b32 s{sWave}, v{vt0}""")
    A(f"""
    s_and_b32 s{sT0}, s2, 7               ; xcd
    s_lshr_b32 s{sT1}, s2, 3              ; sl
    s_lshr_b32 s{sBr}, s{sT0}, 2
    s_bfe_u32 s{sT2}, s{sT0}, 0x10001     ; rowhalf
    s_lshl_b32 s{sT2}, s{sT2}, 3
    s_and_b32 s{sRB}, s{sT1}, 7
    s_add_u32 s{sRB}, s{sRB}, s{sT2}
    s_and_b32 s{sT2}, s{sT0}, 1
    s_lshl_b32 s{sT2}, s{sT2}, 2
    s_lshr_b32 s{sCB}, s{sT1}, 3
    s_add_u32 s{sCB}, s{sCB}, s{sT2}
    s_waitcnt lgkmcnt(0)
    s_mul_i32 s{sT0}, s{sBr}, {WS_OB-WS_OA}
    s_lshl_b32 s{sT1}, s{sRB}, 18
    s_add_u32 s{sT0}, s{sT0}, s{sT1}
    s_add_u32 s{sT0}, s{sT0}, {WS_OA}
    s_add_u32 s{sO}, s{sP}, s{sT0}
    s_addc_u32 s{sO+1}, s{sP+1}, 0
    s_and_b32 s{sO+1}, s{sO+1}, 0xffff
    s_mov_b32 s{sO+2}, 262144
    s_mov_b32 s{sO+3}, 0x20000
    s_cmp_eq_u32 s{sBr}, 0
    s_cselect_b32 s{sT2}, s{sP+2}, s{sP+4}
    s_cselect_b32 s{sT3}, s{sP+3}, s{sP+5}
    s_lshl_b32 s{sT0}, s{sCB}, 8
    s_add_u32 s{sWd}, s{sT2}, s{sT0}
    s_addc_u32 s{sWd+1}, s{sT3}, 0
    s_and_b32 s{sWd+1}, s{sWd+1}, 0xffff
    s_sub_u32 s{sWd+2}, {1024*2048}, s{sT0}
    s_mov_b32 s{sWd+3}, 0x20000
    s_mov_b32 s{sOut}, s{sP+6}
    s_and_b32 s{sOut+1}, s{sP+7}, 0xffff
    s_mov_b32 s{sOut+2}, {OUT_BYTES}
    s_mov_b32 s{sOut+3}, 0x20000
    """)
    if o.get("stamp"): A("s_memtime s[60:61]\ns_memrealtime s[62:63]\ns_waitcnt lgkmcnt(0)")
    A(f"""s_cmp_lt_u32 s{sWave}, 4
    s_cbranch_scc1 L_{N}_compute""")
    PER = 8
    A(f"""L_{N}_loader:
    s_sub_u32 s{sWave}, s{sWave}, 4
    s_lshl_b32 s{sT0}, s{sWave}, 16
    v_lshlrev_b32 v{vLO}, 4, v{l}
    v_add_u32 v{vLO}, s{sT0}, v{vLO}
    """)
    for i in range(4):
        A(f"""v_lshrrev_b32 v{vt0}, 4, v{l}
        s_lshl_b32 s{sT0}, s{sWave}, 4
        s_add_u32 s{sT0}, s{sT0}, {4*i}
        v_add_u32 v{vt0}, s{sT0}, v{vt0}
        v_and_b32 v{vt1}, 7, v{vt0}
        v_lshlrev_b32 v{vt1}, 1, v{vt1}
        v_and_b32 v{vt2}, 15, v{l}
        v_xor_b32 v{vt1}, v{vt1}, v{vt2}
        v_lshlrev_b32 v{vt1}, 4, v{vt1}
        v_lshl_add_u32 v{vLW+i}, v{vt0}, 11, v{vt1}""")
    A(f"""s_mov_b32 s{sOo}, 0
    s_mov_b32 s{sWo}, 0
    s_lshl_b32 s{sM0o}, s{sWave}, 12
    s_add_u32 s{sM0w}, s{sM0o}, {WOFF}
    s_mov_b32 s{sSlot}, 0""")
    def dma():
        A(f"s_add_u32 m0, s{sSlot}, s{sM0o}")
        A("s_nop 0")
        for i in range(4):
            A(f"buffer_load_dwordx4 v{vLO}, s[{sO}:{sO+3}], s{sOo} offen offset:{i*1024} lds")
        A(f"s_add_u32 m0, s{sSlot}, s{sM0w}")
        for i in range(4):
            A("s_nop 0" if i == 0 else "s_add_u32 m0, m0, 1024")
            if i: A("s_nop 0")
            A(f"buffer_load_dwordx4 v{vLW+i}, s[{sWd}:{sWd+3}], s{sWo} offen lds")
        A(f"""s_add_u32 s{sOo}, s{sOo}, 4096
        s_add_u32 s{sWo}, s{sWo}, {64*2048}
        s_add_u32 s{sSlot}, s{sSlot}, {SLOT}
        s_cmp_eq_u32 s{sSlot}, {NS*SLOT}
        s_cselect_b32 s{sSlot}, 0, s{sSlot}""")
    def dma_w(slot, st):
        A(f"s_add_u32 m0, s{sM0w}, {slot*SLOT}")
        A(f"s_mov_b32 s{sT0}, {st*64*2048}")
        for i in range(4):
            if i: A("s_add_u32 m0, m0, 1024\ns_nop 0")
            A(f"buffer_load_dwordx4 v{vLW+i}, s[{sWd}:{sWd+3}], s{sT0} offen lds")
    def dma_o(slot, st):
        A(f"s_add_u32 m0, s{sM0o}, {slot*SLOT}")
        A(f"s_mov_b32 s{sT0}, {st*4096}")
        for i in range(4):
            A(f"buffer_load_dwordx4 v{vLO}, s[{sO}:{sO+3}], s{sT0} offen offset:{i*1024} lds")
    if WPRE:
        NX, NW = O_XSLOTS, O_WSLOTS
        def dx(st):
            A(f"s_add_u32 m0, s{sM0o}, {(st % NX)*16384}")
            A(f"s_mov_b32 s{sT0}, {st*4096}")
            for i in range(4):
                A(f"buffer_load_dwordx4 v{vLO}, s[{sO}:{sO+3}], s{sT0} offen offset:{i*1024} lds")
        def dw(st): ow_dma(A, sWd, vLW, sM0w, sT0, (st % NW)*16384, st)
        vn, vc, vo = acc[0][0], acc[0][1], acc[0][2]
        A(f"""s_cmp_lg_u32 s{sWave}, 0
        s_cbranch_scc1 L_{N}_nopoll""")
        if o.get("stamp4"): rt_stamp(A, 84)
        nonce_from_sgpr(A, vn)
        flag_srd(A, 92, sP)
        if o.get("wflag"):
            A(f"""; index = (br*16 + row block)*32 + head, head = lane&31
            s_lshl_b32 s{sT0}, s{sBr}, 4
            s_add_u32 s{sT0}, s{sT0}, s{sRB}""")
        else:
            A(f"""; index = (br*4 + qb)*32 + head, head = lane&31
            s_lshl_b32 s{sT0}, s{sBr}, 2
            s_lshr_b32 s{sT1}, s{sRB}, 2
            s_add_u32 s{sT0}, s{sT0}, s{sT1}""")
        A(f"""v_and_b32 v{vt0}, 31, v{l}
        s_lshl_b32 s{sT0}, s{sT0}, 12
        s_add_u32 s{sT0}, s{sT0}, {FLG_A}
        v_lshl_add_u32 v{vo}, v{vt0}, 7, s{sT0}""")
        if o.get("pollr"): flag_poll2(A, N, 92, vn, vo, acc[1][0], sCnt, o["pollr"], lds=49152+8192, nrd=o.get("pollrd", 1))
        elif o.get("poll3"): flag_poll3(A, N, 92, vn, vo, vc, sCnt, first=o.get("pollfirst"))
        else: flag_poll(A, N, 92, vn, vo, vc, sCnt, first=o.get("pollfirst"))
        if o.get("stamp4"):
            rt_stamp(A, 85); A(f"s_mov_b32 s86, s{sCnt}")
        A(f"""L_{N}_nopoll:
        s_barrier""")
        npre = o.get("npre", 1)
        order = []
        def issue(kind, st):
            (dx if kind == "x" else dw)(st); order.append((kind, st))
        def wait_for(st):
            need = [i for i, (k, s_) in enumerate(order) if s_ <= st]
            n = len(order) - 1 - max(need) if need else len(order)
            A(f"s_waitcnt vmcnt({min(4*n, 63)})")
        for st in range(npre): issue("x", st)
        wait_for(0)
        if o.get("stamp4"): rt_stamp(A, 87)
        A("s_barrier")
        for st in range(npre, NX): issue("x", st)
        for st in range(NST-1):
            if "nobar" in o.get("abl", ""): break
            wait_for(st+1); A("s_barrier")
            if "nodma" in o.get("abl", ""): continue
            rel = st - 1 if (PIPE and not o.get("earlyrel")) else st
            if rel < 0: continue
            if rel + NX < NST: issue("x", rel + NX)
            if rel + NW < NST and "nodw" not in o.get("abl", ""): issue("w", rel + NW)
        if o.get("stamp4"):
            A(f"""s_lshl_b32 s90, s2, 3
            s_add_u32 s90, s90, s{S_WAVE}
            s_lshl_b32 s90, s90, 4
            s_add_u32 s90, s90, {WS_END + 196608}
            v_mov_b32 v{acc[0][0]}, s84
            v_mov_b32 v{acc[0][0]+1}, s85
            v_mov_b32 v{acc[0][0]+2}, s86
            v_mov_b32 v{acc[0][0]+3}, s87
            v_mov_b32 v{vt4}, s90
            s_mov_b64 exec, 1
            global_store_dwordx4 v{vt4}, v[{acc[0][0]}:{acc[0][0]+3}], s[{sP}:{sP+1}]
            s_mov_b64 exec, -1""")
        A(f"s_branch L_{N}_end")
    elif FUSED:
        assert NS == 4
        for st in range(NS): dma_w(st, st)
        vn, vc, vo = acc[0][0], acc[0][1], acc[0][2]
        A(f"""s_cmp_lg_u32 s{sWave}, 0
        s_cbranch_scc1 L_{N}_nopoll""")
        read_nonce(A, vn, vt0)
        flag_srd(A, 92, sP)
        A(f"""; index = (br*4 + qb)*32 + head, head = lane&31
        v_and_b32 v{vt0}, 31, v{l}
        s_lshl_b32 s{sT0}, s{sBr}, 2
        s_lshr_b32 s{sT1}, s{sRB}, 2
        s_add_u32 s{sT0}, s{sT0}, s{sT1}
        s_lshl_b32 s{sT0}, s{sT0}, 12
        s_add_u32 s{sT0}, s{sT0}, {FLG_A}
        v_lshl_add_u32 v{vo}, v{vt0}, 7, s{sT0}""")
        if o.get("pollr", 0): flag_poll2(A, N, 92, vn, vo, acc[1][0], sCnt, o["pollr"])
        else: flag_poll(A, N, 92, vn, vo, vc, sCnt)
        A(f"""L_{N}_nopoll:
        s_barrier""")
        npre = o.get("npre", 1)
        for st in range(npre): dma_o(st, st)
        A(f"s_waitcnt vmcnt({4*(npre-1)})\ns_barrier")
        for st in range(npre, NS): dma_o(st, st)
        A(f"""s_mov_b32 s{sOo}, {NS*4096}
        s_mov_b32 s{sWo}, {NS*64*2048}
        s_waitcnt vmcnt(8)
        s_barrier""")
        dma()
        A("s_waitcnt vmcnt(12)\ns_barrier")
        dma()
        A(f"s_mov_b32 s{sCnt}, {NST-NS-2}")
    else:
        dma()
        A("s_waitcnt vmcnt(0)\ns_barrier")
        for _ in range(NS-1): dma()
        A(f"s_mov_b32 s{sCnt}, {NST-NS}")
    if not WPRE:
        A(f"L_{N}_ld_loop:")
        A(f"s_waitcnt vmcnt({(NS-2)*PER})\ns_barrier")
        dma()
        A(f"""s_sub_u32 s{sCnt}, s{sCnt}, 1
        s_cmp_lg_u32 s{sCnt}, 0
        s_cbranch_scc1 L_{N}_ld_loop""")
        for j in range(NS-1):
            A(f"s_waitcnt vmcnt({(NS-2-j)*PER})\ns_barrier")
        A(f"s_branch L_{N}_end")
    A(f"""L_{N}_compute:
    s_lshr_b32 s{sT0}, s{sWave}, 1        ; wm
    s_and_b32 s{sT1}, s{sWave}, 1         ; wn
    v_and_b32 v{vt0}, 15, v{l}            ; n / i
    v_lshrrev_b32 v{vt1}, 4, v{l}         ; g
    v_lshlrev_b32 v{vOA}, 9, v{vt1}
    v_lshl_add_u32 v{vOA}, v{vt0}, 4, v{vOA}
    s_lshl_b32 s{sT2}, s{sT0}, 13
    v_add_u32 v{vOA}, s{sT2}, v{vOA}
    ; W address: k = 16(g>>1) + 4(g&1) + (i>>2) ; f = (4(g&1) + (i>>2))<<1
    v_lshrrev_b32 v{vt2}, 2, v{vt0}
    v_and_b32 v{vt3}, 1, v{vt1}
    v_lshl_or_b32 v{vt2}, v{vt3}, 2, v{vt2}       ; k&7
    v_lshrrev_b32 v{vt3}, 1, v{vt1}
    v_lshl_add_u32 v{vt4}, v{vt3}, 4, v{vt2}      ; k
    v_lshlrev_b32 v{vt4}, 8, v{vt4}               ; k*256
    v_lshlrev_b32 v{vt2}, 1, v{vt2}               ; f
    v_and_b32 v{vt3}, 1, v{vt0}
    v_lshl_add_u32 v{vt4}, v{vt3}, 3, v{vt4}      ; + 8*(i&1)
    v_add_u32 v{vt4}, {WOFF}, v{vt4}
    v_bfe_u32 v{vt3}, v{vt0}, 1, 1
    s_lshl_b32 s{sT2}, s{sT1}, 3
    v_add_u32 v{vt3}, s{sT2}, v{vt3}              ; 8wn + ((i&3)>>1)
    """)
    for ct in range(4):
        A(f"""v_add_u32 v{vWA[ct]}, {2*ct}, v{vt3}
        v_xor_b32 v{vWA[ct]}, v{vWA[ct]}, v{vt2}
        v_lshl_add_u32 v{vWA[ct]}, v{vWA[ct]}, 4, v{vt4}""")
    FULL = o.get("fullst")
    A(f"""; store: n*4096 + (g&1)*32 + (g>>1)*16   (whole-line form: (n&7)*4096 + (n>>3)*64 + ..)
    v_and_b32 v{vt2}, 1, v{vt1}
    v_lshlrev_b32 v{vt2}, 5, v{vt2}
    v_lshrrev_b32 v{vt3}, 1, v{vt1}
    v_lshl_add_u32 v{vt2}, v{vt3}, 4, v{vt2}
    {f"v_lshrrev_b32 v{vt3}, 3, v{vt0}" if FULL else ""}
    {f"v_lshl_add_u32 v{vt2}, v{vt3}, 6, v{vt2}" if FULL else ""}
    {f"v_and_b32 v{vt3}, 7, v{vt0}" if FULL else f"v_mov_b32 v{vt3}, v{vt0}"}
    v_lshl_add_u32 v{vst}, v{vt3}, 12, v{vt2}
    s_lshl_b32 s{sSt}, s{sRB}, 19
    s_lshl_b32 s{sT2}, s{sT0}, 18
    s_add_u32 s{sSt}, s{sSt}, s{sT2}
    s_lshl_b32 s{sT2}, s{sBr}, 11
    s_add_u32 s{sSt}, s{sSt}, s{sT2}
    s_lshl_b32 s{sT2}, s{sCB}, 8
    s_add_u32 s{sSt}, s{sSt}, s{sT2}
    s_lshl_b32 s{sT2}, s{sT1}, 7
    s_add_u32 s{sSt}, s{sSt}, s{sT2}
    s_mov_b32 s{sCneg}, {(-(NS-1)*SLOT) & 0xffffffff}
    s_mov_b32 s{sSlot}, 0
    """)
    sSlotW, sDeltaW = 46, 47
    sNegX, sNegW = 57, 58
    if WPRE: A(f"""s_mov_b32 s{sSlotW}, 0
    s_mov_b32 s{sNegX}, {(-(O_XSLOTS-1)*16384) & 0xffffffff}
    s_mov_b32 s{sNegW}, {(-(O_WSLOTS-1)*16384) & 0xffffffff}""")
    for t in range(4):
        for c in range(4):
            for r in range(4): A(f"v_mov_b32 v{acc[t][c]+r}, 0")
    XPF = o.get("xpf", 0)
    if XPF:
        A(f"""v_lshrrev_b32 v{vt2}, 5, v{l}
        v_and_b32 v{vt3}, 31, v{l}
        v_lshlrev_b32 v{vt3}, 7, v{vt3}
        v_lshl_add_u32 v{vpf}, v{vt2}, 12, v{vt3}
        s_and_b32 s{sT2}, s{sCB}, 3
        s_lshl_b32 s{sT2}, s{sT2}, 16
        s_lshl_b32 s{sT3}, s{sWave}, 13
        s_add_u32 s{sT2}, s{sT2}, s{sT3}
        s_add_u32 s{sT3}, s{sT2}, 32768""")
    if FUSED: A("s_barrier")
    def xtouch(first, second=True):
        if first < 4:
            if first: A(f"s_cmp_lt_u32 s{sWave}, {first}\ns_cbranch_scc1 L_{N}_nopf0")
            A(f"buffer_load_dword v{vdum}, v{vpf}, s[{sO}:{sO+3}], s{sT2} offen")
            if first: A(f"L_{N}_nopf0:")
        if second: A(f"buffer_load_dword v{vdum}, v{vpf}, s[{sO}:{sO+3}], s{sT3} offen")
    if XPF == 1: xtouch(0)
    if XPF == 2: xtouch(1)
    A("s_barrier")
    if XPF == 3: xtouch(2)
    if XPF == 4: xtouch(4)
    if XPF == 5: xtouch(2, False)
    def rdO(tt, ks, par):
        r = of[par][tt]
        return f"ds_read_b128 v[{r}:{r+3}], v{vOA} offset:{(tt>>1)*4096 + ks*2048 + (tt&1)*256}"
    def rdW(ct, q, ks, par):
        r = wf[par][ct] + 2*q
        return f"ds_read_b64_tr_b16 v[{r}:{r+1}], v{vWA[ct]} offset:{ks*8192 + q*2048}"
    def mf(d, a, b): return f"v_mfma_f32_16x16x32_bf16 v[{d}:{d+3}], v[{a}:{a+3}], v[{b}:{b+3}], v[{d}:{d+3}]"
    def step(ks, nxt, inter=(), early=()):
        par = ks; npar = ks ^ 1; nks = ks ^ 1
        reads = []
        if nxt:
            reads = [rdW(0,0,nks,npar), rdW(0,1,nks,npar), rdO(0,nks,npar), rdW(1,0,nks,npar), rdW(1,1,nks,npar), rdO(1,nks,npar),
                     rdW(2,0,nks,npar), rdW(2,1,nks,npar), rdO(2,nks,npar), rdW(3,0,nks,npar), rdW(3,1,nks,npar), rdO(3,nks,npar)]
        ab = o.get("abl", "")
        if "now" in ab: reads = [x if "tr_b16" not in x else "s_nop 0" for x in reads]
        if "nox" in ab: reads = [x if "b128" not in x else "s_nop 0" for x in reads]
        inter = list(inter)
        m = 0
        for tt in range(4):
            for ct in range(4):
                A(mf(acc[tt][ct], wf[par][ct], of[par][tt]))
                if m < 6:
                    for x in reads[2*m:2*m+2]: A(x)
                elif m < 8:
                    for x in early[(m-6)*((len(early)+1)//2):(m-5)*((len(early)+1)//2)]: A(x)
                elif inter: A(inter.pop(0))
                m += 1
        for x in inter: A(x)
    def rd_order(ks, par):
        return [rdW(0,0,ks,par), rdW(0,1,ks,par), rdO(0,ks,par), rdW(1,0,ks,par), rdW(1,1,ks,par), rdW(2,0,ks,par), rdW(2,1,ks,par),
                rdW(3,0,ks,par), rdW(3,1,ks,par), rdO(1,ks,par), rdO(2,ks,par), rdO(3,ks,par)]
    def pstep(ks, nxt, early=(), late=(), pre=None):
        par = ks
        reads = rd_order(ks ^ 1, ks ^ 1) if nxt else []
        early = list(early); late = list(late)
        rpos = o.get("rpos", list(range(12)))
        nrd = 0
        for m in range(16):
            tt, ct = m >> 2, m & 3
            if m % 4 == 0:
                left = 3 - (m >> 2)
                A(f"s_waitcnt lgkmcnt({left + nrd})")
                if m == 0 and pre: A(pre)
            A(mf(acc[tt][ct], wf[par][ct], of[par][tt]))
            k = 0
            while nrd < len(reads) and rpos[nrd] == m:
                A(reads[nrd]); nrd += 1; k += 1
            if early and (m % 4 != 3) and k < 2: A(early.pop(0))
            if m > max(rpos):
                for _ in range(2):
                    if late: A(late.pop(0))
        assert not early and not late, (early, late)
    if PIPE:
        for x in rd_order(0, 0): A(x)
    else:
        for ct in range(4):
            for q in range(2): A(rdW(ct, q, 0, 0))
        for tt in range(4): A(rdO(tt, 0, 0))
    A(f"s_mov_b32 s{sCnt}, {NST-1}")
    if o.get("stamp"): A("s_memtime s[70:71]")
    A(f".p2align 6\nL_{N}_loop:")
    if not PIPE: A("s_waitcnt lgkmcnt(0)")
    HID = o.get("hide", True)
    if WPRE:
        rot = f"""s_add_u32 s{sSlot}, s{sSlot}, 1
        s_cmp_eq_u32 s{sSlot}, {O_XSLOTS}
        s_cselect_b32 s{sDelta}, s{sNegX}, 16384
        s_cselect_b32 s{sSlot}, 0, s{sSlot}
        s_add_u32 s{sSlotW}, s{sSlotW}, 1
        s_cmp_eq_u32 s{sSlotW}, {O_WSLOTS}
        s_cselect_b32 s{sDeltaW}, s{sNegW}, 16384
        s_cselect_b32 s{sSlotW}, 0, s{sSlotW}"""
        vadds = [f"v_add_u32 v{vOA}, s{sDelta}, v{vOA}"] + [f"v_add_u32 v{r}, s{sDeltaW}, v{r}" for r in vWA]
    else:
        rot = f"""s_add_u32 s{sSlot}, s{sSlot}, 1
        s_cmp_eq_u32 s{sSlot}, {NS}
        s_cselect_b32 s{sDelta}, s{sCneg}, {SLOT}
        s_cselect_b32 s{sSlot}, 0, s{sSlot}"""
        vadds = [f"v_add_u32 v{r}, s{sDelta}, v{r}" for r in [vOA] + vWA]
    rot = [x.strip() for x in rot.split("\n")]
    bar = "s_nop 0" if "nobar" in o.get("abl", "") else "s_barrier"
    if PIPE:
        pstep(0, True, early=rot, late=vadds)
        A(bar)
        pstep(1, True, early=[f"s_sub_u32 s{sCnt}, s{sCnt}, 1", f"s_cmp_lg_u32 s{sCnt}, 0"])
        A(f"s_cbranch_scc1 L_{N}_loop")
    elif HID:
        step(0, True, vadds, early=rot)
        A(f"s_waitcnt lgkmcnt(0)\n{bar}")
        step(1, True, [f"s_sub_u32 s{sCnt}, s{sCnt}, 1", f"s_cmp_lg_u32 s{sCnt}, 0"])
        A(f"s_cbranch_scc1 L_{N}_loop")
    else:
        for x in rot: A(x)
        step(0, True, vadds)
        A(f"s_sub_u32 s{sCnt}, s{sCnt}, 1")
        A(f"s_waitcnt lgkmcnt(0)\n{bar}")
        step(1, True)
        A(f"""s_cmp_lg_u32 s{sCnt}, 0
        s_cbranch_scc1 L_{N}_loop""")
    tmp = of[0][0]
    def piece(tt, p, d):
        out = []
        for z in range(2):
            s_ = acc[tt][2*p+z]
            out.append(f"v_cvt_pk_bf16_f32 v{d+2*z}, v{s_}, v{s_+1}")
            out.append(f"v_cvt_pk_bf16_f32 v{d+2*z+1}, v{s_+2}, v{s_+3}")
        out.append("s_nop 1")
        out.append(f"v_permlane16_swap_b32 v{d}, v{d+2}")
        out.append(f"v_permlane16_swap_b32 v{d+1}, v{d+3}")
        return out
    def tile_out(tt):
        out = []
        if FULL:
            d0 = tmp + 8*(tt % 2); d1 = d0 + 4; t_ = of[1][tt % 2]
            out += piece(tt, 0, d0) + piece(tt, 1, d1)
            for r in range(4): out.append(f"v_mov_b32_dpp v{t_+r}, v{d0+r} row_ror:8 row_mask:0xf bank_mask:0xf")
            for r in range(4): out.append(f"v_mov_b32_dpp v{d0+r}, v{d1+r} row_ror:8 row_mask:0xf bank_mask:0xc")
            for r in range(4): out.append(f"v_mov_b32_dpp v{d1+r}, v{t_+r} quad_perm:[0,1,2,3] row_mask:0xf bank_mask:0x3")
            out.append(f"s_add_u32 s{sT0}, s{sSt}, {tt*65536}")
            out.append(f"buffer_store_dwordx4 v[{d0}:{d0+3}], v{vst}, s[{sOut}:{sOut+3}], s{sT0} offen {o.get('stflags','')}")
            out.append(f"s_add_u32 s{sT0}, s{sSt}, {tt*65536 + 32768}")
            out.append(f"buffer_store_dwordx4 v[{d1}:{d1+3}], v{vst}, s[{sOut}:{sOut+3}], s{sT0} offen {o.get('stflags','')}")
        else:
            out.append(f"s_add_u32 s{sT0}, s{sSt}, {tt*65536}")
            for p in range(2):
                d = tmp + 4*((2*tt + p) % 4)
                out += piece(tt, p, d)
                out.append(f"buffer_store_dwordx4 v[{d}:{d+3}], v{vst}, s[{sOut}:{sOut+3}], s{sT0} offen offset:{p*64} {o.get('stflags','')}")
        return out
    OT2 = PIPE and FULL and o.get("t2")
    if OT2:
        names = ["W0", "W0", "O0", "W1", "W1", "W2", "W2", "W3", "W3", "O1", "O2", "O3"]
        pend = [(n, 0) for n in names]
        def need(keys):
            idx = [i for i, k in enumerate(pend) if k in keys]
            if idx:
                A(f"s_waitcnt lgkmcnt({len(pend) - 1 - max(idx)})")
                del pend[:max(idx) + 1]
        def half(tts, ks, reads=(), inter=()):
            reads = list(reads); inter = list(inter); seq = [(tt, ct) for tt in tts for ct in range(4)]
            nr, ni = len(reads), len(inter); dr = di = 0
            for m, (tt, ct) in enumerate(seq):
                need({(f"W{ct}", ks), (f"O{tt}", ks)})
                A(mf(acc[tt][ct], wf[ks][ct], of[ks][tt]))
                while dr < (nr*(m+1) + len(seq) - 1)//len(seq):
                    A(reads[dr][1]); pend.append(reads[dr][0]); dr += 1
                while di < (ni*(m+1) + len(seq) - 1)//len(seq):
                    A(inter[di]); di += 1
        r1 = list(zip([(n, 1) for n in names], rd_order(1, 1)))
        half((0, 1), 0, reads=r1)
        half((0, 1), 1)
        half((2, 3), 0, inter=tile_out(0))
        half((2, 3), 1, inter=tile_out(1))
        if o.get("stamp"): A("s_memtime s[72:73]\ns_waitcnt lgkmcnt(0)")
        A("s_nop 7")
        for tt in (2, 3):
            for x in tile_out(tt): A(x)
    else:
        if PIPE:
            pstep(0, True)
            pstep(1, False)
        else:
            A("s_waitcnt lgkmcnt(0)")
            step(0, True)
            A("s_waitcnt lgkmcnt(0)")
            step(1, False)
        if o.get("stamp"): A("s_memtime s[72:73]\ns_waitcnt lgkmcnt(0)")
        A("s_nop 7")
        for tt in range(4):
            for x in tile_out(tt): A(x)
    A(f"s_branch L_{N}_done")
    A(f"L_{N}_done:")
    if o.get("stamp"):
        A(f"""s_memtime s[64:65]
        s_memrealtime s[66:67]
        s_waitcnt lgkmcnt(0)
        s_sub_u32 s64, s64, s60
        s_sub_u32 s66, s66, s62
        s_lshl_b32 s68, s2, 3
        s_add_u32 s68, s68, s{sWave}
        s_lshl_b32 s68, s68, 4
        s_add_u32 s68, s68, {WS_END+131072}
        s_sub_u32 s70, s70, s60
        s_sub_u32 s72, s72, s60
        s_lshr_b32 s70, s70, 2
        s_lshr_b32 s72, s72, 2
        s_lshl_b32 s72, s72, 16
        s_or_b32 s70, s70, s72
        v_mov_b32 v{wf[0][0]}, s64
        v_mov_b32 v{wf[0][0]+1}, s66
        v_mov_b32 v{wf[0][0]+2}, s62
        v_mov_b32 v{wf[0][0]+3}, s70
        v_mov_b32 v{vt0}, 0
        s_mov_b32 s{sO}, s{sP}
        s_and_b32 s{sO+1}, s{sP+1}, 0xffff
        s_mov_b32 s{sO+2}, {WS_END+262144}
        s_mov_b32 s{sO+3}, 0x20000
        buffer_store_dwordx4 v[{wf[0][0]}:{wf[0][0]+3}], v{vt0}, s[{sO}:{sO+3}], s68 offen""")
    if FUSED and o.get("stamp4"):
        A(f"""s_lshl_b32 s90, s2, 3
        s_add_u32 s90, s90, s{S_WAVE}
        s_lshl_b32 s90, s90, 4
        s_add_u32 s90, s90, {WS_END + 196608}
        v_mov_b32 v{wf[1][0]}, s84
        v_mov_b32 v{wf[1][0]+1}, s85
        v_mov_b32 v{wf[1][0]+2}, 0
        v_mov_b32 v{wf[1][0]+3}, 0
        v_mov_b32 v{vt4}, s90
        s_mov_b64 exec, 1
        global_store_dwordx4 v{vt4}, v[{wf[1][0]}:{wf[1][0]+3}], s[{sP}:{sP+1}]
        s_mov_b64 exec, -1""")
    if FUSED:
        A(f"L_{N}_end:")
        return A.text(), dict(name=name, nv=nv, lds=NS*SLOT)
    A(f"""L_{N}_end:
    s_endpgm""")
    return A.text() + kernel_desc(name, nv), dict(name=name, grid=256, block=512, lds=NS*SLOT, nv=nv)

if __name__ == "__main__":
    import hz
    from build import build
    t, i = gen_oproj(opts=dict(stamp=True))
    print(i)
    ps = hz.check_hazards(t)
    for p in ps[:30]: print(p)
    ws = hz.check_waits(t, i["name"], max_back=1)
    for p in ws[:30]: print(p)
    print(len(ps), len(ws))
    build([(t, i)], "oproj_only.s")
```

```python
from kgen import *
import struct, math
def f2u(x): return struct.unpack("<I", struct.pack("<f", x))[0]
CSC = f2u(math.log2(math.e) / math.sqrt(32.0))

def gen_proj(name="proj_kernel", opts=None):
    o = opts or {}
    A = Asm()
    SLOT = 51200
    XOFF, WOFF, EOFF = 0, 16384, 49152
    NST = 16
    va = VAlloc(0)
    vtid = va.get("tid"); vt0 = va.get("t0"); vt1 = va.get("t1"); vt2 = va.get("t2"); vt3 = va.get("t3"); vt4 = va.get("t4")
    vXA = [va.get("xa0"), va.get("xa1")]
    vWA = [va.get(f"wa{i}") for i in range(4)]
    vXE = [va.get("xe0"), va.get("xe1")]
    vWE = [va.get("we0"), va.get("we1")]
    vst = va.get("st")
    vdum = va.get("dummy")
    va_pf = va.get("pf", 2, 2)
    va_pfinc = va.get("pfinc")
    vstamp = va.get("stamp")
    vtag = va.get("tag", 4, 2) if (opts or {}).get("fused") else None
    vtagr = va.get("tagr", 2, 2) if (opts or {}).get("fused") else None
    NSP = 3
    acc = [[va.get(f"acc{t}{c}", 4, 4) for c in range(4)] for t in range(8)]
    acce = [va.get(f"acce{i}", 4, 4) for i in range(2)]
    xf = [va.get(f"xf{t}", 4, 4) for t in range(8)]
    xs = [va.get(f"xs{t}", 4, 4) for t in range(NSP)]
    wf = [[va.get(f"wf{b}{c}", 4, 4) for c in range(4)] for b in range(2)]
    xe = [va.get(f"xef{i}", 4, 4) for i in range(2)]
    we = va.get("wef", 4, 4)
    nv = va.next
    vLX = [xf[0] + i for i in range(4)]
    vLW = [xf[1] + i for i in range(4)] + [xf[2] + i for i in range(4)]
    vLE = xf[3]
    sX, sWd, sE, sWS = 8, 12, 16, 20
    sWave, sXcd, sRB, sCB, sType, sLdw = 24, 25, 26, 27, 28, 29
    sT0, sT1, sT2, sT3 = 30, 31, 32, 33
    sCnt, sDelta, sSlot, sXo, sWo, sEo, sM0x, sM0w, sM0e, sOut, sOutE, sCneg, sWstep = 34, 35, 36, 37, 38, 39, 40, 41, 42, 43, 44, 45, 46
    sC = 56
    sP = 48
    N = name
    FUSED = o.get("fused")
    A.raw(kernel_head(o.get("kname", name)).rstrip("\n"))
    if o.get("stamp"): A("s_memtime s[60:61]\ns_memrealtime s[62:63]")
    A(f"""s_cmp_ge_u32 s2, 256
    s_cbranch_scc1 {"L_fused_end" if FUSED else f"L_{N}_end"}
    s_and_b32 s{sXcd}, s2, 7
    s_lshr_b32 s{sT0}, s2, 3
    s_and_b32 s{sRB}, s{sT0}, 7
    s_lshr_b32 s{sCB}, s{sT0}, 3
    s_load_dwordx2 s[{sP+6}:{sP+7}], s[0:1], {KA_WS}
    {f"s_load_dwordx2 s[98:99], s[0:1], {KA_DBG}" if FUSED else ""}
    v_lshrrev_b32 v{vt0}, 6, v{vtid}
    v_and_b32 v{vtid}, 63, v{vtid}
    v_readfirstlane_b32 s{sWave}, v{vt0}
    s_cmp_lt_u32 s{sXcd}, 2
    s_cbranch_scc1 L_{N}_typeA
    s_load_dwordx2 s[{sP}:{sP+1}], s[0:1], {KA_BX}
    s_load_dwordx2 s[{sP+2}:{sP+3}], s[0:1], {KA_BWQKV}
    s_load_dwordx2 s[{sP+4}:{sP+5}], s[0:1], {KA_BWQKV}
    s_sub_u32 s{sT0}, s{sXcd}, 2
    s_and_b32 s{sT1}, s{sT0}, 1
    s_lshl_b32 s{sT1}, s{sT1}, 3
    s_add_u32 s{sRB}, s{sRB}, s{sT1}
    s_lshr_b32 s{sType}, s{sT0}, 1          ; 0 Q, 1 K, 2 V
    s_mov_b32 s{sLdw}, 6144
    s_lshl_b32 s{sT2}, s{sType}, 11
    s_lshl_b32 s{sT3}, s{sCB}, 9
    s_add_u32 s{sT2}, s{sT2}, s{sT3}
    s_mov_b32 s{sT3}, {1024*6144}
    s_mov_b32 s{sEo}, 0
    s_branch L_{N}_typed
    L_{N}_typeA:
    s_load_dwordx2 s[{sP}:{sP+1}], s[0:1], {KA_AX}
    s_load_dwordx2 s[{sP+2}:{sP+3}], s[0:1], {KA_AWQ}
    s_cmp_lt_u32 s{sCB}, 2
    s_cbranch_scc1 L_{N}_typeAK
    s_load_dwordx2 s[{sP+4}:{sP+5}], s[0:1], {KA_AWV}
    s_mov_b32 s{sType}, 4
    s_branch L_{N}_typeA2
    L_{N}_typeAK:
    s_load_dwordx2 s[{sP+4}:{sP+5}], s[0:1], {KA_AWK}
    s_mov_b32 s{sType}, 3
    L_{N}_typeA2:
    s_lshl_b32 s{sT1}, s{sXcd}, 3
    s_add_u32 s{sRB}, s{sRB}, s{sT1}
    s_mov_b32 s{sLdw}, 2048
    s_lshl_b32 s{sT2}, s{sCB}, 9
    s_mov_b32 s{sT3}, {1024*2048}
    s_and_b32 s{sEo}, s{sCB}, 1
    s_lshl_b32 s{sEo}, s{sEo}, 5
    L_{N}_typed:
    s_mov_b32 s47, s{sT2}
    s_mov_b32 s58, s{sT3}
    """)
    LATE = o.get("latesrd", True)
    def srd_ld():
        A(f"""; SRD X: base + rowblock*128*2048, 256KB
        s_lshl_b32 s59, s{sRB}, 18
        s_add_u32 s{sX}, s{sP}, s59
        s_addc_u32 s{sX+1}, s{sP+1}, 0
        s_and_b32 s{sX+1}, s{sX+1}, 0xffff
        s_mov_b32 s{sX+2}, 262144
        s_mov_b32 s{sX+3}, 0x20000
        s_add_u32 s{sWd}, s{sP+2}, s47
        s_addc_u32 s{sWd+1}, s{sP+3}, 0
        s_and_b32 s{sWd+1}, s{sWd+1}, 0xffff
        s_sub_u32 s{sWd+2}, s58, s47
        s_mov_b32 s{sWd+3}, 0x20000
        ; SRD E
        s_mov_b32 s{sE}, s{sP+4}
        s_and_b32 s{sE+1}, s{sP+5}, 0xffff
        s_mov_b32 s{sE+2}, 65536
        s_mov_b32 s{sE+3}, 0x20000""")
    def srd_ws():
        A(f"""; SRD WS
        s_mov_b32 s{sWS}, s{sP+6}
        s_and_b32 s{sWS+1}, s{sP+7}, 0xffff
        s_mov_b32 s{sWS+2}, {WS_END + (262144 if o.get('stamp') else 0)}
        s_mov_b32 s{sWS+3}, 0x20000""")
    if not LATE:
        A("s_waitcnt lgkmcnt(0)")
        srd_ld(); srd_ws()
    if o.get("stamp"): A("s_memtime s[84:85]" + ("" if LATE else "\ns_waitcnt lgkmcnt(0)"))
    if FUSED: A(f"s_mov_b32 s{S_WAVE}, s{sWave}")
    A(f"""s_cmp_lt_u32 s{sWave}, 4
    s_cbranch_scc1 L_{N}_compute""")
    l = vtid
    A(f"L_{N}_loader:")
    LX0, LX1 = vLX[0], vLX[1]
    A(f"""s_sub_u32 s{sWave}, s{sWave}, 4
    v_lshrrev_b32 v{vt0}, 3, v{l}
    v_lshrrev_b32 v{vt1}, 4, v{l}
    v_and_b32 v{vt2}, 7, v{l}
    v_xor_b32 v{vt1}, v{vt1}, v{vt2}
    s_lshl_b32 s{sT0}, s{sWave}, 16
    v_lshlrev_b32 v{vt1}, 4, v{vt1}
    v_lshl_add_u32 v{LX0}, v{vt0}, 11, v{vt1}
    v_add_u32 v{LX0}, s{sT0}, v{LX0}
    v_xor_b32 v{LX1}, 64, v{LX0}
    s_mov_b32 s{sXo}, 0
    s_lshl_b32 s{sM0x}, s{sWave}, 12
    s_mov_b32 s{sSlot}, 0
    v_lshrrev_b32 v{vt0}, 5, v{l}
    v_and_b32 v{vt2}, 31, v{l}
    v_lshlrev_b32 v{vt1}, 1, v{vt0}
    v_xor_b32 v{vt1}, v{vt1}, v{vt2}
    s_lshl_b32 s{sT0}, s{sWave}, 4
    v_add_u32 v{vt0}, s{sT0}, v{vt0}
    v_mul_lo_u32 v{vt0}, v{vt0}, s{sLdw}
    v_lshl_add_u32 v{vLW[0]}, v{vt1}, 4, v{vt0}
    v_xor_b32 v{vLW[1]}, 64, v{vLW[0]}
    v_xor_b32 v{vLW[2]}, 0x80, v{vLW[0]}
    v_xor_b32 v{vLW[3]}, 0xc0, v{vLW[0]}
    s_mov_b32 s{sWo}, 0
    s_lshl_b32 s{sWstep}, s{sLdw}, 6
    s_lshl_b32 s{sT3}, s{sLdw}, 1
    s_lshl_b32 s{sM0w}, s{sWave}, 13
    s_add_u32 s{sM0w}, s{sM0w}, {WOFF}
    s_cmp_ge_u32 s{sType}, 3
    s_cbranch_scc0 L_{N}_ldB
    s_lshl_b32 s{sT0}, s{sWave}, 4
    v_lshrrev_b32 v{vt0}, 1, v{l}
    v_and_b32 v{vt0}, 15, v{vt0}
    v_add_u32 v{vt0}, s{sT0}, v{vt0}           ; position p
    v_lshrrev_b32 v{vt1}, 1, v{vt0}
    v_and_b32 v{vt1}, 4, v{vt1}
    v_xor_b32 v{vt0}, v{vt0}, v{vt1}
    v_and_b32 v{vt1}, 1, v{l}
    s_cmp_eq_u32 s{sType}, 3
    s_cselect_b32 s{sT0}, 5, 4
    v_lshlrev_b32 v{vt1}, s{sT0}, v{vt1}
    s_cselect_b32 s{sT0}, 1, 0
    s_lshr_b32 s{sEo}, s{sEo}, s{sT0}
    v_lshl_add_u32 v{vLE}, v{vt0}, 6, v{vt1}
    v_add_u32 v{vLE}, s{sEo}, v{vLE}
    s_mov_b32 s{sEo}, 0
    s_lshl_b32 s{sM0e}, s{sWave}, 9
    s_add_u32 s{sM0e}, s{sM0e}, {EOFF}
    s_branch L_{N}_ldA""")
    def dma(extra):
        A(f"s_add_u32 m0, s{sSlot}, s{sM0x}")
        for i in range(4):
            if i: A("s_add_u32 m0, m0, 1024")
            A(f"s_add_u32 s{sT0}, s{sXo}, {i*16384}")
            A(f"buffer_load_dwordx4 v{[LX0,LX1][(i ^ (i>>1)) & 1]}, s[{sX}:{sX+3}], s{sT0} offen {o.get('xfl','')} lds")
        A(f"s_add_u32 m0, s{sSlot}, s{sM0w}")
        A(f"s_mov_b32 s{sT0}, s{sWo}")
        for i in range(8):
            if i:
                A("s_add_u32 m0, m0, 1024")
                A(f"s_add_u32 s{sT0}, s{sT0}, s{sT3}")
            A(f"buffer_load_dwordx4 v{vLW[(i&1) + 2*(i>>2)]}, s[{sWd}:{sWd+3}], s{sT0} offen {o.get('wfl','')} lds")
        if extra:
            A(f"s_add_u32 m0, s{sSlot}, s{sM0e}")
            A("s_mov_b32 exec_hi, 0")
            A(f"buffer_load_dwordx4 v{vLE}, s[{sE}:{sE+3}], s{sEo} offen lds")
            A("s_mov_b32 exec_hi, -1")
            A(f"s_add_u32 s{sEo}, s{sEo}, 4096")
        A(f"""s_add_u32 s{sXo}, s{sXo}, 128
        s_add_u32 s{sWo}, s{sWo}, s{sWstep}
        s_add_u32 s{sSlot}, s{sSlot}, {SLOT}
        s_cmp_eq_u32 s{sSlot}, {3*SLOT}
        s_cselect_b32 s{sSlot}, 0, s{sSlot}""")
    for tag, extra in (("ldB", False), ("ldA", True)):
        PER = 13 if extra else 12
        A(f"L_{N}_{tag}:")
        if LATE:
            A("s_waitcnt lgkmcnt(0)")
            srd_ld()
            if o.get("stamp"): srd_ws()
        pre = o.get("predma", 1)
        if o.get("pfwait"): A("s_barrier")
        if o.get("stamp"): A("s_memtime s[86:87]")
        for _ in range(pre): dma(extra)
        if o.get("stamp"): A("s_memtime s[88:89]")
        A(f"s_waitcnt vmcnt({(pre-1)*PER})")
        if o.get("stamp"):
            A(f"""s_memtime s[90:91]
            s_waitcnt lgkmcnt(0)
            s_sub_u32 s84, s84, s60
            s_sub_u32 s86, s86, s60
            s_sub_u32 s88, s88, s60
            s_sub_u32 s90, s90, s60
            v_mov_b32 v{acc[0][0]}, s84
            v_mov_b32 v{acc[0][0]+1}, s86
            v_mov_b32 v{acc[0][0]+2}, s88
            v_mov_b32 v{acc[0][0]+3}, s90
            v_mov_b32 v{vt4}, 0
            s_lshl_b32 s68, s2, 3
            s_add_u32 s68, s68, s{sWave}
            s_add_u32 s68, s68, 4
            s_lshl_b32 s68, s68, 4
            s_add_u32 s68, s68, {WS_END}""")
        A("s_barrier")
        if o.get("stamp"): A(f"buffer_store_dwordx4 v[{acc[0][0]}:{acc[0][0]+3}], v{vt4}, s[{sWS}:{sWS+3}], s68 offen")
        for _ in range(3-pre): dma(extra)
        A(f"s_mov_b32 s{sCnt}, {NST-3}")
        A(f"L_{N}_{tag}_loop:")
        A(f"s_waitcnt vmcnt({PER})\ns_barrier")
        dma(extra)
        A(f"""s_sub_u32 s{sCnt}, s{sCnt}, 1
        s_cmp_lg_u32 s{sCnt}, 0
        s_cbranch_scc1 L_{N}_{tag}_loop
        s_waitcnt vmcnt({PER})
        s_barrier
        s_waitcnt vmcnt(0)
        s_barrier
        s_branch L_{N}_lend""")
    A(f"L_{N}_compute:")
    l = vtid
    if LATE:
        A("s_waitcnt lgkmcnt(0)")
        srd_ws()
    if FUSED and o.get("nonce", "store") == "atomic":
        A(f"""s_cmp_lg_u32 s{sWave}, 1
        s_cbranch_scc1 L_{N}_notag
        s_memrealtime s[96:97]
        s_waitcnt lgkmcnt(0)
        s_or_b32 s96, s96, 1
        v_mov_b32 v{vtag}, s96
        v_mov_b32 v{vtag+1}, s97
        v_mov_b32 v{vtag+2}, 0
        v_mov_b32 v{vtag+3}, 0
        v_mov_b32 v{vt0}, 0
        s_mov_b64 exec, 1
        global_atomic_cmpswap_x2 v[{vtagr}:{vtagr+1}], v{vt0}, v[{vtag}:{vtag+3}], s[98:99] sc0
        s_mov_b64 exec, -1
        L_{N}_notag:""")
    elif FUSED:
        A(f"""v_mov_b32 v{vtag+2}, 0
        s_cmp_lg_u32 s{sWave}, 1
        s_cbranch_scc1 L_{N}_notag
        s_cmp_lg_u32 s2, 0
        s_cbranch_scc1 L_{N}_notag
        s_memrealtime s[96:97]
        s_waitcnt lgkmcnt(0)
        s_or_b32 s96, s96, 1
        v_mov_b32 v{vtag}, s96
        v_mov_b32 v{vtag+1}, s97
        s_mov_b64 exec, 1
        global_store_dwordx2 v{vtag+2}, v[{vtag}:{vtag+1}], s[98:99] sc0 sc1
        s_mov_b64 exec, -1
        L_{N}_notag:""")
    PF = o.get("prefetch", True)
    PFD = 4
    sPfN = 79
    vpa = va_pf; vpinc = va_pfinc
    if PF:
        A(f"""s_lshr_b32 s{sT1}, s2, 3              ; j
        s_lshr_b32 s{sT0}, s{sRB}, 3
        s_lshl_b32 s{sT0}, s{sT0}, 21
        s_add_u32 s72, s{sP}, s{sT0}
        s_addc_u32 s73, s{sP+1}, 0
        s_lshl_b32 s{sT0}, s{sType}, 11
        s_cmp_ge_u32 s{sType}, 3
        s_cselect_b32 s{sT0}, 0, s{sT0}
        s_add_u32 s74, s{sP+2}, s{sT0}
        s_addc_u32 s75, s{sP+3}, 0
        s_lshl_b32 s{sT2}, s{sT1}, 5
        v_and_b32 v{vt0}, 31, v{l}
        v_add_u32 v{vt0}, s{sT2}, v{vt0}
        v_lshlrev_b32 v{vt0}, 11, v{vt0}
        s_lshl_b32 s{sT2}, s{sT1}, 1
        v_bfe_u32 v{vt1}, v{l}, 4, 1
        v_add_u32 v{vt1}, s{sT2}, v{vt1}
        v_mul_lo_u32 v{vt1}, v{vt1}, s{sLdw}
        v_and_b32 v{vt2}, 15, v{l}
        v_lshl_add_u32 v{vt1}, v{vt2}, 7, v{vt1}
        s_lshl_b32 s{sT2}, s{sLdw}, 6
        v_mov_b32 v{vpinc}, 0x80
        v_mov_b32 v{vt2}, s{sT2}
        v_mov_b32 v{vt3}, s72
        v_mov_b32 v{vt4}, s73
        v_mov_b32 v{vpa}, s74
        v_mov_b32 v{vpa+1}, s75
        v_cmp_gt_u32 vcc, 32, v{l}
        s_nop 1
        v_cndmask_b32 v{vpinc}, v{vt2}, v{vpinc}, vcc
        v_cndmask_b32 v{vt0}, v{vt1}, v{vt0}, vcc
        v_cndmask_b32 v{vpa}, v{vpa}, v{vt3}, vcc
        v_cndmask_b32 v{vpa+1}, v{vpa+1}, v{vt4}, vcc
        v_mul_lo_u32 v{vt1}, v{vpinc}, s{sWave}
        v_add_u32 v{vt0}, v{vt0}, v{vt1}             ; stage = wave
        v_add_co_u32 v{vpa}, vcc, v{vpa}, v{vt0}
        v_lshlrev_b32 v{vpinc}, 2, v{vpinc}          ; each wave then steps 4 stages
        s_mov_b32 s{sPfN}, 3
        v_addc_co_u32 v{vpa+1}, vcc, 0, v{vpa+1}, vcc
        s_mov_b32 s78, s{sWave}""")
    def pf_one():
        return f"""global_load_dword v{vdum}, v[{vpa}:{vpa+1}], off {o.get('pfl','')}
        v_add_co_u32 v{vpa}, vcc, v{vpa}, v{vpinc}
        s_nop 1
        v_addc_co_u32 v{vpa+1}, vcc, 0, v{vpa+1}, vcc"""
    def pf_first():
        if PF and o.get("pfinit", True): A(pf_one())
        elif PF: A(f"""v_add_co_u32 v{vpa}, vcc, v{vpa}, v{vpinc}
        s_nop 1
        v_addc_co_u32 v{vpa+1}, vcc, 0, v{vpa+1}, vcc""")
    if o.get("pfpos", "early") == "early": pf_first()
    if o.get("tlb", True) and not FUSED:
        A(f"""s_cmp_lg_u32 s{sWave}, 2
        s_cbranch_scc1 L_{N}_notlb
        s_load_dwordx2 s[74:75], s[0:1], {KA_OUT}
        v_min_u32 v{vt0}, 12, v{l}
        v_lshlrev_b32 v{vt0}, 21, v{vt0}
        global_load_dword v{vdum}, v{vt0}, s[{sP+6}:{sP+7}]
        v_and_b32 v{vt0}, 3, v{l}
        v_lshlrev_b32 v{vt0}, 21, v{vt0}
        s_waitcnt lgkmcnt(0)
        global_load_dword v{vdum}, v{vt0}, s[74:75]
        L_{N}_notlb:""")
    if FUSED and o.get("tlbout", False):
        A(f"""s_cmp_lg_u32 s{sWave}, 2
        s_cbranch_scc1 L_{N}_notlb
        s_load_dwordx2 s[74:75], s[0:1], {KA_OUT}
        v_and_b32 v{vt0}, 3, v{l}
        v_lshlrev_b32 v{vt0}, 21, v{vt0}
        s_waitcnt lgkmcnt(0)
        global_load_dword v{vdum}, v{vt0}, s[74:75]
        L_{N}_notlb:""")
    if o.get("codepf", True):
        A(f"s_lshr_b32 s{sT0}, s2, 3\ns_and_b32 s{sT0}, s{sT0}, {7 if o.get('wpre') else 3}\ns_cmp_lg_u32 s{sWave}, 3\ns_cbranch_scc1 L_{N}_nocp")
        code_prefetch(A, N, o.get("kname", name), 0, sT0, vt0, vdum, l, 74)
        A(f"L_{N}_nocp:")
    def pf_inloop(tag):
        return [f"""s_cmp_lg_u32 s78, 0
        s_cbranch_scc1 L_{N}_{tag}_pfs
        s_mov_b32 s78, 4
        s_cmp_eq_u32 s{sPfN}, 0
        s_cbranch_scc1 L_{N}_{tag}_pfs
        s_sub_u32 s{sPfN}, s{sPfN}, 1
        {pf_one()}
        L_{N}_{tag}_pfs:
        s_sub_u32 s78, s78, 1"""] if PF else []
    A(f"""v_and_b32 v{vt0}, 15, v{l}          ; n
    v_lshrrev_b32 v{vt1}, 4, v{l}         ; g
    ; ---- store lane offset: (g>>1)*1024 + (g&1)*512 + n*16
    v_lshlrev_b32 v{vst}, 9, v{vt1}
    v_lshl_add_u32 v{vst}, v{vt0}, 4, v{vst}
    v_lshrrev_b32 v{vt2}, 1, v{vt0}
    v_xor_b32 v{vt2}, v{vt2}, v{vt1}
    v_lshlrev_b32 v{vt2}, 4, v{vt2}
    v_lshl_add_u32 v{vt3}, v{vt0}, 7, v{vt2}      ; n*128 + swz*16  ( == (n>>3)*1024 + (n&7)*128 + ..)
    v_and_b32 v{vt2}, 7, v{vt0}
    v_lshrrev_b32 v{vt4}, 1, v{vt2}
    v_xor_b32 v{vt4}, v{vt4}, v{vt1}
    v_lshlrev_b32 v{vt2}, 7, v{vt2}
    v_lshrrev_b32 v{vst+0 if False else vXE[1]}, 3, v{vt0}     ; n>>3
    v_lshlrev_b32 v{vXE[0]}, 2, v{vXE[1]}
    v_xor_b32 v{vt4}, v{vt4}, v{vXE[0]}
    v_lshl_add_u32 v{vt2}, v{vt4}, 4, v{vt2}
    v_lshl_add_u32 v{vt4}, v{vXE[1]}, 11, v{vt2}
    s_lshl_b32 s{sT0}, s{sWave}, 12
    s_cmp_eq_u32 s{sType}, 2
    s_cbranch_scc1 L_{N}_xperm
    v_mov_b32 v{vXA[0]}, v{vt3}
    s_branch L_{N}_xdone
    L_{N}_xperm:
    v_mov_b32 v{vXA[0]}, v{vt4}
    L_{N}_xdone:
    v_xor_b32 v{vXA[1]}, 64, v{vXA[0]}
    s_cmp_eq_u32 s{sType}, 4
    s_cbranch_scc1 L_{N}_eperm
    v_add_u32 v{vXE[0]}, s{sT0}, v{vt3}
    s_branch L_{N}_edone
    L_{N}_eperm:
    v_add_u32 v{vXE[0]}, s{sT0}, v{vt4}
    L_{N}_edone:
    v_xor_b32 v{vXE[1]}, 64, v{vXE[0]}
    v_lshrrev_b32 v{vt2}, 2, v{vt0}               ; i>>2
    v_and_b32 v{vt3}, 1, v{vt1}
    v_lshl_or_b32 v{vt3}, v{vt3}, 2, v{vt2}
    v_lshlrev_b32 v{vt3}, 1, v{vt3}               ; f
    v_lshl_add_u32 v{vt2}, v{vt1}, 3, v{vt2}      ; row
    v_lshlrev_b32 v{vt4}, 9, v{vt2}               ; row*512
    v_and_b32 v{vWE[1]}, 1, v{vt0}
    v_lshl_add_u32 v{vt4}, v{vWE[1]}, 3, v{vt4}   ; + 8*(i&1)
    v_add_u32 v{vt4}, {WOFF}, v{vt4}
    v_bfe_u32 v{vWE[1]}, v{vt0}, 1, 1             ; (i&3)>>1
    s_lshl_b32 s{sT1}, s{sWave}, 3
    v_add_u32 v{vWE[1]}, s{sT1}, v{vWE[1]}
    """)
    for ct in range(4):
        A(f"""v_add_u32 v{vWA[ct]}, {2*ct}, v{vWE[1]}
        v_xor_b32 v{vWA[ct]}, v{vWA[ct]}, v{vt3}
        v_lshl_add_u32 v{vWA[ct]}, v{vWA[ct]}, 4, v{vt4}""")
    A(f"""; ---- WE address: EOFF + row*32 + (i&3)*8 + ((q ^ (g&1))*128)
    v_lshlrev_b32 v{vt4}, 5, v{vt2}
    v_and_b32 v{vt2}, 3, v{vt0}
    v_lshl_add_u32 v{vt4}, v{vt2}, 3, v{vt4}
    v_add_u32 v{vt4}, {EOFF}, v{vt4}
    v_and_b32 v{vt2}, 1, v{vt1}
    v_lshl_add_u32 v{vWE[0]}, v{vt2}, 7, v{vt4}
    v_xor_b32 v{vt2}, 1, v{vt2}
    v_lshl_add_u32 v{vWE[1]}, v{vt2}, 7, v{vt4}
    s_mov_b32 s{sC}, {CSC}
    s_mov_b32 s{sCneg}, {(-2*SLOT) & 0xffffffff}
    """)
    for t in range(8):
        for c in range(4):
            for r in range(4): A(f"v_mov_b32 v{acc[t][c]+r}, 0")
    for i in range(2):
        for r in range(4): A(f"v_mov_b32 v{acce[i]+r}, 0")
    A(f"s_mov_b32 s{sSlot}, 0")
    if o.get("pfpos", "early") == "late": pf_first()
    if o.get("pfwait"): A("s_waitcnt vmcnt(0)\ns_barrier")
    NAT = o.get("nonceat", "end")
    if FUSED and NAT == "spread":
        A(f"""s_lshr_b32 s77, s2, 3
        s_and_b32 s77, s77, 7
        s_add_u32 s77, s77, 3
        s_cmp_eq_u32 s{S_WAVE}, 0
        s_cselect_b32 s77, s77, 0""")
    A("s_barrier")
    if FUSED and NAT == "p0":
        A(f"""s_cmp_lg_u32 s{S_WAVE}, 0
        s_cbranch_scc1 L_{N}_notag0
        global_load_dwordx2 v[{vtagr}:{vtagr+1}], v{vtag+2}, s[98:99] sc0 sc1
        L_{N}_notag0:""")

    def xreg(tt, par):
        sp = tt - (8 - NSP)
        if sp >= 0 and par == 1: return xs[sp]
        return xf[tt]
    def rdX(tt, ks, par, perm):
        if perm: T, ab = tt >> 1, tt & 1; a = vXA[(ks ^ ab) & 1]; off = XOFF + T*4096 + ab*1024
        else: a = vXA[(ks ^ tt) & 1]; off = XOFF + tt*2048
        r = xreg(tt, par)
        return f"ds_read_b128 v[{r}:{r+3}], v{a} offset:{off}"
    def rdW(ct, q, ks, par):
        r = wf[par][ct] + 2*q
        return f"ds_read_b64_tr_b16 v[{r}:{r+1}], v{vWA[ct]} offset:{ks*16384 + q*2048}"
    def rdXE(i, ks, perm):
        a = vXE[(ks ^ i) & 1]; off = XOFF + (i*1024 if perm else i*2048)
        return f"ds_read_b128 v[{xe[i]}:{xe[i]+3}], v{a} offset:{off}"
    def rdWE(q, ks):
        return f"ds_read_b64_tr_b16 v[{we+2*q}:{we+2*q+1}], v{vWE[q]} offset:{ks*1024}"
    def mf(d, a, b): return f"v_mfma_f32_16x16x32_bf16 v[{d}:{d+3}], v[{a}:{a+3}], v[{b}:{b+3}], v[{d}:{d+3}]"

    def step(ks, vtype, extra, nxt, inter=(), early=()):
        par = ks; npar = ks ^ 1; nks = ks ^ 1
        after = {}
        def put(m, s): after.setdefault(m, []).append(s)
        seq = []
        if extra:
            for i in range(2):
                seq.append(mf(acce[i], we, xe[i]) if extra == "K" else mf(acce[i], xe[i], we))
        ne = len(seq)
        for tt in range(8):
            for ct in range(4):
                x = xreg(tt, par); w = wf[par][ct]
                seq.append(mf(acc[tt][ct], x, w) if vtype else mf(acc[tt][ct], w, x))
        if nxt:
            m = 0
            if extra:
                put(1, rdWE(0, nks)); put(1, rdWE(1, nks)); put(2, rdXE(0, nks, extra == "V")); put(3, rdXE(1, nks, extra == "V"))
            for k in range(8): put(ne + k, rdW(k >> 1, k & 1, nks, npar))
            put(ne+3, rdX(0, nks, npar, vtype)); put(ne+7, rdX(1, nks, npar, vtype))
            put(ne+8, rdX(5, nks, npar, vtype)); put(ne+9, rdX(6, nks, npar, vtype)); put(ne+10, rdX(7, nks, npar, vtype))
            put(ne+11, rdX(2, nks, npar, vtype)); put(ne+15, rdX(3, nks, npar, vtype)); put(ne+19, rdX(4, nks, npar, vtype))
        inter = list(inter); early = list(early)
        for m, s in enumerate(seq):
            A(s)
            for x in after.get(m, []): A(x)
            if early and m >= ne + 12 and len(after.get(m, [])) == 0: A(early.pop(0))
            if inter and m >= ne + 20:
                assert not early
                A(inter.pop(0))
        for x in inter: A(x)

    T2 = o.get("t2", False)
    def t2on(tag): return bool(T2) and (T2 is True or (T2 == "A" and tag in ("av", "ak")) or (T2 == "B" and tag not in ("av", "ak")))
    def compute(tag, vtype, extra):
        for ct in range(4):
            for q in range(2): A(rdW(ct, q, 0, 0))
        A("s_waitcnt lgkmcnt(4)")
        for tt in range(8): A(rdX(tt, 0, 0, vtype))
        if extra:
            A("s_waitcnt lgkmcnt(8)")
            for q in range(2): A(rdWE(q, 0))
            for i in range(2): A(rdXE(i, 0, extra == "V"))
        A(f"s_mov_b32 s{sCnt}, {NST-1}")
        if o.get("stamp"): A("s_memtime s[70:71]")
        A(f".p2align 6\nL_{N}_{tag}_loop:")
        A("s_waitcnt lgkmcnt(0)")
        rot = [f"s_add_u32 s{sSlot}, s{sSlot}, 1", f"s_cmp_eq_u32 s{sSlot}, 3",
               f"s_cselect_b32 s{sDelta}, s{sCneg}, {SLOT}", f"s_cselect_b32 s{sSlot}, 0, s{sSlot}"]
        if not o.get("hide", True):
            for x in rot: A(x)
            rot = []
        regs = vXA + vWA + ((vXE + vWE) if extra else [])
        nl = [f"""s_cmp_lg_u32 s{sCnt}, s77
        s_cbranch_scc1 L_{N}_{tag}_non
        global_load_dwordx2 v[{vtagr}:{vtagr+1}], v{vtag+2}, s[98:99] sc0 sc1
        L_{N}_{tag}_non:"""] if (FUSED and NAT == "spread") else []
        step(0, vtype, extra, "same", [f"v_add_u32 v{r}, s{sDelta}, v{r}" for r in regs] + pf_inloop(tag) + nl, early=rot)
        A("s_waitcnt lgkmcnt(0)\ns_barrier")
        if o.get("stagestamp"):
            A(f"""s_memtime s[80:81]
            s_waitcnt lgkmcnt(0)
            s_sub_u32 s80, s80, s60
            s_sub_u32 s82, 15, s{sCnt}
            s_mov_b32 m0, s82
            v_writelane_b32 v{vdum+0 if False else vstamp}, s80, m0""")
        step(1, vtype, extra, "next", [f"s_sub_u32 s{sCnt}, s{sCnt}, 1", f"s_cmp_lg_u32 s{sCnt}, 0"])
        A(f"s_cbranch_scc1 L_{N}_{tag}_loop")
        if FUSED and o.get("nonce", "store") == "store" and NAT == "end":
            A(f"""s_cmp_lg_u32 s{S_WAVE}, 0
            s_cbranch_scc1 L_{N}_{tag}_notag
            global_load_dwordx2 v[{vtagr}:{vtagr+1}], v{vtag+2}, s[98:99] sc0 sc1
            L_{N}_{tag}_notag:""")
        if t2on(tag): return
        A("s_waitcnt lgkmcnt(0)")
        step(0, vtype, extra, "same")
        A("s_waitcnt lgkmcnt(0)")
        step(1, vtype, extra, None)
        if o.get("stamp"): A("s_memtime s[72:73]\ns_waitcnt lgkmcnt(0)")
        A("s_nop 7")

    def pieces(kind, T, k0):
        out = []; k = k0
        for hh in range(2):
            for th in range(2):
                if kind == "V": srcs = [acc[2*T][2*hh+th], acc[2*T+1][2*hh+th]]
                else: srcs = [acc[2*T+th][2*hh], acc[2*T+th][2*hh+1]]
                d = xf[0] + 4*(k % 4); k += 1
                if th == 0: out.append(f"s_add_u32 s{sT0}, s{sOut}, {(hh*64 + T)*2048}")
                if kind == "Q":
                    for s_ in srcs:
                        out.append(f"v_pk_mul_f32 v[{s_}:{s_+1}], v[{s_}:{s_+1}], s[{sC}:{sC+1}]")
                        out.append(f"v_pk_mul_f32 v[{s_+2}:{s_+3}], v[{s_+2}:{s_+3}], s[{sC}:{sC+1}]")
                for j, s_ in enumerate(srcs):
                    out.append(f"v_cvt_pk_bf16_f32 v{d+2*j}, v{s_}, v{s_+1}")
                    out.append(f"v_cvt_pk_bf16_f32 v{d+2*j+1}, v{s_+2}, v{s_+3}")
                out.append(f"buffer_store_dwordx4 v[{d}:{d+3}], v{vst}, s[{sWS}:{sWS+3}], s{sT0} offen offset:{th*256} {o.get('stflags','')}")
        return out
    def tail(kind, vtype, extra):
        ne = 2 if extra else 0
        def EM(i): return mf(acce[i], we, xe[i]) if extra == "K" else mf(acce[i], xe[i], we)
        def M(tt, ct, par):
            x = xreg(tt, par); w = wf[par][ct]
            return mf(acc[tt][ct], x, w) if vtype else mf(acc[tt][ct], w, x)
        def emit(seq, after, inter=(), waits={}):
            inter = list(inter); n = len(seq); done = 0; tot = len(inter)
            for m, x in enumerate(seq):
                if m in waits: A(f"s_waitcnt lgkmcnt({waits[m]})")
                A(x)
                for y in after.get(m, []): A(y)
                want = (tot*(m+1) + n - 1)//n
                while done < want: A(inter[done]); done += 1
        A("s_waitcnt lgkmcnt(0)")
        seq = ([EM(0), EM(1)] if extra else []) + [M(tt, ct, 0) for tt in range(4) for ct in range(4)]
        after = {}
        def put(m, x): after.setdefault(m, []).append(x)
        if extra:
            put(1, rdWE(0, 1)); put(1, rdWE(1, 1)); put(2, rdXE(0, 1, extra == "V")); put(3, rdXE(1, 1, extra == "V"))
        for k in range(8): put(ne + k, rdW(k >> 1, k & 1, 1, 1))
        put(ne+3, rdX(0, 1, 1, vtype)); put(ne+7, rdX(1, 1, 1, vtype))
        put(ne+8, rdX(5, 1, 1, vtype)); put(ne+9, rdX(6, 1, 1, vtype)); put(ne+10, rdX(7, 1, 1, vtype))
        put(ne+11, rdX(2, 1, 1, vtype)); put(ne+15, rdX(3, 1, 1, vtype))
        emit(seq, after)
        seq = ([EM(0), EM(1)] if extra else []) + [M(tt, ct, 1) for tt in range(4) for ct in range(4)]
        emit(seq, {}, waits={0: 5, ne+8: 1, ne+12: 0})
        seq = [M(tt, ct, 0) for tt in range(4, 8) for ct in range(4)]
        emit(seq, {3: [rdX(4, 1, 1, vtype)]}, inter=pieces(kind, 0, 0))
        seq = [M(tt, ct, 1) for tt in range(4, 8) for ct in range(4)]
        emit(seq, {}, inter=pieces(kind, 1, 4), waits={0: 0})
        if o.get("stamp"): A("s_memtime s[72:73]\ns_waitcnt lgkmcnt(0)")
        A("s_nop 7")
        for x in pieces(kind, 2, 8) + pieces(kind, 3, 12): A(x)
        epilogue(kind, extra, main=False)
    def epilogue(kind, extra, main=True):
        if main and t2on({"V": "av", "K": "ak", None: "b"}[extra]): return tail(kind, kind == "V", extra)
        tmp = xf[0]
        stride = 2048
        for hh in range(2 if main else 0):
            for T in range(4):
                A(f"s_add_u32 s{sT0}, s{sOut}, {(hh*64 + T)*stride}")
                for th in range(2):
                    if kind == "V": srcs = [acc[2*T][2*hh+th], acc[2*T+1][2*hh+th]]
                    else: srcs = [acc[2*T+th][2*hh], acc[2*T+th][2*hh+1]]
                    d = tmp + 4*((T*2+th) % 4)
                    if kind == "Q":
                        for s_ in srcs:
                            A(f"v_pk_mul_f32 v[{s_}:{s_+1}], v[{s_}:{s_+1}], s[{sC}:{sC+1}]")
                            A(f"v_pk_mul_f32 v[{s_+2}:{s_+3}], v[{s_+2}:{s_+3}], s[{sC}:{sC+1}]")
                    for k, s_ in enumerate(srcs):
                        A(f"v_cvt_pk_bf16_f32 v{d+2*k}, v{s_}, v{s_+1}")
                        A(f"v_cvt_pk_bf16_f32 v{d+2*k+1}, v{s_+2}, v{s_+3}")
                    A(f"buffer_store_dwordx4 v[{d}:{d+3}], v{vst}, s[{sWS}:{sWS+3}], s{sT0} offen offset:{th*256} {o.get('stflags','')}")
        if extra == "K":
            d = wf[0][0]
            for th in range(2):
                A(f"v_cvt_pk_bf16_f32 v{d+2*th}, v{acce[th]}, v{acce[th]+1}")
                A(f"v_cvt_pk_bf16_f32 v{d+2*th+1}, v{acce[th]+2}, v{acce[th]+3}")
            A(f"""v_and_b32 v{vt0}, 0x200, v{vst}
            v_lshrrev_b32 v{vt1}, 2, v{vst}
            v_and_b32 v{vt1}, 0x100, v{vt1}
            v_permlane32_swap_b32 v{d}, v{d+2}
            v_permlane32_swap_b32 v{d+1}, v{d+3}
            v_and_b32 v{vt2}, 0xf0, v{vst}
            v_or3_b32 v{vt0}, v{vt0}, v{vt1}, v{vt2}
            buffer_store_dwordx4 v[{d}:{d+3}], v{vt0}, s[{sWS}:{sWS+3}], s{sOutE} offen {o.get('stflags','')}""")
        elif extra == "V":
            d = wf[0][0]
            for k in range(2):
                A(f"v_cvt_pk_bf16_f32 v{d+2*k}, v{acce[k]}, v{acce[k]+1}")
                A(f"v_cvt_pk_bf16_f32 v{d+2*k+1}, v{acce[k]+2}, v{acce[k]+3}")
            A(f"buffer_store_dwordx4 v[{d}:{d+3}], v{vst}, s[{sWS}:{sWS+3}], s{sOutE} offen {o.get('stflags','')}")
        A(f"s_branch L_{N}_done")

    A(f"""s_lshl_b32 s{sT0}, s{sCB}, 3
    s_lshl_b32 s{sT1}, s{sWave}, 1
    s_add_u32 s{sT0}, s{sT0}, s{sT1}        ; head0
    s_lshl_b32 s{sT0}, s{sT0}, 6
    s_lshl_b32 s{sT1}, s{sRB}, 2
    s_add_u32 s{sT0}, s{sT0}, s{sT1}        ; head0*64 + T0
    s_add_u32 s{sT1}, s{sT1}, s{sWave}
    s_lshl_b32 s{sOutE}, s{sT1}, 11
    s_add_u32 s{sOutE}, s{sOutE}, {WS_KA}
    s_mov_b32 s{sC+1}, s{sC}
    s_cmp_eq_u32 s{sType}, 0
    s_cbranch_scc1 L_{N}_cBQ
    s_cmp_eq_u32 s{sType}, 1
    s_cbranch_scc1 L_{N}_cBK
    s_cmp_eq_u32 s{sType}, 2
    s_cbranch_scc1 L_{N}_cBV
    s_lshl_b32 s{sOut}, s{sT0}, 11
    s_add_u32 s{sOut}, s{sOut}, {WS_QA}
    s_cmp_eq_u32 s{sType}, 3
    s_cbranch_scc1 L_{N}_cAK
    s_lshl_b32 s{sT1}, s{sEo}, 3
    s_add_u32 s{sOutE}, s{sOutE}, s{sT1}
    s_add_u32 s{sOutE}, s{sOutE}, {WS_VA-WS_KA}""")
    compute("av", False, "V"); epilogue("Q", "V")
    A(f"""L_{N}_cAK:
    s_lshl_b32 s{sT1}, s{sEo}, 5
    s_add_u32 s{sOutE}, s{sOutE}, s{sT1}""")
    compute("ak", False, "K"); epilogue("Q", "K")
    A(f"""L_{N}_cBQ:
    s_lshl_b32 s{sOut}, s{sT0}, 11
    s_add_u32 s{sOut}, s{sOut}, {WS_QB}""")
    A(f"s_branch L_{N}_cBQK")
    A(f"""L_{N}_cBK:
    s_lshl_b32 s{sOut}, s{sT0}, 11
    s_add_u32 s{sOut}, s{sOut}, {WS_KB}
    L_{N}_cBQK:""")
    compute("bqk", False, None)
    A(f"""s_cmp_eq_u32 s{sType}, 1
    s_cbranch_scc1 L_{N}_eBK""")
    epilogue("Q", None)
    A(f"L_{N}_eBK:")
    epilogue("K", None)
    A(f"""L_{N}_cBV:
    s_lshl_b32 s{sOut}, s{sT0}, 11
    s_add_u32 s{sOut}, s{sOut}, {WS_VB}""")
    compute("bv", True, None); epilogue("V", None)

    A(f"L_{N}_done:")
    if o.get("stamp"):
        A(f"""s_memtime s[64:65]
        s_memrealtime s[66:67]
        s_waitcnt lgkmcnt(0)
        s_sub_u32 s64, s64, s60
        s_sub_u32 s66, s66, s62
        s_lshl_b32 s68, s2, 3
        s_add_u32 s68, s68, s{sWave}
        s_lshl_b32 s68, s68, 4
        s_add_u32 s68, s68, {WS_END}
        v_mov_b32 v{xs[0]}, s64
        v_mov_b32 v{xs[0]+1}, s66
        v_mov_b32 v{xs[0]+2}, s62
        s_sub_u32 s70, s70, s60
        s_sub_u32 s72, s72, s60
        s_lshr_b32 s70, s70, 2
        s_lshr_b32 s72, s72, 2
        s_lshl_b32 s72, s72, 16
        s_or_b32 s70, s70, s72
        v_mov_b32 v{xs[0]+3}, s70
        v_mov_b32 v{vt0}, 0
        buffer_store_dwordx4 v[{xs[0]}:{xs[0]+3}], v{vt0}, s[{sWS}:{sWS+3}], s68 offen""")
        if o.get("stagestamp"):
            A(f"""s_lshl_b32 s68, s2, 2
            s_add_u32 s68, s68, s{sWave}
            s_lshl_b32 s68, s68, 6
            s_add_u32 s68, s68, {WS_END + 196608}
            v_lshlrev_b32 v{vt0}, 2, v{vtid}
            s_mov_b64 exec, 0xffff
            buffer_store_dword v{vstamp}, v{vt0}, s[{sWS}:{sWS+3}], s68 offen
            s_mov_b64 exec, -1""")
    if FUSED and o.get("nonce", "store") == "atomic":
        A(f"""s_waitcnt vmcnt(0)
        s_cmp_lg_u32 s{S_WAVE}, 1
        s_cbranch_scc1 L_{N}_lend
        v_cmp_eq_u64 vcc, 0, v[{vtagr}:{vtagr+1}]
        v_mov_b32 v{vt0}, {NONCE_LDS}
        s_nop 0
        v_cndmask_b32 v{vtag}, v{vtagr}, v{vtag}, vcc
        v_cndmask_b32 v{vtag+1}, v{vtagr+1}, v{vtag+1}, vcc
        s_mov_b64 exec, 1
        ds_write_b64 v{vt0}, v[{vtag}:{vtag+1}]
        s_mov_b64 exec, -1
        s_waitcnt lgkmcnt(0)
        L_{N}_lend:
        s_barrier
        s_cmp_lg_u32 s{S_WAVE}, 0
        s_cbranch_scc1 L_{N}_noflag""")
        read_nonce(A, vtag, vt0)
        flag_srd(A, 92, sP+6)
        A(f"s_mov_b32 s{sT0}, s2")
        flag_store(A, 92, vtag, vt0, sT0, 0, 8)
        A(f"L_{N}_noflag:")
        return A.text(), dict(name=name, nv=nv, lds=3*SLOT)
    if FUSED:
        A("s_waitcnt vmcnt(0)")
        if o.get("stamp3"): rt_stamp(A, 80)
        A(f"""s_cmp_lg_u32 s{S_WAVE}, 0
        s_cbranch_scc1 L_{N}_lend
        s_mov_b32 s{sCnt}, 400000
        L_{N}_tagspin:
        v_cmp_eq_u64 vcc, 0, v[{vtagr}:{vtagr+1}]
        s_sub_u32 s{sCnt}, s{sCnt}, 1
        s_nop 2
        s_cmp_eq_u64 vcc, 0
        s_cbranch_scc1 L_{N}_tagok
        s_cmp_eq_u32 s{sCnt}, 0
        s_cbranch_scc1 L_{N}_tagok
        global_load_dwordx2 v[{vtagr}:{vtagr+1}], v{vtag+2}, s[98:99] sc0 sc1
        s_waitcnt vmcnt(0)
        s_branch L_{N}_tagspin
        L_{N}_tagok:
        v_mov_b32 v{vt0}, {NONCE_LDS}
        s_mov_b64 exec, 1
        ds_write_b64 v{vt0}, v[{vtagr}:{vtagr+1}]
        s_mov_b64 exec, -1""")
        A(f"""s_waitcnt lgkmcnt(0)
        L_{N}_lend:
        s_barrier
        s_cmp_lg_u32 s{S_WAVE}, 0
        s_cbranch_scc1 L_{N}_noflag""")
        flag_srd(A, 92, sP+6)
        A(f"""v_mov_b32 v{vtag}, v{vtagr}
        v_mov_b32 v{vtag+1}, v{vtagr+1}
        s_mov_b32 s{sT0}, s2""")
        flag_store(A, 92, vtag, vt0, sT0, 0, 8)
        if o.get("stamp3"): rt_stamp(A, 81)
        A(f"L_{N}_noflag:")
        if o.get("wpre"): nonce_to_sgpr(A, vtagr, vt0)
        return A.text(), dict(name=name, nv=nv, lds=3*SLOT)
    A(f"""s_waitcnt vmcnt(0)
    L_{N}_lend:
    L_{N}_end:
    s_endpgm""")
    return A.text() + kernel_desc(name, nv), dict(name=name, grid=256, block=512, lds=3*SLOT, nv=nv)

if __name__ == "__main__":
    import hz
    from build import build
    t, i = gen_proj(opts=dict(stamp=True))
    print(i)
    ps = hz.check_hazards(t)
    for p in ps[:30]: print(p)
    ws = hz.check_waits(t, i["name"], max_back=1)
    for p in ws[:30]: print(p)
    print(len(ps), len(ws))
    build([(t, i)], "proj_only.s")
```

```python
import sys; sys.path.insert(0,"dev")
from build import build
import hz, importlib
import proj, attn, attn2, oproj
def make(path, stamp=False, po=None, ao=None, oo=None, check=True):
    po = dict(po or {}); ao = dict(ao or {}); oo = dict(oo or {})
    if stamp: po["stamp"] = ao["stamp"] = oo["stamp"] = True
    parts = [proj.gen_proj(opts=po), (attn.gen_attn(opts=ao) if ao.get('v1') else attn2.gen_attn2(opts=ao)), oproj.gen_oproj(opts=oo)]
    if check:
        for t, i in parts:
            ps = hz.check_hazards(t); ws = hz.check_waits(t, i["name"], max_back=1)
            for p in (ps + ws)[:20]: print("!!", p)
            print(i, "hazards", len(ps), "waits", len(ws))
    build(parts, path)
def make_fused(path, stamp=False, po=None, ao=None, oo=None, check=True):
    po = dict(po or {}); ao = dict(ao or {}); oo = dict(oo or {})
    for d in (po, ao, oo): d["fused"] = True
    if stamp: po["stamp"] = ao["stamp"] = oo["stamp"] = True
    WPRE = oo.get("wpre")
    if WPRE: po["wpre"] = ao["wpre"] = True
    if oo.get("wflag"): ao["wflag"] = True
    if oo.get("orot"): ao["orot"] = oo["orot"]
    KN = "fused_kernel"
    po["kname"] = KN
    tp, ip = proj.gen_proj(opts=po); ta, ia = attn2.gen_attn2(opts=ao); to, io = oproj.gen_oproj(opts=oo)
    nv = max(ip["nv"], ia["nv"], io["nv"])
    txt = tp + ta + to + "L_fused_end:\n  s_endpgm\n"
    full = txt + kernel_desc(KN, nv)
    info = dict(name=KN, grid=256, block=512, lds=(LDS_FULL if WPRE else NONCE_LDS + 64), nv=nv)
    if check:
        ps = hz.check_hazards(txt); ws = hz.check_waits(txt, KN, max_back=1, max_paths=20000)
        for p in (ps + ws)[:20]: print("!!", p)
        print(info, "hazards", len(ps), "waits", len(ws))
    build([(full, info)], path)
from kgen import *
if __name__ == "__main__":
    CFG = dict(po=dict(stflags="sc0 sc1", predma=2, predmaB=1, prefetch=False, t2="A", stag="xwo", krot=("4", 1, "A")),
               ao=dict(stflags="sc0 sc1", early=2, pollfirst=(0x80000000, 0, 0, 0x8000, 29), qpoll=True, wotouch_at=2),
               oo=dict(stflags="sc0 sc1", wpre=True, pipe=True, npre=2, wflag=True, pollfirst=(0, 0x80000000), fullst=True, t2=True))
    set_orings(4, 6)
    make_fused("fused_best.s", **CFG)
    C3 = dict(po=dict(stflags="sc0 sc1", pfl="", predma=2, pfpos="late", krot=("4", 1, "A")), ao=dict(stflags="sc0 sc1"), oo=dict(stflags="nt"))
    make("all.s", check=False, **C3)
```

```python
from kgen import *

def gen_attn2(name="attn_kernel", NSLOT=3, TPC=8, opts=None):
    o = opts or {}
    A = Asm()
    NQ = 4
    CH = TPC * 4096
    NCH = 64 // TPC
    FLAG = NSLOT * CH
    va = VAlloc(0)
    vtid = va.get("tid")
    vl16 = va.get("l16")
    vcur = va.get("cur"); vnxt = va.get("nxt")
    vt0 = va.get("t0", 1, 4); vt1 = va.get("t1"); vt2 = va.get("t2"); vt3 = va.get("t3")
    vidx = va.get("idx")
    val = va.get("alpha")
    vdum = va.get("dummy")
    vm = [va.get(f"m{i}") for i in range(NQ)]
    vsel = va.get("sel", 4, 4)
    Q = [[va.get(f"q{i}{h}", 4, 4) for h in range(2)] for i in range(NQ)]
    O = [va.get(f"o{i}", 16, 4) for i in range(NQ)]
    L = [va.get(f"l{i}", 4, 4) for i in range(NQ)]
    S = [va.get(f"s{i}", 16, 4) for i in range(2)]
    P = [va.get(f"p{i}", 8, 4) for i in range(2)]
    K = [va.get(f"k{i}", 8, 4) for i in range(2)]
    V = [va.get(f"v{i}", 8, 4) for i in range(2)]
    nv = va.next
    vdma = Q[0][0]
    sWS, sKV, sW = 4, 8, 12
    sWave, sSoff, sM0, sCnt, sQ, sO, sNxt, sMode, sT0, sT1 = 16, 17, 18, 19, 20, 21, 22, 23, 24, 25
    sT2, sT3 = 26, 27
    N = name
    PER = CH // 4 // 1024
    FUSED = o.get("fused")
    WPRE = FUSED and o.get("wpre")
    WFL = WPRE and o.get("wflag")
    O_XSLOTS, O_WSLOTS, O_WOFF = orings()
    rdn = (lambda vn, vt: nonce_from_sgpr(A, vn)) if WPRE else (lambda vn, vt: read_nonce(A, vn, vt))
    if not FUSED: A.raw(kernel_head(name).rstrip("\n"))
    if o.get("stamp"): A("s_memtime s[40:41]\ns_memrealtime s[42:43]")
    if FUSED:
        A(f"""s_load_dwordx2 s[{sWS}:{sWS+1}], s[0:1], {KA_WS}
        v_and_b32 v{vl16}, 63, v{vtid}
        s_mov_b32 s{sWave}, s{S_WAVE}""")
    else:
        A(f"""s_cmp_ge_u32 s2, 256
        s_cbranch_scc1 L_{N}_end
        s_load_dwordx2 s[{sWS}:{sWS+1}], s[0:1], {KA_WS}
        v_lshrrev_b32 v{vt0}, 6, v{vtid}
        v_and_b32 v{vl16}, 63, v{vtid}
        v_readfirstlane_b32 s{sWave}, v{vt0}""")
    A(f"""v_lshlrev_b32 v{vl16}, 4, v{vl16}
    s_and_b32 s{sT0}, s2, 7
    s_lshr_b32 s{sT1}, s2, 3
    s_lshl_b32 s{sT0}, s{sT0}, 3
    s_lshr_b32 s{sT2}, s{sT1}, 2
    s_add_u32 s{sT0}, s{sT0}, s{sT2}      ; bh
    s_and_b32 s{sT1}, s{sT1}, 3           ; qb
    s_and_b32 s{sT2}, s{sT0}, 31          ; head
    s_lshr_b32 s{sT0}, s{sT0}, 5          ; branch
    s_mov_b32 s28, s{sT2}
    s_mov_b32 s29, s{sT0}
    s_mov_b32 s30, s{sT1}
    s_cmp_lt_u32 s{sWave}, 4
    s_cbranch_scc1 L_{N}_compute""")
    A(f"""L_{N}_loader:
    s_sub_u32 s{sWave}, s{sWave}, 4
    s_lshl_b32 s{sT2}, s{sT2}, 17         ; head*128KB
    s_add_u32 s{sT2}, s{sT2}, {WS_KB}
    s_cmp_eq_u32 s{sT0}, 0
    s_cselect_b32 s{sT2}, {WS_KA}, s{sT2}
    s_mov_b32 s{sT3}, {WS_VB-WS_KB}
    s_cselect_b32 s{sT3}, {WS_VA-WS_KA}, s{sT3}
    s_cmp_ge_u32 s{sWave}, 2
    s_cselect_b32 s{sT3}, s{sT3}, 0
    s_add_u32 s{sT2}, s{sT2}, s{sT3}
    s_and_b32 s{sT1}, s{sWave}, 1
    s_mul_i32 s{sT1}, s{sT1}, {PER*1024}
    v_add_u32 v{vdma}, s{sT1}, v{vl16}
    s_mul_i32 s{sM0}, s{sWave}, {PER*1024}
    s_mov_b32 s{sQ}, s{sM0}
    s_mov_b32 s{sSoff}, 0
    s_waitcnt lgkmcnt(0)
    s_add_u32 s{sKV}, s{sWS}, s{sT2}
    s_addc_u32 s{sKV+1}, s{sWS+1}, 0
    s_and_b32 s{sKV+1}, s{sKV+1}, 0xffff
    s_mov_b32 s{sKV+2}, 131072
    s_mov_b32 s{sKV+3}, 0x20000
    """)
    if FUSED:
        vn, vc, vo = S[0], S[0]+2, S[0]+4
        if o.get("stamp3"): rt_stamp(A, 80)
        A(f"""s_cmp_lg_u32 s{sWave}, 0
        s_cbranch_scc1 L_{N}_nopoll""")
        rdn(vn, vt0)
        flag_srd(A, 92, sWS)
        A(f"""v_lshrrev_b32 v{vt0}, 4, v{vl16}          ; lane
        s_cmp_eq_u32 s29, 0
        s_cbranch_scc0 L_{N}_pollB
        v_and_b32 v{vt1}, 1, v{vt0}
        v_lshrrev_b32 v{vt2}, 1, v{vt0}
        v_lshl_add_u32 v{vo}, v{vt2}, 3, v{vt1}
        s_branch L_{N}_pollgo
        L_{N}_pollB:
        {f"v_mov_b32 v{vt3+1}, {o.get('bwait')}" if o.get("bwait") is not None else ""}
        v_and_b32 v{vt1}, 15, v{vt0}
        s_lshl_b32 s{sT1}, s30, 2
        v_and_b32 v{vt2}, 3, v{vt0}
        v_add_u32 v{vt2}, s{sT1}, v{vt2}
        v_cmp_gt_u32 vcc, 32, v{vt0}
        s_nop 1
        v_cndmask_b32 v{vt1}, v{vt2}, v{vt1}, vcc      ; rb
        v_lshrrev_b32 v{vt2}, 4, v{vt0}                ; 0 K, 1 V, 2/3 Q
        v_lshlrev_b32 v{vt2}, 1, v{vt2}
        v_add_u32 v{vt2}, 4, v{vt2}                    ; 4, 6, ..
        v_cndmask_b32 v{vt2}, 2, v{vt2}, vcc
        v_lshrrev_b32 v{vt3}, 3, v{vt1}
        v_add_u32 v{vt2}, v{vt2}, v{vt3}               ; xcd
        v_and_b32 v{vt1}, 7, v{vt1}
        s_lshr_b32 s{sT1}, s28, 3                      ; cb
        s_lshl_b32 s{sT1}, s{sT1}, 3
        v_add_u32 v{vt1}, s{sT1}, v{vt1}               ; sl
        v_lshl_add_u32 v{vo}, v{vt1}, 3, v{vt2}
        {f"v_cmp_eq_u32 vcc, 63, v{vt0}" if o.get("bwait") is not None else ""}
        {"s_nop 1" if o.get("bwait") is not None else ""}
        {f"v_cndmask_b32 v{vo}, v{vo}, v{vt3+1}, vcc" if o.get("bwait") is not None else ""}
        L_{N}_pollgo:
        s_and_b32 s{sT1}, s2, 7
        s_lshl_b32 s{sT1}, s{sT1}, 7
        v_lshlrev_b32 v{vo}, 10, v{vo}
        v_add_u32 v{vo}, s{sT1}, v{vo}""")
        if o.get("pollr", 0): flag_poll2(A, N, 92, vn, vo, S[0]+8, sCnt, o["pollr"], lds=(NONCE_LDS if WPRE else None), nrd=o.get("pollrd", 1))
        elif o.get("poll3"): flag_poll3(A, N, 92, vn, vo, vc, sCnt, first=o.get("pollfirst"))
        else: flag_poll(A, N, 92, vn, vo, vc, sCnt, first=o.get("pollfirst"))
        if o.get("stamp3"):
            rt_stamp(A, 81); A(f"s_mov_b32 s82, s{sCnt}")
        A(f"""L_{N}_nopoll:
        s_barrier""")
    def dma(rot=True):
        A(f"s_mov_b32 m0, s{sM0}")
        if rot: A(f"s_add_u32 s{sM0}, s{sM0}, {CH}")
        else: A("s_nop 0")
        for i in range(PER):
            if i == 4:
                A("s_add_u32 m0, m0, 4096")
                A(f"s_add_u32 s{sT3}, s{sSoff}, 4096")
            A(f"buffer_load_dwordx4 v{vdma}, s[{sKV}:{sKV+3}], s{sSoff if i < 4 else sT3} offen offset:{(i&3)*1024} lds")
        A(f"s_add_u32 s{sSoff}, s{sSoff}, {CH//2}")
        if rot:
            A(f"s_cmp_ge_u32 s{sM0}, {NSLOT*CH}")
            A(f"s_cselect_b32 s{sT1}, {NSLOT*CH}, 0")
            A(f"s_sub_u32 s{sM0}, s{sM0}, s{sT1}")
    EARLY = o.get("early", 0) if WPRE else 0
    def dma_part(lo, hi):
        for i in range(lo, hi):
            if i == lo or i == 4:
                A(f"s_add_u32 m0, s{sM0}, {4096 if i >= 4 else 0}")
                A(f"s_add_u32 s{sT3}, s{sSoff}, {4096 if i >= 4 else 0}")
            A(f"buffer_load_dwordx4 v{vdma}, s[{sKV}:{sKV+3}], s{sT3} offen offset:{(i&3)*1024} lds")
    if EARLY:
        assert EARLY <= 4 and PER == 8
        A(f"s_bitcmp1_b32 s{sWave}, 0\ns_cbranch_scc1 L_{N}_odd0")
        dma_part(0, 2*EARLY)
        A("s_waitcnt vmcnt(0)")
        if o.get("stamp3"): rt_stamp(A, 83)
        A("s_barrier")
        dma_part(2*EARLY, PER)
        A(f"s_branch L_{N}_odd1\nL_{N}_odd0:\ns_barrier")
        dma_part(0, PER)
        A(f"""L_{N}_odd1:
        s_add_u32 s{sM0}, s{sM0}, {CH}
        s_add_u32 s{sSoff}, s{sSoff}, {CH//2}""")
        if o.get("early_c1", True):
            dma()
            A(f"s_waitcnt vmcnt({PER})\ns_barrier")
        else:
            A("s_waitcnt vmcnt(0)\ns_barrier")
            dma()
    else:
        dma()
        if WPRE: A("s_waitcnt vmcnt(0)")
        else: A(f"""v_mov_b32 v{vt0}, 0
        v_mov_b32 v{vt1}, {FLAG}
        ds_write_b32 v{vt1}, v{vt0}
        s_waitcnt vmcnt(0) lgkmcnt(0)""")
        if o.get("stamp3"): rt_stamp(A, 83)
        A("s_barrier")
        for c in range(NSLOT-2): dma()
    if o.get("prefetch", True):
        sPW = 56
        A(f"""s_load_dwordx2 s[{sPW+4}:{sPW+5}], s[0:1], {KA_AWO}
        s_load_dwordx2 s[{sPW+6}:{sPW+7}], s[0:1], {KA_BWO}
        s_lshr_b32 s{sT0}, s2, 3
        s_lshl_b32 s{sT0}, s{sT0}, 5
        s_lshl_b32 s{sT1}, s{sWave}, 3
        s_add_u32 s{sT0}, s{sT0}, s{sT1}
        s_lshl_b32 s{sT0}, s{sT0}, 11
        s_and_b32 s{sT1}, s2, 1
        s_lshl_b32 s{sT1}, s{sT1}, 10
        s_add_u32 s{sT0}, s{sT0}, s{sT1}
        v_lshrrev_b32 v{vt0}, 7, v{vl16}
        v_lshlrev_b32 v{vt0}, 11, v{vt0}
        v_bfe_u32 v{vt1}, v{vl16}, 4, 3
        v_lshl_add_u32 v{vt0}, v{vt1}, 7, v{vt0}
        s_bitcmp1_b32 s2, 2
        s_waitcnt lgkmcnt(0)
        s_cselect_b32 s{sPW}, s{sPW+6}, s{sPW+4}
        s_cselect_b32 s{sPW+1}, s{sPW+7}, s{sPW+5}
        s_and_b32 s{sPW+1}, s{sPW+1}, 0xffff
        s_mov_b32 s{sPW+2}, {1024*2048}
        s_mov_b32 s{sPW+3}, 0x20000
        buffer_load_dword v{vdum}, v{vt0}, s[{sPW}:{sPW+3}], s{sT0} offen""")
    if WPRE:
        sOW, vOW = 64, S[1]
        A(f"""s_load_dwordx2 s[68:69], s[0:1], {KA_AWO}
        s_load_dwordx2 s[70:71], s[0:1], {KA_BWO}
        v_lshrrev_b32 v{vOW+4}, 4, v{vl16}
        s_lshl_b32 s72, s{sWave}, 12
        s_add_u32 s72, s72, {O_WOFF}
        s_waitcnt lgkmcnt(0)""")
        ow_srd(A, sOW, 68, 70, sT0, sT1)
        ow_lanes(A, vOW, vOW+4, sWave, sT0, vt0, vt1, vt2)
    A(f"s_mov_b32 s{sCnt}, {NCH-2 if WPRE else NCH}")
    A(f"""L_{N}_ldloop:
    s_waitcnt vmcnt({(NSLOT-3)*PER})
    {"s_nop 0" if "nobar" in o.get("ablate","") else "s_barrier"}""")
    dma()
    A(f"""s_sub_u32 s{sCnt}, s{sCnt}, 1
    s_cmp_lg_u32 s{sCnt}, 0
    s_cbranch_scc1 L_{N}_ldloop""")
    if WPRE:
        A("s_waitcnt vmcnt(0)\ns_barrier")
        for st in range(O_WSLOTS): ow_dma(A, sOW, vOW, 72, sT0, st*16384, st)
        A("s_barrier")
        A(f"""s_barrier
        v_mov_b32 v{vt1}, {VOTE_LDS}
        ds_read_b128 v[{vOW+4}:{vOW+7}], v{vt1}
        s_waitcnt lgkmcnt(0)
        v_or3_b32 v{vt0}, v{vOW+4}, v{vOW+5}, v{vOW+6}
        v_or_b32 v{vt0}, v{vt0}, v{vOW+7}
        s_nop 1""")
    else:
        A(f"""s_waitcnt vmcnt(0)
        s_barrier
        v_mov_b32 v{vt1}, {FLAG}
        ds_read_b32 v{vt0}, v{vt1}
        s_waitcnt lgkmcnt(0)""")
    A(f"""v_readfirstlane_b32 s{sT0}, v{vt0}
    s_nop 3
    s_cmp_eq_u32 s{sT0}, 0
    s_cbranch_scc1 L_{N}_end
    s_mov_b32 s{sCnt}, {NCH}
    s_mov_b32 s{sSoff}, 0
    s_mov_b32 s{sM0}, s{sQ}
    L_{N}_ldslow:
    s_barrier""")
    dma(rot=False)
    A(f"""s_waitcnt vmcnt(0)
    s_barrier
    s_sub_u32 s{sCnt}, s{sCnt}, 1
    s_cmp_lg_u32 s{sCnt}, 0
    s_cbranch_scc1 L_{N}_ldslow
    {"s_barrier" if FUSED else ""}
    s_branch L_{N}_end
""")
    A(f"""L_{N}_compute:
    s_lshl_b32 s{sT1}, s{sT1}, 4
    s_lshl_b32 s{sT3}, s{sWave}, 2
    s_add_u32 s{sT1}, s{sT1}, s{sT3}
    s_lshl_b32 s{sQ}, s{sT2}, 6
    s_add_u32 s{sQ}, s{sQ}, s{sT1}
    s_lshl_b32 s{sQ}, s{sQ}, 11           ; (head*64+T)*2048
    s_lshl_b32 s{sO}, s{sT1}, 5
    s_add_u32 s{sO}, s{sO}, s{sT2}
    s_lshl_b32 s{sO}, s{sO}, 11           ; (T*32+head)*2048
    s_mul_i32 s{sT3}, s{sT0}, {WS_QB-WS_QA}
    s_add_u32 s{sQ}, s{sQ}, s{sT3}
    s_add_u32 s{sO}, s{sO}, s{sT3}
    s_add_u32 s{sO}, s{sO}, {WS_OA}
    s_waitcnt lgkmcnt(0)
    {"s_memtime s[60:61]" if o.get('stamp2') else ""}
    s_mov_b32 s{sW}, s{sWS}
    s_and_b32 s{sW+1}, s{sWS+1}, 0xffff
    s_mov_b32 s{sW+2}, {WS_END + (262144 if o.get('stamp') else 0)}
    s_mov_b32 s{sW+3}, 0x20000
    """)
    assert WS_OB - WS_OA == WS_QB - WS_QA
    def q_loads():
        for i in range(NQ):
            if i == 2: A(f"s_add_u32 s{sQ}, s{sQ}, 4096")
            for h in range(2):
                A(f"buffer_load_dwordx4 v[{Q[i][h]}:{Q[i][h]+3}], v{vl16}, s[{sW}:{sW+3}], s{sQ} offen offset:{(i&1)*2048+h*1024}")
    if not FUSED: q_loads()
    def init_acc():
        for i in range(NQ):
            for r in range(16): A(f"v_mov_b32 v{O[i]+r}, 0")
            for r in range(2): A(f"v_mov_b32 v{L[i]+r}, 0")
    init_acc()
    for i in range(NQ):
        for r in range(2,4): A(f"v_mov_b32 v{L[i]+r}, 0")
    for r in range(8):
        A(f"v_mov_b32 v{P[1]+r}, 0")
        A(f"v_mov_b32 v{V[1]+r}, 0")
    A(f"""v_lshrrev_b32 v{vt0}, 4, v{vl16}      ; lane
    v_and_b32 v{vt1}, 2, v{vt0}           ; r>=2 -> nonzero
    v_and_b32 v{vt2}, 4, v{vt0}           ; qhalf
    v_mov_b32 v{vt3}, 0x3f803f80
    v_cmp_eq_u32 vcc, 0, v{vt1}
    s_nop 1
    v_cndmask_b32 v{vt3}, 0, v{vt3}, vcc
    v_cmp_eq_u32 vcc, 0, v{vt2}
    s_nop 1
    v_cndmask_b32 v{vsel}, 0, v{vt3}, vcc
    v_cndmask_b32 v{vsel+1}, 0, v{vt3}, vcc
    v_cndmask_b32 v{vsel+2}, v{vt3}, 0, vcc
    v_cndmask_b32 v{vsel+3}, v{vt3}, 0, vcc
    v_and_b32 v{vt1}, 1, v{vt0}
    v_mov_b32 v{vt2}, 0x44444444
    v_mov_b32 v{vt3}, 0xeeeeeeee
    v_cmp_eq_u32 vcc, 0, v{vt1}
    s_nop 1
    v_cndmask_b32 v{vidx}, v{vt3}, v{vt2}, vcc
    {f"v_and_b32 v{vt1}, 3, v{vt0}" if o.get("l4") else ""}
    {f"v_mov_b32 v{vt3}, 0x3f803f80" if o.get("l4") else ""}
    {f"v_cmp_eq_u32 vcc, 0, v{vt1}" if o.get("l4") else ""}
    {"s_nop 1" if o.get("l4") else ""}
    {f"v_cndmask_b32 v{vsel}, 0, v{vt3}, vcc" if o.get("l4") else ""}
    {f"v_cndmask_b32 v{vsel+1}, 0, v{vt3}, vcc" if o.get("l4") else ""}
    v_mov_b32 v{vcur}, v{vl16}
    v_add_u32 v{vnxt}, {CH}, v{vl16}
    s_mov_b32 s{sNxt}, {2*CH}
    s_mov_b32 s{sMode}, 0
    s_mov_b32 s{sCnt}, {NCH}""")
    if FUSED:
        A("s_barrier")
        if o.get("stamp3"): rt_stamp(A, 82)
        q_loads()
        if o.get("stamp3"):
            A("s_waitcnt vmcnt(0)"); rt_stamp(A, 83)
    A(f"""{"s_memtime s[62:63]" if o.get('stamp2') else ""}
    s_waitcnt vmcnt(0)
    {"s_memtime s[64:65]" if o.get('stamp2') else ""}
    s_barrier
    {"s_memtime s[66:67]" if o.get('stamp2') else ""}
    """)
    def rK(buf, base, t, h): return f"ds_read_b128 v[{K[buf]+4*h}:{K[buf]+4*h+3}], v{base} offset:{t*2048+h*1024}"
    def rV(buf, base, t, h): return f"ds_read_b128 v[{V[buf]+4*h}:{V[buf]+4*h+3}], v{base} offset:{CH//2+t*2048+h*1024}"
    def mf(d, a, b, c):
        cs = "0" if c is None else f"v[{c}:{c+15}]"
        return f"v_mfma_f32_32x32x16_bf16 v[{d}:{d+15}], v[{a}:{a+3}], v[{b}:{b+3}], {cs}"
    def sm(qi, pb):
        if o.get("l4"):
            return "\n".join(f"v_mfma_f32_4x4x4bf16_1k v[{L[qi]}:{L[qi]+3}], v[{vsel}:{vsel+1}], v[{P[pb]+2*z}:{P[pb]+2*z+1}], v[{L[qi]}:{L[qi]+3}]\ns_nop 1" for z in range(4))
        return f"v_smfmac_f32_16x16x64_bf16 v[{L[qi]}:{L[qi]+3}], v[{vsel}:{vsel+3}], v[{P[pb]}:{P[pb]+7}], v{vidx}"
    for h in range(2): A(rK(0, vcur, 0, h))
    for h in range(2): A(rV(0, vcur, 0, h))
    A("s_waitcnt lgkmcnt(0)")
    A(mf(S[0], K[0], Q[0][0], None)); A(mf(S[0], K[0]+4, Q[0][1], S[0]))
    A("s_nop 7\ns_nop 3")
    if o.get("stamp"): A("s_memtime s[50:51]\ns_waitcnt lgkmcnt(0)")
    A(f".p2align 6\nL_{N}_loop:")
    pat = o.get("pat", "Q1 e e e P1 e e e Q2 e e c c P2 e e c c S R e e c e e c e e c c").split()
    for kt in range(TPC):
        for qi in range(NQ):
            u = kt*NQ + qi
            nk, nq = (kt, qi+1) if qi+1 < NQ else (kt+1, 0)
            pk, pq = (kt, qi-1) if qi > 0 else (kt-1, NQ-1)
            sb = u & 1; nb = sb ^ 1
            e = lambda j: f"v_exp_f32 v{S[sb]+j}, v{S[sb]+j}"
            c = lambda j: f"v_cvt_pk_bf16_f32 v{P[sb]+j}, v{S[sb]+2*j}, v{S[sb]+2*j+1}"
            Kb = K[nk % 2]; Vb = V[pk % 2]
            pre = []
            HW = o.get("hidew", 0)
            if qi == 3 and not HW: pre.append("s_waitcnt lgkmcnt(0)")
            if qi == 0 and kt == TPC-1: pre.append("s_barrier")
            if EARLY and qi == 0 and kt == EARLY-1:
                pre.append(f"s_cbranch_scc1 L_{N}_bar1"); pre.append(f"L_{N}_bar1r:")
            base, t = (vcur, kt+1) if kt+1 < TPC else (vnxt, 0)
            b2 = (kt+1) % 2
            rd = {0: [rK(b2, base, t, 0)], 1: [rK(b2, base, t, 1)], 2: [rV(b2, base, t, 0), rV(b2, base, t, 1)], 3: []}[qi]
            seq = list(pre); ne = nc = 0
            hid = []
            if o.get("hide", True) and kt == TPC-1 and qi == NQ-1:
                hid = [f"v_mov_b32 v{vcur}, v{vnxt}", f"v_add_u32 v{vnxt}, s{sNxt}, v{vl16}", f"s_add_u32 s{sNxt}, s{sNxt}, {CH}",
                       f"s_cmp_ge_u32 s{sNxt}, {NSLOT*CH}", f"s_cselect_b32 s{sT1}, {NSLOT*CH}, 0", f"s_sub_u32 s{sNxt}, s{sNxt}, s{sT1}",
                       f"s_sub_u32 s{sCnt}, s{sCnt}, 1", f"s_cmp_lg_u32 s{sCnt}, 0"]
            if EARLY and EARLY > 1 and qi == NQ-1 and kt == EARLY-2: hid = [f"s_cmp_eq_u32 s{sCnt}, {NCH}"]
            for tk in pat:
                if tk == "Q1": seq.append(mf(S[nb], Kb, Q[nq][0], None))
                elif tk == "Q2": seq.append(mf(S[nb], Kb+4, Q[nq][1], S[nb]))
                elif tk == "P1": seq.append(mf(O[pq], Vb, P[nb], O[pq]))
                elif tk == "P2": seq.append(mf(O[pq], Vb+4, P[nb]+4, O[pq]))
                elif tk == "S": seq.append(sm(pq, nb))
                elif tk in ("s0","s1","s2","s3"):
                    z = int(tk[1]); seq.append(f"v_mfma_f32_4x4x4bf16_1k v[{L[pq]}:{L[pq]+3}], v[{vsel}:{vsel+1}], v[{P[nb]+2*z}:{P[nb]+2*z+1}], v[{L[pq]}:{L[pq]+3}]")
                elif tk == "e":
                    seq.append(e(ne)); ne += 1
                    if hid and ne >= 2: seq.append(hid.pop(0))
                    if HW == 1 and qi == 2 and ne == 16: seq.append("s_waitcnt lgkmcnt(0)")
                    if HW == 2 and qi == 2 and ne == 16: seq.append("s_waitcnt lgkmcnt(2)")
                    if HW == 2 and qi == 0 and ne == 16: seq.append("s_waitcnt lgkmcnt(1)")
                elif tk == "c": seq.append(c(nc)); assert 2*nc+1 < ne; nc += 1
                elif tk == "R": seq += rd
                else: raise Exception(tk)
            assert ne == 16 and nc == 8
            ab = o.get("ablate", "")
            for l in seq:
                if "nosm" in ab and l.startswith("v_smfmac"): continue
                if "nolds" in ab and l.startswith("ds_read"): continue
                if "nocvt" in ab and l.startswith("v_cvt"): continue
                if "noexp" in ab and l.startswith("v_exp"): continue
                if "nopv" in ab and l.startswith(f"v_mfma_f32_32x32x16_bf16 v[{O[pq]}:"): continue
                if "noqk" in ab and l.startswith(f"v_mfma_f32_32x32x16_bf16 v[{S[nb]}:"): continue
                if "nobar" in ab and l.startswith("s_barrier"): l = "s_nop 0"
                if "expsep" in ab and l.startswith("v_exp"):
                    r = l.split()[1].rstrip(","); l = f"v_exp_f32 v{vt2}, {r}"
                A(l)
    if o.get("hide", True): A(f"s_cbranch_scc1 L_{N}_loop")
    else: A(f"""v_mov_b32 v{vcur}, v{vnxt}
    v_add_u32 v{vnxt}, s{sNxt}, v{vl16}
    s_add_u32 s{sNxt}, s{sNxt}, {CH}
    s_cmp_ge_u32 s{sNxt}, {NSLOT*CH}
    s_cselect_b32 s{sT1}, {NSLOT*CH}, 0
    s_sub_u32 s{sNxt}, s{sNxt}, s{sT1}
    s_sub_u32 s{sCnt}, s{sCnt}, 1
    s_cmp_lg_u32 s{sCnt}, 0
    s_cbranch_scc1 L_{N}_loop
    """)
    if EARLY:
        A(f"""s_branch L_{N}_bar2
        L_{N}_bar1:
        s_barrier
        s_branch L_{N}_bar1r
        L_{N}_bar2:""")
    if o.get("stamp"): A("s_memtime s[52:53]\ns_waitcnt lgkmcnt(0)")
    lb = (TPC*NQ-1) & 1
    Vb = V[(TPC-1) % 2]
    A("s_nop 1")
    A(mf(O[NQ-1], Vb, P[lb], O[NQ-1])); A(mf(O[NQ-1], Vb+4, P[lb]+4, O[NQ-1])); A(sm(NQ-1, lb))
    A(f"L_{N}_fin:")
    A("s_nop 7\ns_nop 7")
    vrc, vna, vz = K[0], K[0]+2, K[0]+4
    for r in (vna, vna+1, vz, vz+1): A(f"v_mov_b32 v{r}, 0")
    A(f"s_mov_b32 s{sCnt}, 0")
    for qi in range(NQ):
        if o.get("l4"):
            A(f"v_mov_b32 v{vt0}, v{L[qi]}")
            A(f"v_mov_b32 v{vt1}, v{L[qi]}")
            A("s_nop 1")
            A(f"v_permlane32_swap_b32 v{vt0}, v{vt1}")
            A(f"v_add_f32 v{vt0}, v{vt0}, v{vt1}")
        else:
            A(f"v_add_f32 v{vt0}, v{L[qi]}, v{L[qi]+1}")
        A(f"v_rcp_f32 v{vrc}, v{vt0}")
        A(f"v_mov_b32 v{vt2}, 0x35800000")
        A(f"v_cmp_nle_f32 s[{sT2}:{sT3}], v{vt2}, v{vt0}")
        A(f"v_mov_b32 v{vt2}, 0x71800000")
        A(f"v_cmp_nle_f32 vcc, v{vt0}, v{vt2}")
        A(f"v_mov_b32 v{vrc+1}, v{vrc}")
        for r in range(0, 16, 2):
            A(f"v_pk_mul_f32 v[{O[qi]+r}:{O[qi]+r+1}], v[{O[qi]+r}:{O[qi]+r+1}], v[{vrc}:{vrc+1}]")
        A(f"s_or_b64 vcc, vcc, s[{sT2}:{sT3}]")
        A(f"s_cmp_lg_u64 vcc, 0")
        A(f"s_cselect_b32 s{sT0}, 1, 0")
        A(f"s_or_b32 s{sCnt}, s{sCnt}, s{sT0}")
        if not o.get("latechk", True):
            for r in range(0, 16, 2):
                A(f"v_pk_fma_f32 v[{vna}:{vna+1}], v[{O[qi]+r}:{O[qi]+r+1}], v[{vz}:{vz+1}], v[{vna}:{vna+1}]")
        d = S[qi & 1] + 8*((qi >> 1) & 1)
        for j in range(8):
            A(f"v_cvt_pk_bf16_f32 v{d+j}, v{O[qi]+2*j}, v{O[qi]+2*j+1}")
        A(f"buffer_store_dwordx4 v[{d}:{d+3}], v{vl16}, s[{sW}:{sW+3}], s{sO} offen offset:0 {o.get('stflags','')}")
        A(f"buffer_store_dwordx4 v[{d+4}:{d+7}], v{vl16}, s[{sW}:{sW+3}], s{sO} offen offset:1024 {o.get('stflags','')}")
        A(f"s_add_u32 s{sO}, s{sO}, 65536")
    if o.get("latechk", True):
        for qi in range(NQ):
            for r in range(0, 16, 2):
                A(f"v_pk_fma_f32 v[{vna}:{vna+1}], v[{O[qi]+r}:{O[qi]+r+1}], v[{vz}:{vz+1}], v[{vna}:{vna+1}]")
    A(f"s_sub_u32 s{sO}, s{sO}, {NQ*65536}")
    A(f"""v_add_f32 v{vt3}, v{vna}, v{vna+1}
    v_cmp_u_f32 vcc, v{vt3}, v{vt3}
    s_nop 3
    s_cmp_lg_u64 vcc, 0
    s_cselect_b32 s{sT0}, 1, 0
    s_or_b32 s{sCnt}, s{sCnt}, s{sT0}
    {"s_waitcnt vmcnt(0)" if (FUSED and not WFL) else ""}
    s_cmp_eq_u32 s{sMode}, 1
    s_cbranch_scc1 L_{N}_{"done2" if FUSED else "done"}
    v_mov_b32 v{vt0}, s{sCnt}""")
    if WPRE:
        A(f"""s_lshl_b32 s{sT0}, s{sWave}, 2
        s_add_u32 s{sT0}, s{sT0}, {VOTE_LDS}
        v_mov_b32 v{vt1}, s{sT0}
        ds_write_b32 v{vt1}, v{vt0}
        v_mov_b32 v{vt1}, {VOTE_LDS}
        s_waitcnt lgkmcnt(0)
        s_barrier
        ds_read_b128 v[{K[1]}:{K[1]+3}], v{vt1}
        s_waitcnt lgkmcnt(0)
        v_or3_b32 v{vt0}, v{K[1]}, v{K[1]+1}, v{K[1]+2}
        v_or_b32 v{vt0}, v{vt0}, v{K[1]+3}
        s_nop 1""")
    else:
        A(f"""v_mov_b32 v{vt1}, {FLAG}
        ds_or_b32 v{vt1}, v{vt0}
        s_waitcnt lgkmcnt(0)
        s_barrier
        ds_read_b32 v{vt0}, v{vt1}
        s_waitcnt lgkmcnt(0)""")
    A(f"""v_readfirstlane_b32 s{sT0}, v{vt0}
    s_nop 3
    s_cmp_eq_u32 s{sT0}, 0
    s_cbranch_scc1 L_{N}_done
    """)
    A(f"""s_waitcnt vmcnt(0)
    s_mov_b32 s{sMode}, 1
    s_mov_b32 s{sCnt}, {NCH}
    """)
    init_acc()
    for i in range(NQ): A(f"v_mov_b32 v{vm[i]}, 0xff7fffff")
    A(f"""L_{N}_slow:
    s_barrier
    s_barrier
    v_mov_b32 v{vcur}, v{vl16}
    s_mov_b32 s{sNxt}, {TPC}
    L_{N}_slowt:""")
    for h in range(2): A(rK(0, vcur, 0, h))
    for h in range(2): A(rV(0, vcur, 0, h))
    A(f"v_add_u32 v{vcur}, 2048, v{vcur}")
    A("s_waitcnt lgkmcnt(0)")
    for qi in range(NQ):
        s = S[0]
        A(mf(s, K[0], Q[qi][0], None)); A(mf(s, K[0]+4, Q[qi][1], s))
        A("s_nop 7\ns_nop 3")
        A(f"v_max3_f32 v{vt0}, v{s}, v{s+1}, v{s+2}")
        for j in range(3, 15, 2): A(f"v_max3_f32 v{vt0}, v{vt0}, v{s+j}, v{s+j+1}")
        A(f"v_max_f32 v{vt0}, v{vt0}, v{s+15}")
        A(f"v_mov_b32 v{vt1}, v{vt0}")
        A("s_nop 1")
        A(f"v_permlane32_swap_b32 v{vt0}, v{vt1}")
        A(f"v_max3_f32 v{vt0}, v{vt0}, v{vt1}, v{vm[qi]}")
        A(f"v_sub_f32 v{val}, v{vm[qi]}, v{vt0}")
        A(f"v_exp_f32 v{val}, v{val}")
        A(f"v_mov_b32 v{vm[qi]}, v{vt0}")
        for r in range(16): A(f"v_sub_f32 v{s+r}, v{s+r}, v{vt0}")
        for r in range(16): A(f"v_exp_f32 v{s+r}, v{s+r}")
        for r in range(16): A(f"v_mul_f32 v{O[qi]+r}, v{O[qi]+r}, v{val}")
        for r in range(2): A(f"v_mul_f32 v{L[qi]+r}, v{L[qi]+r}, v{val}")
        for j in range(8): A(f"v_cvt_pk_bf16_f32 v{P[0]+j}, v{s+2*j}, v{s+2*j+1}")
        A("s_nop 1")
        A(mf(O[qi], V[0], P[0], O[qi])); A(mf(O[qi], V[0]+4, P[0]+4, O[qi])); A(sm(qi, 0))
        A("s_nop 7\ns_nop 7")
    A(f"""s_sub_u32 s{sNxt}, s{sNxt}, 1
    s_cmp_lg_u32 s{sNxt}, 0
    s_cbranch_scc1 L_{N}_slowt
    s_sub_u32 s{sCnt}, s{sCnt}, 1
    s_cmp_lg_u32 s{sCnt}, 0
    s_cbranch_scc1 L_{N}_slow
    s_branch L_{N}_fin
    """)
    if FUSED:
        A(f"""L_{N}_done2:
        s_barrier""")
    A(f"""L_{N}_done:""")
    if o.get("stamp"):
        A(f"""s_memtime s[44:45]
        s_memrealtime s[46:47]
        s_waitcnt lgkmcnt(0)
        s_sub_u32 s44, s44, s40
        s_sub_u32 s46, s46, s42
        s_sub_u32 s50, s50, s40
        s_sub_u32 s52, s52, s40
        s_lshr_b32 s50, s50, 2
        s_lshr_b32 s52, s52, 2
        s_lshl_b32 s52, s52, 16
        s_or_b32 s50, s50, s52
        s_lshl_b32 s48, s2, 3
        s_add_u32 s48, s48, s{sWave}
        s_lshl_b32 s48, s48, 4
        s_add_u32 s48, s48, {WS_END+65536}
        v_mov_b32 v{vt0}, s44
        v_mov_b32 v{vt1}, s46
        v_mov_b32 v{vt2}, s42
        v_mov_b32 v{vt3}, s50
        v_mov_b32 v{val}, 0
        buffer_store_dwordx4 v[{vt0}:{vt0+3}], v{val}, s[{sW}:{sW+3}], s48 offen""")
        if o.get("stamp2"):
            A(f"""s_sub_u32 s60, s60, s40
            s_sub_u32 s62, s62, s40
            s_sub_u32 s64, s64, s40
            s_sub_u32 s66, s66, s40
            s_add_u32 s48, s48, 64
            s_nop 1
            v_mov_b32 v{vt0}, s60
            v_mov_b32 v{vt1}, s62
            v_mov_b32 v{vt2}, s64
            v_mov_b32 v{vt3}, s66
            buffer_store_dwordx4 v[{vt0}:{vt0+3}], v{val}, s[{sW}:{sW+3}], s48 offen""")
    if WFL:
        rdn(P[0], vt0)
        flag_srd(A, 92, sWS)
        A(f"""s_lshl_b32 s{sT0}, s29, 4
        s_lshl_b32 s{sT1}, s30, 2
        s_add_u32 s{sT0}, s{sT0}, s{sT1}
        s_add_u32 s{sT0}, s{sT0}, s{sWave}
        s_lshl_b32 s{sT0}, s{sT0}, 5
        s_add_u32 s{sT0}, s{sT0}, s28""")
        if o.get("stamp4"):
            rt_stamp(A, 84); A("s_waitcnt vmcnt(0)"); rt_stamp(A, 85)
        flag_store(A, 92, P[0], vt0, sT0, FLG_A, 1, drain=True)
    elif FUSED:
        A(f"""s_cmp_lg_u32 s{S_WAVE}, 0
        s_cbranch_scc1 L_{N}_end""")
        rdn(S[0], vt0)
        flag_srd(A, 92, sWS)
        A(f"""s_lshl_b32 s{sT0}, s29, 2
        s_add_u32 s{sT0}, s{sT0}, s30
        s_lshl_b32 s{sT0}, s{sT0}, 5
        s_add_u32 s{sT0}, s{sT0}, s28""")
        flag_store(A, 92, S[0], vt0, sT0, FLG_A, 1)
    if FUSED:
        A(f"L_{N}_end:")
        if o.get("stamp3"):
            A(f"""s_lshl_b32 s84, s2, 3
            s_add_u32 s84, s84, s{S_WAVE}
            s_lshl_b32 s84, s84, 4
            s_add_u32 s84, s84, {WS_END + 196608}
            v_mov_b32 v{vt0}, s80
            v_mov_b32 v{vt1}, s81
            v_mov_b32 v{vt2}, s82
            v_mov_b32 v{vt3}, s83
            v_mov_b32 v{vt3+1}, s84
            s_mov_b64 exec, 1
            global_store_dwordx4 v{vt3+1}, v[{vt0}:{vt0+3}], s[{sWS}:{sWS+1}]
            s_mov_b64 exec, -1""")
        return A.text(), dict(name=name, nv=nv, lds=NSLOT*CH + 64)
    A(f"""L_{N}_end:
    s_endpgm""")
    txt = A.text() + kernel_desc(name, nv)
    return txt, dict(name=name, grid=256, block=512, lds=NSLOT*CH + 64, nv=nv)

if __name__ == "__main__":
    import hz
    from build import build
    t, i = gen_attn2(opts=dict(stamp=True))
    print(i)
    ps = hz.check_hazards(t)
    for p in ps[:30]: print(p)
    ws = hz.check_waits(t, i["name"], max_back=1)
    for p in ws[:30]: print(p)
    print(len(ps), len(ws))
    build([(t, i)], "attn2_only.s")
```

```python
from kgen import *
import struct, math
def f2u(x): return struct.unpack("<I", struct.pack("<f", x))[0]
CSC = f2u(math.log2(math.e) / math.sqrt(32.0))

def gen_proj(name="proj_kernel", opts=None):
    o = opts or {}
    A = Asm()
    SLOT = 51200
    XOFF, WOFF, EOFF = 0, 16384, 49152
    NST = 16
    va = VAlloc(0)
    vtid = va.get("tid"); vt0 = va.get("t0"); vt1 = va.get("t1"); vt2 = va.get("t2"); vt3 = va.get("t3"); vt4 = va.get("t4")
    vXA = [va.get("xa0"), va.get("xa1")]
    vWA = [va.get(f"wa{i}") for i in range(4)]
    vXE = [va.get("xe0"), va.get("xe1")]
    vWE = [va.get("we0"), va.get("we1")]
    vst = va.get("st")
    vdum = va.get("dummy")
    va_pf = va.get("pf", 2, 2)
    va_pfinc = va.get("pfinc")
    vstamp = va.get("stamp")
    vtag = va.get("tag", 4, 2) if (opts or {}).get("fused") else None
    vtagr = va.get("tagr", 2, 2) if (opts or {}).get("fused") else None
    NSP = 3
    acc = [[va.get(f"acc{t}{c}", 4, 4) for c in range(4)] for t in range(8)]
    acce = [va.get(f"acce{i}", 4, 4) for i in range(2)]
    xf = [va.get(f"xf{t}", 4, 4) for t in range(8)]
    xs = [va.get(f"xs{t}", 4, 4) for t in range(NSP)]
    wf = [[va.get(f"wf{b}{c}", 4, 4) for c in range(4)] for b in range(2)]
    xe = [va.get(f"xef{i}", 4, 4) for i in range(2)]
    we = va.get("wef", 4, 4)
    nv = va.next
    vLX = [xf[0] + i for i in range(4)]
    vLW = [xf[1] + i for i in range(4)] + [xf[2] + i for i in range(4)]
    vLE = xf[3]
    sX, sWd, sE, sWS = 8, 12, 16, 20
    sWave, sXcd, sRB, sCB, sType, sLdw = 24, 25, 26, 27, 28, 29
    sT0, sT1, sT2, sT3 = 30, 31, 32, 33
    sCnt, sDelta, sSlot, sXo, sWo, sEo, sM0x, sM0w, sM0e, sOut, sOutE, sCneg, sWstep = 34, 35, 36, 37, 38, 39, 40, 41, 42, 43, 44, 45, 46
    sC = 56
    sP = 48
    N = name
    FUSED = o.get("fused")
    A.raw(kernel_head(o.get("kname", name)).rstrip("\n"))
    if o.get("stamp"): A("s_memtime s[60:61]\ns_memrealtime s[62:63]")
    A(f"""s_cmp_ge_u32 s2, 256
    s_cbranch_scc1 {"L_fused_end" if FUSED else f"L_{N}_end"}
    s_and_b32 s{sXcd}, s2, 7
    s_lshr_b32 s{sT0}, s2, 3
    s_and_b32 s{sRB}, s{sT0}, 7
    s_lshr_b32 s{sCB}, s{sT0}, 3
    s_load_dwordx2 s[{sP+6}:{sP+7}], s[0:1], {KA_WS}
    {f"s_load_dwordx2 s[98:99], s[0:1], {KA_DBG}" if FUSED else ""}
    v_lshrrev_b32 v{vt0}, 6, v{vtid}
    v_and_b32 v{vtid}, 63, v{vtid}
    v_readfirstlane_b32 s{sWave}, v{vt0}
    s_cmp_lt_u32 s{sXcd}, 2
    s_cbranch_scc1 L_{N}_typeA
    s_load_dwordx2 s[{sP}:{sP+1}], s[0:1], {KA_BX}
    s_load_dwordx2 s[{sP+2}:{sP+3}], s[0:1], {KA_BWQKV}
    s_load_dwordx2 s[{sP+4}:{sP+5}], s[0:1], {KA_BWQKV}
    s_sub_u32 s{sT0}, s{sXcd}, 2
    s_and_b32 s{sT1}, s{sT0}, 1
    s_lshl_b32 s{sT1}, s{sT1}, 3
    s_add_u32 s{sRB}, s{sRB}, s{sT1}
    s_lshr_b32 s{sType}, s{sT0}, 1          ; 0 Q, 1 K, 2 V
    s_mov_b32 s{sLdw}, 6144
    s_lshl_b32 s{sT2}, s{sType}, 11
    s_lshl_b32 s{sT3}, s{sCB}, 9
    s_add_u32 s{sT2}, s{sT2}, s{sT3}
    s_mov_b32 s{sT3}, {1024*6144}
    s_mov_b32 s{sEo}, 0
    s_branch L_{N}_typed
    L_{N}_typeA:
    s_load_dwordx2 s[{sP}:{sP+1}], s[0:1], {KA_AX}
    s_load_dwordx2 s[{sP+2}:{sP+3}], s[0:1], {KA_AWQ}
    s_cmp_lt_u32 s{sCB}, 2
    s_cbranch_scc1 L_{N}_typeAK
    s_load_dwordx2 s[{sP+4}:{sP+5}], s[0:1], {KA_AWV}
    s_mov_b32 s{sType}, 4
    s_branch L_{N}_typeA2
    L_{N}_typeAK:
    s_load_dwordx2 s[{sP+4}:{sP+5}], s[0:1], {KA_AWK}
    s_mov_b32 s{sType}, 3
    L_{N}_typeA2:
    s_lshl_b32 s{sT1}, s{sXcd}, 3
    s_add_u32 s{sRB}, s{sRB}, s{sT1}
    s_mov_b32 s{sLdw}, 2048
    s_lshl_b32 s{sT2}, s{sCB}, 9
    s_mov_b32 s{sT3}, {1024*2048}
    s_and_b32 s{sEo}, s{sCB}, 1
    s_lshl_b32 s{sEo}, s{sEo}, 5
    L_{N}_typed:
    s_mov_b32 s47, s{sT2}
    s_mov_b32 s58, s{sT3}
    """)
    LATE = o.get("latesrd", True)
    def srd_ld():
        A(f"""; SRD X: base + rowblock*128*2048, 256KB
        s_lshl_b32 s59, s{sRB}, 18
        s_add_u32 s{sX}, s{sP}, s59
        s_addc_u32 s{sX+1}, s{sP+1}, 0
        s_and_b32 s{sX+1}, s{sX+1}, 0xffff
        s_mov_b32 s{sX+2}, 262144
        s_mov_b32 s{sX+3}, 0x20000
        s_add_u32 s{sWd}, s{sP+2}, s47
        s_addc_u32 s{sWd+1}, s{sP+3}, 0
        s_and_b32 s{sWd+1}, s{sWd+1}, 0xffff
        s_sub_u32 s{sWd+2}, s58, s47
        s_mov_b32 s{sWd+3}, 0x20000
        ; SRD E
        s_mov_b32 s{sE}, s{sP+4}
        s_and_b32 s{sE+1}, s{sP+5}, 0xffff
        s_mov_b32 s{sE+2}, 65536
        s_mov_b32 s{sE+3}, 0x20000""")
    def srd_ws():
        A(f"""; SRD WS
        s_mov_b32 s{sWS}, s{sP+6}
        s_and_b32 s{sWS+1}, s{sP+7}, 0xffff
        s_mov_b32 s{sWS+2}, {WS_END + (262144 if o.get('stamp') else 0)}
        s_mov_b32 s{sWS+3}, 0x20000""")
    if not LATE:
        A("s_waitcnt lgkmcnt(0)")
        srd_ld(); srd_ws()
    if o.get("stamp"): A("s_memtime s[84:85]" + ("" if LATE else "\ns_waitcnt lgkmcnt(0)"))
    if FUSED: A(f"s_mov_b32 s{S_WAVE}, s{sWave}")
    A(f"""s_cmp_lt_u32 s{sWave}, 4
    s_cbranch_scc1 L_{N}_compute""")
    l = vtid
    A(f"L_{N}_loader:")
    LX0, LX1 = vLX[0], vLX[1]
    A(f"""s_sub_u32 s{sWave}, s{sWave}, 4
    v_lshrrev_b32 v{vt0}, 3, v{l}
    v_lshrrev_b32 v{vt1}, 4, v{l}
    v_and_b32 v{vt2}, 7, v{l}
    v_xor_b32 v{vt1}, v{vt1}, v{vt2}
    s_lshl_b32 s{sT0}, s{sWave}, 16
    v_lshlrev_b32 v{vt1}, 4, v{vt1}
    v_lshl_add_u32 v{LX0}, v{vt0}, 11, v{vt1}
    v_add_u32 v{LX0}, s{sT0}, v{LX0}
    v_xor_b32 v{LX1}, 64, v{LX0}
    s_mov_b32 s{sXo}, 0
    s_lshl_b32 s{sM0x}, s{sWave}, 12
    s_mov_b32 s{sSlot}, 0
    v_lshrrev_b32 v{vt0}, 5, v{l}
    v_and_b32 v{vt2}, 31, v{l}
    v_lshlrev_b32 v{vt1}, 1, v{vt0}
    v_xor_b32 v{vt1}, v{vt1}, v{vt2}
    s_lshl_b32 s{sT0}, s{sWave}, 4
    v_add_u32 v{vt0}, s{sT0}, v{vt0}
    v_mul_lo_u32 v{vt0}, v{vt0}, s{sLdw}
    v_lshl_add_u32 v{vLW[0]}, v{vt1}, 4, v{vt0}
    v_xor_b32 v{vLW[1]}, 64, v{vLW[0]}
    v_xor_b32 v{vLW[2]}, 0x80, v{vLW[0]}
    v_xor_b32 v{vLW[3]}, 0xc0, v{vLW[0]}
    s_mov_b32 s{sWo}, 0
    s_lshl_b32 s{sWstep}, s{sLdw}, 6
    s_lshl_b32 s{sT3}, s{sLdw}, 1
    s_lshl_b32 s{sM0w}, s{sWave}, 13
    s_add_u32 s{sM0w}, s{sM0w}, {WOFF}
    s_cmp_ge_u32 s{sType}, 3
    s_cbranch_scc0 L_{N}_ldB
    s_lshl_b32 s{sT0}, s{sWave}, 4
    v_lshrrev_b32 v{vt0}, 1, v{l}
    v_and_b32 v{vt0}, 15, v{vt0}
    v_add_u32 v{vt0}, s{sT0}, v{vt0}           ; position p
    v_lshrrev_b32 v{vt1}, 1, v{vt0}
    v_and_b32 v{vt1}, 4, v{vt1}
    v_xor_b32 v{vt0}, v{vt0}, v{vt1}
    v_and_b32 v{vt1}, 1, v{l}
    s_cmp_eq_u32 s{sType}, 3
    s_cselect_b32 s{sT0}, 5, 4
    v_lshlrev_b32 v{vt1}, s{sT0}, v{vt1}
    s_cselect_b32 s{sT0}, 1, 0
    s_lshr_b32 s{sEo}, s{sEo}, s{sT0}
    v_lshl_add_u32 v{vLE}, v{vt0}, 6, v{vt1}
    v_add_u32 v{vLE}, s{sEo}, v{vLE}
    s_mov_b32 s{sEo}, 0
    s_lshl_b32 s{sM0e}, s{sWave}, 9
    s_add_u32 s{sM0e}, s{sM0e}, {EOFF}
    s_branch L_{N}_ldA""")
    def dma(extra):
        A(f"s_add_u32 m0, s{sSlot}, s{sM0x}")
        for i in range(4):
            if i: A("s_add_u32 m0, m0, 1024")
            A(f"s_add_u32 s{sT0}, s{sXo}, {i*16384}")
            A(f"buffer_load_dwordx4 v{[LX0,LX1][(i ^ (i>>1)) & 1]}, s[{sX}:{sX+3}], s{sT0} offen {o.get('xfl','')} lds")
        A(f"s_add_u32 m0, s{sSlot}, s{sM0w}")
        A(f"s_mov_b32 s{sT0}, s{sWo}")
        for i in range(8):
            if i:
                A("s_add_u32 m0, m0, 1024")
                A(f"s_add_u32 s{sT0}, s{sT0}, s{sT3}")
            A(f"buffer_load_dwordx4 v{vLW[(i&1) + 2*(i>>2)]}, s[{sWd}:{sWd+3}], s{sT0} offen {o.get('wfl','')} lds")
        if extra:
            A(f"s_add_u32 m0, s{sSlot}, s{sM0e}")
            A("s_mov_b32 exec_hi, 0")
            A(f"buffer_load_dwordx4 v{vLE}, s[{sE}:{sE+3}], s{sEo} offen lds")
            A("s_mov_b32 exec_hi, -1")
            A(f"s_add_u32 s{sEo}, s{sEo}, 4096")
        A(f"""s_add_u32 s{sXo}, s{sXo}, 128
        s_add_u32 s{sWo}, s{sWo}, s{sWstep}
        s_add_u32 s{sSlot}, s{sSlot}, {SLOT}
        s_cmp_eq_u32 s{sSlot}, {3*SLOT}
        s_cselect_b32 s{sSlot}, 0, s{sSlot}""")
    for tag, extra in (("ldB", False), ("ldA", True)):
        PER = 13 if extra else 12
        A(f"L_{N}_{tag}:")
        if LATE:
            A("s_waitcnt lgkmcnt(0)")
            srd_ld()
            if o.get("stamp"): srd_ws()
        pre = o.get("predmaA" if extra else "predmaB", o.get("predma", 1))
        if o.get("pfwait"): A("s_barrier")
        if o.get("stamp"): A("s_memtime s[86:87]")
        for _ in range(pre): dma(extra)
        if o.get("stamp"): A("s_memtime s[88:89]")
        A(f"s_waitcnt vmcnt({(pre-1)*PER})")
        if o.get("stamp"):
            A(f"""s_memtime s[90:91]
            s_waitcnt lgkmcnt(0)
            s_sub_u32 s84, s84, s60
            s_sub_u32 s86, s86, s60
            s_sub_u32 s88, s88, s60
            s_sub_u32 s90, s90, s60
            v_mov_b32 v{acc[0][0]}, s84
            v_mov_b32 v{acc[0][0]+1}, s86
            v_mov_b32 v{acc[0][0]+2}, s88
            v_mov_b32 v{acc[0][0]+3}, s90
            v_mov_b32 v{vt4}, 0
            s_lshl_b32 s68, s2, 3
            s_add_u32 s68, s68, s{sWave}
            s_add_u32 s68, s68, 4
            s_lshl_b32 s68, s68, 4
            s_add_u32 s68, s68, {WS_END}""")
        A("s_barrier")
        if o.get("stamp"): A(f"buffer_store_dwordx4 v[{acc[0][0]}:{acc[0][0]+3}], v{vt4}, s[{sWS}:{sWS+3}], s68 offen")
        for _ in range(3-pre): dma(extra)
        A(f"s_mov_b32 s{sCnt}, {NST-3}")
        A(f"L_{N}_{tag}_loop:")
        A(f"s_waitcnt vmcnt({PER})\ns_barrier")
        dma(extra)
        A(f"""s_sub_u32 s{sCnt}, s{sCnt}, 1
        s_cmp_lg_u32 s{sCnt}, 0
        s_cbranch_scc1 L_{N}_{tag}_loop
        s_waitcnt vmcnt({PER})
        s_barrier
        s_waitcnt vmcnt(0)
        s_barrier
        s_branch L_{N}_lend""")
    A(f"L_{N}_compute:")
    l = vtid
    if LATE:
        A("s_waitcnt lgkmcnt(0)")
        srd_ws()
    if FUSED and o.get("nonce", "store") == "atomic":
        A(f"""s_cmp_lg_u32 s{sWave}, 1
        s_cbranch_scc1 L_{N}_notag
        s_memrealtime s[96:97]
        s_waitcnt lgkmcnt(0)
        s_or_b32 s96, s96, 1
        v_mov_b32 v{vtag}, s96
        v_mov_b32 v{vtag+1}, s97
        v_mov_b32 v{vtag+2}, 0
        v_mov_b32 v{vtag+3}, 0
        v_mov_b32 v{vt0}, 0
        s_mov_b64 exec, 1
        global_atomic_cmpswap_x2 v[{vtagr}:{vtagr+1}], v{vt0}, v[{vtag}:{vtag+3}], s[98:99] sc0
        s_mov_b64 exec, -1
        L_{N}_notag:""")
    elif FUSED:
        A(f"""v_mov_b32 v{vtag+2}, 0
        s_cmp_lg_u32 s{sWave}, 1
        s_cbranch_scc1 L_{N}_notag
        s_cmp_lg_u32 s2, 0
        s_cbranch_scc1 L_{N}_notag
        s_memrealtime s[96:97]
        s_waitcnt lgkmcnt(0)
        s_or_b32 s96, s96, 1
        v_mov_b32 v{vtag}, s96
        v_mov_b32 v{vtag+1}, s97
        s_mov_b64 exec, 1
        global_store_dwordx2 v{vtag+2}, v[{vtag}:{vtag+1}], s[98:99] sc0 sc1
        s_mov_b64 exec, -1
        L_{N}_notag:""")
    PF = o.get("prefetch", True)
    PFD = 4
    sPfN = 79
    vpa = va_pf; vpinc = va_pfinc
    if PF:
        A(f"""s_lshr_b32 s{sT1}, s2, 3              ; j
        s_lshr_b32 s{sT0}, s{sRB}, 3
        s_lshl_b32 s{sT0}, s{sT0}, 21
        s_add_u32 s72, s{sP}, s{sT0}
        s_addc_u32 s73, s{sP+1}, 0
        s_lshl_b32 s{sT0}, s{sType}, 11
        s_cmp_ge_u32 s{sType}, 3
        s_cselect_b32 s{sT0}, 0, s{sT0}
        s_add_u32 s74, s{sP+2}, s{sT0}
        s_addc_u32 s75, s{sP+3}, 0
        s_lshl_b32 s{sT2}, s{sT1}, 5
        v_and_b32 v{vt0}, 31, v{l}
        v_add_u32 v{vt0}, s{sT2}, v{vt0}
        v_lshlrev_b32 v{vt0}, 11, v{vt0}
        s_lshl_b32 s{sT2}, s{sT1}, 1
        v_bfe_u32 v{vt1}, v{l}, 4, 1
        v_add_u32 v{vt1}, s{sT2}, v{vt1}
        v_mul_lo_u32 v{vt1}, v{vt1}, s{sLdw}
        v_and_b32 v{vt2}, 15, v{l}
        v_lshl_add_u32 v{vt1}, v{vt2}, 7, v{vt1}
        s_lshl_b32 s{sT2}, s{sLdw}, 6
        v_mov_b32 v{vpinc}, 0x80
        v_mov_b32 v{vt2}, s{sT2}
        v_mov_b32 v{vt3}, s72
        v_mov_b32 v{vt4}, s73
        v_mov_b32 v{vpa}, s74
        v_mov_b32 v{vpa+1}, s75
        v_cmp_gt_u32 vcc, 32, v{l}
        s_nop 1
        v_cndmask_b32 v{vpinc}, v{vt2}, v{vpinc}, vcc
        v_cndmask_b32 v{vt0}, v{vt1}, v{vt0}, vcc
        v_cndmask_b32 v{vpa}, v{vpa}, v{vt3}, vcc
        v_cndmask_b32 v{vpa+1}, v{vpa+1}, v{vt4}, vcc
        v_mul_lo_u32 v{vt1}, v{vpinc}, s{sWave}
        v_add_u32 v{vt0}, v{vt0}, v{vt1}             ; stage = wave
        v_add_co_u32 v{vpa}, vcc, v{vpa}, v{vt0}
        v_lshlrev_b32 v{vpinc}, 2, v{vpinc}          ; each wave then steps 4 stages
        s_mov_b32 s{sPfN}, 3
        v_addc_co_u32 v{vpa+1}, vcc, 0, v{vpa+1}, vcc
        s_mov_b32 s78, s{sWave}""")
    PM = o.get("pfmask")
    if PF and PM:
        mk = {"x": (0xffffffff, 0), "w": (0, 0xffffffff), "xw": (0xffffffff, 0xffffffff)}
        A(f"""s_cmp_ge_u32 s{sType}, 3
        s_cselect_b32 s76, {mk[PM[0]][0]}, {mk[PM[1]][0]}
        s_cselect_b32 s77, {mk[PM[0]][1]}, {mk[PM[1]][1]}""".replace(str(0xffffffff), "-1"))
    def pf_one():
        if PM: return f"""s_mov_b64 exec, s[76:77]
        global_load_dword v{vdum}, v[{vpa}:{vpa+1}], off {o.get('pfl','')}
        s_mov_b64 exec, -1
        v_add_co_u32 v{vpa}, vcc, v{vpa}, v{vpinc}
        s_nop 1
        v_addc_co_u32 v{vpa+1}, vcc, 0, v{vpa+1}, vcc"""
        return f"""global_load_dword v{vdum}, v[{vpa}:{vpa+1}], off {o.get('pfl','')}
        v_add_co_u32 v{vpa}, vcc, v{vpa}, v{vpinc}
        s_nop 1
        v_addc_co_u32 v{vpa+1}, vcc, 0, v{vpa+1}, vcc"""
    def pf_more():
        m = o.get("pfd8")
        nA = o.get("pfnA", 2 if m in ("A", "all") else 1); nB = o.get("pfnB", 2 if m in ("B", "all") else 1)
        if not PF or (nA <= 1 and nB <= 1): return
        A(f"s_cmp_ge_u32 s{sType}, 3\ns_cbranch_scc1 L_{N}_pfa")
        for _ in range(nB - 1): A(pf_one())
        A(f"s_mov_b32 s{sPfN}, {4 - nB}\ns_branch L_{N}_pfz\nL_{N}_pfa:")
        for _ in range(nA - 1): A(pf_one())
        A(f"s_mov_b32 s{sPfN}, {4 - nA}\nL_{N}_pfz:")
    def pf_first():
        if PF and o.get("pfinit") in ("B", "Bonly"):
            A(f"s_cmp_ge_u32 s{sType}, 3\ns_cbranch_scc1 L_{N}_pfia")
            A(pf_one())
            A(f"""s_branch L_{N}_pfiz
            L_{N}_pfia:
            v_add_co_u32 v{vpa}, vcc, v{vpa}, v{vpinc}
            s_nop 1
            v_addc_co_u32 v{vpa+1}, vcc, 0, v{vpa+1}, vcc
            {f"s_mov_b32 s{sPfN}, 0" if o.get("pfinit") == "Bonly" else ""}
            L_{N}_pfiz:""")
        elif PF and o.get("pfinit") in ("A", "Aonly"):
            A(f"s_cmp_lt_u32 s{sType}, 3\ns_cbranch_scc1 L_{N}_pfia")
            A(pf_one())
            A(f"""s_branch L_{N}_pfiz
            L_{N}_pfia:
            v_add_co_u32 v{vpa}, vcc, v{vpa}, v{vpinc}
            s_nop 1
            v_addc_co_u32 v{vpa+1}, vcc, 0, v{vpa+1}, vcc
            {f"s_mov_b32 s{sPfN}, 0" if o.get("pfinit") == "Aonly" else ""}
            L_{N}_pfiz:""")
        elif PF and o.get("pfinit", True): A(pf_one())
        elif PF: A(f"""v_add_co_u32 v{vpa}, vcc, v{vpa}, v{vpinc}
        s_nop 1
        v_addc_co_u32 v{vpa+1}, vcc, 0, v{vpa+1}, vcc""")
    if o.get("pfpos", "early") == "early": pf_first()
    if o.get("tlb", True) and not FUSED:
        A(f"""s_cmp_lg_u32 s{sWave}, 2
        s_cbranch_scc1 L_{N}_notlb
        s_load_dwordx2 s[74:75], s[0:1], {KA_OUT}
        v_min_u32 v{vt0}, 12, v{l}
        v_lshlrev_b32 v{vt0}, 21, v{vt0}
        global_load_dword v{vdum}, v{vt0}, s[{sP+6}:{sP+7}]
        v_and_b32 v{vt0}, 3, v{l}
        v_lshlrev_b32 v{vt0}, 21, v{vt0}
        s_waitcnt lgkmcnt(0)
        global_load_dword v{vdum}, v{vt0}, s[74:75]
        L_{N}_notlb:""")
    if FUSED and o.get("tlbout", False):
        A(f"""s_cmp_lg_u32 s{sWave}, 2
        s_cbranch_scc1 L_{N}_notlb
        s_load_dwordx2 s[74:75], s[0:1], {KA_OUT}
        v_and_b32 v{vt0}, 3, v{l}
        v_lshlrev_b32 v{vt0}, 21, v{vt0}
        s_waitcnt lgkmcnt(0)
        global_load_dword v{vdum}, v{vt0}, s[74:75]
        L_{N}_notlb:""")
    if o.get("codepf", True):
        A(f"s_lshr_b32 s{sT0}, s2, 3\ns_and_b32 s{sT0}, s{sT0}, {7 if o.get('wpre') else 3}\ns_cmp_lg_u32 s{sWave}, 3\ns_cbranch_scc1 L_{N}_nocp")
        code_prefetch(A, N, o.get("kname", name), 0, sT0, vt0, vdum, l, 74)
        A(f"L_{N}_nocp:")
    def pf_inloop(tag):
        return [f"""s_cmp_lg_u32 s78, 0
        s_cbranch_scc1 L_{N}_{tag}_pfs
        s_mov_b32 s78, 4
        s_cmp_eq_u32 s{sPfN}, 0
        s_cbranch_scc1 L_{N}_{tag}_pfs
        s_sub_u32 s{sPfN}, s{sPfN}, 1
        {pf_one()}
        L_{N}_{tag}_pfs:
        s_sub_u32 s78, s78, 1"""] if PF else []
    A(f"""v_and_b32 v{vt0}, 15, v{l}          ; n
    v_lshrrev_b32 v{vt1}, 4, v{l}         ; g
    ; ---- store lane offset: (g>>1)*1024 + (g&1)*512 + n*16
    v_lshlrev_b32 v{vst}, 9, v{vt1}
    v_lshl_add_u32 v{vst}, v{vt0}, 4, v{vst}
    v_lshrrev_b32 v{vt2}, 1, v{vt0}
    v_xor_b32 v{vt2}, v{vt2}, v{vt1}
    v_lshlrev_b32 v{vt2}, 4, v{vt2}
    v_lshl_add_u32 v{vt3}, v{vt0}, 7, v{vt2}      ; n*128 + swz*16  ( == (n>>3)*1024 + (n&7)*128 + ..)
    v_and_b32 v{vt2}, 7, v{vt0}
    v_lshrrev_b32 v{vt4}, 1, v{vt2}
    v_xor_b32 v{vt4}, v{vt4}, v{vt1}
    v_lshlrev_b32 v{vt2}, 7, v{vt2}
    v_lshrrev_b32 v{vst+0 if False else vXE[1]}, 3, v{vt0}     ; n>>3
    v_lshlrev_b32 v{vXE[0]}, 2, v{vXE[1]}
    v_xor_b32 v{vt4}, v{vt4}, v{vXE[0]}
    v_lshl_add_u32 v{vt2}, v{vt4}, 4, v{vt2}
    v_lshl_add_u32 v{vt4}, v{vXE[1]}, 11, v{vt2}
    s_lshl_b32 s{sT0}, s{sWave}, 12
    s_cmp_eq_u32 s{sType}, 2
    s_cbranch_scc1 L_{N}_xperm
    v_mov_b32 v{vXA[0]}, v{vt3}
    s_branch L_{N}_xdone
    L_{N}_xperm:
    v_mov_b32 v{vXA[0]}, v{vt4}
    L_{N}_xdone:
    v_xor_b32 v{vXA[1]}, 64, v{vXA[0]}
    s_cmp_eq_u32 s{sType}, 4
    s_cbranch_scc1 L_{N}_eperm
    v_add_u32 v{vXE[0]}, s{sT0}, v{vt3}
    s_branch L_{N}_edone
    L_{N}_eperm:
    v_add_u32 v{vXE[0]}, s{sT0}, v{vt4}
    L_{N}_edone:
    v_xor_b32 v{vXE[1]}, 64, v{vXE[0]}
    v_lshrrev_b32 v{vt2}, 2, v{vt0}               ; i>>2
    v_and_b32 v{vt3}, 1, v{vt1}
    v_lshl_or_b32 v{vt3}, v{vt3}, 2, v{vt2}
    v_lshlrev_b32 v{vt3}, 1, v{vt3}               ; f
    v_lshl_add_u32 v{vt2}, v{vt1}, 3, v{vt2}      ; row
    v_lshlrev_b32 v{vt4}, 9, v{vt2}               ; row*512
    v_and_b32 v{vWE[1]}, 1, v{vt0}
    v_lshl_add_u32 v{vt4}, v{vWE[1]}, 3, v{vt4}   ; + 8*(i&1)
    v_add_u32 v{vt4}, {WOFF}, v{vt4}
    v_bfe_u32 v{vWE[1]}, v{vt0}, 1, 1             ; (i&3)>>1
    s_lshl_b32 s{sT1}, s{sWave}, 3
    v_add_u32 v{vWE[1]}, s{sT1}, v{vWE[1]}
    """)
    for ct in range(4):
        A(f"""v_add_u32 v{vWA[ct]}, {2*ct}, v{vWE[1]}
        v_xor_b32 v{vWA[ct]}, v{vWA[ct]}, v{vt3}
        v_lshl_add_u32 v{vWA[ct]}, v{vWA[ct]}, 4, v{vt4}""")
    A(f"""; ---- WE address: EOFF + row*32 + (i&3)*8 + ((q ^ (g&1))*128)
    v_lshlrev_b32 v{vt4}, 5, v{vt2}
    v_and_b32 v{vt2}, 3, v{vt0}
    v_lshl_add_u32 v{vt4}, v{vt2}, 3, v{vt4}
    v_add_u32 v{vt4}, {EOFF}, v{vt4}
    v_and_b32 v{vt2}, 1, v{vt1}
    v_lshl_add_u32 v{vWE[0]}, v{vt2}, 7, v{vt4}
    v_xor_b32 v{vt2}, 1, v{vt2}
    v_lshl_add_u32 v{vWE[1]}, v{vt2}, 7, v{vt4}
    s_mov_b32 s{sC}, {CSC}
    s_mov_b32 s{sCneg}, {(-2*SLOT) & 0xffffffff}
    """)
    for t in range(8):
        for c in range(4):
            for r in range(4): A(f"v_mov_b32 v{acc[t][c]+r}, 0")
    for i in range(2):
        for r in range(4): A(f"v_mov_b32 v{acce[i]+r}, 0")
    A(f"s_mov_b32 s{sSlot}, 0")
    if o.get("pfpos", "early") == "late": pf_first()
    pf_more()
    if o.get("pfwait"): A("s_waitcnt vmcnt(0)\ns_barrier")
    NAT = o.get("nonceat", "end")
    if FUSED and NAT == "spread":
        A(f"""s_lshr_b32 s77, s2, 3
        s_and_b32 s77, s77, 7
        s_add_u32 s77, s77, 3
        s_cmp_eq_u32 s{S_WAVE}, 0
        s_cselect_b32 s77, s77, 0""")
    A("s_barrier")
    if FUSED and NAT == "p0":
        A(f"""s_cmp_lg_u32 s{S_WAVE}, 0
        s_cbranch_scc1 L_{N}_notag0
        global_load_dwordx2 v[{vtagr}:{vtagr+1}], v{vtag+2}, s[98:99] sc0 sc1
        L_{N}_notag0:""")

    def xreg(tt, par):
        sp = tt - (8 - NSP)
        if sp >= 0 and par == 1: return xs[sp]
        return xf[tt]
    def rdX(tt, ks, par, perm):
        if perm: T, ab = tt >> 1, tt & 1; a = vXA[(ks ^ ab) & 1]; off = XOFF + T*4096 + ab*1024
        else: a = vXA[(ks ^ tt) & 1]; off = XOFF + tt*2048
        r = xreg(tt, par)
        return f"ds_read_b128 v[{r}:{r+3}], v{a} offset:{off}"
    def rdW(ct, q, ks, par):
        r = wf[par][ct] + 2*q
        return f"ds_read_b64_tr_b16 v[{r}:{r+1}], v{vWA[ct]} offset:{ks*16384 + q*2048}"
    def rdXE(i, ks, perm):
        a = vXE[(ks ^ i) & 1]; off = XOFF + (i*1024 if perm else i*2048)
        return f"ds_read_b128 v[{xe[i]}:{xe[i]+3}], v{a} offset:{off}"
    def rdWE(q, ks):
        return f"ds_read_b64_tr_b16 v[{we+2*q}:{we+2*q+1}], v{vWE[q]} offset:{ks*1024}"
    def mf(d, a, b): return f"v_mfma_f32_16x16x32_bf16 v[{d}:{d+3}], v[{a}:{a+3}], v[{b}:{b+3}], v[{d}:{d+3}]"

    def step(ks, vtype, extra, nxt, inter=(), early=()):
        par = ks; npar = ks ^ 1; nks = ks ^ 1
        after = {}
        def put(m, s): after.setdefault(m, []).append(s)
        seq = []
        if extra:
            for i in range(2):
                seq.append(mf(acce[i], we, xe[i]) if extra == "K" else mf(acce[i], xe[i], we))
        ne = len(seq)
        for tt in range(8):
            for ct in range(4):
                x = xreg(tt, par); w = wf[par][ct]
                seq.append(mf(acc[tt][ct], x, w) if vtype else mf(acc[tt][ct], w, x))
        if nxt:
            m = 0
            if extra:
                put(1, rdWE(0, nks)); put(1, rdWE(1, nks)); put(2, rdXE(0, nks, extra == "V")); put(3, rdXE(1, nks, extra == "V"))
            for k in range(8): put(ne + k, rdW(k >> 1, k & 1, nks, npar))
            put(ne+3, rdX(0, nks, npar, vtype)); put(ne+7, rdX(1, nks, npar, vtype))
            put(ne+8, rdX(5, nks, npar, vtype)); put(ne+9, rdX(6, nks, npar, vtype)); put(ne+10, rdX(7, nks, npar, vtype))
            put(ne+11, rdX(2, nks, npar, vtype)); put(ne+15, rdX(3, nks, npar, vtype)); put(ne+19, rdX(4, nks, npar, vtype))
        inter = list(inter); early = list(early)
        for m, s in enumerate(seq):
            A(s)
            for x in after.get(m, []): A(x)
            if early and m >= ne + 12 and len(after.get(m, [])) == 0: A(early.pop(0))
            if inter and m >= ne + 20:
                assert not early
                A(inter.pop(0))
        for x in inter: A(x)

    T2 = o.get("t2", False)
    def t2on(tag): return bool(T2) and (T2 is True or (T2 == "A" and tag in ("av", "ak")) or (T2 == "B" and tag not in ("av", "ak")))
    def compute(tag, vtype, extra):
        for ct in range(4):
            for q in range(2): A(rdW(ct, q, 0, 0))
        A("s_waitcnt lgkmcnt(4)")
        for tt in range(8): A(rdX(tt, 0, 0, vtype))
        if extra:
            A("s_waitcnt lgkmcnt(8)")
            for q in range(2): A(rdWE(q, 0))
            for i in range(2): A(rdXE(i, 0, extra == "V"))
        A(f"s_mov_b32 s{sCnt}, {NST-1}")
        if o.get("stamp"): A("s_memtime s[70:71]")
        A(f".p2align 6\nL_{N}_{tag}_loop:")
        A("s_waitcnt lgkmcnt(0)")
        rot = [f"s_add_u32 s{sSlot}, s{sSlot}, 1", f"s_cmp_eq_u32 s{sSlot}, 3",
               f"s_cselect_b32 s{sDelta}, s{sCneg}, {SLOT}", f"s_cselect_b32 s{sSlot}, 0, s{sSlot}"]
        if not o.get("hide", True):
            for x in rot: A(x)
            rot = []
        regs = vXA + vWA + ((vXE + vWE) if extra else [])
        nl = [f"""s_cmp_lg_u32 s{sCnt}, s77
        s_cbranch_scc1 L_{N}_{tag}_non
        global_load_dwordx2 v[{vtagr}:{vtagr+1}], v{vtag+2}, s[98:99] sc0 sc1
        L_{N}_{tag}_non:"""] if (FUSED and NAT == "spread") else []
        step(0, vtype, extra, "same", [f"v_add_u32 v{r}, s{sDelta}, v{r}" for r in regs] + pf_inloop(tag) + nl, early=rot)
        A("s_waitcnt lgkmcnt(0)\ns_barrier")
        if o.get("stagestamp"):
            A(f"""s_memtime s[80:81]
            s_waitcnt lgkmcnt(0)
            s_sub_u32 s80, s80, s60
            s_sub_u32 s82, 15, s{sCnt}
            s_mov_b32 m0, s82
            v_writelane_b32 v{vdum+0 if False else vstamp}, s80, m0""")
        step(1, vtype, extra, "next", [f"s_sub_u32 s{sCnt}, s{sCnt}, 1", f"s_cmp_lg_u32 s{sCnt}, 0"])
        A(f"s_cbranch_scc1 L_{N}_{tag}_loop")
        if FUSED and o.get("nonce", "store") == "store" and NAT == "end":
            A(f"""s_cmp_lg_u32 s{S_WAVE}, 0
            s_cbranch_scc1 L_{N}_{tag}_notag
            global_load_dwordx2 v[{vtagr}:{vtagr+1}], v{vtag+2}, s[98:99] sc0 sc1
            L_{N}_{tag}_notag:""")
        if t2on(tag): return
        A("s_waitcnt lgkmcnt(0)")
        step(0, vtype, extra, "same")
        A("s_waitcnt lgkmcnt(0)")
        step(1, vtype, extra, None)
        if o.get("stamp"): A("s_memtime s[72:73]\ns_waitcnt lgkmcnt(0)")
        A("s_nop 7")

    def pieces(kind, T, k0):
        out = []; k = k0
        for hh in range(2):
            for th in range(2):
                if kind == "V": srcs = [acc[2*T][2*hh+th], acc[2*T+1][2*hh+th]]
                else: srcs = [acc[2*T+th][2*hh], acc[2*T+th][2*hh+1]]
                d = xf[0] + 4*(k % 4); k += 1
                if th == 0: out.append(f"s_add_u32 s{sT0}, s{sOut}, {(hh*64 + T)*2048}")
                if kind == "Q":
                    for s_ in srcs:
                        out.append(f"v_pk_mul_f32 v[{s_}:{s_+1}], v[{s_}:{s_+1}], s[{sC}:{sC+1}]")
                        out.append(f"v_pk_mul_f32 v[{s_+2}:{s_+3}], v[{s_+2}:{s_+3}], s[{sC}:{sC+1}]")
                for j, s_ in enumerate(srcs):
                    out.append(f"v_cvt_pk_bf16_f32 v{d+2*j}, v{s_}, v{s_+1}")
                    out.append(f"v_cvt_pk_bf16_f32 v{d+2*j+1}, v{s_+2}, v{s_+3}")
                out.append(f"buffer_store_dwordx4 v[{d}:{d+3}], v{vst}, s[{sWS}:{sWS+3}], s{sT0} offen offset:{th*256} {o.get('stflags','')}")
        return out
    def tail(kind, vtype, extra):
        ne = 2 if extra else 0
        def EM(i): return mf(acce[i], we, xe[i]) if extra == "K" else mf(acce[i], xe[i], we)
        def M(tt, ct, par):
            x = xreg(tt, par); w = wf[par][ct]
            return mf(acc[tt][ct], x, w) if vtype else mf(acc[tt][ct], w, x)
        def emit(seq, after, inter=(), waits={}):
            inter = list(inter); n = len(seq); done = 0; tot = len(inter)
            for m, x in enumerate(seq):
                if m in waits: A(f"s_waitcnt lgkmcnt({waits[m]})")
                A(x)
                for y in after.get(m, []): A(y)
                want = (tot*(m+1) + n - 1)//n
                while done < want: A(inter[done]); done += 1
        A("s_waitcnt lgkmcnt(0)")
        seq = ([EM(0), EM(1)] if extra else []) + [M(tt, ct, 0) for tt in range(4) for ct in range(4)]
        after = {}
        def put(m, x): after.setdefault(m, []).append(x)
        if extra:
            put(1, rdWE(0, 1)); put(1, rdWE(1, 1)); put(2, rdXE(0, 1, extra == "V")); put(3, rdXE(1, 1, extra == "V"))
        for k in range(8): put(ne + k, rdW(k >> 1, k & 1, 1, 1))
        put(ne+3, rdX(0, 1, 1, vtype)); put(ne+7, rdX(1, 1, 1, vtype))
        put(ne+8, rdX(5, 1, 1, vtype)); put(ne+9, rdX(6, 1, 1, vtype)); put(ne+10, rdX(7, 1, 1, vtype))
        put(ne+11, rdX(2, 1, 1, vtype)); put(ne+15, rdX(3, 1, 1, vtype))
        emit(seq, after)
        seq = ([EM(0), EM(1)] if extra else []) + [M(tt, ct, 1) for tt in range(4) for ct in range(4)]
        emit(seq, {}, waits={0: 5, ne+8: 1, ne+12: 0})
        seq = [M(tt, ct, 0) for tt in range(4, 8) for ct in range(4)]
        emit(seq, {3: [rdX(4, 1, 1, vtype)]}, inter=pieces(kind, 0, 0))
        seq = [M(tt, ct, 1) for tt in range(4, 8) for ct in range(4)]
        emit(seq, {}, inter=pieces(kind, 1, 4), waits={0: 0})
        if o.get("stamp"): A("s_memtime s[72:73]\ns_waitcnt lgkmcnt(0)")
        A("s_nop 7")
        for x in pieces(kind, 2, 8) + pieces(kind, 3, 12): A(x)
        epilogue(kind, extra, main=False)
    def epilogue(kind, extra, main=True):
        if main and t2on({"V": "av", "K": "ak", None: "b"}[extra]): return tail(kind, kind == "V", extra)
        tmp = xf[0]
        stride = 2048
        for hh in range(2 if main else 0):
            for T in range(4):
                A(f"s_add_u32 s{sT0}, s{sOut}, {(hh*64 + T)*stride}")
                for th in range(2):
                    if kind == "V": srcs = [acc[2*T][2*hh+th], acc[2*T+1][2*hh+th]]
                    else: srcs = [acc[2*T+th][2*hh], acc[2*T+th][2*hh+1]]
                    d = tmp + 4*((T*2+th) % 4)
                    if kind == "Q":
                        for s_ in srcs:
                            A(f"v_pk_mul_f32 v[{s_}:{s_+1}], v[{s_}:{s_+1}], s[{sC}:{sC+1}]")
                            A(f"v_pk_mul_f32 v[{s_+2}:{s_+3}], v[{s_+2}:{s_+3}], s[{sC}:{sC+1}]")
                    for k, s_ in enumerate(srcs):
                        A(f"v_cvt_pk_bf16_f32 v{d+2*k}, v{s_}, v{s_+1}")
                        A(f"v_cvt_pk_bf16_f32 v{d+2*k+1}, v{s_+2}, v{s_+3}")
                    A(f"buffer_store_dwordx4 v[{d}:{d+3}], v{vst}, s[{sWS}:{sWS+3}], s{sT0} offen offset:{th*256} {o.get('stflags','')}")
        if extra == "K":
            d = wf[0][0]
            for th in range(2):
                A(f"v_cvt_pk_bf16_f32 v{d+2*th}, v{acce[th]}, v{acce[th]+1}")
                A(f"v_cvt_pk_bf16_f32 v{d+2*th+1}, v{acce[th]+2}, v{acce[th]+3}")
            A(f"""v_and_b32 v{vt0}, 0x200, v{vst}
            v_lshrrev_b32 v{vt1}, 2, v{vst}
            v_and_b32 v{vt1}, 0x100, v{vt1}
            v_permlane32_swap_b32 v{d}, v{d+2}
            v_permlane32_swap_b32 v{d+1}, v{d+3}
            v_and_b32 v{vt2}, 0xf0, v{vst}
            v_or3_b32 v{vt0}, v{vt0}, v{vt1}, v{vt2}
            buffer_store_dwordx4 v[{d}:{d+3}], v{vt0}, s[{sWS}:{sWS+3}], s{sOutE} offen {o.get('stflags','')}""")
        elif extra == "V":
            d = wf[0][0]
            for k in range(2):
                A(f"v_cvt_pk_bf16_f32 v{d+2*k}, v{acce[k]}, v{acce[k]+1}")
                A(f"v_cvt_pk_bf16_f32 v{d+2*k+1}, v{acce[k]+2}, v{acce[k]+3}")
            A(f"buffer_store_dwordx4 v[{d}:{d+3}], v{vst}, s[{sWS}:{sWS+3}], s{sOutE} offen {o.get('stflags','')}")
        A(f"s_branch L_{N}_done")

    A(f"""s_lshl_b32 s{sT0}, s{sCB}, 3
    s_lshl_b32 s{sT1}, s{sWave}, 1
    s_add_u32 s{sT0}, s{sT0}, s{sT1}        ; head0
    s_lshl_b32 s{sT0}, s{sT0}, 6
    s_lshl_b32 s{sT1}, s{sRB}, 2
    s_add_u32 s{sT0}, s{sT0}, s{sT1}        ; head0*64 + T0
    s_add_u32 s{sT1}, s{sT1}, s{sWave}
    s_lshl_b32 s{sOutE}, s{sT1}, 11
    s_add_u32 s{sOutE}, s{sOutE}, {WS_KA}
    s_mov_b32 s{sC+1}, s{sC}
    s_cmp_eq_u32 s{sType}, 0
    s_cbranch_scc1 L_{N}_cBQ
    s_cmp_eq_u32 s{sType}, 1
    s_cbranch_scc1 L_{N}_cBK
    s_cmp_eq_u32 s{sType}, 2
    s_cbranch_scc1 L_{N}_cBV
    s_lshl_b32 s{sOut}, s{sT0}, 11
    s_add_u32 s{sOut}, s{sOut}, {WS_QA}
    s_cmp_eq_u32 s{sType}, 3
    s_cbranch_scc1 L_{N}_cAK
    s_lshl_b32 s{sT1}, s{sEo}, 3
    s_add_u32 s{sOutE}, s{sOutE}, s{sT1}
    s_add_u32 s{sOutE}, s{sOutE}, {WS_VA-WS_KA}""")
    compute("av", False, "V"); epilogue("Q", "V")
    A(f"""L_{N}_cAK:
    s_lshl_b32 s{sT1}, s{sEo}, 5
    s_add_u32 s{sOutE}, s{sOutE}, s{sT1}""")
    compute("ak", False, "K"); epilogue("Q", "K")
    A(f"""L_{N}_cBQ:
    s_lshl_b32 s{sOut}, s{sT0}, 11
    s_add_u32 s{sOut}, s{sOut}, {WS_QB}""")
    A(f"s_branch L_{N}_cBQK")
    A(f"""L_{N}_cBK:
    s_lshl_b32 s{sOut}, s{sT0}, 11
    s_add_u32 s{sOut}, s{sOut}, {WS_KB}
    L_{N}_cBQK:""")
    compute("bqk", False, None)
    A(f"""s_cmp_eq_u32 s{sType}, 1
    s_cbranch_scc1 L_{N}_eBK""")
    epilogue("Q", None)
    A(f"L_{N}_eBK:")
    epilogue("K", None)
    A(f"""L_{N}_cBV:
    s_lshl_b32 s{sOut}, s{sT0}, 11
    s_add_u32 s{sOut}, s{sOut}, {WS_VB}""")
    compute("bv", True, None); epilogue("V", None)

    A(f"L_{N}_done:")
    if o.get("stamp"):
        A(f"""s_memtime s[64:65]
        s_memrealtime s[66:67]
        s_waitcnt lgkmcnt(0)
        s_sub_u32 s64, s64, s60
        s_sub_u32 s66, s66, s62
        s_lshl_b32 s68, s2, 3
        s_add_u32 s68, s68, s{sWave}
        s_lshl_b32 s68, s68, 4
        s_add_u32 s68, s68, {WS_END}
        v_mov_b32 v{xs[0]}, s64
        v_mov_b32 v{xs[0]+1}, s66
        v_mov_b32 v{xs[0]+2}, s62
        s_sub_u32 s70, s70, s60
        s_sub_u32 s72, s72, s60
        s_lshr_b32 s70, s70, 2
        s_lshr_b32 s72, s72, 2
        s_lshl_b32 s72, s72, 16
        s_or_b32 s70, s70, s72
        v_mov_b32 v{xs[0]+3}, s70
        v_mov_b32 v{vt0}, 0
        buffer_store_dwordx4 v[{xs[0]}:{xs[0]+3}], v{vt0}, s[{sWS}:{sWS+3}], s68 offen""")
        if o.get("stagestamp"):
            A(f"""s_lshl_b32 s68, s2, 2
            s_add_u32 s68, s68, s{sWave}
            s_lshl_b32 s68, s68, 6
            s_add_u32 s68, s68, {WS_END + 196608}
            v_lshlrev_b32 v{vt0}, 2, v{vtid}
            s_mov_b64 exec, 0xffff
            buffer_store_dword v{vstamp}, v{vt0}, s[{sWS}:{sWS+3}], s68 offen
            s_mov_b64 exec, -1""")
    if FUSED and o.get("nonce", "store") == "atomic":
        A(f"""s_waitcnt vmcnt(0)
        s_cmp_lg_u32 s{S_WAVE}, 1
        s_cbranch_scc1 L_{N}_lend
        v_cmp_eq_u64 vcc, 0, v[{vtagr}:{vtagr+1}]
        v_mov_b32 v{vt0}, {NONCE_LDS}
        s_nop 0
        v_cndmask_b32 v{vtag}, v{vtagr}, v{vtag}, vcc
        v_cndmask_b32 v{vtag+1}, v{vtagr+1}, v{vtag+1}, vcc
        s_mov_b64 exec, 1
        ds_write_b64 v{vt0}, v[{vtag}:{vtag+1}]
        s_mov_b64 exec, -1
        s_waitcnt lgkmcnt(0)
        L_{N}_lend:
        s_barrier
        s_cmp_lg_u32 s{S_WAVE}, 0
        s_cbranch_scc1 L_{N}_noflag""")
        read_nonce(A, vtag, vt0)
        flag_srd(A, 92, sP+6)
        A(f"s_mov_b32 s{sT0}, s2")
        flag_store(A, 92, vtag, vt0, sT0, 0, 8)
        A(f"L_{N}_noflag:")
        return A.text(), dict(name=name, nv=nv, lds=3*SLOT)
    if FUSED:
        A("s_waitcnt vmcnt(0)")
        if o.get("stamp3"): rt_stamp(A, 80)
        A(f"""s_cmp_lg_u32 s{S_WAVE}, 0
        s_cbranch_scc1 L_{N}_lend
        s_mov_b32 s{sCnt}, 400000
        L_{N}_tagspin:
        v_cmp_eq_u64 vcc, 0, v[{vtagr}:{vtagr+1}]
        s_sub_u32 s{sCnt}, s{sCnt}, 1
        s_nop 2
        s_cmp_eq_u64 vcc, 0
        s_cbranch_scc1 L_{N}_tagok
        s_cmp_eq_u32 s{sCnt}, 0
        s_cbranch_scc1 L_{N}_tagok
        global_load_dwordx2 v[{vtagr}:{vtagr+1}], v{vtag+2}, s[98:99] sc0 sc1
        s_waitcnt vmcnt(0)
        s_branch L_{N}_tagspin
        L_{N}_tagok:
        v_mov_b32 v{vt0}, {NONCE_LDS}
        s_mov_b64 exec, 1
        ds_write_b64 v{vt0}, v[{vtagr}:{vtagr+1}]
        s_mov_b64 exec, -1""")
        A(f"""s_waitcnt lgkmcnt(0)
        L_{N}_lend:
        s_barrier
        s_cmp_lg_u32 s{S_WAVE}, 0
        s_cbranch_scc1 L_{N}_noflag""")
        flag_srd(A, 92, sP+6)
        A(f"""v_mov_b32 v{vtag}, v{vtagr}
        v_mov_b32 v{vtag+1}, v{vtagr+1}
        s_mov_b32 s{sT0}, s2""")
        flag_store(A, 92, vtag, vt0, sT0, 0, 8)
        if o.get("stamp3"): rt_stamp(A, 81)
        A(f"L_{N}_noflag:")
        if o.get("wpre"): nonce_to_sgpr(A, vtagr, vt0)
        return A.text(), dict(name=name, nv=nv, lds=3*SLOT)
    A(f"""s_waitcnt vmcnt(0)
    L_{N}_lend:
    L_{N}_end:
    s_endpgm""")
    return A.text() + kernel_desc(name, nv), dict(name=name, grid=256, block=512, lds=3*SLOT, nv=nv)

if __name__ == "__main__":
    import hz
    from build import build
    t, i = gen_proj(opts=dict(stamp=True))
    print(i)
    ps = hz.check_hazards(t)
    for p in ps[:30]: print(p)
    ws = hz.check_waits(t, i["name"], max_back=1)
    for p in ws[:30]: print(p)
    print(len(ps), len(ws))
    build([(t, i)], "proj_only.s")
```

```python
from kgen import *

def gen_attn2(name="attn_kernel", NSLOT=3, TPC=8, opts=None):
    o = opts or {}
    A = Asm()
    NQ = 4
    CH = TPC * 4096
    NCH = 64 // TPC
    FLAG = NSLOT * CH
    va = VAlloc(0)
    vtid = va.get("tid")
    vl16 = va.get("l16")
    vcur = va.get("cur"); vnxt = va.get("nxt")
    vt0 = va.get("t0", 1, 4); vt1 = va.get("t1"); vt2 = va.get("t2"); vt3 = va.get("t3")
    vidx = va.get("idx")
    val = va.get("alpha")
    vdum = va.get("dummy")
    vm = [va.get(f"m{i}") for i in range(NQ)]
    vsel = va.get("sel", 4, 4)
    Q = [[va.get(f"q{i}{h}", 4, 4) for h in range(2)] for i in range(NQ)]
    O = [va.get(f"o{i}", 16, 4) for i in range(NQ)]
    L = [va.get(f"l{i}", 4, 4) for i in range(NQ)]
    S = [va.get(f"s{i}", 16, 4) for i in range(2)]
    P = [va.get(f"p{i}", 8, 4) for i in range(2)]
    K = [va.get(f"k{i}", 8, 4) for i in range(2)]
    V = [va.get(f"v{i}", 8, 4) for i in range(2)]
    nv = va.next
    vdma = Q[0][0]
    sWS, sKV, sW = 4, 8, 12
    sWave, sSoff, sM0, sCnt, sQ, sO, sNxt, sMode, sT0, sT1 = 16, 17, 18, 19, 20, 21, 22, 23, 24, 25
    sT2, sT3 = 26, 27
    N = name
    PER = CH // 4 // 1024
    FUSED = o.get("fused")
    WPRE = FUSED and o.get("wpre")
    WFL = WPRE and o.get("wflag")
    O_XSLOTS, O_WSLOTS, O_WOFF = orings()
    rdn = (lambda vn, vt: nonce_from_sgpr(A, vn)) if WPRE else (lambda vn, vt: read_nonce(A, vn, vt))
    if not FUSED: A.raw(kernel_head(name).rstrip("\n"))
    else: A("L_attn_code:")
    if o.get("stamp"): A("s_memtime s[40:41]\ns_memrealtime s[42:43]")
    if FUSED:
        A(f"""s_load_dwordx2 s[{sWS}:{sWS+1}], s[0:1], {KA_WS}
        v_and_b32 v{vl16}, 63, v{vtid}
        s_mov_b32 s{sWave}, s{S_WAVE}""")
    else:
        A(f"""s_cmp_ge_u32 s2, 256
        s_cbranch_scc1 L_{N}_end
        s_load_dwordx2 s[{sWS}:{sWS+1}], s[0:1], {KA_WS}
        v_lshrrev_b32 v{vt0}, 6, v{vtid}
        v_and_b32 v{vl16}, 63, v{vtid}
        v_readfirstlane_b32 s{sWave}, v{vt0}""")
    A(f"""v_lshlrev_b32 v{vl16}, 4, v{vl16}
    s_and_b32 s{sT0}, s2, 7
    s_lshr_b32 s{sT1}, s2, 3
    s_lshl_b32 s{sT0}, s{sT0}, 3
    s_lshr_b32 s{sT2}, s{sT1}, 2
    s_add_u32 s{sT0}, s{sT0}, s{sT2}      ; bh
    s_and_b32 s{sT1}, s{sT1}, 3           ; qb
    s_and_b32 s{sT2}, s{sT0}, 31          ; head
    s_lshr_b32 s{sT0}, s{sT0}, 5          ; branch
    s_mov_b32 s28, s{sT2}
    s_mov_b32 s29, s{sT0}
    s_mov_b32 s30, s{sT1}
    s_cmp_lt_u32 s{sWave}, 4
    s_cbranch_scc1 L_{N}_compute""")
    A(f"""L_{N}_loader:
    s_sub_u32 s{sWave}, s{sWave}, 4
    s_lshl_b32 s{sT2}, s{sT2}, 17         ; head*128KB
    s_add_u32 s{sT2}, s{sT2}, {WS_KB}
    s_cmp_eq_u32 s{sT0}, 0
    s_cselect_b32 s{sT2}, {WS_KA}, s{sT2}
    s_mov_b32 s{sT3}, {WS_VB-WS_KB}
    s_cselect_b32 s{sT3}, {WS_VA-WS_KA}, s{sT3}
    s_cmp_ge_u32 s{sWave}, 2
    s_cselect_b32 s{sT3}, s{sT3}, 0
    s_add_u32 s{sT2}, s{sT2}, s{sT3}
    s_and_b32 s{sT1}, s{sWave}, 1
    s_mul_i32 s{sT1}, s{sT1}, {PER*1024}
    v_add_u32 v{vdma}, s{sT1}, v{vl16}
    s_mul_i32 s{sM0}, s{sWave}, {PER*1024}
    s_mov_b32 s{sQ}, s{sM0}
    s_mov_b32 s{sSoff}, 0
    s_waitcnt lgkmcnt(0)
    s_add_u32 s{sKV}, s{sWS}, s{sT2}
    s_addc_u32 s{sKV+1}, s{sWS+1}, 0
    s_and_b32 s{sKV+1}, s{sKV+1}, 0xffff
    s_mov_b32 s{sKV+2}, 131072
    s_mov_b32 s{sKV+3}, 0x20000
    """)
    if FUSED:
        vn, vc, vo = S[0], S[0]+2, S[0]+4
        if o.get("stamp3"): rt_stamp(A, 80)
        A(f"""s_cmp_lg_u32 s{sWave}, 0
        s_cbranch_scc1 L_{N}_nopoll""")
        rdn(vn, vt0)
        flag_srd(A, 92, sWS)
        A(f"""v_lshrrev_b32 v{vt0}, 4, v{vl16}          ; lane
        s_cmp_eq_u32 s29, 0
        s_cbranch_scc0 L_{N}_pollB
        v_and_b32 v{vt1}, 1, v{vt0}
        v_lshrrev_b32 v{vt2}, 1, v{vt0}
        v_lshl_add_u32 v{vo}, v{vt2}, 3, v{vt1}
        s_branch L_{N}_pollgo
        L_{N}_pollB:
        {f"v_mov_b32 v{vt3+1}, {o.get('bwait')}" if o.get("bwait") is not None else ""}
        v_and_b32 v{vt1}, 15, v{vt0}
        s_lshl_b32 s{sT1}, s30, 2
        v_and_b32 v{vt2}, 3, v{vt0}
        v_add_u32 v{vt2}, s{sT1}, v{vt2}
        v_cmp_gt_u32 vcc, 32, v{vt0}
        s_nop 1
        v_cndmask_b32 v{vt1}, v{vt2}, v{vt1}, vcc      ; rb
        v_lshrrev_b32 v{vt2}, 4, v{vt0}                ; 0 K, 1 V, 2/3 Q
        v_lshlrev_b32 v{vt2}, 1, v{vt2}
        v_add_u32 v{vt2}, 4, v{vt2}                    ; 4, 6, ..
        v_cndmask_b32 v{vt2}, 2, v{vt2}, vcc
        v_lshrrev_b32 v{vt3}, 3, v{vt1}
        v_add_u32 v{vt2}, v{vt2}, v{vt3}               ; xcd
        v_and_b32 v{vt1}, 7, v{vt1}
        s_lshr_b32 s{sT1}, s28, 3                      ; cb
        s_lshl_b32 s{sT1}, s{sT1}, 3
        v_add_u32 v{vt1}, s{sT1}, v{vt1}               ; sl
        v_lshl_add_u32 v{vo}, v{vt1}, 3, v{vt2}
        {f"v_cmp_eq_u32 vcc, 63, v{vt0}" if o.get("bwait") is not None else ""}
        {"s_nop 1" if o.get("bwait") is not None else ""}
        {f"v_cndmask_b32 v{vo}, v{vo}, v{vt3+1}, vcc" if o.get("bwait") is not None else ""}
        L_{N}_pollgo:
        s_and_b32 s{sT1}, s2, 7
        s_lshl_b32 s{sT1}, s{sT1}, 7
        v_lshlrev_b32 v{vo}, 10, v{vo}
        v_add_u32 v{vo}, s{sT1}, v{vo}""")
        if o.get("pollr", 0): flag_poll2(A, N, 92, vn, vo, S[0]+8, sCnt, o["pollr"], lds=(NONCE_LDS if WPRE else None), nrd=o.get("pollrd", 1))
        elif o.get("poll3"): flag_poll3(A, N, 92, vn, vo, vc, sCnt, first=o.get("pollfirst"))
        else: flag_poll(A, N, 92, vn, vo, vc, sCnt, first=o.get("pollfirst"))
        if o.get("stamp3"):
            rt_stamp(A, 81); A(f"s_mov_b32 s82, s{sCnt}")
        A(f"""L_{N}_nopoll:
        s_barrier""")
    def dma(rot=True):
        A(f"s_mov_b32 m0, s{sM0}")
        if rot: A(f"s_add_u32 s{sM0}, s{sM0}, {CH}")
        else: A("s_nop 0")
        for i in range(PER):
            if i == 4:
                A("s_add_u32 m0, m0, 4096")
                A(f"s_add_u32 s{sT3}, s{sSoff}, 4096")
            A(f"buffer_load_dwordx4 v{vdma}, s[{sKV}:{sKV+3}], s{sSoff if i < 4 else sT3} offen offset:{(i&3)*1024} lds")
        A(f"s_add_u32 s{sSoff}, s{sSoff}, {CH//2}")
        if rot:
            A(f"s_cmp_ge_u32 s{sM0}, {NSLOT*CH}")
            A(f"s_cselect_b32 s{sT1}, {NSLOT*CH}, 0")
            A(f"s_sub_u32 s{sM0}, s{sM0}, s{sT1}")
    EARLY = o.get("early", 0) if WPRE else 0
    def dma_part(lo, hi):
        for i in range(lo, hi):
            if i == lo or i == 4:
                A(f"s_add_u32 m0, s{sM0}, {4096 if i >= 4 else 0}")
                A(f"s_add_u32 s{sT3}, s{sSoff}, {4096 if i >= 4 else 0}")
            A(f"buffer_load_dwordx4 v{vdma}, s[{sKV}:{sKV+3}], s{sT3} offen offset:{(i&3)*1024} lds")
    if EARLY:
        assert EARLY <= 4 and PER == 8
        A(f"s_bitcmp1_b32 s{sWave}, 0\ns_cbranch_scc1 L_{N}_odd0")
        dma_part(0, 2*EARLY)
        A("s_waitcnt vmcnt(0)")
        if o.get("stamp3"): rt_stamp(A, 83)
        A("s_barrier")
        dma_part(2*EARLY, PER)
        A(f"s_branch L_{N}_odd1\nL_{N}_odd0:\ns_barrier")
        dma_part(0, PER)
        A(f"""L_{N}_odd1:
        s_add_u32 s{sM0}, s{sM0}, {CH}
        s_add_u32 s{sSoff}, s{sSoff}, {CH//2}""")
        if o.get("early_c1", True):
            dma()
            A(f"s_waitcnt vmcnt({PER})\ns_barrier")
        else:
            A("s_waitcnt vmcnt(0)\ns_barrier")
            dma()
    else:
        dma()
        if WPRE: A("s_waitcnt vmcnt(0)")
        else: A(f"""v_mov_b32 v{vt0}, 0
        v_mov_b32 v{vt1}, {FLAG}
        ds_write_b32 v{vt1}, v{vt0}
        s_waitcnt vmcnt(0) lgkmcnt(0)""")
        if o.get("stamp3"): rt_stamp(A, 83)
        A("s_barrier")
        for c in range(NSLOT-2): dma()
    if o.get("prefetch", True):
        sPW = 56
        A(f"""s_load_dwordx2 s[{sPW+4}:{sPW+5}], s[0:1], {KA_AWO}
        s_load_dwordx2 s[{sPW+6}:{sPW+7}], s[0:1], {KA_BWO}
        s_lshr_b32 s{sT0}, s2, 3
        s_lshl_b32 s{sT0}, s{sT0}, 5
        s_lshl_b32 s{sT1}, s{sWave}, 3
        s_add_u32 s{sT0}, s{sT0}, s{sT1}
        s_lshl_b32 s{sT0}, s{sT0}, 11
        s_and_b32 s{sT1}, s2, 1
        s_lshl_b32 s{sT1}, s{sT1}, 10
        s_add_u32 s{sT0}, s{sT0}, s{sT1}
        v_lshrrev_b32 v{vt0}, 7, v{vl16}
        v_lshlrev_b32 v{vt0}, 11, v{vt0}
        v_bfe_u32 v{vt1}, v{vl16}, 4, 3
        v_lshl_add_u32 v{vt0}, v{vt1}, 7, v{vt0}
        s_bitcmp1_b32 s2, 2
        s_waitcnt lgkmcnt(0)
        s_cselect_b32 s{sPW}, s{sPW+6}, s{sPW+4}
        s_cselect_b32 s{sPW+1}, s{sPW+7}, s{sPW+5}
        s_and_b32 s{sPW+1}, s{sPW+1}, 0xffff
        s_mov_b32 s{sPW+2}, {1024*2048}
        s_mov_b32 s{sPW+3}, 0x20000
        buffer_load_dword v{vdum}, v{vt0}, s[{sPW}:{sPW+3}], s{sT0} offen""")
    if WPRE:
        sOW, vOW = 64, S[1]
        A(f"""s_load_dwordx2 s[68:69], s[0:1], {KA_AWO}
        s_load_dwordx2 s[70:71], s[0:1], {KA_BWO}
        v_lshrrev_b32 v{vOW+4}, 4, v{vl16}
        s_lshl_b32 s72, s{sWave}, 12
        s_add_u32 s72, s72, {O_WOFF}
        s_waitcnt lgkmcnt(0)""")
        ow_srd(A, sOW, 68, 70, sT0, sT1)
        ow_lanes(A, vOW, vOW+4, sWave, sT0, vt0, vt1, vt2)
    A(f"s_mov_b32 s{sCnt}, {NCH-2 if WPRE else NCH}")
    A(f"""L_{N}_ldloop:
    s_waitcnt vmcnt({(NSLOT-3)*PER})
    {"s_nop 0" if "nobar" in o.get("ablate","") else "s_barrier"}""")
    dma()
    A(f"""s_sub_u32 s{sCnt}, s{sCnt}, 1
    s_cmp_lg_u32 s{sCnt}, 0
    s_cbranch_scc1 L_{N}_ldloop""")
    if WPRE:
        A("s_waitcnt vmcnt(0)\ns_barrier")
        if o.get("orot"): o_rot(A, 73, o["orot"])
        for st in range(O_WSLOTS): ow_dma(A, sOW, vOW, 72, sT0, st*16384, st, 73 if o.get("orot") else None)
        if o.get("ctouch"): code_touch(A, N, "L_oproj_code", vt0, vdum, vl16, sWave, 74)
        A("s_barrier")
        A(f"""s_barrier
        v_mov_b32 v{vt1}, {VOTE_LDS}
        ds_read_b128 v[{vOW+4}:{vOW+7}], v{vt1}
        s_waitcnt lgkmcnt(0)
        v_or3_b32 v{vt0}, v{vOW+4}, v{vOW+5}, v{vOW+6}
        v_or_b32 v{vt0}, v{vt0}, v{vOW+7}
        s_nop 1""")
    else:
        A(f"""s_waitcnt vmcnt(0)
        s_barrier
        v_mov_b32 v{vt1}, {FLAG}
        ds_read_b32 v{vt0}, v{vt1}
        s_waitcnt lgkmcnt(0)""")
    A(f"""v_readfirstlane_b32 s{sT0}, v{vt0}
    s_nop 3
    s_cmp_eq_u32 s{sT0}, 0
    s_cbranch_scc1 L_{N}_end
    s_mov_b32 s{sCnt}, {NCH}
    s_mov_b32 s{sSoff}, 0
    s_mov_b32 s{sM0}, s{sQ}
    L_{N}_ldslow:
    s_barrier""")
    dma(rot=False)
    A(f"""s_waitcnt vmcnt(0)
    s_barrier
    s_sub_u32 s{sCnt}, s{sCnt}, 1
    s_cmp_lg_u32 s{sCnt}, 0
    s_cbranch_scc1 L_{N}_ldslow
    {"s_barrier" if FUSED else ""}
    s_branch L_{N}_end
""")
    A(f"""L_{N}_compute:
    s_lshl_b32 s{sT1}, s{sT1}, 4
    s_lshl_b32 s{sT3}, s{sWave}, 2
    s_add_u32 s{sT1}, s{sT1}, s{sT3}
    s_lshl_b32 s{sQ}, s{sT2}, 6
    s_add_u32 s{sQ}, s{sQ}, s{sT1}
    s_lshl_b32 s{sQ}, s{sQ}, 11           ; (head*64+T)*2048
    s_lshl_b32 s{sO}, s{sT1}, 5
    s_add_u32 s{sO}, s{sO}, s{sT2}
    s_lshl_b32 s{sO}, s{sO}, 11           ; (T*32+head)*2048
    s_mul_i32 s{sT3}, s{sT0}, {WS_QB-WS_QA}
    s_add_u32 s{sQ}, s{sQ}, s{sT3}
    s_add_u32 s{sO}, s{sO}, s{sT3}
    s_add_u32 s{sO}, s{sO}, {WS_OA}
    s_waitcnt lgkmcnt(0)
    {"s_memtime s[60:61]" if o.get('stamp2') else ""}
    s_mov_b32 s{sW}, s{sWS}
    s_and_b32 s{sW+1}, s{sWS+1}, 0xffff
    s_mov_b32 s{sW+2}, {WS_END + (262144 if o.get('stamp') else 0)}
    s_mov_b32 s{sW+3}, 0x20000
    """)
    assert WS_OB - WS_OA == WS_QB - WS_QA
    def q_loads():
        for i in range(NQ):
            if i == 2: A(f"s_add_u32 s{sQ}, s{sQ}, 4096")
            for h in range(2):
                A(f"buffer_load_dwordx4 v[{Q[i][h]}:{Q[i][h]+3}], v{vl16}, s[{sW}:{sW+3}], s{sQ} offen offset:{(i&1)*2048+h*1024}")
    if not FUSED: q_loads()
    def init_acc():
        for i in range(NQ):
            for r in range(16): A(f"v_mov_b32 v{O[i]+r}, 0")
            for r in range(2): A(f"v_mov_b32 v{L[i]+r}, 0")
    init_acc()
    for i in range(NQ):
        for r in range(2,4): A(f"v_mov_b32 v{L[i]+r}, 0")
    for r in range(8):
        A(f"v_mov_b32 v{P[1]+r}, 0")
        A(f"v_mov_b32 v{V[1]+r}, 0")
    A(f"""v_lshrrev_b32 v{vt0}, 4, v{vl16}      ; lane
    v_and_b32 v{vt1}, 2, v{vt0}           ; r>=2 -> nonzero
    v_and_b32 v{vt2}, 4, v{vt0}           ; qhalf
    v_mov_b32 v{vt3}, 0x3f803f80
    v_cmp_eq_u32 vcc, 0, v{vt1}
    s_nop 1
    v_cndmask_b32 v{vt3}, 0, v{vt3}, vcc
    v_cmp_eq_u32 vcc, 0, v{vt2}
    s_nop 1
    v_cndmask_b32 v{vsel}, 0, v{vt3}, vcc
    v_cndmask_b32 v{vsel+1}, 0, v{vt3}, vcc
    v_cndmask_b32 v{vsel+2}, v{vt3}, 0, vcc
    v_cndmask_b32 v{vsel+3}, v{vt3}, 0, vcc
    v_and_b32 v{vt1}, 1, v{vt0}
    v_mov_b32 v{vt2}, 0x44444444
    v_mov_b32 v{vt3}, 0xeeeeeeee
    v_cmp_eq_u32 vcc, 0, v{vt1}
    s_nop 1
    v_cndmask_b32 v{vidx}, v{vt3}, v{vt2}, vcc
    {f"v_and_b32 v{vt1}, 3, v{vt0}" if o.get("l4") else ""}
    {f"v_mov_b32 v{vt3}, 0x3f803f80" if o.get("l4") else ""}
    {f"v_cmp_eq_u32 vcc, 0, v{vt1}" if o.get("l4") else ""}
    {"s_nop 1" if o.get("l4") else ""}
    {f"v_cndmask_b32 v{vsel}, 0, v{vt3}, vcc" if o.get("l4") else ""}
    {f"v_cndmask_b32 v{vsel+1}, 0, v{vt3}, vcc" if o.get("l4") else ""}
    v_mov_b32 v{vcur}, v{vl16}
    v_add_u32 v{vnxt}, {CH}, v{vl16}
    s_mov_b32 s{sNxt}, {2*CH}
    s_mov_b32 s{sMode}, 0
    s_mov_b32 s{sCnt}, {NCH}""")
    if FUSED:
        A("s_barrier")
        if o.get("stamp3"): rt_stamp(A, 82)
        q_loads()
        if o.get("stamp3"):
            A("s_waitcnt vmcnt(0)"); rt_stamp(A, 83)
    A(f"""{"s_memtime s[62:63]" if o.get('stamp2') else ""}
    s_waitcnt vmcnt(0)
    {"s_memtime s[64:65]" if o.get('stamp2') else ""}
    s_barrier
    {"s_memtime s[66:67]" if o.get('stamp2') else ""}
    """)
    def rK(buf, base, t, h): return f"ds_read_b128 v[{K[buf]+4*h}:{K[buf]+4*h+3}], v{base} offset:{t*2048+h*1024}"
    def rV(buf, base, t, h): return f"ds_read_b128 v[{V[buf]+4*h}:{V[buf]+4*h+3}], v{base} offset:{CH//2+t*2048+h*1024}"
    def mf(d, a, b, c):
        cs = "0" if c is None else f"v[{c}:{c+15}]"
        return f"v_mfma_f32_32x32x16_bf16 v[{d}:{d+15}], v[{a}:{a+3}], v[{b}:{b+3}], {cs}"
    def sm(qi, pb):
        if o.get("l4"):
            return "\n".join(f"v_mfma_f32_4x4x4bf16_1k v[{L[qi]}:{L[qi]+3}], v[{vsel}:{vsel+1}], v[{P[pb]+2*z}:{P[pb]+2*z+1}], v[{L[qi]}:{L[qi]+3}]\ns_nop 1" for z in range(4))
        return f"v_smfmac_f32_16x16x64_bf16 v[{L[qi]}:{L[qi]+3}], v[{vsel}:{vsel+3}], v[{P[pb]}:{P[pb]+7}], v{vidx}"
    for h in range(2): A(rK(0, vcur, 0, h))
    for h in range(2): A(rV(0, vcur, 0, h))
    A("s_waitcnt lgkmcnt(0)")
    A(mf(S[0], K[0], Q[0][0], None)); A(mf(S[0], K[0]+4, Q[0][1], S[0]))
    A("s_nop 7\ns_nop 3")
    if o.get("stamp"): A("s_memtime s[50:51]\ns_waitcnt lgkmcnt(0)")
    A(f".p2align 6\nL_{N}_loop:")
    pat = o.get("pat", "Q1 e e e P1 e e e Q2 e e c c P2 e e c c S R e e c e e c e e c c").split()
    for kt in range(TPC):
        for qi in range(NQ):
            u = kt*NQ + qi
            nk, nq = (kt, qi+1) if qi+1 < NQ else (kt+1, 0)
            pk, pq = (kt, qi-1) if qi > 0 else (kt-1, NQ-1)
            sb = u & 1; nb = sb ^ 1
            e = lambda j: f"v_exp_f32 v{S[sb]+j}, v{S[sb]+j}"
            c = lambda j: f"v_cvt_pk_bf16_f32 v{P[sb]+j}, v{S[sb]+2*j}, v{S[sb]+2*j+1}"
            Kb = K[nk % 2]; Vb = V[pk % 2]
            pre = []
            HW = o.get("hidew", 0)
            if qi == 3 and not HW: pre.append("s_waitcnt lgkmcnt(0)")
            if qi == 0 and kt == TPC-1: pre.append("s_barrier")
            if EARLY and qi == 0 and kt == EARLY-1:
                pre.append(f"s_cbranch_scc1 L_{N}_bar1"); pre.append(f"L_{N}_bar1r:")
            base, t = (vcur, kt+1) if kt+1 < TPC else (vnxt, 0)
            b2 = (kt+1) % 2
            rd = {0: [rK(b2, base, t, 0)], 1: [rK(b2, base, t, 1)], 2: [rV(b2, base, t, 0), rV(b2, base, t, 1)], 3: []}[qi]
            seq = list(pre); ne = nc = 0
            hid = []
            if o.get("hide", True) and kt == TPC-1 and qi == NQ-1:
                hid = [f"v_mov_b32 v{vcur}, v{vnxt}", f"v_add_u32 v{vnxt}, s{sNxt}, v{vl16}", f"s_add_u32 s{sNxt}, s{sNxt}, {CH}",
                       f"s_cmp_ge_u32 s{sNxt}, {NSLOT*CH}", f"s_cselect_b32 s{sT1}, {NSLOT*CH}, 0", f"s_sub_u32 s{sNxt}, s{sNxt}, s{sT1}",
                       f"s_sub_u32 s{sCnt}, s{sCnt}, 1", f"s_cmp_lg_u32 s{sCnt}, 0"]
            if EARLY and EARLY > 1 and qi == NQ-1 and kt == EARLY-2: hid = [f"s_cmp_eq_u32 s{sCnt}, {NCH}"]
            for tk in pat:
                if tk == "Q1": seq.append(mf(S[nb], Kb, Q[nq][0], None))
                elif tk == "Q2": seq.append(mf(S[nb], Kb+4, Q[nq][1], S[nb]))
                elif tk == "P1": seq.append(mf(O[pq], Vb, P[nb], O[pq]))
                elif tk == "P2": seq.append(mf(O[pq], Vb+4, P[nb]+4, O[pq]))
                elif tk == "S": seq.append(sm(pq, nb))
                elif tk in ("s0","s1","s2","s3"):
                    z = int(tk[1]); seq.append(f"v_mfma_f32_4x4x4bf16_1k v[{L[pq]}:{L[pq]+3}], v[{vsel}:{vsel+1}], v[{P[nb]+2*z}:{P[nb]+2*z+1}], v[{L[pq]}:{L[pq]+3}]")
                elif tk == "e":
                    seq.append(e(ne)); ne += 1
                    if hid and ne >= 2: seq.append(hid.pop(0))
                    if HW == 1 and qi == 2 and ne == 16: seq.append("s_waitcnt lgkmcnt(0)")
                    if HW == 2 and qi == 2 and ne == 16: seq.append("s_waitcnt lgkmcnt(2)")
                    if HW == 2 and qi == 0 and ne == 16: seq.append("s_waitcnt lgkmcnt(1)")
                elif tk == "c": seq.append(c(nc)); assert 2*nc+1 < ne; nc += 1
                elif tk == "R": seq += rd
                else: raise Exception(tk)
            assert ne == 16 and nc == 8
            ab = o.get("ablate", "")
            for l in seq:
                if "nosm" in ab and l.startswith("v_smfmac"): continue
                if "nolds" in ab and l.startswith("ds_read"): continue
                if "nocvt" in ab and l.startswith("v_cvt"): continue
                if "noexp" in ab and l.startswith("v_exp"): continue
                if "nopv" in ab and l.startswith(f"v_mfma_f32_32x32x16_bf16 v[{O[pq]}:"): continue
                if "noqk" in ab and l.startswith(f"v_mfma_f32_32x32x16_bf16 v[{S[nb]}:"): continue
                if "nobar" in ab and l.startswith("s_barrier"): l = "s_nop 0"
                if "expsep" in ab and l.startswith("v_exp"):
                    r = l.split()[1].rstrip(","); l = f"v_exp_f32 v{vt2}, {r}"
                A(l)
    if o.get("hide", True): A(f"s_cbranch_scc1 L_{N}_loop")
    else: A(f"""v_mov_b32 v{vcur}, v{vnxt}
    v_add_u32 v{vnxt}, s{sNxt}, v{vl16}
    s_add_u32 s{sNxt}, s{sNxt}, {CH}
    s_cmp_ge_u32 s{sNxt}, {NSLOT*CH}
    s_cselect_b32 s{sT1}, {NSLOT*CH}, 0
    s_sub_u32 s{sNxt}, s{sNxt}, s{sT1}
    s_sub_u32 s{sCnt}, s{sCnt}, 1
    s_cmp_lg_u32 s{sCnt}, 0
    s_cbranch_scc1 L_{N}_loop
    """)
    if EARLY:
        A(f"""s_branch L_{N}_bar2
        L_{N}_bar1:
        s_barrier
        s_branch L_{N}_bar1r
        L_{N}_bar2:""")
    if o.get("stamp"): A("s_memtime s[52:53]\ns_waitcnt lgkmcnt(0)")
    lb = (TPC*NQ-1) & 1
    Vb = V[(TPC-1) % 2]
    A("s_nop 1")
    A(mf(O[NQ-1], Vb, P[lb], O[NQ-1])); A(mf(O[NQ-1], Vb+4, P[lb]+4, O[NQ-1])); A(sm(NQ-1, lb))
    A(f"L_{N}_fin:")
    A("s_nop 7\ns_nop 7")
    vrc, vna, vz = K[0], K[0]+2, K[0]+4
    for r in (vna, vna+1, vz, vz+1): A(f"v_mov_b32 v{r}, 0")
    A(f"s_mov_b32 s{sCnt}, 0")
    for qi in range(NQ):
        if o.get("l4"):
            A(f"v_mov_b32 v{vt0}, v{L[qi]}")
            A(f"v_mov_b32 v{vt1}, v{L[qi]}")
            A("s_nop 1")
            A(f"v_permlane32_swap_b32 v{vt0}, v{vt1}")
            A(f"v_add_f32 v{vt0}, v{vt0}, v{vt1}")
        else:
            A(f"v_add_f32 v{vt0}, v{L[qi]}, v{L[qi]+1}")
        A(f"v_rcp_f32 v{vrc}, v{vt0}")
        A(f"v_mov_b32 v{vt2}, 0x35800000")
        A(f"v_cmp_nle_f32 s[{sT2}:{sT3}], v{vt2}, v{vt0}")
        A(f"v_mov_b32 v{vt2}, 0x71800000")
        A(f"v_cmp_nle_f32 vcc, v{vt0}, v{vt2}")
        A(f"v_mov_b32 v{vrc+1}, v{vrc}")
        for r in range(0, 16, 2):
            A(f"v_pk_mul_f32 v[{O[qi]+r}:{O[qi]+r+1}], v[{O[qi]+r}:{O[qi]+r+1}], v[{vrc}:{vrc+1}]")
        A(f"s_or_b64 vcc, vcc, s[{sT2}:{sT3}]")
        A(f"s_cmp_lg_u64 vcc, 0")
        A(f"s_cselect_b32 s{sT0}, 1, 0")
        A(f"s_or_b32 s{sCnt}, s{sCnt}, s{sT0}")
        if not o.get("latechk", True):
            for r in range(0, 16, 2):
                A(f"v_pk_fma_f32 v[{vna}:{vna+1}], v[{O[qi]+r}:{O[qi]+r+1}], v[{vz}:{vz+1}], v[{vna}:{vna+1}]")
        d = S[qi & 1] + 8*((qi >> 1) & 1)
        for j in range(8):
            A(f"v_cvt_pk_bf16_f32 v{d+j}, v{O[qi]+2*j}, v{O[qi]+2*j+1}")
        A(f"buffer_store_dwordx4 v[{d}:{d+3}], v{vl16}, s[{sW}:{sW+3}], s{sO} offen offset:0 {o.get('stflags','')}")
        A(f"buffer_store_dwordx4 v[{d+4}:{d+7}], v{vl16}, s[{sW}:{sW+3}], s{sO} offen offset:1024 {o.get('stflags','')}")
        A(f"s_add_u32 s{sO}, s{sO}, 65536")
    if o.get("latechk", True):
        for qi in range(NQ):
            for r in range(0, 16, 2):
                A(f"v_pk_fma_f32 v[{vna}:{vna+1}], v[{O[qi]+r}:{O[qi]+r+1}], v[{vz}:{vz+1}], v[{vna}:{vna+1}]")
    A(f"s_sub_u32 s{sO}, s{sO}, {NQ*65536}")
    A(f"""v_add_f32 v{vt3}, v{vna}, v{vna+1}
    v_cmp_u_f32 vcc, v{vt3}, v{vt3}
    s_nop 3
    s_cmp_lg_u64 vcc, 0
    s_cselect_b32 s{sT0}, 1, 0
    s_or_b32 s{sCnt}, s{sCnt}, s{sT0}
    {"s_waitcnt vmcnt(0)" if (FUSED and not WFL) else ""}
    s_cmp_eq_u32 s{sMode}, 1
    s_cbranch_scc1 L_{N}_{"done2" if FUSED else "done"}
    v_mov_b32 v{vt0}, s{sCnt}""")
    if WPRE:
        A(f"""s_lshl_b32 s{sT0}, s{sWave}, 2
        s_add_u32 s{sT0}, s{sT0}, {VOTE_LDS}
        v_mov_b32 v{vt1}, s{sT0}
        ds_write_b32 v{vt1}, v{vt0}
        v_mov_b32 v{vt1}, {VOTE_LDS}
        s_waitcnt lgkmcnt(0)
        s_barrier
        ds_read_b128 v[{K[1]}:{K[1]+3}], v{vt1}
        s_waitcnt lgkmcnt(0)
        v_or3_b32 v{vt0}, v{K[1]}, v{K[1]+1}, v{K[1]+2}
        v_or_b32 v{vt0}, v{vt0}, v{K[1]+3}
        s_nop 1""")
    else:
        A(f"""v_mov_b32 v{vt1}, {FLAG}
        ds_or_b32 v{vt1}, v{vt0}
        s_waitcnt lgkmcnt(0)
        s_barrier
        ds_read_b32 v{vt0}, v{vt1}
        s_waitcnt lgkmcnt(0)""")
    A(f"""v_readfirstlane_b32 s{sT0}, v{vt0}
    s_nop 3
    s_cmp_eq_u32 s{sT0}, 0
    s_cbranch_scc1 L_{N}_done
    """)
    A(f"""s_waitcnt vmcnt(0)
    s_mov_b32 s{sMode}, 1
    s_mov_b32 s{sCnt}, {NCH}
    """)
    init_acc()
    for i in range(NQ): A(f"v_mov_b32 v{vm[i]}, 0xff7fffff")
    A(f"""L_{N}_slow:
    s_barrier
    s_barrier
    v_mov_b32 v{vcur}, v{vl16}
    s_mov_b32 s{sNxt}, {TPC}
    L_{N}_slowt:""")
    for h in range(2): A(rK(0, vcur, 0, h))
    for h in range(2): A(rV(0, vcur, 0, h))
    A(f"v_add_u32 v{vcur}, 2048, v{vcur}")
    A("s_waitcnt lgkmcnt(0)")
    for qi in range(NQ):
        s = S[0]
        A(mf(s, K[0], Q[qi][0], None)); A(mf(s, K[0]+4, Q[qi][1], s))
        A("s_nop 7\ns_nop 3")
        A(f"v_max3_f32 v{vt0}, v{s}, v{s+1}, v{s+2}")
        for j in range(3, 15, 2): A(f"v_max3_f32 v{vt0}, v{vt0}, v{s+j}, v{s+j+1}")
        A(f"v_max_f32 v{vt0}, v{vt0}, v{s+15}")
        A(f"v_mov_b32 v{vt1}, v{vt0}")
        A("s_nop 1")
        A(f"v_permlane32_swap_b32 v{vt0}, v{vt1}")
        A(f"v_max3_f32 v{vt0}, v{vt0}, v{vt1}, v{vm[qi]}")
        A(f"v_sub_f32 v{val}, v{vm[qi]}, v{vt0}")
        A(f"v_exp_f32 v{val}, v{val}")
        A(f"v_mov_b32 v{vm[qi]}, v{vt0}")
        for r in range(16): A(f"v_sub_f32 v{s+r}, v{s+r}, v{vt0}")
        for r in range(16): A(f"v_exp_f32 v{s+r}, v{s+r}")
        for r in range(16): A(f"v_mul_f32 v{O[qi]+r}, v{O[qi]+r}, v{val}")
        for r in range(2): A(f"v_mul_f32 v{L[qi]+r}, v{L[qi]+r}, v{val}")
        for j in range(8): A(f"v_cvt_pk_bf16_f32 v{P[0]+j}, v{s+2*j}, v{s+2*j+1}")
        A("s_nop 1")
        A(mf(O[qi], V[0], P[0], O[qi])); A(mf(O[qi], V[0]+4, P[0]+4, O[qi])); A(sm(qi, 0))
        A("s_nop 7\ns_nop 7")
    A(f"""s_sub_u32 s{sNxt}, s{sNxt}, 1
    s_cmp_lg_u32 s{sNxt}, 0
    s_cbranch_scc1 L_{N}_slowt
    s_sub_u32 s{sCnt}, s{sCnt}, 1
    s_cmp_lg_u32 s{sCnt}, 0
    s_cbranch_scc1 L_{N}_slow
    s_branch L_{N}_fin
    """)
    if FUSED:
        A(f"""L_{N}_done2:
        s_barrier""")
    A(f"""L_{N}_done:""")
    if o.get("stamp"):
        A(f"""s_memtime s[44:45]
        s_memrealtime s[46:47]
        s_waitcnt lgkmcnt(0)
        s_sub_u32 s44, s44, s40
        s_sub_u32 s46, s46, s42
        s_sub_u32 s50, s50, s40
        s_sub_u32 s52, s52, s40
        s_lshr_b32 s50, s50, 2
        s_lshr_b32 s52, s52, 2
        s_lshl_b32 s52, s52, 16
        s_or_b32 s50, s50, s52
        s_lshl_b32 s48, s2, 3
        s_add_u32 s48, s48, s{sWave}
        s_lshl_b32 s48, s48, 4
        s_add_u32 s48, s48, {WS_END+65536}
        v_mov_b32 v{vt0}, s44
        v_mov_b32 v{vt1}, s46
        v_mov_b32 v{vt2}, s42
        v_mov_b32 v{vt3}, s50
        v_mov_b32 v{val}, 0
        buffer_store_dwordx4 v[{vt0}:{vt0+3}], v{val}, s[{sW}:{sW+3}], s48 offen""")
        if o.get("stamp2"):
            A(f"""s_sub_u32 s60, s60, s40
            s_sub_u32 s62, s62, s40
            s_sub_u32 s64, s64, s40
            s_sub_u32 s66, s66, s40
            s_add_u32 s48, s48, 64
            s_nop 1
            v_mov_b32 v{vt0}, s60
            v_mov_b32 v{vt1}, s62
            v_mov_b32 v{vt2}, s64
            v_mov_b32 v{vt3}, s66
            buffer_store_dwordx4 v[{vt0}:{vt0+3}], v{val}, s[{sW}:{sW+3}], s48 offen""")
    if WFL:
        rdn(P[0], vt0)
        flag_srd(A, 92, sWS)
        A(f"""s_lshl_b32 s{sT0}, s29, 4
        s_lshl_b32 s{sT1}, s30, 2
        s_add_u32 s{sT0}, s{sT0}, s{sT1}
        s_add_u32 s{sT0}, s{sT0}, s{sWave}
        s_lshl_b32 s{sT0}, s{sT0}, 5
        s_add_u32 s{sT0}, s{sT0}, s28""")
        if o.get("stamp4"):
            rt_stamp(A, 84); A("s_waitcnt vmcnt(0)"); rt_stamp(A, 85)
        flag_store(A, 92, P[0], vt0, sT0, FLG_A, 1, drain=True)
    elif FUSED:
        A(f"""s_cmp_lg_u32 s{S_WAVE}, 0
        s_cbranch_scc1 L_{N}_end""")
        rdn(S[0], vt0)
        flag_srd(A, 92, sWS)
        A(f"""s_lshl_b32 s{sT0}, s29, 2
        s_add_u32 s{sT0}, s{sT0}, s30
        s_lshl_b32 s{sT0}, s{sT0}, 5
        s_add_u32 s{sT0}, s{sT0}, s28""")
        flag_store(A, 92, S[0], vt0, sT0, FLG_A, 1)
    if FUSED:
        A(f"L_{N}_end:")
        if o.get("stamp3"):
            A(f"""s_lshl_b32 s84, s2, 3
            s_add_u32 s84, s84, s{S_WAVE}
            s_lshl_b32 s84, s84, 4
            s_add_u32 s84, s84, {WS_END + 196608}
            v_mov_b32 v{vt0}, s80
            v_mov_b32 v{vt1}, s81
            v_mov_b32 v{vt2}, s82
            v_mov_b32 v{vt3}, s83
            v_mov_b32 v{vt3+1}, s84
            s_mov_b64 exec, 1
            global_store_dwordx4 v{vt3+1}, v[{vt0}:{vt0+3}], s[{sWS}:{sWS+1}]
            s_mov_b64 exec, -1""")
        return A.text(), dict(name=name, nv=nv, lds=NSLOT*CH + 64)
    A(f"""L_{N}_end:
    s_endpgm""")
    txt = A.text() + kernel_desc(name, nv)
    return txt, dict(name=name, grid=256, block=512, lds=NSLOT*CH + 64, nv=nv)

if __name__ == "__main__":
    import hz
    from build import build
    t, i = gen_attn2(opts=dict(stamp=True))
    print(i)
    ps = hz.check_hazards(t)
    for p in ps[:30]: print(p)
    ws = hz.check_waits(t, i["name"], max_back=1)
    for p in ws[:30]: print(p)
    print(len(ps), len(ws))
    build([(t, i)], "attn2_only.s")
```

```python
class Asm:
    def __init__(self):
        self.lines = []
    def __call__(self, fmt, *a):
        for l in fmt.split("\n"):
            l = l.strip()
            if l: self.lines.append(("" if l.endswith(":") else "  ") + l)
    def label(self, name): self.lines.append(name + ":")
    def raw(self, s): self.lines.append(s)
    def comment(self, s): self.lines.append("  ; " + s)
    def text(self): return "\n".join(self.lines) + "\n"

def vr(base, n=1):
    return f"v{base}" if n == 1 else f"v[{base}:{base+n-1}]"
def sr(base, n=1):
    return f"s{base}" if n == 1 else f"s[{base}:{base+n-1}]"

class VAlloc:
    def __init__(self, start=0, limit=256):
        self.next = start; self.limit = limit; self.names = {}
    def get(self, name, n=1, align=1):
        if n >= 2 and align < 2: align = 2
        b = (self.next + align - 1) // align * align
        self.next = b + n
        assert self.next <= self.limit, f"out of vgprs at {name}"
        self.names[name] = (b, n)
        return b

def kernel_desc(name, vgpr, sgpr=102, accum=None):
    if accum is None: accum = (vgpr + 3) // 4 * 4
    return f""".section .rodata,"a"
.p2align 6
.amdhsa_kernel {name}
  .amdhsa_next_free_vgpr {vgpr}
  .amdhsa_next_free_sgpr {sgpr}
  .amdhsa_accum_offset {accum}
  .amdhsa_group_segment_fixed_size 0
  .amdhsa_kernarg_size 88
  .amdhsa_user_sgpr_count 2
  .amdhsa_user_sgpr_kernarg_segment_ptr 1
  .amdhsa_system_sgpr_workgroup_id_x 1
  .amdhsa_float_denorm_mode_32 3
.end_amdhsa_kernel
.text
"""
def kernel_head(name):
    return f""".globl {name}
.p2align 8
.type {name},@function
{name}:
"""

MB = 1 << 20
WS_QA  = 0
WS_QB  = 4 * MB
WS_KB  = 8 * MB
WS_VB  = 12 * MB
WS_KA  = 16 * MB
WS_VA  = 16 * MB + 131072
WS_OA  = 17 * MB
WS_OB  = 21 * MB
WS_END = 25 * MB
KA_AX, KA_AWQ, KA_AWK, KA_AWV, KA_AWO, KA_BX, KA_BWQKV, KA_BWO, KA_OUT, KA_DBG, KA_WS = [8*i for i in range(11)]

def code_prefetch(A, tag, base_label, nbytes, blk_sgpr, vt, vdum, lane, stmp):
    A(f"""s_getpc_b64 s[{stmp}:{stmp+1}]
    L_cp_{tag}:
    s_sub_u32 s{stmp}, s{stmp}, L_cp_{tag}-{base_label}
    s_subb_u32 s{stmp+1}, s{stmp+1}, 0
    v_lshlrev_b32 v{vt}, 7, v{lane}
    v_lshl_add_u32 v{vt}, s{blk_sgpr}, 13, v{vt}
    v_min_u32 v{vt}, L_code_end-{base_label}-4, v{vt}
    global_load_dword v{vdum}, v{vt}, s[{stmp}:{stmp+1}]""")

WS_FLG = 30 * MB
FLG_A = 262144
FLG_BYTES = FLG_A + 131072
NONCE_LDS = 153600
S_WAVE = 3
def flag_srd(A, srd, ptr):
    A(f"""s_add_u32 s{srd}, s{ptr}, {WS_FLG}
    s_addc_u32 s{srd+1}, s{ptr+1}, 0
    s_and_b32 s{srd+1}, s{srd+1}, 0xffff
    s_mov_b32 s{srd+2}, {FLG_BYTES}
    s_mov_b32 s{srd+3}, 0x20000""")
def read_nonce(A, vn, vt):
    A(f"""v_mov_b32 v{vt}, {NONCE_LDS}
    ds_read_b64 v[{vn}:{vn+1}], v{vt}
    s_waitcnt lgkmcnt(0)""")
FLAG_ST = "sc0 sc1"
FLAG_LD = "sc0 sc1"
def set_flag_policy(st, ld):
    global FLAG_ST, FLAG_LD
    FLAG_ST, FLAG_LD = st, ld
def flag_store(A, srd, vn, vt, st, base, nlines=1, drain=False):
    A(f"""s_mul_i32 s{st}, s{st}, {128*nlines}
    s_add_u32 s{st}, s{st}, {base}
    v_mbcnt_lo_u32_b32 v{vt}, -1, 0
    v_mbcnt_hi_u32_b32 v{vt}, -1, v{vt}
    v_mov_b32 v{vn+2}, v{vn}
    v_mov_b32 v{vn+3}, v{vn+1}
    v_lshlrev_b32 v{vt}, 4, v{vt}""")
    if drain: A("s_waitcnt vmcnt(0)")
    if nlines < 8: A(f"s_mov_b64 exec, {(1 << (8*nlines)) - 1}")
    A(f"buffer_store_dwordx4 v[{vn}:{vn+3}], v{vt}, s[{srd}:{srd+3}], s{st} offen {FLAG_ST}")
    if nlines < 8: A("s_mov_b64 exec, -1")
def flag_poll(A, tag, srd, vn, voff, vc, scnt, first=None):
    if first:
        A(f"""s_mov_b32 exec_lo, {first[1]}
        s_mov_b32 exec_hi, {first[0]}
        s_mov_b32 s{scnt}, 400000
        L_poll_{tag}_a:
        buffer_load_dwordx2 v[{vc}:{vc+1}], v{voff}, s[{srd}:{srd+3}], 0 offen {FLAG_LD}
        s_waitcnt vmcnt(0)
        v_cmp_ne_u64 vcc, v[{vc}:{vc+1}], v[{vn}:{vn+1}]
        s_sub_u32 s{scnt}, s{scnt}, 1
        s_nop 2
        s_cmp_eq_u64 vcc, 0
        s_cbranch_scc1 L_poll_{tag}_aok
        s_cmp_lg_u32 s{scnt}, 0
        s_cbranch_scc1 L_poll_{tag}_a
        L_poll_{tag}_aok:
        s_mov_b64 exec, -1""")
    A(f"""s_mov_b32 s{scnt}, 400000
    L_poll_{tag}:
    buffer_load_dwordx2 v[{vc}:{vc+1}], v{voff}, s[{srd}:{srd+3}], 0 offen {FLAG_LD}
    s_waitcnt vmcnt(0)
    v_cmp_ne_u64 vcc, v[{vc}:{vc+1}], v[{vn}:{vn+1}]
    s_sub_u32 s{scnt}, s{scnt}, 1
    s_nop 2
    s_cmp_eq_u64 vcc, 0
    s_cbranch_scc1 L_poll_{tag}_ok
    s_cmp_lg_u32 s{scnt}, 0
    s_cbranch_scc1 L_poll_{tag}
    L_poll_{tag}_ok:""")

def rt_stamp(A, dst):
    A(f"""s_memrealtime s[88:89]
    s_waitcnt lgkmcnt(0)
    s_mov_b32 s{dst}, s88""")

def flag_poll2(A, tag, srd, vn, voff, vres, scnt, R, lds=None, nrd=1):
    A(f"v_mov_b32 v{voff+1}, {NONCE_LDS if lds is None else lds}")
    if lds is not None:
        A(f"ds_write_b64 v{voff+1}, v[{vn}:{vn+1}]")
    for i in range(2*R): A(f"v_mov_b32 v{vres+i}, 0")
    A(f"""s_mov_b32 s{scnt}, {400000 // R}
    L_poll_{tag}:""")
    for i in range(R):
        r = vres + 2*i
        for _ in range(nrd - 1): A(f"ds_read_b64 v[{vn}:{vn+1}], v{voff+1}\ns_waitcnt lgkmcnt(0)")
        A(f"""ds_read_b64 v[{vn}:{vn+1}], v{voff+1}
        s_waitcnt vmcnt({R-1}) lgkmcnt(0)
        v_cmp_ne_u64 vcc, v[{r}:{r+1}], v[{vn}:{vn+1}]
        s_nop 3
        s_and_b64 exec, exec, vcc
        s_cbranch_scc0 L_poll_{tag}_ok
        buffer_load_dwordx2 v[{r}:{r+1}], v{voff}, s[{srd}:{srd+3}], 0 offen {FLAG_LD}""")
    A(f"""s_sub_u32 s{scnt}, s{scnt}, 1
    s_cmp_lg_u32 s{scnt}, 0
    s_cbranch_scc1 L_poll_{tag}
    L_poll_{tag}_ok:
    s_mov_b64 exec, -1""")

S_NONCE = 100
LDS_FULL = 163840
O_XSLOTS, O_WSLOTS, O_WOFF = 4, 6, 65536
def set_orings(nx, nw):
    global O_XSLOTS, O_WSLOTS, O_WOFF
    O_XSLOTS, O_WSLOTS, O_WOFF = nx, nw, nx*16384
def orings(): return O_XSLOTS, O_WSLOTS, O_WOFF
VOTE_LDS = 32768
def nonce_to_sgpr(A, vn, vt):
    A(f"""v_mov_b32 v{vt}, {NONCE_LDS}
    ds_read_b64 v[{vn}:{vn+1}], v{vt}
    s_waitcnt lgkmcnt(0)
    v_readfirstlane_b32 s{S_NONCE}, v{vn}
    v_readfirstlane_b32 s{S_NONCE+1}, v{vn+1}""")
def nonce_from_sgpr(A, vn):
    A(f"""v_mov_b32 v{vn}, s{S_NONCE}
    v_mov_b32 v{vn+1}, s{S_NONCE+1}""")
def ow_srd(A, srd, ptrA, ptrB, t0, t1):
    A(f"""s_bitcmp1_b32 s2, 2
    s_cselect_b32 s{srd}, s{ptrB}, s{ptrA}
    s_cselect_b32 s{srd+1}, s{ptrB+1}, s{ptrA+1}
    s_lshr_b32 s{t0}, s2, 6
    s_and_b32 s{t0}, s{t0}, 3
    s_and_b32 s{t1}, s2, 1
    s_lshl_b32 s{t1}, s{t1}, 2
    s_add_u32 s{t0}, s{t0}, s{t1}
    s_lshl_b32 s{t0}, s{t0}, 8
    s_add_u32 s{srd}, s{srd}, s{t0}
    s_addc_u32 s{srd+1}, s{srd+1}, 0
    s_and_b32 s{srd+1}, s{srd+1}, 0xffff
    s_sub_u32 s{srd+2}, {1024*2048}, s{t0}
    s_mov_b32 s{srd+3}, 0x20000""")
def ow_lanes(A, vLW, l, sw, st, vt0, vt1, vt2):
    for i in range(4):
        A(f"""v_lshrrev_b32 v{vt0}, 4, v{l}
        s_lshl_b32 s{st}, s{sw}, 4
        s_add_u32 s{st}, s{st}, {4*i}
        v_add_u32 v{vt0}, s{st}, v{vt0}
        v_and_b32 v{vt1}, 7, v{vt0}
        v_lshlrev_b32 v{vt1}, 1, v{vt1}
        v_and_b32 v{vt2}, 15, v{l}
        v_xor_b32 v{vt1}, v{vt1}, v{vt2}
        v_lshlrev_b32 v{vt1}, 4, v{vt1}
        v_lshl_add_u32 v{vLW+i}, v{vt0}, 11, v{vt1}""")
def o_rot(A, srot, step):
    A(f"s_bfe_u32 s{srot}, s2, 0x20006\ns_mul_i32 s{srot}, s{srot}, {step}")
def ow_dma(A, srd, vLW, sm0w, st_tmp, ldsoff, stage, srot=None):
    A(f"s_add_u32 m0, s{sm0w}, {ldsoff}")
    if srot is None: A(f"s_mov_b32 s{st_tmp}, {stage*64*2048}")
    else: A(f"s_add_u32 s{st_tmp}, s{srot}, {stage}\ns_and_b32 s{st_tmp}, s{st_tmp}, 15\ns_lshl_b32 s{st_tmp}, s{st_tmp}, 17")
    for i in range(4):
        if i: A("s_add_u32 m0, m0, 1024\ns_nop 0")
        A(f"buffer_load_dwordx4 v{vLW+i}, s[{srd}:{srd+3}], s{st_tmp} offen lds")

def flag_poll3(A, tag, srd, vn, voff, vc, scnt, first=None):
    def loop(t):
        A(f"""s_mov_b32 s{scnt}, 400000
        L_poll_{t}:
        buffer_load_dwordx2 v[{vc}:{vc+1}], v{voff}, s[{srd}:{srd+3}], 0 offen {FLAG_LD}
        s_waitcnt vmcnt(0)
        v_cmp_ne_u64 vcc, v[{vc}:{vc+1}], v[{vn}:{vn+1}]
        s_sub_u32 s{scnt}, s{scnt}, 1
        s_nop 2
        s_and_b64 exec, exec, vcc
        s_cbranch_scc0 L_poll_{t}_ok
        s_cmp_lg_u32 s{scnt}, 0
        s_cbranch_scc1 L_poll_{t}
        L_poll_{t}_ok:""")
    if first:
        A(f"s_mov_b32 exec_lo, {first[1]}\ns_mov_b32 exec_hi, {first[0]}")
        loop(tag + "_a")
        A(f"s_mov_b32 exec_lo, {~first[1] & 0xffffffff}\ns_mov_b32 exec_hi, {~first[0] & 0xffffffff}")
    loop(tag)
    A("s_mov_b64 exec, -1")

def code_touch(A, tag, label, vt, vdum, lane16, sw, stmp, end="L_code_end"):
    A(f"""s_getpc_b64 s[{stmp}:{stmp+1}]
    L_ct_{tag}:
    s_add_u32 s{stmp}, s{stmp}, {label}-L_ct_{tag}
    s_addc_u32 s{stmp+1}, s{stmp+1}, 0
    v_lshlrev_b32 v{vt}, 3, v{lane16}
    v_lshl_add_u32 v{vt}, s{sw}, 13, v{vt}
    v_min_u32 v{vt}, {end}-{label}-4, v{vt}
    global_load_dword v{vdum}, v{vt}, s[{stmp}:{stmp+1}]""")
```

```python
from kgen import *

def gen_oproj(name="oproj_kernel", NS=4, opts=None):
    o = opts or {}
    A = Asm()
    SLOT = 32768
    WOFF = 16384
    NST = 16
    OUT_BYTES = 2048*2048*2
    va = VAlloc(0)
    vtid = va.get("tid"); vt0 = va.get("t0"); vt1 = va.get("t1"); vt2 = va.get("t2"); vt3 = va.get("t3"); vt4 = va.get("t4")
    vOA = va.get("oa")
    vWA = [va.get(f"wa{i}") for i in range(4)]
    vst = va.get("st")
    vdum = va.get("dum"); vpf = va.get("pf")
    acc = [[va.get(f"acc{t}{c}", 4, 4) for c in range(4)] for t in range(4)]
    of = [[va.get(f"of{b}{t}", 4, 4) for t in range(4)] for b in range(2)]
    wf = [[va.get(f"wf{b}{c}", 4, 4) for c in range(4)] for b in range(2)]
    nv = va.next
    vLO = of[0][0]; vLW = of[0][1]
    sO, sWd, sOut = 8, 12, 16
    sWave, sBr, sRB, sCB = 24, 25, 26, 27
    sT0, sT1, sT2, sT3 = 30, 31, 32, 33
    sCnt, sDelta, sSlot, sOo, sWo, sM0o, sM0w, sSt, sCneg = 34, 35, 36, 37, 38, 40, 41, 43, 45
    sP = 48
    N = name; l = vtid
    FUSED = o.get("fused")
    WPRE = FUSED and o.get("wpre")
    O_XSLOTS, O_WSLOTS, O_WOFF = orings()
    PIPE = o.get("pipe")
    if WPRE: WOFF = O_WOFF
    if FUSED: A("L_oproj_code:")
    if not FUSED:
        A.raw(kernel_head(name).rstrip("\n"))
        A(f"s_cmp_ge_u32 s2, 256\ns_cbranch_scc1 L_{N}_end")
    A(f"""s_load_dwordx2 s[{sP}:{sP+1}], s[0:1], {KA_WS}
    s_load_dwordx2 s[{sP+2}:{sP+3}], s[0:1], {KA_AWO}
    s_load_dwordx2 s[{sP+4}:{sP+5}], s[0:1], {KA_BWO}
    s_load_dwordx2 s[{sP+6}:{sP+7}], s[0:1], {KA_OUT}""")
    if FUSED: A(f"s_mov_b32 s{sWave}, s{S_WAVE}")
    else:
        A(f"""v_lshrrev_b32 v{vt0}, 6, v{vtid}
        v_and_b32 v{vtid}, 63, v{vtid}
        v_readfirstlane_b32 s{sWave}, v{vt0}""")
    A(f"""
    s_and_b32 s{sT0}, s2, 7               ; xcd
    s_lshr_b32 s{sT1}, s2, 3              ; sl
    s_lshr_b32 s{sBr}, s{sT0}, 2
    s_bfe_u32 s{sT2}, s{sT0}, 0x10001     ; rowhalf
    s_lshl_b32 s{sT2}, s{sT2}, 3
    s_and_b32 s{sRB}, s{sT1}, 7
    s_add_u32 s{sRB}, s{sRB}, s{sT2}
    s_and_b32 s{sT2}, s{sT0}, 1
    s_lshl_b32 s{sT2}, s{sT2}, 2
    s_lshr_b32 s{sCB}, s{sT1}, 3
    s_add_u32 s{sCB}, s{sCB}, s{sT2}
    s_waitcnt lgkmcnt(0)
    s_mul_i32 s{sT0}, s{sBr}, {WS_OB-WS_OA}
    s_lshl_b32 s{sT1}, s{sRB}, 18
    s_add_u32 s{sT0}, s{sT0}, s{sT1}
    s_add_u32 s{sT0}, s{sT0}, {WS_OA}
    s_add_u32 s{sO}, s{sP}, s{sT0}
    s_addc_u32 s{sO+1}, s{sP+1}, 0
    s_and_b32 s{sO+1}, s{sO+1}, 0xffff
    s_mov_b32 s{sO+2}, 262144
    s_mov_b32 s{sO+3}, 0x20000
    s_cmp_eq_u32 s{sBr}, 0
    s_cselect_b32 s{sT2}, s{sP+2}, s{sP+4}
    s_cselect_b32 s{sT3}, s{sP+3}, s{sP+5}
    s_lshl_b32 s{sT0}, s{sCB}, 8
    s_add_u32 s{sWd}, s{sT2}, s{sT0}
    s_addc_u32 s{sWd+1}, s{sT3}, 0
    s_and_b32 s{sWd+1}, s{sWd+1}, 0xffff
    s_sub_u32 s{sWd+2}, {1024*2048}, s{sT0}
    s_mov_b32 s{sWd+3}, 0x20000
    s_mov_b32 s{sOut}, s{sP+6}
    s_and_b32 s{sOut+1}, s{sP+7}, 0xffff
    s_mov_b32 s{sOut+2}, {OUT_BYTES}
    s_mov_b32 s{sOut+3}, 0x20000
    """)
    if o.get("stamp"): A("s_memtime s[60:61]\ns_memrealtime s[62:63]\ns_waitcnt lgkmcnt(0)")
    A(f"""s_cmp_lt_u32 s{sWave}, 4
    s_cbranch_scc1 L_{N}_compute""")
    PER = 8
    A(f"""L_{N}_loader:
    s_sub_u32 s{sWave}, s{sWave}, 4
    s_lshl_b32 s{sT0}, s{sWave}, 16
    v_lshlrev_b32 v{vLO}, 4, v{l}
    v_add_u32 v{vLO}, s{sT0}, v{vLO}
    """)
    for i in range(4):
        A(f"""v_lshrrev_b32 v{vt0}, 4, v{l}
        s_lshl_b32 s{sT0}, s{sWave}, 4
        s_add_u32 s{sT0}, s{sT0}, {4*i}
        v_add_u32 v{vt0}, s{sT0}, v{vt0}
        v_and_b32 v{vt1}, 7, v{vt0}
        v_lshlrev_b32 v{vt1}, 1, v{vt1}
        v_and_b32 v{vt2}, 15, v{l}
        v_xor_b32 v{vt1}, v{vt1}, v{vt2}
        v_lshlrev_b32 v{vt1}, 4, v{vt1}
        v_lshl_add_u32 v{vLW+i}, v{vt0}, 11, v{vt1}""")
    A(f"""s_mov_b32 s{sOo}, 0
    s_mov_b32 s{sWo}, 0
    s_lshl_b32 s{sM0o}, s{sWave}, 12
    s_add_u32 s{sM0w}, s{sM0o}, {WOFF}
    s_mov_b32 s{sSlot}, 0""")
    def dma():
        A(f"s_add_u32 m0, s{sSlot}, s{sM0o}")
        A("s_nop 0")
        for i in range(4):
            A(f"buffer_load_dwordx4 v{vLO}, s[{sO}:{sO+3}], s{sOo} offen offset:{i*1024} lds")
        A(f"s_add_u32 m0, s{sSlot}, s{sM0w}")
        for i in range(4):
            A("s_nop 0" if i == 0 else "s_add_u32 m0, m0, 1024")
            if i: A("s_nop 0")
            A(f"buffer_load_dwordx4 v{vLW+i}, s[{sWd}:{sWd+3}], s{sWo} offen lds")
        A(f"""s_add_u32 s{sOo}, s{sOo}, 4096
        s_add_u32 s{sWo}, s{sWo}, {64*2048}
        s_add_u32 s{sSlot}, s{sSlot}, {SLOT}
        s_cmp_eq_u32 s{sSlot}, {NS*SLOT}
        s_cselect_b32 s{sSlot}, 0, s{sSlot}""")
    def dma_w(slot, st):
        A(f"s_add_u32 m0, s{sM0w}, {slot*SLOT}")
        A(f"s_mov_b32 s{sT0}, {st*64*2048}")
        for i in range(4):
            if i: A("s_add_u32 m0, m0, 1024\ns_nop 0")
            A(f"buffer_load_dwordx4 v{vLW+i}, s[{sWd}:{sWd+3}], s{sT0} offen lds")
    def dma_o(slot, st):
        A(f"s_add_u32 m0, s{sM0o}, {slot*SLOT}")
        A(f"s_mov_b32 s{sT0}, {st*4096}")
        for i in range(4):
            A(f"buffer_load_dwordx4 v{vLO}, s[{sO}:{sO+3}], s{sT0} offen offset:{i*1024} lds")
    if WPRE:
        NX, NW = O_XSLOTS, O_WSLOTS
        OR = o.get("orot")
        if OR: o_rot(A, 60, OR)
        def dx(st):
            A(f"s_add_u32 m0, s{sM0o}, {(st % NX)*16384}")
            if OR: A(f"s_add_u32 s{sT0}, s60, {st}\ns_and_b32 s{sT0}, s{sT0}, 15\ns_lshl_b32 s{sT0}, s{sT0}, 12")
            else: A(f"s_mov_b32 s{sT0}, {st*4096}")
            for i in range(4):
                A(f"buffer_load_dwordx4 v{vLO}, s[{sO}:{sO+3}], s{sT0} offen offset:{i*1024} lds")
        def dw(st): ow_dma(A, sWd, vLW, sM0w, sT0, (st % NW)*16384, st, 60 if OR else None)
        vn, vc, vo = acc[0][0], acc[0][1], acc[0][2]
        A(f"""s_cmp_lg_u32 s{sWave}, 0
        s_cbranch_scc1 L_{N}_nopoll""")
        if o.get("stamp4"): rt_stamp(A, 84)
        nonce_from_sgpr(A, vn)
        flag_srd(A, 92, sP)
        if o.get("wflag"):
            A(f"""; index = (br*16 + row block)*32 + head, head = lane&31
            s_lshl_b32 s{sT0}, s{sBr}, 4
            s_add_u32 s{sT0}, s{sT0}, s{sRB}""")
        else:
            A(f"""; index = (br*4 + qb)*32 + head, head = lane&31
            s_lshl_b32 s{sT0}, s{sBr}, 2
            s_lshr_b32 s{sT1}, s{sRB}, 2
            s_add_u32 s{sT0}, s{sT0}, s{sT1}""")
        A(f"""v_and_b32 v{vt0}, 31, v{l}
        s_lshl_b32 s{sT0}, s{sT0}, 12
        s_add_u32 s{sT0}, s{sT0}, {FLG_A}
        v_lshl_add_u32 v{vo}, v{vt0}, 7, s{sT0}""")
        if o.get("pollr"): flag_poll2(A, N, 92, vn, vo, acc[1][0], sCnt, o["pollr"], lds=49152+8192, nrd=o.get("pollrd", 1))
        elif o.get("poll3"): flag_poll3(A, N, 92, vn, vo, vc, sCnt, first=o.get("pollfirst"))
        else: flag_poll(A, N, 92, vn, vo, vc, sCnt, first=o.get("pollfirst"))
        if o.get("stamp4"):
            rt_stamp(A, 85); A(f"s_mov_b32 s86, s{sCnt}")
        A(f"""L_{N}_nopoll:
        s_barrier""")
        npre = o.get("npre", 1)
        order = []
        def issue(kind, st):
            (dx if kind == "x" else dw)(st); order.append((kind, st))
        def wait_for(st):
            need = [i for i, (k, s_) in enumerate(order) if s_ <= st]
            n = len(order) - 1 - max(need) if need else len(order)
            A(f"s_waitcnt vmcnt({min(4*n, 63)})")
        for st in range(npre): issue("x", st)
        wait_for(0)
        if o.get("stamp4"): rt_stamp(A, 87)
        A("s_barrier")
        for st in range(npre, NX): issue("x", st)
        for st in range(NST-1):
            if "nobar" in o.get("abl", ""): break
            wait_for(st+1); A("s_barrier")
            if "nodma" in o.get("abl", ""): continue
            rel = st - 1 if (PIPE and not o.get("earlyrel")) else st
            if rel < 0: continue
            if rel + NX < NST: issue("x", rel + NX)
            if rel + NW < NST and "nodw" not in o.get("abl", ""): issue("w", rel + NW)
        if o.get("stamp4"):
            A(f"""s_lshl_b32 s90, s2, 3
            s_add_u32 s90, s90, s{S_WAVE}
            s_lshl_b32 s90, s90, 4
            s_add_u32 s90, s90, {WS_END + 196608}
            v_mov_b32 v{acc[0][0]}, s84
            v_mov_b32 v{acc[0][0]+1}, s85
            v_mov_b32 v{acc[0][0]+2}, s86
            v_mov_b32 v{acc[0][0]+3}, s87
            v_mov_b32 v{vt4}, s90
            s_mov_b64 exec, 1
            global_store_dwordx4 v{vt4}, v[{acc[0][0]}:{acc[0][0]+3}], s[{sP}:{sP+1}]
            s_mov_b64 exec, -1""")
        A(f"s_branch L_{N}_end")
    elif FUSED:
        assert NS == 4
        for st in range(NS): dma_w(st, st)
        vn, vc, vo = acc[0][0], acc[0][1], acc[0][2]
        A(f"""s_cmp_lg_u32 s{sWave}, 0
        s_cbranch_scc1 L_{N}_nopoll""")
        read_nonce(A, vn, vt0)
        flag_srd(A, 92, sP)
        A(f"""; index = (br*4 + qb)*32 + head, head = lane&31
        v_and_b32 v{vt0}, 31, v{l}
        s_lshl_b32 s{sT0}, s{sBr}, 2
        s_lshr_b32 s{sT1}, s{sRB}, 2
        s_add_u32 s{sT0}, s{sT0}, s{sT1}
        s_lshl_b32 s{sT0}, s{sT0}, 12
        s_add_u32 s{sT0}, s{sT0}, {FLG_A}
        v_lshl_add_u32 v{vo}, v{vt0}, 7, s{sT0}""")
        if o.get("pollr", 0): flag_poll2(A, N, 92, vn, vo, acc[1][0], sCnt, o["pollr"])
        else: flag_poll(A, N, 92, vn, vo, vc, sCnt)
        A(f"""L_{N}_nopoll:
        s_barrier""")
        npre = o.get("npre", 1)
        for st in range(npre): dma_o(st, st)
        A(f"s_waitcnt vmcnt({4*(npre-1)})\ns_barrier")
        for st in range(npre, NS): dma_o(st, st)
        A(f"""s_mov_b32 s{sOo}, {NS*4096}
        s_mov_b32 s{sWo}, {NS*64*2048}
        s_waitcnt vmcnt(8)
        s_barrier""")
        dma()
        A("s_waitcnt vmcnt(12)\ns_barrier")
        dma()
        A(f"s_mov_b32 s{sCnt}, {NST-NS-2}")
    else:
        dma()
        A("s_waitcnt vmcnt(0)\ns_barrier")
        for _ in range(NS-1): dma()
        A(f"s_mov_b32 s{sCnt}, {NST-NS}")
    if not WPRE:
        A(f"L_{N}_ld_loop:")
        A(f"s_waitcnt vmcnt({(NS-2)*PER})\ns_barrier")
        dma()
        A(f"""s_sub_u32 s{sCnt}, s{sCnt}, 1
        s_cmp_lg_u32 s{sCnt}, 0
        s_cbranch_scc1 L_{N}_ld_loop""")
        for j in range(NS-1):
            A(f"s_waitcnt vmcnt({(NS-2-j)*PER})\ns_barrier")
        A(f"s_branch L_{N}_end")
    A(f"""L_{N}_compute:
    s_lshr_b32 s{sT0}, s{sWave}, 1        ; wm
    s_and_b32 s{sT1}, s{sWave}, 1         ; wn
    v_and_b32 v{vt0}, 15, v{l}            ; n / i
    v_lshrrev_b32 v{vt1}, 4, v{l}         ; g
    v_lshlrev_b32 v{vOA}, 9, v{vt1}
    v_lshl_add_u32 v{vOA}, v{vt0}, 4, v{vOA}
    s_lshl_b32 s{sT2}, s{sT0}, 13
    v_add_u32 v{vOA}, s{sT2}, v{vOA}
    ; W address: k = 16(g>>1) + 4(g&1) + (i>>2) ; f = (4(g&1) + (i>>2))<<1
    v_lshrrev_b32 v{vt2}, 2, v{vt0}
    v_and_b32 v{vt3}, 1, v{vt1}
    v_lshl_or_b32 v{vt2}, v{vt3}, 2, v{vt2}       ; k&7
    v_lshrrev_b32 v{vt3}, 1, v{vt1}
    v_lshl_add_u32 v{vt4}, v{vt3}, 4, v{vt2}      ; k
    v_lshlrev_b32 v{vt4}, 8, v{vt4}               ; k*256
    v_lshlrev_b32 v{vt2}, 1, v{vt2}               ; f
    v_and_b32 v{vt3}, 1, v{vt0}
    v_lshl_add_u32 v{vt4}, v{vt3}, 3, v{vt4}      ; + 8*(i&1)
    v_add_u32 v{vt4}, {WOFF}, v{vt4}
    v_bfe_u32 v{vt3}, v{vt0}, 1, 1
    s_lshl_b32 s{sT2}, s{sT1}, 3
    v_add_u32 v{vt3}, s{sT2}, v{vt3}              ; 8wn + ((i&3)>>1)
    """)
    for ct in range(4):
        A(f"""v_add_u32 v{vWA[ct]}, {2*ct}, v{vt3}
        v_xor_b32 v{vWA[ct]}, v{vWA[ct]}, v{vt2}
        v_lshl_add_u32 v{vWA[ct]}, v{vWA[ct]}, 4, v{vt4}""")
    FULL = o.get("fullst")
    A(f"""; store: n*4096 + (g&1)*32 + (g>>1)*16   (whole-line form: (n&7)*4096 + (n>>3)*64 + ..)
    v_and_b32 v{vt2}, 1, v{vt1}
    v_lshlrev_b32 v{vt2}, 5, v{vt2}
    v_lshrrev_b32 v{vt3}, 1, v{vt1}
    v_lshl_add_u32 v{vt2}, v{vt3}, 4, v{vt2}
    {f"v_lshrrev_b32 v{vt3}, 3, v{vt0}" if FULL else ""}
    {f"v_lshl_add_u32 v{vt2}, v{vt3}, 6, v{vt2}" if FULL else ""}
    {f"v_and_b32 v{vt3}, 7, v{vt0}" if FULL else f"v_mov_b32 v{vt3}, v{vt0}"}
    v_lshl_add_u32 v{vst}, v{vt3}, 12, v{vt2}
    s_lshl_b32 s{sSt}, s{sRB}, 19
    s_lshl_b32 s{sT2}, s{sT0}, 18
    s_add_u32 s{sSt}, s{sSt}, s{sT2}
    s_lshl_b32 s{sT2}, s{sBr}, 11
    s_add_u32 s{sSt}, s{sSt}, s{sT2}
    s_lshl_b32 s{sT2}, s{sCB}, 8
    s_add_u32 s{sSt}, s{sSt}, s{sT2}
    s_lshl_b32 s{sT2}, s{sT1}, 7
    s_add_u32 s{sSt}, s{sSt}, s{sT2}
    s_mov_b32 s{sCneg}, {(-(NS-1)*SLOT) & 0xffffffff}
    s_mov_b32 s{sSlot}, 0
    """)
    sSlotW, sDeltaW = 46, 47
    sNegX, sNegW = 57, 58
    if WPRE: A(f"""s_mov_b32 s{sSlotW}, 0
    s_mov_b32 s{sNegX}, {(-(O_XSLOTS-1)*16384) & 0xffffffff}
    s_mov_b32 s{sNegW}, {(-(O_WSLOTS-1)*16384) & 0xffffffff}""")
    for t in range(4):
        for c in range(4):
            for r in range(4): A(f"v_mov_b32 v{acc[t][c]+r}, 0")
    XPF = o.get("xpf", 0)
    if XPF:
        A(f"""v_lshrrev_b32 v{vt2}, 5, v{l}
        v_and_b32 v{vt3}, 31, v{l}
        v_lshlrev_b32 v{vt3}, 7, v{vt3}
        v_lshl_add_u32 v{vpf}, v{vt2}, 12, v{vt3}
        s_and_b32 s{sT2}, s{sCB}, 3
        s_lshl_b32 s{sT2}, s{sT2}, 16
        s_lshl_b32 s{sT3}, s{sWave}, 13
        s_add_u32 s{sT2}, s{sT2}, s{sT3}
        s_add_u32 s{sT3}, s{sT2}, 32768""")
    if FUSED: A("s_barrier")
    def xtouch(first, second=True):
        if first < 4:
            if first: A(f"s_cmp_lt_u32 s{sWave}, {first}\ns_cbranch_scc1 L_{N}_nopf0")
            A(f"buffer_load_dword v{vdum}, v{vpf}, s[{sO}:{sO+3}], s{sT2} offen")
            if first: A(f"L_{N}_nopf0:")
        if second: A(f"buffer_load_dword v{vdum}, v{vpf}, s[{sO}:{sO+3}], s{sT3} offen")
    if XPF == 1: xtouch(0)
    if XPF == 2: xtouch(1)
    A("s_barrier")
    if XPF == 3: xtouch(2)
    if XPF == 4: xtouch(4)
    if XPF == 5: xtouch(2, False)
    def rdO(tt, ks, par):
        r = of[par][tt]
        return f"ds_read_b128 v[{r}:{r+3}], v{vOA} offset:{(tt>>1)*4096 + ks*2048 + (tt&1)*256}"
    def rdW(ct, q, ks, par):
        r = wf[par][ct] + 2*q
        return f"ds_read_b64_tr_b16 v[{r}:{r+1}], v{vWA[ct]} offset:{ks*8192 + q*2048}"
    def mf(d, a, b): return f"v_mfma_f32_16x16x32_bf16 v[{d}:{d+3}], v[{a}:{a+3}], v[{b}:{b+3}], v[{d}:{d+3}]"
    def step(ks, nxt, inter=(), early=()):
        par = ks; npar = ks ^ 1; nks = ks ^ 1
        reads = []
        if nxt:
            reads = [rdW(0,0,nks,npar), rdW(0,1,nks,npar), rdO(0,nks,npar), rdW(1,0,nks,npar), rdW(1,1,nks,npar), rdO(1,nks,npar),
                     rdW(2,0,nks,npar), rdW(2,1,nks,npar), rdO(2,nks,npar), rdW(3,0,nks,npar), rdW(3,1,nks,npar), rdO(3,nks,npar)]
        ab = o.get("abl", "")
        if "now" in ab: reads = [x if "tr_b16" not in x else "s_nop 0" for x in reads]
        if "nox" in ab: reads = [x if "b128" not in x else "s_nop 0" for x in reads]
        inter = list(inter)
        m = 0
        for tt in range(4):
            for ct in range(4):
                A(mf(acc[tt][ct], wf[par][ct], of[par][tt]))
                if m < 6:
                    for x in reads[2*m:2*m+2]: A(x)
                elif m < 8:
                    for x in early[(m-6)*((len(early)+1)//2):(m-5)*((len(early)+1)//2)]: A(x)
                elif inter: A(inter.pop(0))
                m += 1
        for x in inter: A(x)
    def rd_order(ks, par):
        return [rdW(0,0,ks,par), rdW(0,1,ks,par), rdO(0,ks,par), rdW(1,0,ks,par), rdW(1,1,ks,par), rdW(2,0,ks,par), rdW(2,1,ks,par),
                rdW(3,0,ks,par), rdW(3,1,ks,par), rdO(1,ks,par), rdO(2,ks,par), rdO(3,ks,par)]
    def pstep(ks, nxt, early=(), late=(), pre=None):
        par = ks
        reads = rd_order(ks ^ 1, ks ^ 1) if nxt else []
        early = list(early); late = list(late)
        rpos = o.get("rpos", list(range(12)))
        nrd = 0
        for m in range(16):
            tt, ct = m >> 2, m & 3
            if m % 4 == 0:
                left = 3 - (m >> 2)
                A(f"s_waitcnt lgkmcnt({left + nrd})")
                if m == 0 and pre: A(pre)
            A(mf(acc[tt][ct], wf[par][ct], of[par][tt]))
            k = 0
            while nrd < len(reads) and rpos[nrd] == m:
                A(reads[nrd]); nrd += 1; k += 1
            if early and (m % 4 != 3) and k < 2: A(early.pop(0))
            if m > max(rpos):
                for _ in range(2):
                    if late: A(late.pop(0))
        assert not early and not late, (early, late)
    if PIPE:
        for x in rd_order(0, 0): A(x)
    else:
        for ct in range(4):
            for q in range(2): A(rdW(ct, q, 0, 0))
        for tt in range(4): A(rdO(tt, 0, 0))
    A(f"s_mov_b32 s{sCnt}, {NST-1}")
    if o.get("stamp"): A("s_memtime s[70:71]")
    A(f".p2align 6\nL_{N}_loop:")
    if not PIPE: A("s_waitcnt lgkmcnt(0)")
    HID = o.get("hide", True)
    if WPRE:
        rot = f"""s_add_u32 s{sSlot}, s{sSlot}, 1
        s_cmp_eq_u32 s{sSlot}, {O_XSLOTS}
        s_cselect_b32 s{sDelta}, s{sNegX}, 16384
        s_cselect_b32 s{sSlot}, 0, s{sSlot}
        s_add_u32 s{sSlotW}, s{sSlotW}, 1
        s_cmp_eq_u32 s{sSlotW}, {O_WSLOTS}
        s_cselect_b32 s{sDeltaW}, s{sNegW}, 16384
        s_cselect_b32 s{sSlotW}, 0, s{sSlotW}"""
        vadds = [f"v_add_u32 v{vOA}, s{sDelta}, v{vOA}"] + [f"v_add_u32 v{r}, s{sDeltaW}, v{r}" for r in vWA]
    else:
        rot = f"""s_add_u32 s{sSlot}, s{sSlot}, 1
        s_cmp_eq_u32 s{sSlot}, {NS}
        s_cselect_b32 s{sDelta}, s{sCneg}, {SLOT}
        s_cselect_b32 s{sSlot}, 0, s{sSlot}"""
        vadds = [f"v_add_u32 v{r}, s{sDelta}, v{r}" for r in [vOA] + vWA]
    rot = [x.strip() for x in rot.split("\n")]
    bar = "s_nop 0" if "nobar" in o.get("abl", "") else "s_barrier"
    if PIPE:
        pstep(0, True, early=rot, late=vadds)
        A(bar)
        pstep(1, True, early=[f"s_sub_u32 s{sCnt}, s{sCnt}, 1", f"s_cmp_lg_u32 s{sCnt}, 0"])
        A(f"s_cbranch_scc1 L_{N}_loop")
    elif HID:
        step(0, True, vadds, early=rot)
        A(f"s_waitcnt lgkmcnt(0)\n{bar}")
        step(1, True, [f"s_sub_u32 s{sCnt}, s{sCnt}, 1", f"s_cmp_lg_u32 s{sCnt}, 0"])
        A(f"s_cbranch_scc1 L_{N}_loop")
    else:
        for x in rot: A(x)
        step(0, True, vadds)
        A(f"s_sub_u32 s{sCnt}, s{sCnt}, 1")
        A(f"s_waitcnt lgkmcnt(0)\n{bar}")
        step(1, True)
        A(f"""s_cmp_lg_u32 s{sCnt}, 0
        s_cbranch_scc1 L_{N}_loop""")
    tmp = of[0][0]
    def piece(tt, p, d):
        out = []
        for z in range(2):
            s_ = acc[tt][2*p+z]
            out.append(f"v_cvt_pk_bf16_f32 v{d+2*z}, v{s_}, v{s_+1}")
            out.append(f"v_cvt_pk_bf16_f32 v{d+2*z+1}, v{s_+2}, v{s_+3}")
        out.append("s_nop 1")
        out.append(f"v_permlane16_swap_b32 v{d}, v{d+2}")
        out.append(f"v_permlane16_swap_b32 v{d+1}, v{d+3}")
        return out
    def tile_out(tt):
        out = []
        if FULL:
            d0 = tmp + 8*(tt % 2); d1 = d0 + 4; t_ = of[1][tt % 2]
            out += piece(tt, 0, d0) + piece(tt, 1, d1)
            for r in range(4): out.append(f"v_mov_b32_dpp v{t_+r}, v{d0+r} row_ror:8 row_mask:0xf bank_mask:0xf")
            for r in range(4): out.append(f"v_mov_b32_dpp v{d0+r}, v{d1+r} row_ror:8 row_mask:0xf bank_mask:0xc")
            for r in range(4): out.append(f"v_mov_b32_dpp v{d1+r}, v{t_+r} quad_perm:[0,1,2,3] row_mask:0xf bank_mask:0x3")
            out.append(f"s_add_u32 s{sT0}, s{sSt}, {tt*65536}")
            out.append(f"buffer_store_dwordx4 v[{d0}:{d0+3}], v{vst}, s[{sOut}:{sOut+3}], s{sT0} offen {o.get('stflags','')}")
            out.append(f"s_add_u32 s{sT0}, s{sSt}, {tt*65536 + 32768}")
            out.append(f"buffer_store_dwordx4 v[{d1}:{d1+3}], v{vst}, s[{sOut}:{sOut+3}], s{sT0} offen {o.get('stflags','')}")
        else:
            out.append(f"s_add_u32 s{sT0}, s{sSt}, {tt*65536}")
            for p in range(2):
                d = tmp + 4*((2*tt + p) % 4)
                out += piece(tt, p, d)
                out.append(f"buffer_store_dwordx4 v[{d}:{d+3}], v{vst}, s[{sOut}:{sOut+3}], s{sT0} offen offset:{p*64} {o.get('stflags','')}")
        return out
    OT2 = PIPE and FULL and o.get("t2")
    if OT2:
        names = ["W0", "W0", "O0", "W1", "W1", "W2", "W2", "W3", "W3", "O1", "O2", "O3"]
        pend = [(n, 0) for n in names]
        def need(keys):
            idx = [i for i, k in enumerate(pend) if k in keys]
            if idx:
                A(f"s_waitcnt lgkmcnt({len(pend) - 1 - max(idx)})")
                del pend[:max(idx) + 1]
        def half(tts, ks, reads=(), inter=()):
            reads = list(reads); inter = list(inter); seq = [(tt, ct) for tt in tts for ct in range(4)]
            nr, ni = len(reads), len(inter); dr = di = 0
            for m, (tt, ct) in enumerate(seq):
                need({(f"W{ct}", ks), (f"O{tt}", ks)})
                A(mf(acc[tt][ct], wf[ks][ct], of[ks][tt]))
                while dr < (nr*(m+1) + len(seq) - 1)//len(seq):
                    A(reads[dr][1]); pend.append(reads[dr][0]); dr += 1
                while di < (ni*(m+1) + len(seq) - 1)//len(seq):
                    A(inter[di]); di += 1
        r1 = list(zip([(n, 1) for n in names], rd_order(1, 1)))
        half((0, 1), 0, reads=r1)
        half((0, 1), 1)
        half((2, 3), 0, inter=tile_out(0))
        half((2, 3), 1, inter=tile_out(1))
        if o.get("stamp"): A("s_memtime s[72:73]\ns_waitcnt lgkmcnt(0)")
        A("s_nop 7")
        for tt in (2, 3):
            for x in tile_out(tt): A(x)
    else:
        if PIPE:
            pstep(0, True)
            pstep(1, False)
        else:
            A("s_waitcnt lgkmcnt(0)")
            step(0, True)
            A("s_waitcnt lgkmcnt(0)")
            step(1, False)
        if o.get("stamp"): A("s_memtime s[72:73]\ns_waitcnt lgkmcnt(0)")
        A("s_nop 7")
        for tt in range(4):
            for x in tile_out(tt): A(x)
    A(f"s_branch L_{N}_done")
    A(f"L_{N}_done:")
    if o.get("stamp"):
        A(f"""s_memtime s[64:65]
        s_memrealtime s[66:67]
        s_waitcnt lgkmcnt(0)
        s_sub_u32 s64, s64, s60
        s_sub_u32 s66, s66, s62
        s_lshl_b32 s68, s2, 3
        s_add_u32 s68, s68, s{sWave}
        s_lshl_b32 s68, s68, 4
        s_add_u32 s68, s68, {WS_END+131072}
        s_sub_u32 s70, s70, s60
        s_sub_u32 s72, s72, s60
        s_lshr_b32 s70, s70, 2
        s_lshr_b32 s72, s72, 2
        s_lshl_b32 s72, s72, 16
        s_or_b32 s70, s70, s72
        v_mov_b32 v{wf[0][0]}, s64
        v_mov_b32 v{wf[0][0]+1}, s66
        v_mov_b32 v{wf[0][0]+2}, s62
        v_mov_b32 v{wf[0][0]+3}, s70
        v_mov_b32 v{vt0}, 0
        s_mov_b32 s{sO}, s{sP}
        s_and_b32 s{sO+1}, s{sP+1}, 0xffff
        s_mov_b32 s{sO+2}, {WS_END+262144}
        s_mov_b32 s{sO+3}, 0x20000
        buffer_store_dwordx4 v[{wf[0][0]}:{wf[0][0]+3}], v{vt0}, s[{sO}:{sO+3}], s68 offen""")
    if FUSED and o.get("stamp4"):
        A(f"""s_lshl_b32 s90, s2, 3
        s_add_u32 s90, s90, s{S_WAVE}
        s_lshl_b32 s90, s90, 4
        s_add_u32 s90, s90, {WS_END + 196608}
        v_mov_b32 v{wf[1][0]}, s84
        v_mov_b32 v{wf[1][0]+1}, s85
        v_mov_b32 v{wf[1][0]+2}, 0
        v_mov_b32 v{wf[1][0]+3}, 0
        v_mov_b32 v{vt4}, s90
        s_mov_b64 exec, 1
        global_store_dwordx4 v{vt4}, v[{wf[1][0]}:{wf[1][0]+3}], s[{sP}:{sP+1}]
        s_mov_b64 exec, -1""")
    if FUSED:
        A(f"L_{N}_end:")
        return A.text(), dict(name=name, nv=nv, lds=NS*SLOT)
    A(f"""L_{N}_end:
    s_endpgm""")
    return A.text() + kernel_desc(name, nv), dict(name=name, grid=256, block=512, lds=NS*SLOT, nv=nv)

if __name__ == "__main__":
    import hz
    from build import build
    t, i = gen_oproj(opts=dict(stamp=True))
    print(i)
    ps = hz.check_hazards(t)
    for p in ps[:30]: print(p)
    ws = hz.check_waits(t, i["name"], max_back=1)
    for p in ws[:30]: print(p)
    print(len(ps), len(ws))
    build([(t, i)], "oproj_only.s")
```

```python
from kgen import *
import struct, math
def f2u(x): return struct.unpack("<I", struct.pack("<f", x))[0]
CSC = f2u(math.log2(math.e) / math.sqrt(32.0))

def gen_proj(name="proj_kernel", opts=None):
    o = opts or {}
    A = Asm()
    SLOT = 51200
    XOFF, WOFF, EOFF = 0, 16384, 49152
    NST = 16
    va = VAlloc(0)
    vtid = va.get("tid"); vt0 = va.get("t0"); vt1 = va.get("t1"); vt2 = va.get("t2"); vt3 = va.get("t3"); vt4 = va.get("t4")
    vXA = [va.get("xa0"), va.get("xa1")]
    vWA = [va.get(f"wa{i}") for i in range(4)]
    vXE = [va.get("xe0"), va.get("xe1")]
    vWE = [va.get("we0"), va.get("we1")]
    vst = va.get("st")
    vdum = va.get("dummy")
    va_pf = va.get("pf", 2, 2)
    va_pfinc = va.get("pfinc")
    vstamp = va.get("stamp")
    vtag = va.get("tag", 4, 2) if (opts or {}).get("fused") else None
    vtagr = va.get("tagr", 2, 2) if (opts or {}).get("fused") else None
    NSP = 3
    acc = [[va.get(f"acc{t}{c}", 4, 4) for c in range(4)] for t in range(8)]
    acce = [va.get(f"acce{i}", 4, 4) for i in range(2)]
    xf = [va.get(f"xf{t}", 4, 4) for t in range(8)]
    xs = [va.get(f"xs{t}", 4, 4) for t in range(NSP)]
    wf = [[va.get(f"wf{b}{c}", 4, 4) for c in range(4)] for b in range(2)]
    xe = [va.get(f"xef{i}", 4, 4) for i in range(2)]
    we = va.get("wef", 4, 4)
    nv = va.next
    vLX = [xf[0] + i for i in range(4)]
    vLW = [xf[1] + i for i in range(4)] + [xf[2] + i for i in range(4)]
    vLE = xf[3]
    sX, sWd, sE, sWS = 8, 12, 16, 20
    sWave, sXcd, sRB, sCB, sType, sLdw = 24, 25, 26, 27, 28, 29
    sT0, sT1, sT2, sT3 = 30, 31, 32, 33
    sCnt, sDelta, sSlot, sXo, sWo, sEo, sM0x, sM0w, sM0e, sOut, sOutE, sCneg, sWstep = 34, 35, 36, 37, 38, 39, 40, 41, 42, 43, 44, 45, 46
    sC = 56
    sP = 48
    N = name
    FUSED = o.get("fused")
    A.raw(kernel_head(o.get("kname", name)).rstrip("\n"))
    if o.get("stamp"): A("s_memtime s[60:61]\ns_memrealtime s[62:63]")
    A(f"""s_cmp_ge_u32 s2, 256
    s_cbranch_scc1 {"L_fused_end" if FUSED else f"L_{N}_end"}
    s_and_b32 s{sXcd}, s2, 7
    s_lshr_b32 s{sT0}, s2, 3
    s_and_b32 s{sRB}, s{sT0}, 7
    s_lshr_b32 s{sCB}, s{sT0}, 3
    s_load_dwordx2 s[{sP+6}:{sP+7}], s[0:1], {KA_WS}
    {f"s_load_dwordx2 s[98:99], s[0:1], {KA_DBG}" if FUSED else ""}
    v_lshrrev_b32 v{vt0}, 6, v{vtid}
    v_and_b32 v{vtid}, 63, v{vtid}
    v_readfirstlane_b32 s{sWave}, v{vt0}
    s_cmp_lt_u32 s{sXcd}, 2
    s_cbranch_scc1 L_{N}_typeA
    s_load_dwordx2 s[{sP}:{sP+1}], s[0:1], {KA_BX}
    s_load_dwordx2 s[{sP+2}:{sP+3}], s[0:1], {KA_BWQKV}
    s_load_dwordx2 s[{sP+4}:{sP+5}], s[0:1], {KA_BWQKV}
    s_sub_u32 s{sT0}, s{sXcd}, 2
    s_and_b32 s{sT1}, s{sT0}, 1
    s_lshl_b32 s{sT1}, s{sT1}, 3
    s_add_u32 s{sRB}, s{sRB}, s{sT1}
    s_lshr_b32 s{sType}, s{sT0}, 1          ; 0 Q, 1 K, 2 V
    s_mov_b32 s{sLdw}, 6144
    s_lshl_b32 s{sT2}, s{sType}, 11
    s_lshl_b32 s{sT3}, s{sCB}, 9
    s_add_u32 s{sT2}, s{sT2}, s{sT3}
    s_mov_b32 s{sT3}, {1024*6144}
    s_mov_b32 s{sEo}, 0
    s_branch L_{N}_typed
    L_{N}_typeA:
    s_load_dwordx2 s[{sP}:{sP+1}], s[0:1], {KA_AX}
    s_load_dwordx2 s[{sP+2}:{sP+3}], s[0:1], {KA_AWQ}
    s_cmp_lt_u32 s{sCB}, 2
    s_cbranch_scc1 L_{N}_typeAK
    s_load_dwordx2 s[{sP+4}:{sP+5}], s[0:1], {KA_AWV}
    s_mov_b32 s{sType}, 4
    s_branch L_{N}_typeA2
    L_{N}_typeAK:
    s_load_dwordx2 s[{sP+4}:{sP+5}], s[0:1], {KA_AWK}
    s_mov_b32 s{sType}, 3
    L_{N}_typeA2:
    s_lshl_b32 s{sT1}, s{sXcd}, 3
    s_add_u32 s{sRB}, s{sRB}, s{sT1}
    s_mov_b32 s{sLdw}, 2048
    s_lshl_b32 s{sT2}, s{sCB}, 9
    s_mov_b32 s{sT3}, {1024*2048}
    s_and_b32 s{sEo}, s{sCB}, 1
    s_lshl_b32 s{sEo}, s{sEo}, 5
    L_{N}_typed:
    s_mov_b32 s47, s{sT2}
    s_mov_b32 s58, s{sT3}
    """)
    LATE = o.get("latesrd", True)
    def srd_ld():
        A(f"""; SRD X: base + rowblock*128*2048, 256KB
        s_lshl_b32 s59, s{sRB}, 18
        s_add_u32 s{sX}, s{sP}, s59
        s_addc_u32 s{sX+1}, s{sP+1}, 0
        s_and_b32 s{sX+1}, s{sX+1}, 0xffff
        s_mov_b32 s{sX+2}, 262144
        s_mov_b32 s{sX+3}, 0x20000
        s_add_u32 s{sWd}, s{sP+2}, s47
        s_addc_u32 s{sWd+1}, s{sP+3}, 0
        s_and_b32 s{sWd+1}, s{sWd+1}, 0xffff
        s_sub_u32 s{sWd+2}, s58, s47
        s_mov_b32 s{sWd+3}, 0x20000
        ; SRD E
        s_mov_b32 s{sE}, s{sP+4}
        s_and_b32 s{sE+1}, s{sP+5}, 0xffff
        s_mov_b32 s{sE+2}, 65536
        s_mov_b32 s{sE+3}, 0x20000""")
    def srd_ws():
        A(f"""; SRD WS
        s_mov_b32 s{sWS}, s{sP+6}
        s_and_b32 s{sWS+1}, s{sP+7}, 0xffff
        s_mov_b32 s{sWS+2}, {WS_END + (262144 if o.get('stamp') else 0)}
        s_mov_b32 s{sWS+3}, 0x20000""")
    if not LATE:
        A("s_waitcnt lgkmcnt(0)")
        srd_ld(); srd_ws()
    if o.get("stamp"): A("s_memtime s[84:85]" + ("" if LATE else "\ns_waitcnt lgkmcnt(0)"))
    if FUSED: A(f"s_mov_b32 s{S_WAVE}, s{sWave}")
    A(f"""s_cmp_lt_u32 s{sWave}, 4
    s_cbranch_scc1 L_{N}_compute""")
    l = vtid
    A(f"L_{N}_loader:")
    LX0, LX1 = vLX[0], vLX[1]
    A(f"""s_sub_u32 s{sWave}, s{sWave}, 4
    v_lshrrev_b32 v{vt0}, 3, v{l}
    v_lshrrev_b32 v{vt1}, 4, v{l}
    v_and_b32 v{vt2}, 7, v{l}
    v_xor_b32 v{vt1}, v{vt1}, v{vt2}
    s_lshl_b32 s{sT0}, s{sWave}, 16
    v_lshlrev_b32 v{vt1}, 4, v{vt1}
    v_lshl_add_u32 v{LX0}, v{vt0}, 11, v{vt1}
    v_add_u32 v{LX0}, s{sT0}, v{LX0}
    v_xor_b32 v{LX1}, 64, v{LX0}
    s_mov_b32 s{sXo}, 0
    s_lshl_b32 s{sM0x}, s{sWave}, 12
    s_mov_b32 s{sSlot}, 0
    v_lshrrev_b32 v{vt0}, 5, v{l}
    v_and_b32 v{vt2}, 31, v{l}
    v_lshlrev_b32 v{vt1}, 1, v{vt0}
    v_xor_b32 v{vt1}, v{vt1}, v{vt2}
    s_lshl_b32 s{sT0}, s{sWave}, 4
    v_add_u32 v{vt0}, s{sT0}, v{vt0}
    v_mul_lo_u32 v{vt0}, v{vt0}, s{sLdw}
    v_lshl_add_u32 v{vLW[0]}, v{vt1}, 4, v{vt0}
    v_xor_b32 v{vLW[1]}, 64, v{vLW[0]}
    v_xor_b32 v{vLW[2]}, 0x80, v{vLW[0]}
    v_xor_b32 v{vLW[3]}, 0xc0, v{vLW[0]}
    s_mov_b32 s{sWo}, 0
    s_lshl_b32 s{sWstep}, s{sLdw}, 6
    s_lshl_b32 s{sT3}, s{sLdw}, 1
    s_lshl_b32 s{sM0w}, s{sWave}, 13
    s_add_u32 s{sM0w}, s{sM0w}, {WOFF}
    """)
    STAG = o.get("stag", "")
    if STAG:
        A(f"""s_bfe_u32 s{sT0}, s{sRB}, {(0x10001 if 'o' in STAG else 0x10000) if 'w' in STAG else 0x1}          ; fw
        s_lshl_b32 s{sT1}, s{sT0}, 7
        v_xor_b32 v{vLW[0]}, s{sT1}, v{vLW[0]}
        v_xor_b32 v{vLW[1]}, s{sT1}, v{vLW[1]}
        v_xor_b32 v{vLW[2]}, s{sT1}, v{vLW[2]}
        v_xor_b32 v{vLW[3]}, s{sT1}, v{vLW[3]}
        s_lshl_b32 s{sT1}, s{sT0}, 12
        s_add_u32 s{sM0w}, s{sM0w}, s{sT1}
        s_mul_i32 s{sT1}, s{sLdw}, 8
        s_mul_i32 s{sWo}, s{sT1}, s{sT0}
        s_mul_i32 s{sT1}, s{sLdw}, -14
        s_cmp_eq_u32 s{sT0}, 0
        s_cselect_b32 s66, s{sT3}, s{sT1}
        s_mov_b32 s{sT1}, -7168
        s_cselect_b32 s67, 0x400, s{sT1}
        s_bfe_u32 s{sT0}, s{sCB}, {0x10001 if 'x' in STAG else 0x1}          ; fx
        s_lshl_b32 s{sT1}, s{sT0}, 6
        v_xor_b32 v{LX0}, s{sT1}, v{LX0}
        v_xor_b32 v{LX1}, s{sT1}, v{LX1}
        s_lshl_b32 s{sT1}, s{sT0}, 11
        s_add_u32 s{sM0x}, s{sM0x}, s{sT1}
        s_lshl_b32 s{sXo}, s{sT0}, 15
        s_mov_b32 s{sT1}, -49152
        s_cmp_eq_u32 s{sT0}, 0
        s_cselect_b32 s64, 0x4000, s{sT1}
        s_mov_b32 s{sT1}, -3072
        s_cselect_b32 s65, 0x400, s{sT1}""")
    KR = o.get("krot")
    if KR:
        if KR[0] == "p": A(f"s_add_u32 s69, s{sRB}, s{sCB}\ns_and_b32 s69, s69, 1")
        elif KR[0] == "h": A(f"s_lshr_b32 s69, s{sRB}, 1\ns_lshr_b32 s70, s{sCB}, 1\ns_add_u32 s69, s69, s70\ns_and_b32 s69, s69, 1")
        elif KR[0] == "4": A(f"s_add_u32 s69, s{sRB}, s{sCB}\ns_and_b32 s69, s69, 3")
        elif KR[0] == "8": A(f"s_lshl_b32 s70, s{sCB}, 1\ns_add_u32 s69, s{sRB}, s70\ns_and_b32 s69, s69, 7")
        if len(KR) > 2:
            A(f"s_cmp_ge_u32 s{sType}, 3\ns_cselect_b32 s69, {'s69, 0' if KR[2] == 'A' else '0, s69'}")
        A(f"""s_mul_i32 s69, s69, {KR[1]}
        s_lshl_b32 s70, s69, 7
        s_add_u32 s{sXo}, s{sXo}, s70
        s_mul_i32 s70, s69, s{sWstep}
        s_add_u32 s{sWo}, s{sWo}, s70
        s_mul_i32 s71, s{sWstep}, -15
        s_movk_i32 s72, 0x80""")
    A(f"""s_cmp_ge_u32 s{sType}, 3
    s_cbranch_scc0 L_{N}_ldB
    s_lshl_b32 s{sT0}, s{sWave}, 4
    v_lshrrev_b32 v{vt0}, 1, v{l}
    v_and_b32 v{vt0}, 15, v{vt0}
    v_add_u32 v{vt0}, s{sT0}, v{vt0}           ; position p
    v_lshrrev_b32 v{vt1}, 1, v{vt0}
    v_and_b32 v{vt1}, 4, v{vt1}
    v_xor_b32 v{vt0}, v{vt0}, v{vt1}
    v_and_b32 v{vt1}, 1, v{l}
    s_cmp_eq_u32 s{sType}, 3
    s_cselect_b32 s{sT0}, 5, 4
    v_lshlrev_b32 v{vt1}, s{sT0}, v{vt1}
    s_cselect_b32 s{sT0}, 1, 0
    s_lshr_b32 s{sEo}, s{sEo}, s{sT0}
    v_lshl_add_u32 v{vLE}, v{vt0}, 6, v{vt1}
    v_add_u32 v{vLE}, s{sEo}, v{vLE}
    {f"s_lshl_b32 s{sEo}, s69, 12" if KR else f"s_mov_b32 s{sEo}, 0"}
    s_lshl_b32 s{sM0e}, s{sWave}, 9
    s_add_u32 s{sM0e}, s{sM0e}, {EOFF}
    s_branch L_{N}_ldA""")
    def dma(extra, order=0):
        def xpart():
            A(f"s_add_u32 m0, s{sSlot}, s{sM0x}")
            for i in range(4):
                if STAG:
                    if i == 0: A(f"s_mov_b32 s{sT0}, s{sXo}")
                    elif i == 2: A(f"s_add_u32 m0, m0, s65\ns_add_u32 s{sT0}, s{sT0}, s64")
                    else: A(f"s_add_u32 m0, m0, 1024\ns_add_u32 s{sT0}, s{sT0}, 16384")
                else:
                    if i: A("s_add_u32 m0, m0, 1024")
                    A(f"s_add_u32 s{sT0}, s{sXo}, {i*16384}")
                A(f"buffer_load_dwordx4 v{[LX0,LX1][(i ^ (i>>1)) & 1]}, s[{sX}:{sX+3}], s{sT0} offen {o.get('xfl','')} lds")
        def wpart():
            A(f"s_add_u32 m0, s{sSlot}, s{sM0w}")
            A(f"s_mov_b32 s{sT0}, s{sWo}")
            for i in range(8):
                if i == 4 and STAG:
                    A("s_add_u32 m0, m0, s67")
                    A(f"s_add_u32 s{sT0}, s{sT0}, s66")
                elif i:
                    A("s_add_u32 m0, m0, 1024")
                    A(f"s_add_u32 s{sT0}, s{sT0}, s{sT3}")
                A(f"buffer_load_dwordx4 v{vLW[(i&1) + 2*(i>>2)]}, s[{sWd}:{sWd+3}], s{sT0} offen {o.get('wfl','')} lds")
        for part in ((xpart, wpart) if order == 0 else (wpart, xpart)): part()
        if extra:
            A(f"s_add_u32 m0, s{sSlot}, s{sM0e}")
            A("s_mov_b32 exec_hi, 0")
            A(f"buffer_load_dwordx4 v{vLE}, s[{sE}:{sE+3}], s{sEo} offen lds")
            A("s_mov_b32 exec_hi, -1")
            if not KR: A(f"s_add_u32 s{sEo}, s{sEo}, 4096")
        if KR:
            A(f"""s_add_u32 s69, s69, 1
            s_cmp_eq_u32 s69, 16
            s_cselect_b32 s69, 0, s69
            s_cselect_b32 s70, s71, s{sWstep}
            s_add_u32 s{sWo}, s{sWo}, s70
            s_cmp_eq_u32 s69, 0
            s_cselect_b32 s70, 0xfffff880, s72
            s_add_u32 s{sXo}, s{sXo}, s70""")
            if extra: A(f"s_lshl_b32 s{sEo}, s69, 12")
        else:
            A(f"""s_add_u32 s{sXo}, s{sXo}, 128
            s_add_u32 s{sWo}, s{sWo}, s{sWstep}""")
        A(f"""s_add_u32 s{sSlot}, s{sSlot}, {SLOT}
        s_cmp_eq_u32 s{sSlot}, {3*SLOT}
        s_cselect_b32 s{sSlot}, 0, s{sSlot}""")
    ORD = 'o' in STAG
    for tag, extra, order in ([("ldB", False, 0), ("ldB1", False, 1), ("ldA", True, 0), ("ldA1", True, 1)] if ORD else [("ldB", False, 0), ("ldA", True, 0)]):
        PER = 13 if extra else 12
        A(f"L_{N}_{tag}:")
        if ORD and order == 0:
            A(f"s_xor_b32 s{sT0}, s{sRB}, s{sCB}\ns_bitcmp1_b32 s{sT0}, 0\ns_cbranch_scc1 L_{N}_{tag}1")
        _dma = dma
        dma_ = lambda e, order=order: _dma(e, order)
        if LATE:
            A("s_waitcnt lgkmcnt(0)")
            srd_ld()
            if o.get("stamp"): srd_ws()
        pre = o.get("predmaA" if extra else "predmaB", o.get("predma", 1))
        if o.get("pfwait"): A("s_barrier")
        if o.get("stamp"): A("s_memtime s[86:87]")
        for _ in range(pre): dma_(extra)
        if o.get("stamp"): A("s_memtime s[88:89]")
        A(f"s_waitcnt vmcnt({(pre-1)*PER})")
        if o.get("stamp"):
            A(f"""s_memtime s[90:91]
            s_waitcnt lgkmcnt(0)
            s_sub_u32 s84, s84, s60
            s_sub_u32 s86, s86, s60
            s_sub_u32 s88, s88, s60
            s_sub_u32 s90, s90, s60
            v_mov_b32 v{acc[0][0]}, s84
            v_mov_b32 v{acc[0][0]+1}, s86
            v_mov_b32 v{acc[0][0]+2}, s88
            v_mov_b32 v{acc[0][0]+3}, s90
            v_mov_b32 v{vt4}, 0
            s_lshl_b32 s68, s2, 3
            s_add_u32 s68, s68, s{sWave}
            s_add_u32 s68, s68, 4
            s_lshl_b32 s68, s68, 4
            s_add_u32 s68, s68, {WS_END}""")
        A("s_barrier")
        if o.get("stamp"): A(f"buffer_store_dwordx4 v[{acc[0][0]}:{acc[0][0]+3}], v{vt4}, s[{sWS}:{sWS+3}], s68 offen")
        for _ in range(3-pre): dma_(extra)
        A(f"s_mov_b32 s{sCnt}, {NST-3}")
        A(f"L_{N}_{tag}_loop:")
        A(f"s_waitcnt vmcnt({PER})\ns_barrier")
        dma_(extra)
        A(f"""s_sub_u32 s{sCnt}, s{sCnt}, 1
        s_cmp_lg_u32 s{sCnt}, 0
        s_cbranch_scc1 L_{N}_{tag}_loop
        s_waitcnt vmcnt({PER})
        s_barrier
        s_waitcnt vmcnt(0)
        s_barrier""")
        if FUSED and o.get("ctouch"):
            A(f"v_lshlrev_b32 v{vt1}, 4, v{l}")
            code_touch(A, f"{N}_{tag}", "L_attn_code", vt0, vdum, vt1, sWave, 74, end="L_oproj_code")
        A(f"s_branch L_{N}_lend")
    A(f"L_{N}_compute:")
    l = vtid
    def cpf():
        A(f"s_lshr_b32 s{sT0}, s2, 3\ns_and_b32 s{sT0}, s{sT0}, {7 if o.get('wpre') else 3}\ns_cmp_lg_u32 s{sWave}, {o.get('cpwave', 3)}\ns_cbranch_scc1 L_{N}_nocp")
        code_prefetch(A, N, o.get("kname", name), 0, sT0, vt0, vdum, l, 74)
        A(f"L_{N}_nocp:")
    if o.get("codepf", True) and o.get("cpearly"): cpf()
    if LATE:
        A("s_waitcnt lgkmcnt(0)")
        srd_ws()
    if FUSED and o.get("nonce", "store") == "atomic":
        A(f"""s_cmp_lg_u32 s{sWave}, 1
        s_cbranch_scc1 L_{N}_notag
        s_memrealtime s[96:97]
        s_waitcnt lgkmcnt(0)
        s_or_b32 s96, s96, 1
        v_mov_b32 v{vtag}, s96
        v_mov_b32 v{vtag+1}, s97
        v_mov_b32 v{vtag+2}, 0
        v_mov_b32 v{vtag+3}, 0
        v_mov_b32 v{vt0}, 0
        s_mov_b64 exec, 1
        global_atomic_cmpswap_x2 v[{vtagr}:{vtagr+1}], v{vt0}, v[{vtag}:{vtag+3}], s[98:99] sc0
        s_mov_b64 exec, -1
        L_{N}_notag:""")
    elif FUSED:
        A(f"""v_mov_b32 v{vtag+2}, 0
        s_cmp_lg_u32 s{sWave}, 1
        s_cbranch_scc1 L_{N}_notag
        s_cmp_lg_u32 s2, 0
        s_cbranch_scc1 L_{N}_notag
        s_memrealtime s[96:97]
        s_waitcnt lgkmcnt(0)
        s_or_b32 s96, s96, 1
        v_mov_b32 v{vtag}, s96
        v_mov_b32 v{vtag+1}, s97
        s_mov_b64 exec, 1
        global_store_dwordx2 v{vtag+2}, v[{vtag}:{vtag+1}], s[98:99] sc0 sc1
        s_mov_b64 exec, -1
        L_{N}_notag:""")
    PF = o.get("prefetch", True)
    PFD = 4
    sPfN = 79
    vpa = va_pf; vpinc = va_pfinc
    if PF:
        A(f"""s_lshr_b32 s{sT1}, s2, 3              ; j
        s_lshr_b32 s{sT0}, s{sRB}, 3
        s_lshl_b32 s{sT0}, s{sT0}, 21
        s_add_u32 s72, s{sP}, s{sT0}
        s_addc_u32 s73, s{sP+1}, 0
        s_lshl_b32 s{sT0}, s{sType}, 11
        s_cmp_ge_u32 s{sType}, 3
        s_cselect_b32 s{sT0}, 0, s{sT0}
        s_add_u32 s74, s{sP+2}, s{sT0}
        s_addc_u32 s75, s{sP+3}, 0
        s_lshl_b32 s{sT2}, s{sT1}, 5
        v_and_b32 v{vt0}, 31, v{l}
        v_add_u32 v{vt0}, s{sT2}, v{vt0}
        v_lshlrev_b32 v{vt0}, 11, v{vt0}
        s_lshl_b32 s{sT2}, s{sT1}, 1
        v_bfe_u32 v{vt1}, v{l}, 4, 1
        v_add_u32 v{vt1}, s{sT2}, v{vt1}
        v_mul_lo_u32 v{vt1}, v{vt1}, s{sLdw}
        v_and_b32 v{vt2}, 15, v{l}
        v_lshl_add_u32 v{vt1}, v{vt2}, 7, v{vt1}
        s_lshl_b32 s{sT2}, s{sLdw}, 6
        v_mov_b32 v{vpinc}, 0x80
        v_mov_b32 v{vt2}, s{sT2}
        v_mov_b32 v{vt3}, s72
        v_mov_b32 v{vt4}, s73
        v_mov_b32 v{vpa}, s74
        v_mov_b32 v{vpa+1}, s75
        v_cmp_gt_u32 vcc, 32, v{l}
        s_nop 1
        v_cndmask_b32 v{vpinc}, v{vt2}, v{vpinc}, vcc
        v_cndmask_b32 v{vt0}, v{vt1}, v{vt0}, vcc
        v_cndmask_b32 v{vpa}, v{vpa}, v{vt3}, vcc
        v_cndmask_b32 v{vpa+1}, v{vpa+1}, v{vt4}, vcc
        v_mul_lo_u32 v{vt1}, v{vpinc}, s{sWave}
        v_add_u32 v{vt0}, v{vt0}, v{vt1}             ; stage = wave
        v_add_co_u32 v{vpa}, vcc, v{vpa}, v{vt0}
        v_lshlrev_b32 v{vpinc}, 2, v{vpinc}          ; each wave then steps 4 stages
        s_mov_b32 s{sPfN}, 3
        v_addc_co_u32 v{vpa+1}, vcc, 0, v{vpa+1}, vcc
        s_mov_b32 s78, s{sWave}""")
    PM = o.get("pfmask")
    if PF and PM:
        mk = {"x": (0xffffffff, 0), "w": (0, 0xffffffff), "xw": (0xffffffff, 0xffffffff)}
        A(f"""s_cmp_ge_u32 s{sType}, 3
        s_cselect_b32 s76, {mk[PM[0]][0]}, {mk[PM[1]][0]}
        s_cselect_b32 s77, {mk[PM[0]][1]}, {mk[PM[1]][1]}""".replace(str(0xffffffff), "-1"))
    def pf_one():
        if PM: return f"""s_mov_b64 exec, s[76:77]
        global_load_dword v{vdum}, v[{vpa}:{vpa+1}], off {o.get('pfl','')}
        s_mov_b64 exec, -1
        v_add_co_u32 v{vpa}, vcc, v{vpa}, v{vpinc}
        s_nop 1
        v_addc_co_u32 v{vpa+1}, vcc, 0, v{vpa+1}, vcc"""
        return f"""global_load_dword v{vdum}, v[{vpa}:{vpa+1}], off {o.get('pfl','')}
        v_add_co_u32 v{vpa}, vcc, v{vpa}, v{vpinc}
        s_nop 1
        v_addc_co_u32 v{vpa+1}, vcc, 0, v{vpa+1}, vcc"""
    def pf_more():
        m = o.get("pfd8")
        nA = o.get("pfnA", 2 if m in ("A", "all") else 1); nB = o.get("pfnB", 2 if m in ("B", "all") else 1)
        if not PF or (nA <= 1 and nB <= 1): return
        A(f"s_cmp_ge_u32 s{sType}, 3\ns_cbranch_scc1 L_{N}_pfa")
        for _ in range(nB - 1): A(pf_one())
        A(f"s_mov_b32 s{sPfN}, {4 - nB}\ns_branch L_{N}_pfz\nL_{N}_pfa:")
        for _ in range(nA - 1): A(pf_one())
        A(f"s_mov_b32 s{sPfN}, {4 - nA}\nL_{N}_pfz:")
    def pf_first():
        if PF and o.get("pfinit") in ("B", "Bonly"):
            A(f"s_cmp_ge_u32 s{sType}, 3\ns_cbranch_scc1 L_{N}_pfia")
            A(pf_one())
            A(f"""s_branch L_{N}_pfiz
            L_{N}_pfia:
            v_add_co_u32 v{vpa}, vcc, v{vpa}, v{vpinc}
            s_nop 1
            v_addc_co_u32 v{vpa+1}, vcc, 0, v{vpa+1}, vcc
            {f"s_mov_b32 s{sPfN}, 0" if o.get("pfinit") == "Bonly" else ""}
            L_{N}_pfiz:""")
        elif PF and o.get("pfinit") in ("A", "Aonly"):
            A(f"s_cmp_lt_u32 s{sType}, 3\ns_cbranch_scc1 L_{N}_pfia")
            A(pf_one())
            A(f"""s_branch L_{N}_pfiz
            L_{N}_pfia:
            v_add_co_u32 v{vpa}, vcc, v{vpa}, v{vpinc}
            s_nop 1
            v_addc_co_u32 v{vpa+1}, vcc, 0, v{vpa+1}, vcc
            {f"s_mov_b32 s{sPfN}, 0" if o.get("pfinit") == "Aonly" else ""}
            L_{N}_pfiz:""")
        elif PF and o.get("pfinit", True): A(pf_one())
        elif PF: A(f"""v_add_co_u32 v{vpa}, vcc, v{vpa}, v{vpinc}
        s_nop 1
        v_addc_co_u32 v{vpa+1}, vcc, 0, v{vpa+1}, vcc""")
    if o.get("pfpos", "early") == "early": pf_first()
    if o.get("tlb", True) and not FUSED:
        A(f"""s_cmp_lg_u32 s{sWave}, 2
        s_cbranch_scc1 L_{N}_notlb
        s_load_dwordx2 s[74:75], s[0:1], {KA_OUT}
        v_min_u32 v{vt0}, 12, v{l}
        v_lshlrev_b32 v{vt0}, 21, v{vt0}
        global_load_dword v{vdum}, v{vt0}, s[{sP+6}:{sP+7}]
        v_and_b32 v{vt0}, 3, v{l}
        v_lshlrev_b32 v{vt0}, 21, v{vt0}
        s_waitcnt lgkmcnt(0)
        global_load_dword v{vdum}, v{vt0}, s[74:75]
        L_{N}_notlb:""")
    if FUSED and o.get("tlbout", False):
        A(f"""s_cmp_lg_u32 s{sWave}, 2
        s_cbranch_scc1 L_{N}_notlb
        s_load_dwordx2 s[74:75], s[0:1], {KA_OUT}
        v_and_b32 v{vt0}, 3, v{l}
        v_lshlrev_b32 v{vt0}, 21, v{vt0}
        s_waitcnt lgkmcnt(0)
        global_load_dword v{vdum}, v{vt0}, s[74:75]
        L_{N}_notlb:""")
    if o.get("codepf", True) and not o.get("cpearly"): cpf()
    def pf_inloop(tag):
        return [f"""s_cmp_lg_u32 s78, 0
        s_cbranch_scc1 L_{N}_{tag}_pfs
        s_mov_b32 s78, 4
        s_cmp_eq_u32 s{sPfN}, 0
        s_cbranch_scc1 L_{N}_{tag}_pfs
        s_sub_u32 s{sPfN}, s{sPfN}, 1
        {pf_one()}
        L_{N}_{tag}_pfs:
        s_sub_u32 s78, s78, 1"""] if PF else []
    A(f"""v_and_b32 v{vt0}, 15, v{l}          ; n
    v_lshrrev_b32 v{vt1}, 4, v{l}         ; g
    ; ---- store lane offset: (g>>1)*1024 + (g&1)*512 + n*16
    v_lshlrev_b32 v{vst}, 9, v{vt1}
    v_lshl_add_u32 v{vst}, v{vt0}, 4, v{vst}
    v_lshrrev_b32 v{vt2}, 1, v{vt0}
    v_xor_b32 v{vt2}, v{vt2}, v{vt1}
    v_lshlrev_b32 v{vt2}, 4, v{vt2}
    v_lshl_add_u32 v{vt3}, v{vt0}, 7, v{vt2}      ; n*128 + swz*16  ( == (n>>3)*1024 + (n&7)*128 + ..)
    v_and_b32 v{vt2}, 7, v{vt0}
    v_lshrrev_b32 v{vt4}, 1, v{vt2}
    v_xor_b32 v{vt4}, v{vt4}, v{vt1}
    v_lshlrev_b32 v{vt2}, 7, v{vt2}
    v_lshrrev_b32 v{vst+0 if False else vXE[1]}, 3, v{vt0}     ; n>>3
    v_lshlrev_b32 v{vXE[0]}, 2, v{vXE[1]}
    v_xor_b32 v{vt4}, v{vt4}, v{vXE[0]}
    v_lshl_add_u32 v{vt2}, v{vt4}, 4, v{vt2}
    v_lshl_add_u32 v{vt4}, v{vXE[1]}, 11, v{vt2}
    s_lshl_b32 s{sT0}, s{sWave}, 12
    s_cmp_eq_u32 s{sType}, 2
    s_cbranch_scc1 L_{N}_xperm
    v_mov_b32 v{vXA[0]}, v{vt3}
    s_branch L_{N}_xdone
    L_{N}_xperm:
    v_mov_b32 v{vXA[0]}, v{vt4}
    L_{N}_xdone:
    v_xor_b32 v{vXA[1]}, 64, v{vXA[0]}
    s_cmp_eq_u32 s{sType}, 4
    s_cbranch_scc1 L_{N}_eperm
    v_add_u32 v{vXE[0]}, s{sT0}, v{vt3}
    s_branch L_{N}_edone
    L_{N}_eperm:
    v_add_u32 v{vXE[0]}, s{sT0}, v{vt4}
    L_{N}_edone:
    v_xor_b32 v{vXE[1]}, 64, v{vXE[0]}
    v_lshrrev_b32 v{vt2}, 2, v{vt0}               ; i>>2
    v_and_b32 v{vt3}, 1, v{vt1}
    v_lshl_or_b32 v{vt3}, v{vt3}, 2, v{vt2}
    v_lshlrev_b32 v{vt3}, 1, v{vt3}               ; f
    v_lshl_add_u32 v{vt2}, v{vt1}, 3, v{vt2}      ; row
    v_lshlrev_b32 v{vt4}, 9, v{vt2}               ; row*512
    v_and_b32 v{vWE[1]}, 1, v{vt0}
    v_lshl_add_u32 v{vt4}, v{vWE[1]}, 3, v{vt4}   ; + 8*(i&1)
    v_add_u32 v{vt4}, {WOFF}, v{vt4}
    v_bfe_u32 v{vWE[1]}, v{vt0}, 1, 1             ; (i&3)>>1
    s_lshl_b32 s{sT1}, s{sWave}, 3
    v_add_u32 v{vWE[1]}, s{sT1}, v{vWE[1]}
    """)
    for ct in range(4):
        A(f"""v_add_u32 v{vWA[ct]}, {2*ct}, v{vWE[1]}
        v_xor_b32 v{vWA[ct]}, v{vWA[ct]}, v{vt3}
        v_lshl_add_u32 v{vWA[ct]}, v{vWA[ct]}, 4, v{vt4}""")
    A(f"""; ---- WE address: EOFF + row*32 + (i&3)*8 + ((q ^ (g&1))*128)
    v_lshlrev_b32 v{vt4}, 5, v{vt2}
    v_and_b32 v{vt2}, 3, v{vt0}
    v_lshl_add_u32 v{vt4}, v{vt2}, 3, v{vt4}
    v_add_u32 v{vt4}, {EOFF}, v{vt4}
    v_and_b32 v{vt2}, 1, v{vt1}
    v_lshl_add_u32 v{vWE[0]}, v{vt2}, 7, v{vt4}
    v_xor_b32 v{vt2}, 1, v{vt2}
    v_lshl_add_u32 v{vWE[1]}, v{vt2}, 7, v{vt4}
    s_mov_b32 s{sC}, {CSC}
    s_mov_b32 s{sCneg}, {(-2*SLOT) & 0xffffffff}
    """)
    for t in range(8):
        for c in range(4):
            for r in range(4): A(f"v_mov_b32 v{acc[t][c]+r}, 0")
    for i in range(2):
        for r in range(4): A(f"v_mov_b32 v{acce[i]+r}, 0")
    A(f"s_mov_b32 s{sSlot}, 0")
    if o.get("pfpos", "early") == "late": pf_first()
    pf_more()
    if o.get("pfwait"): A("s_waitcnt vmcnt(0)\ns_barrier")
    NAT = o.get("nonceat", "end")
    if FUSED and NAT == "spread":
        A(f"""s_lshr_b32 s77, s2, 3
        s_and_b32 s77, s77, 7
        s_add_u32 s77, s77, 3
        s_cmp_eq_u32 s{S_WAVE}, 0
        s_cselect_b32 s77, s77, 0""")
    A("s_barrier")
    if FUSED and NAT == "p0":
        A(f"""s_cmp_lg_u32 s{S_WAVE}, 0
        s_cbranch_scc1 L_{N}_notag0
        global_load_dwordx2 v[{vtagr}:{vtagr+1}], v{vtag+2}, s[98:99] sc0 sc1
        L_{N}_notag0:""")

    def xreg(tt, par):
        sp = tt - (8 - NSP)
        if sp >= 0 and par == 1: return xs[sp]
        return xf[tt]
    def rdX(tt, ks, par, perm):
        if perm: T, ab = tt >> 1, tt & 1; a = vXA[(ks ^ ab) & 1]; off = XOFF + T*4096 + ab*1024
        else: a = vXA[(ks ^ tt) & 1]; off = XOFF + tt*2048
        r = xreg(tt, par)
        return f"ds_read_b128 v[{r}:{r+3}], v{a} offset:{off}"
    def rdW(ct, q, ks, par):
        r = wf[par][ct] + 2*q
        return f"ds_read_b64_tr_b16 v[{r}:{r+1}], v{vWA[ct]} offset:{ks*16384 + q*2048}"
    def rdXE(i, ks, perm):
        a = vXE[(ks ^ i) & 1]; off = XOFF + (i*1024 if perm else i*2048)
        return f"ds_read_b128 v[{xe[i]}:{xe[i]+3}], v{a} offset:{off}"
    def rdWE(q, ks):
        return f"ds_read_b64_tr_b16 v[{we+2*q}:{we+2*q+1}], v{vWE[q]} offset:{ks*1024}"
    def mf(d, a, b): return f"v_mfma_f32_16x16x32_bf16 v[{d}:{d+3}], v[{a}:{a+3}], v[{b}:{b+3}], v[{d}:{d+3}]"

    def step(ks, vtype, extra, nxt, inter=(), early=()):
        par = ks; npar = ks ^ 1; nks = ks ^ 1
        after = {}
        def put(m, s): after.setdefault(m, []).append(s)
        seq = []
        if extra:
            for i in range(2):
                seq.append(mf(acce[i], we, xe[i]) if extra == "K" else mf(acce[i], xe[i], we))
        ne = len(seq)
        for tt in range(8):
            for ct in range(4):
                x = xreg(tt, par); w = wf[par][ct]
                seq.append(mf(acc[tt][ct], x, w) if vtype else mf(acc[tt][ct], w, x))
        if nxt:
            m = 0
            if extra:
                put(1, rdWE(0, nks)); put(1, rdWE(1, nks)); put(2, rdXE(0, nks, extra == "V")); put(3, rdXE(1, nks, extra == "V"))
            for k in range(8): put(ne + k, rdW(k >> 1, k & 1, nks, npar))
            put(ne+3, rdX(0, nks, npar, vtype)); put(ne+7, rdX(1, nks, npar, vtype))
            put(ne+8, rdX(5, nks, npar, vtype)); put(ne+9, rdX(6, nks, npar, vtype)); put(ne+10, rdX(7, nks, npar, vtype))
            put(ne+11, rdX(2, nks, npar, vtype)); put(ne+15, rdX(3, nks, npar, vtype)); put(ne+19, rdX(4, nks, npar, vtype))
        inter = list(inter); early = list(early)
        for m, s in enumerate(seq):
            A(s)
            for x in after.get(m, []): A(x)
            if early and m >= ne + 12 and len(after.get(m, [])) == 0: A(early.pop(0))
            if inter and m >= ne + 20:
                assert not early
                A(inter.pop(0))
        for x in inter: A(x)

    T2 = o.get("t2", False)
    def t2on(tag): return bool(T2) and (T2 is True or (T2 == "A" and tag in ("av", "ak")) or (T2 == "B" and tag not in ("av", "ak")))
    def compute(tag, vtype, extra):
        for ct in range(4):
            for q in range(2): A(rdW(ct, q, 0, 0))
        A("s_waitcnt lgkmcnt(4)")
        for tt in range(8): A(rdX(tt, 0, 0, vtype))
        if extra:
            A("s_waitcnt lgkmcnt(8)")
            for q in range(2): A(rdWE(q, 0))
            for i in range(2): A(rdXE(i, 0, extra == "V"))
        A(f"s_mov_b32 s{sCnt}, {NST-1}")
        if o.get("stamp"): A("s_memtime s[70:71]")
        A(f".p2align 6\nL_{N}_{tag}_loop:")
        A("s_waitcnt lgkmcnt(0)")
        rot = [f"s_add_u32 s{sSlot}, s{sSlot}, 1", f"s_cmp_eq_u32 s{sSlot}, 3",
               f"s_cselect_b32 s{sDelta}, s{sCneg}, {SLOT}", f"s_cselect_b32 s{sSlot}, 0, s{sSlot}"]
        if not o.get("hide", True):
            for x in rot: A(x)
            rot = []
        regs = vXA + vWA + ((vXE + vWE) if extra else [])
        nl = [f"""s_cmp_lg_u32 s{sCnt}, s77
        s_cbranch_scc1 L_{N}_{tag}_non
        global_load_dwordx2 v[{vtagr}:{vtagr+1}], v{vtag+2}, s[98:99] sc0 sc1
        L_{N}_{tag}_non:"""] if (FUSED and NAT == "spread") else []
        step(0, vtype, extra, "same", [f"v_add_u32 v{r}, s{sDelta}, v{r}" for r in regs] + pf_inloop(tag) + nl, early=rot)
        A("s_waitcnt lgkmcnt(0)\ns_barrier")
        if o.get("stagestamp"):
            A(f"""s_memtime s[80:81]
            s_waitcnt lgkmcnt(0)
            s_sub_u32 s80, s80, s60
            s_sub_u32 s82, 15, s{sCnt}
            s_mov_b32 m0, s82
            v_writelane_b32 v{vdum+0 if False else vstamp}, s80, m0""")
        step(1, vtype, extra, "next", [f"s_sub_u32 s{sCnt}, s{sCnt}, 1", f"s_cmp_lg_u32 s{sCnt}, 0"])
        A(f"s_cbranch_scc1 L_{N}_{tag}_loop")
        if FUSED and o.get("nonce", "store") == "store" and NAT == "end":
            A(f"""s_cmp_lg_u32 s{S_WAVE}, 0
            s_cbranch_scc1 L_{N}_{tag}_notag
            global_load_dwordx2 v[{vtagr}:{vtagr+1}], v{vtag+2}, s[98:99] sc0 sc1
            L_{N}_{tag}_notag:""")
        if t2on(tag): return
        A("s_waitcnt lgkmcnt(0)")
        step(0, vtype, extra, "same")
        A("s_waitcnt lgkmcnt(0)")
        step(1, vtype, extra, None)
        if o.get("stamp"): A("s_memtime s[72:73]\ns_waitcnt lgkmcnt(0)")
        A("s_nop 7")

    def pieces(kind, T, k0):
        out = []; k = k0
        for hh in range(2):
            for th in range(2):
                if kind == "V": srcs = [acc[2*T][2*hh+th], acc[2*T+1][2*hh+th]]
                else: srcs = [acc[2*T+th][2*hh], acc[2*T+th][2*hh+1]]
                d = xf[0] + 4*(k % 4); k += 1
                if th == 0: out.append(f"s_add_u32 s{sT0}, s{sOut}, {(hh*64 + T)*2048}")
                if kind == "Q":
                    for s_ in srcs:
                        out.append(f"v_pk_mul_f32 v[{s_}:{s_+1}], v[{s_}:{s_+1}], s[{sC}:{sC+1}]")
                        out.append(f"v_pk_mul_f32 v[{s_+2}:{s_+3}], v[{s_+2}:{s_+3}], s[{sC}:{sC+1}]")
                for j, s_ in enumerate(srcs):
                    out.append(f"v_cvt_pk_bf16_f32 v{d+2*j}, v{s_}, v{s_+1}")
                    out.append(f"v_cvt_pk_bf16_f32 v{d+2*j+1}, v{s_+2}, v{s_+3}")
                out.append(f"buffer_store_dwordx4 v[{d}:{d+3}], v{vst}, s[{sWS}:{sWS+3}], s{sT0} offen offset:{th*256} {o.get('stflags','')}")
        return out
    def tail(kind, vtype, extra):
        ne = 2 if extra else 0
        def EM(i): return mf(acce[i], we, xe[i]) if extra == "K" else mf(acce[i], xe[i], we)
        def M(tt, ct, par):
            x = xreg(tt, par); w = wf[par][ct]
            return mf(acc[tt][ct], x, w) if vtype else mf(acc[tt][ct], w, x)
        def emit(seq, after, inter=(), waits={}):
            inter = list(inter); n = len(seq); done = 0; tot = len(inter)
            for m, x in enumerate(seq):
                if m in waits: A(f"s_waitcnt lgkmcnt({waits[m]})")
                A(x)
                for y in after.get(m, []): A(y)
                want = (tot*(m+1) + n - 1)//n
                while done < want: A(inter[done]); done += 1
        A("s_waitcnt lgkmcnt(0)")
        seq = ([EM(0), EM(1)] if extra else []) + [M(tt, ct, 0) for tt in range(4) for ct in range(4)]
        after = {}
        def put(m, x): after.setdefault(m, []).append(x)
        if extra:
            put(1, rdWE(0, 1)); put(1, rdWE(1, 1)); put(2, rdXE(0, 1, extra == "V")); put(3, rdXE(1, 1, extra == "V"))
        for k in range(8): put(ne + k, rdW(k >> 1, k & 1, 1, 1))
        put(ne+3, rdX(0, 1, 1, vtype)); put(ne+7, rdX(1, 1, 1, vtype))
        put(ne+8, rdX(5, 1, 1, vtype)); put(ne+9, rdX(6, 1, 1, vtype)); put(ne+10, rdX(7, 1, 1, vtype))
        put(ne+11, rdX(2, 1, 1, vtype)); put(ne+15, rdX(3, 1, 1, vtype))
        emit(seq, after)
        seq = ([EM(0), EM(1)] if extra else []) + [M(tt, ct, 1) for tt in range(4) for ct in range(4)]
        emit(seq, {}, waits={0: 5, ne+8: 1, ne+12: 0})
        seq = [M(tt, ct, 0) for tt in range(4, 8) for ct in range(4)]
        emit(seq, {3: [rdX(4, 1, 1, vtype)]}, inter=pieces(kind, 0, 0))
        seq = [M(tt, ct, 1) for tt in range(4, 8) for ct in range(4)]
        emit(seq, {}, inter=pieces(kind, 1, 4), waits={0: 0})
        if o.get("stamp"): A("s_memtime s[72:73]\ns_waitcnt lgkmcnt(0)")
        A("s_nop 7")
        for x in pieces(kind, 2, 8) + pieces(kind, 3, 12): A(x)
        epilogue(kind, extra, main=False)
    def epilogue(kind, extra, main=True):
        if main and t2on({"V": "av", "K": "ak", None: "b"}[extra]): return tail(kind, kind == "V", extra)
        tmp = xf[0]
        stride = 2048
        for hh in range(2 if main else 0):
            for T in range(4):
                A(f"s_add_u32 s{sT0}, s{sOut}, {(hh*64 + T)*stride}")
                for th in range(2):
                    if kind == "V": srcs = [acc[2*T][2*hh+th], acc[2*T+1][2*hh+th]]
                    else: srcs = [acc[2*T+th][2*hh], acc[2*T+th][2*hh+1]]
                    d = tmp + 4*((T*2+th) % 4)
                    if kind == "Q":
                        for s_ in srcs:
                            A(f"v_pk_mul_f32 v[{s_}:{s_+1}], v[{s_}:{s_+1}], s[{sC}:{sC+1}]")
                            A(f"v_pk_mul_f32 v[{s_+2}:{s_+3}], v[{s_+2}:{s_+3}], s[{sC}:{sC+1}]")
                    for k, s_ in enumerate(srcs):
                        A(f"v_cvt_pk_bf16_f32 v{d+2*k}, v{s_}, v{s_+1}")
                        A(f"v_cvt_pk_bf16_f32 v{d+2*k+1}, v{s_+2}, v{s_+3}")
                    A(f"buffer_store_dwordx4 v[{d}:{d+3}], v{vst}, s[{sWS}:{sWS+3}], s{sT0} offen offset:{th*256} {o.get('stflags','')}")
        if extra == "K":
            d = wf[0][0]
            for th in range(2):
                A(f"v_cvt_pk_bf16_f32 v{d+2*th}, v{acce[th]}, v{acce[th]+1}")
                A(f"v_cvt_pk_bf16_f32 v{d+2*th+1}, v{acce[th]+2}, v{acce[th]+3}")
            A(f"""v_and_b32 v{vt0}, 0x200, v{vst}
            v_lshrrev_b32 v{vt1}, 2, v{vst}
            v_and_b32 v{vt1}, 0x100, v{vt1}
            v_permlane32_swap_b32 v{d}, v{d+2}
            v_permlane32_swap_b32 v{d+1}, v{d+3}
            v_and_b32 v{vt2}, 0xf0, v{vst}
            v_or3_b32 v{vt0}, v{vt0}, v{vt1}, v{vt2}
            buffer_store_dwordx4 v[{d}:{d+3}], v{vt0}, s[{sWS}:{sWS+3}], s{sOutE} offen {o.get('stflags','')}""")
        elif extra == "V":
            d = wf[0][0]
            for k in range(2):
                A(f"v_cvt_pk_bf16_f32 v{d+2*k}, v{acce[k]}, v{acce[k]+1}")
                A(f"v_cvt_pk_bf16_f32 v{d+2*k+1}, v{acce[k]+2}, v{acce[k]+3}")
            A(f"buffer_store_dwordx4 v[{d}:{d+3}], v{vst}, s[{sWS}:{sWS+3}], s{sOutE} offen {o.get('stflags','')}")
        A(f"s_branch L_{N}_done")

    A(f"""s_lshl_b32 s{sT0}, s{sCB}, 3
    s_lshl_b32 s{sT1}, s{sWave}, 1
    s_add_u32 s{sT0}, s{sT0}, s{sT1}        ; head0
    s_lshl_b32 s{sT0}, s{sT0}, 6
    s_lshl_b32 s{sT1}, s{sRB}, 2
    s_add_u32 s{sT0}, s{sT0}, s{sT1}        ; head0*64 + T0
    s_add_u32 s{sT1}, s{sT1}, s{sWave}
    s_lshl_b32 s{sOutE}, s{sT1}, 11
    s_add_u32 s{sOutE}, s{sOutE}, {WS_KA}
    s_mov_b32 s{sC+1}, s{sC}
    s_cmp_eq_u32 s{sType}, 0
    s_cbranch_scc1 L_{N}_cBQ
    s_cmp_eq_u32 s{sType}, 1
    s_cbranch_scc1 L_{N}_cBK
    s_cmp_eq_u32 s{sType}, 2
    s_cbranch_scc1 L_{N}_cBV
    s_lshl_b32 s{sOut}, s{sT0}, 11
    s_add_u32 s{sOut}, s{sOut}, {WS_QA}
    s_cmp_eq_u32 s{sType}, 3
    s_cbranch_scc1 L_{N}_cAK
    s_lshl_b32 s{sT1}, s{sEo}, 3
    s_add_u32 s{sOutE}, s{sOutE}, s{sT1}
    s_add_u32 s{sOutE}, s{sOutE}, {WS_VA-WS_KA}""")
    compute("av", False, "V"); epilogue("Q", "V")
    A(f"""L_{N}_cAK:
    s_lshl_b32 s{sT1}, s{sEo}, 5
    s_add_u32 s{sOutE}, s{sOutE}, s{sT1}""")
    compute("ak", False, "K"); epilogue("Q", "K")
    A(f"""L_{N}_cBQ:
    s_lshl_b32 s{sOut}, s{sT0}, 11
    s_add_u32 s{sOut}, s{sOut}, {WS_QB}""")
    A(f"s_branch L_{N}_cBQK")
    A(f"""L_{N}_cBK:
    s_lshl_b32 s{sOut}, s{sT0}, 11
    s_add_u32 s{sOut}, s{sOut}, {WS_KB}
    L_{N}_cBQK:""")
    compute("bqk", False, None)
    A(f"""s_cmp_eq_u32 s{sType}, 1
    s_cbranch_scc1 L_{N}_eBK""")
    epilogue("Q", None)
    A(f"L_{N}_eBK:")
    epilogue("K", None)
    A(f"""L_{N}_cBV:
    s_lshl_b32 s{sOut}, s{sT0}, 11
    s_add_u32 s{sOut}, s{sOut}, {WS_VB}""")
    compute("bv", True, None); epilogue("V", None)

    A(f"L_{N}_done:")
    if o.get("stamp"):
        A(f"""s_memtime s[64:65]
        s_memrealtime s[66:67]
        s_waitcnt lgkmcnt(0)
        s_sub_u32 s64, s64, s60
        s_sub_u32 s66, s66, s62
        s_lshl_b32 s68, s2, 3
        s_add_u32 s68, s68, s{sWave}
        s_lshl_b32 s68, s68, 4
        s_add_u32 s68, s68, {WS_END}
        v_mov_b32 v{xs[0]}, s64
        v_mov_b32 v{xs[0]+1}, s66
        v_mov_b32 v{xs[0]+2}, s62
        s_sub_u32 s70, s70, s60
        s_sub_u32 s72, s72, s60
        s_lshr_b32 s70, s70, 2
        s_lshr_b32 s72, s72, 2
        s_lshl_b32 s72, s72, 16
        s_or_b32 s70, s70, s72
        v_mov_b32 v{xs[0]+3}, s70
        v_mov_b32 v{vt0}, 0
        buffer_store_dwordx4 v[{xs[0]}:{xs[0]+3}], v{vt0}, s[{sWS}:{sWS+3}], s68 offen""")
        if o.get("stagestamp"):
            A(f"""s_lshl_b32 s68, s2, 2
            s_add_u32 s68, s68, s{sWave}
            s_lshl_b32 s68, s68, 6
            s_add_u32 s68, s68, {WS_END + 196608}
            v_lshlrev_b32 v{vt0}, 2, v{vtid}
            s_mov_b64 exec, 0xffff
            buffer_store_dword v{vstamp}, v{vt0}, s[{sWS}:{sWS+3}], s68 offen
            s_mov_b64 exec, -1""")
    if FUSED and o.get("nonce", "store") == "atomic":
        A(f"""s_waitcnt vmcnt(0)
        s_cmp_lg_u32 s{S_WAVE}, 1
        s_cbranch_scc1 L_{N}_lend
        v_cmp_eq_u64 vcc, 0, v[{vtagr}:{vtagr+1}]
        v_mov_b32 v{vt0}, {NONCE_LDS}
        s_nop 0
        v_cndmask_b32 v{vtag}, v{vtagr}, v{vtag}, vcc
        v_cndmask_b32 v{vtag+1}, v{vtagr+1}, v{vtag+1}, vcc
        s_mov_b64 exec, 1
        ds_write_b64 v{vt0}, v[{vtag}:{vtag+1}]
        s_mov_b64 exec, -1
        s_waitcnt lgkmcnt(0)
        L_{N}_lend:
        s_barrier
        s_cmp_lg_u32 s{S_WAVE}, 0
        s_cbranch_scc1 L_{N}_noflag""")
        read_nonce(A, vtag, vt0)
        flag_srd(A, 92, sP+6)
        A(f"s_mov_b32 s{sT0}, s2")
        flag_store(A, 92, vtag, vt0, sT0, 0, 8)
        A(f"L_{N}_noflag:")
        return A.text(), dict(name=name, nv=nv, lds=3*SLOT)
    if FUSED:
        A("s_waitcnt vmcnt(0)")
        if o.get("stamp3"): rt_stamp(A, 80)
        A(f"""s_cmp_lg_u32 s{S_WAVE}, 0
        s_cbranch_scc1 L_{N}_lend
        s_mov_b32 s{sCnt}, 400000
        L_{N}_tagspin:
        v_cmp_eq_u64 vcc, 0, v[{vtagr}:{vtagr+1}]
        s_sub_u32 s{sCnt}, s{sCnt}, 1
        s_nop 2
        s_cmp_eq_u64 vcc, 0
        s_cbranch_scc1 L_{N}_tagok
        s_cmp_eq_u32 s{sCnt}, 0
        s_cbranch_scc1 L_{N}_tagok
        global_load_dwordx2 v[{vtagr}:{vtagr+1}], v{vtag+2}, s[98:99] sc0 sc1
        s_waitcnt vmcnt(0)
        s_branch L_{N}_tagspin
        L_{N}_tagok:
        v_mov_b32 v{vt0}, {NONCE_LDS}
        s_mov_b64 exec, 1
        ds_write_b64 v{vt0}, v[{vtagr}:{vtagr+1}]
        s_mov_b64 exec, -1""")
        A(f"""s_waitcnt lgkmcnt(0)
        L_{N}_lend:
        s_barrier
        s_cmp_lg_u32 s{S_WAVE}, 0
        s_cbranch_scc1 L_{N}_noflag""")
        flag_srd(A, 92, sP+6)
        A(f"""v_mov_b32 v{vtag}, v{vtagr}
        v_mov_b32 v{vtag+1}, v{vtagr+1}
        s_mov_b32 s{sT0}, s2""")
        flag_store(A, 92, vtag, vt0, sT0, 0, 8)
        if o.get("stamp3"): rt_stamp(A, 81)
        A(f"L_{N}_noflag:")
        if o.get("wpre"): nonce_to_sgpr(A, vtagr, vt0)
        return A.text(), dict(name=name, nv=nv, lds=3*SLOT)
    A(f"""s_waitcnt vmcnt(0)
    L_{N}_lend:
    L_{N}_end:
    s_endpgm""")
    return A.text() + kernel_desc(name, nv), dict(name=name, grid=256, block=512, lds=3*SLOT, nv=nv)

if __name__ == "__main__":
    import hz
    from build import build
    t, i = gen_proj(opts=dict(stamp=True))
    print(i)
    ps = hz.check_hazards(t)
    for p in ps[:30]: print(p)
    ws = hz.check_waits(t, i["name"], max_back=1)
    for p in ws[:30]: print(p)
    print(len(ps), len(ws))
    build([(t, i)], "proj_only.s")
```

```python
from kgen import *

def gen_attn2(name="attn_kernel", NSLOT=3, TPC=8, opts=None):
    o = opts or {}
    A = Asm()
    NQ = 4
    CH = TPC * 4096
    NCH = 64 // TPC
    FLAG = NSLOT * CH
    va = VAlloc(0)
    vtid = va.get("tid")
    vl16 = va.get("l16")
    vcur = va.get("cur"); vnxt = va.get("nxt")
    vt0 = va.get("t0", 1, 4); vt1 = va.get("t1"); vt2 = va.get("t2"); vt3 = va.get("t3")
    vidx = va.get("idx")
    val = va.get("alpha")
    vdum = va.get("dummy")
    vm = [va.get(f"m{i}") for i in range(NQ)]
    vsel = va.get("sel", 4, 4)
    Q = [[va.get(f"q{i}{h}", 4, 4) for h in range(2)] for i in range(NQ)]
    O = [va.get(f"o{i}", 16, 4) for i in range(NQ)]
    L = [va.get(f"l{i}", 4, 4) for i in range(NQ)]
    S = [va.get(f"s{i}", 16, 4) for i in range(2)]
    P = [va.get(f"p{i}", 8, 4) for i in range(2)]
    K = [va.get(f"k{i}", 8, 4) for i in range(2)]
    V = [va.get(f"v{i}", 8, 4) for i in range(2)]
    nv = va.next
    vdma = Q[0][0]
    sWS, sKV, sW = 4, 8, 12
    sWave, sSoff, sM0, sCnt, sQ, sO, sNxt, sMode, sT0, sT1 = 16, 17, 18, 19, 20, 21, 22, 23, 24, 25
    sT2, sT3 = 26, 27
    N = name
    PER = CH // 4 // 1024
    FUSED = o.get("fused")
    WPRE = FUSED and o.get("wpre")
    WFL = WPRE and o.get("wflag")
    O_XSLOTS, O_WSLOTS, O_WOFF = orings()
    rdn = (lambda vn, vt: nonce_from_sgpr(A, vn)) if WPRE else (lambda vn, vt: read_nonce(A, vn, vt))
    if not FUSED: A.raw(kernel_head(name).rstrip("\n"))
    else: A("L_attn_code:")
    if o.get("stamp"): A("s_memtime s[40:41]\ns_memrealtime s[42:43]")
    if FUSED:
        A(f"""s_load_dwordx2 s[{sWS}:{sWS+1}], s[0:1], {KA_WS}
        v_and_b32 v{vl16}, 63, v{vtid}
        s_mov_b32 s{sWave}, s{S_WAVE}""")
    else:
        A(f"""s_cmp_ge_u32 s2, 256
        s_cbranch_scc1 L_{N}_end
        s_load_dwordx2 s[{sWS}:{sWS+1}], s[0:1], {KA_WS}
        v_lshrrev_b32 v{vt0}, 6, v{vtid}
        v_and_b32 v{vl16}, 63, v{vtid}
        v_readfirstlane_b32 s{sWave}, v{vt0}""")
    A(f"""v_lshlrev_b32 v{vl16}, 4, v{vl16}
    s_and_b32 s{sT0}, s2, 7
    s_lshr_b32 s{sT1}, s2, 3
    s_lshl_b32 s{sT0}, s{sT0}, 3
    s_lshr_b32 s{sT2}, s{sT1}, 2
    s_add_u32 s{sT0}, s{sT0}, s{sT2}      ; bh
    s_and_b32 s{sT1}, s{sT1}, 3           ; qb
    s_and_b32 s{sT2}, s{sT0}, 31          ; head
    s_lshr_b32 s{sT0}, s{sT0}, 5          ; branch
    s_mov_b32 s28, s{sT2}
    s_mov_b32 s29, s{sT0}
    s_mov_b32 s30, s{sT1}
    s_cmp_lt_u32 s{sWave}, 4
    s_cbranch_scc1 L_{N}_compute""")
    A(f"""L_{N}_loader:
    s_sub_u32 s{sWave}, s{sWave}, 4
    s_lshl_b32 s{sT2}, s{sT2}, 17         ; head*128KB
    s_add_u32 s{sT2}, s{sT2}, {WS_KB}
    s_cmp_eq_u32 s{sT0}, 0
    s_cselect_b32 s{sT2}, {WS_KA}, s{sT2}
    s_mov_b32 s{sT3}, {WS_VB-WS_KB}
    s_cselect_b32 s{sT3}, {WS_VA-WS_KA}, s{sT3}
    s_cmp_ge_u32 s{sWave}, 2
    s_cselect_b32 s{sT3}, s{sT3}, 0
    s_add_u32 s{sT2}, s{sT2}, s{sT3}
    s_and_b32 s{sT1}, s{sWave}, 1
    s_mul_i32 s{sT1}, s{sT1}, {PER*1024}
    v_add_u32 v{vdma}, s{sT1}, v{vl16}
    s_mul_i32 s{sM0}, s{sWave}, {PER*1024}
    s_mov_b32 s{sQ}, s{sM0}
    s_mov_b32 s{sSoff}, 0
    s_waitcnt lgkmcnt(0)
    s_add_u32 s{sKV}, s{sWS}, s{sT2}
    s_addc_u32 s{sKV+1}, s{sWS+1}, 0
    s_and_b32 s{sKV+1}, s{sKV+1}, 0xffff
    s_mov_b32 s{sKV+2}, 131072
    s_mov_b32 s{sKV+3}, 0x20000
    """)
    if FUSED:
        vn, vc, vo = S[0], S[0]+2, S[0]+4
        if o.get("stamp3"): rt_stamp(A, 80)
        A(f"""s_cmp_lg_u32 s{sWave}, 0
        s_cbranch_scc1 L_{N}_nopoll""")
        rdn(vn, vt0)
        flag_srd(A, 92, sWS)
        A(f"""v_lshrrev_b32 v{vt0}, 4, v{vl16}          ; lane
        s_cmp_eq_u32 s29, 0
        s_cbranch_scc0 L_{N}_pollB
        v_and_b32 v{vt1}, 1, v{vt0}
        v_lshrrev_b32 v{vt2}, 1, v{vt0}
        v_lshl_add_u32 v{vo}, v{vt2}, 3, v{vt1}
        s_branch L_{N}_pollgo
        L_{N}_pollB:
        {f"v_mov_b32 v{vt3+1}, {o.get('bwait')}" if o.get("bwait") is not None else ""}
        v_and_b32 v{vt1}, 15, v{vt0}
        s_lshl_b32 s{sT1}, s30, 2
        v_and_b32 v{vt2}, 3, v{vt0}
        v_add_u32 v{vt2}, s{sT1}, v{vt2}
        v_cmp_gt_u32 vcc, 32, v{vt0}
        s_nop 1
        v_cndmask_b32 v{vt1}, v{vt2}, v{vt1}, vcc      ; rb
        v_lshrrev_b32 v{vt2}, 4, v{vt0}                ; 0 K, 1 V, 2/3 Q
        v_lshlrev_b32 v{vt2}, 1, v{vt2}
        v_add_u32 v{vt2}, 4, v{vt2}                    ; 4, 6, ..
        v_cndmask_b32 v{vt2}, 2, v{vt2}, vcc
        v_lshrrev_b32 v{vt3}, 3, v{vt1}
        v_add_u32 v{vt2}, v{vt2}, v{vt3}               ; xcd
        v_and_b32 v{vt1}, 7, v{vt1}
        s_lshr_b32 s{sT1}, s28, 3                      ; cb
        s_lshl_b32 s{sT1}, s{sT1}, 3
        v_add_u32 v{vt1}, s{sT1}, v{vt1}               ; sl
        v_lshl_add_u32 v{vo}, v{vt1}, 3, v{vt2}
        {f"v_cmp_eq_u32 vcc, 63, v{vt0}" if o.get("bwait") is not None else ""}
        {"s_nop 1" if o.get("bwait") is not None else ""}
        {f"v_cndmask_b32 v{vo}, v{vo}, v{vt3+1}, vcc" if o.get("bwait") is not None else ""}
        L_{N}_pollgo:
        s_and_b32 s{sT1}, s2, {flag_copies()-1}
        s_lshl_b32 s{sT1}, s{sT1}, 7
        v_mul_u32_u24 v{vo}, {128*flag_copies()}, v{vo}
        v_add_u32 v{vo}, s{sT1}, v{vo}""")
        if o.get("pollr", 0): flag_poll2(A, N, 92, vn, vo, S[0]+8, sCnt, o["pollr"], lds=(NONCE_LDS if WPRE else None), nrd=o.get("pollrd", 1))
        elif o.get("poll3"): flag_poll3(A, N, 92, vn, vo, vc, sCnt, first=o.get("pollfirst"))
        else: flag_poll(A, N, 92, vn, vo, vc, sCnt, first=o.get("pollfirst"))
        if o.get("stamp3"):
            rt_stamp(A, 81); A(f"s_mov_b32 s82, s{sCnt}")
        A(f"""L_{N}_nopoll:
        s_barrier""")
    def dma(rot=True):
        A(f"s_mov_b32 m0, s{sM0}")
        if rot: A(f"s_add_u32 s{sM0}, s{sM0}, {CH}")
        else: A("s_nop 0")
        for i in range(PER):
            if i == 4:
                A("s_add_u32 m0, m0, 4096")
                A(f"s_add_u32 s{sT3}, s{sSoff}, 4096")
            A(f"buffer_load_dwordx4 v{vdma}, s[{sKV}:{sKV+3}], s{sSoff if i < 4 else sT3} offen offset:{(i&3)*1024} lds")
        A(f"s_add_u32 s{sSoff}, s{sSoff}, {CH//2}")
        if rot:
            A(f"s_cmp_ge_u32 s{sM0}, {NSLOT*CH}")
            A(f"s_cselect_b32 s{sT1}, {NSLOT*CH}, 0")
            A(f"s_sub_u32 s{sM0}, s{sM0}, s{sT1}")
    EARLY = o.get("early", 0) if WPRE else 0
    def dma_part(lo, hi):
        for i in range(lo, hi):
            if i == lo or i == 4:
                A(f"s_add_u32 m0, s{sM0}, {4096 if i >= 4 else 0}")
                A(f"s_add_u32 s{sT3}, s{sSoff}, {4096 if i >= 4 else 0}")
            A(f"buffer_load_dwordx4 v{vdma}, s[{sKV}:{sKV+3}], s{sT3} offen offset:{(i&3)*1024} lds")
    if EARLY:
        assert EARLY <= 4 and PER == 8
        A(f"s_bitcmp1_b32 s{sWave}, 0\ns_cbranch_scc1 L_{N}_odd0")
        dma_part(0, 2*EARLY)
        A("s_waitcnt vmcnt(0)")
        if o.get("stamp3"): rt_stamp(A, 83)
        A("s_barrier")
        dma_part(2*EARLY, PER)
        A(f"s_branch L_{N}_odd1\nL_{N}_odd0:\ns_barrier")
        dma_part(0, PER)
        A(f"""L_{N}_odd1:
        s_add_u32 s{sM0}, s{sM0}, {CH}
        s_add_u32 s{sSoff}, s{sSoff}, {CH//2}""")
        if o.get("early_c1", True):
            dma()
            A(f"s_waitcnt vmcnt({PER})\ns_barrier")
        else:
            A("s_waitcnt vmcnt(0)\ns_barrier")
            dma()
    else:
        dma()
        if WPRE: A("s_waitcnt vmcnt(0)")
        else: A(f"""v_mov_b32 v{vt0}, 0
        v_mov_b32 v{vt1}, {FLAG}
        ds_write_b32 v{vt1}, v{vt0}
        s_waitcnt vmcnt(0) lgkmcnt(0)""")
        if o.get("stamp3"): rt_stamp(A, 83)
        A("s_barrier")
        for c in range(NSLOT-2): dma()
    if o.get("prefetch", True):
        sPW = 56
        A(f"""s_load_dwordx2 s[{sPW+4}:{sPW+5}], s[0:1], {KA_AWO}
        s_load_dwordx2 s[{sPW+6}:{sPW+7}], s[0:1], {KA_BWO}
        s_lshr_b32 s{sT0}, s2, 3
        s_lshl_b32 s{sT0}, s{sT0}, 5
        s_lshl_b32 s{sT1}, s{sWave}, 3
        s_add_u32 s{sT0}, s{sT0}, s{sT1}
        s_lshl_b32 s{sT0}, s{sT0}, 11
        s_and_b32 s{sT1}, s2, 1
        s_lshl_b32 s{sT1}, s{sT1}, 10
        s_add_u32 s{sT0}, s{sT0}, s{sT1}
        v_lshrrev_b32 v{vt0}, 7, v{vl16}
        v_lshlrev_b32 v{vt0}, 11, v{vt0}
        v_bfe_u32 v{vt1}, v{vl16}, 4, 3
        v_lshl_add_u32 v{vt0}, v{vt1}, 7, v{vt0}
        s_bitcmp1_b32 s2, 2
        s_waitcnt lgkmcnt(0)
        s_cselect_b32 s{sPW}, s{sPW+6}, s{sPW+4}
        s_cselect_b32 s{sPW+1}, s{sPW+7}, s{sPW+5}
        s_and_b32 s{sPW+1}, s{sPW+1}, 0xffff
        s_mov_b32 s{sPW+2}, {1024*2048}
        s_mov_b32 s{sPW+3}, 0x20000""")
        WT = o.get("wotouch_at")
        if WT is None: A(f"buffer_load_dword v{vdum}, v{vt0}, s[{sPW}:{sPW+3}], s{sT0} offen")
        else: A(f"s_mov_b32 s74, s{sT0}\nv_mov_b32 v{S[1]+8}, v{vt0}")
    if WPRE:
        sOW, vOW = 64, S[1]
        A(f"""s_load_dwordx2 s[68:69], s[0:1], {KA_AWO}
        s_load_dwordx2 s[70:71], s[0:1], {KA_BWO}
        v_lshrrev_b32 v{vOW+4}, 4, v{vl16}
        s_lshl_b32 s72, s{sWave}, 12
        s_add_u32 s72, s72, {O_WOFF}
        s_waitcnt lgkmcnt(0)""")
        ow_srd(A, sOW, 68, 70, sT0, sT1)
        ow_lanes(A, vOW, vOW+4, sWave, sT0, vt0, vt1, vt2)
    A(f"s_mov_b32 s{sCnt}, {NCH-2 if WPRE else NCH}")
    A(f"""L_{N}_ldloop:
    s_waitcnt vmcnt({(NSLOT-3)*PER})
    {"s_nop 0" if "nobar" in o.get("ablate","") else "s_barrier"}""")
    dma()
    if o.get("prefetch", True) and o.get("wotouch_at") is not None:
        A(f"""s_cmp_lg_u32 s{sCnt}, {o["wotouch_at"]}
        s_cbranch_scc1 L_{N}_nowt
        buffer_load_dword v{vdum}, v{S[1]+8}, s[56:59], s74 offen
        L_{N}_nowt:""")
    A(f"""s_sub_u32 s{sCnt}, s{sCnt}, 1
    s_cmp_lg_u32 s{sCnt}, 0
    s_cbranch_scc1 L_{N}_ldloop""")
    if WPRE:
        A("s_waitcnt vmcnt(0)\ns_barrier")
        if o.get("orot"): o_rot(A, 73, o["orot"])
        for st in range(O_WSLOTS): ow_dma(A, sOW, vOW, 72, sT0, st*16384, st, 73 if o.get("orot") else None)
        if o.get("ctouch"): code_touch(A, N, "L_oproj_code", vt0, vdum, vl16, sWave, 74)
        A("s_barrier")
        A(f"""s_barrier
        v_mov_b32 v{vt1}, {VOTE_LDS}
        ds_read_b128 v[{vOW+4}:{vOW+7}], v{vt1}
        s_waitcnt lgkmcnt(0)
        v_or3_b32 v{vt0}, v{vOW+4}, v{vOW+5}, v{vOW+6}
        v_or_b32 v{vt0}, v{vt0}, v{vOW+7}
        s_nop 1""")
    else:
        A(f"""s_waitcnt vmcnt(0)
        s_barrier
        v_mov_b32 v{vt1}, {FLAG}
        ds_read_b32 v{vt0}, v{vt1}
        s_waitcnt lgkmcnt(0)""")
    A(f"""v_readfirstlane_b32 s{sT0}, v{vt0}
    s_nop 3
    s_cmp_eq_u32 s{sT0}, 0
    s_cbranch_scc1 L_{N}_end
    s_mov_b32 s{sCnt}, {NCH}
    s_mov_b32 s{sSoff}, 0
    s_mov_b32 s{sM0}, s{sQ}
    L_{N}_ldslow:
    s_barrier""")
    dma(rot=False)
    A(f"""s_waitcnt vmcnt(0)
    s_barrier
    s_sub_u32 s{sCnt}, s{sCnt}, 1
    s_cmp_lg_u32 s{sCnt}, 0
    s_cbranch_scc1 L_{N}_ldslow
    {"s_barrier" if FUSED else ""}
    s_branch L_{N}_end
""")
    A(f"""L_{N}_compute:
    s_lshl_b32 s{sT1}, s{sT1}, 4
    s_lshl_b32 s{sT3}, s{sWave}, 2
    s_add_u32 s{sT1}, s{sT1}, s{sT3}
    s_lshl_b32 s{sQ}, s{sT2}, 6
    s_add_u32 s{sQ}, s{sQ}, s{sT1}
    s_lshl_b32 s{sQ}, s{sQ}, 11           ; (head*64+T)*2048
    s_lshl_b32 s{sO}, s{sT1}, 5
    s_add_u32 s{sO}, s{sO}, s{sT2}
    s_lshl_b32 s{sO}, s{sO}, 11           ; (T*32+head)*2048
    s_mul_i32 s{sT3}, s{sT0}, {WS_QB-WS_QA}
    s_add_u32 s{sQ}, s{sQ}, s{sT3}
    s_add_u32 s{sO}, s{sO}, s{sT3}
    s_add_u32 s{sO}, s{sO}, {WS_OA}
    s_waitcnt lgkmcnt(0)
    {"s_memtime s[60:61]" if o.get('stamp2') else ""}
    s_mov_b32 s{sW}, s{sWS}
    s_and_b32 s{sW+1}, s{sWS+1}, 0xffff
    s_mov_b32 s{sW+2}, {WS_END + (262144 if o.get('stamp') else 0)}
    s_mov_b32 s{sW+3}, 0x20000
    """)
    assert WS_OB - WS_OA == WS_QB - WS_QA
    def q_loads():
        for i in range(NQ):
            if i == 2: A(f"s_add_u32 s{sQ}, s{sQ}, 4096")
            for h in range(2):
                A(f"buffer_load_dwordx4 v[{Q[i][h]}:{Q[i][h]+3}], v{vl16}, s[{sW}:{sW+3}], s{sQ} offen offset:{(i&1)*2048+h*1024}")
    if not FUSED: q_loads()
    def init_acc():
        for i in range(NQ):
            for r in range(16): A(f"v_mov_b32 v{O[i]+r}, 0")
            for r in range(2): A(f"v_mov_b32 v{L[i]+r}, 0")
    init_acc()
    for i in range(NQ):
        for r in range(2,4): A(f"v_mov_b32 v{L[i]+r}, 0")
    for r in range(8):
        A(f"v_mov_b32 v{P[1]+r}, 0")
        A(f"v_mov_b32 v{V[1]+r}, 0")
    A(f"""v_lshrrev_b32 v{vt0}, 4, v{vl16}      ; lane
    v_and_b32 v{vt1}, 2, v{vt0}           ; r>=2 -> nonzero
    v_and_b32 v{vt2}, 4, v{vt0}           ; qhalf
    v_mov_b32 v{vt3}, 0x3f803f80
    v_cmp_eq_u32 vcc, 0, v{vt1}
    s_nop 1
    v_cndmask_b32 v{vt3}, 0, v{vt3}, vcc
    v_cmp_eq_u32 vcc, 0, v{vt2}
    s_nop 1
    v_cndmask_b32 v{vsel}, 0, v{vt3}, vcc
    v_cndmask_b32 v{vsel+1}, 0, v{vt3}, vcc
    v_cndmask_b32 v{vsel+2}, v{vt3}, 0, vcc
    v_cndmask_b32 v{vsel+3}, v{vt3}, 0, vcc
    v_and_b32 v{vt1}, 1, v{vt0}
    v_mov_b32 v{vt2}, 0x44444444
    v_mov_b32 v{vt3}, 0xeeeeeeee
    v_cmp_eq_u32 vcc, 0, v{vt1}
    s_nop 1
    v_cndmask_b32 v{vidx}, v{vt3}, v{vt2}, vcc
    {f"v_and_b32 v{vt1}, 3, v{vt0}" if o.get("l4") else ""}
    {f"v_mov_b32 v{vt3}, 0x3f803f80" if o.get("l4") else ""}
    {f"v_cmp_eq_u32 vcc, 0, v{vt1}" if o.get("l4") else ""}
    {"s_nop 1" if o.get("l4") else ""}
    {f"v_cndmask_b32 v{vsel}, 0, v{vt3}, vcc" if o.get("l4") else ""}
    {f"v_cndmask_b32 v{vsel+1}, 0, v{vt3}, vcc" if o.get("l4") else ""}
    v_mov_b32 v{vcur}, v{vl16}
    v_add_u32 v{vnxt}, {CH}, v{vl16}
    s_mov_b32 s{sNxt}, {2*CH}
    s_mov_b32 s{sMode}, 0
    s_mov_b32 s{sCnt}, {NCH}""")
    if FUSED:
        A("s_barrier")
        if o.get("stamp3"): rt_stamp(A, 82)
        q_loads()
        if o.get("stamp3"):
            A("s_waitcnt vmcnt(0)"); rt_stamp(A, 83)
    EQ = FUSED and o.get("earlyq")
    A(f"""{"s_memtime s[62:63]" if o.get('stamp2') else ""}
    s_waitcnt vmcnt({4 if EQ else 0})
    {"s_memtime s[64:65]" if o.get('stamp2') else ""}
    s_barrier
    {"s_memtime s[66:67]" if o.get('stamp2') else ""}
    """)
    def rK(buf, base, t, h): return f"ds_read_b128 v[{K[buf]+4*h}:{K[buf]+4*h+3}], v{base} offset:{t*2048+h*1024}"
    def rV(buf, base, t, h): return f"ds_read_b128 v[{V[buf]+4*h}:{V[buf]+4*h+3}], v{base} offset:{CH//2+t*2048+h*1024}"
    def mf(d, a, b, c):
        cs = "0" if c is None else f"v[{c}:{c+15}]"
        return f"v_mfma_f32_32x32x16_bf16 v[{d}:{d+15}], v[{a}:{a+3}], v[{b}:{b+3}], {cs}"
    def sm(qi, pb):
        if o.get("l4"):
            return "\n".join(f"v_mfma_f32_4x4x4bf16_1k v[{L[qi]}:{L[qi]+3}], v[{vsel}:{vsel+1}], v[{P[pb]+2*z}:{P[pb]+2*z+1}], v[{L[qi]}:{L[qi]+3}]\ns_nop 1" for z in range(4))
        return f"v_smfmac_f32_16x16x64_bf16 v[{L[qi]}:{L[qi]+3}], v[{vsel}:{vsel+3}], v[{P[pb]}:{P[pb]+7}], v{vidx}"
    for h in range(2): A(rK(0, vcur, 0, h))
    for h in range(2): A(rV(0, vcur, 0, h))
    A("s_waitcnt lgkmcnt(0)")
    A(mf(S[0], K[0], Q[0][0], None)); A(mf(S[0], K[0]+4, Q[0][1], S[0]))
    A("s_nop 7\ns_nop 3")
    if o.get("stamp"): A("s_memtime s[50:51]\ns_waitcnt lgkmcnt(0)")
    A(f".p2align 6\nL_{N}_loop:")
    pat = o.get("pat", "Q1 e e e P1 e e e Q2 e e c c P2 e e c c S R e e c e e c e e c c").split()
    for kt in range(TPC):
        for qi in range(NQ):
            u = kt*NQ + qi
            nk, nq = (kt, qi+1) if qi+1 < NQ else (kt+1, 0)
            pk, pq = (kt, qi-1) if qi > 0 else (kt-1, NQ-1)
            sb = u & 1; nb = sb ^ 1
            e = lambda j: f"v_exp_f32 v{S[sb]+j}, v{S[sb]+j}"
            c = lambda j: f"v_cvt_pk_bf16_f32 v{P[sb]+j}, v{S[sb]+2*j}, v{S[sb]+2*j+1}"
            Kb = K[nk % 2]; Vb = V[pk % 2]
            pre = []
            HW = o.get("hidew", 0)
            if qi == 3 and not HW: pre.append("s_waitcnt lgkmcnt(0)")
            if qi == 0 and kt == TPC-1: pre.append("s_barrier")
            if EARLY and qi == 0 and kt == EARLY-1:
                pre.append(f"s_cbranch_scc1 L_{N}_bar1"); pre.append(f"L_{N}_bar1r:")
            base, t = (vcur, kt+1) if kt+1 < TPC else (vnxt, 0)
            b2 = (kt+1) % 2
            rd = {0: [rK(b2, base, t, 0)], 1: [rK(b2, base, t, 1)], 2: [rV(b2, base, t, 0), rV(b2, base, t, 1)], 3: []}[qi]
            seq = list(pre); ne = nc = 0
            hid = []
            if o.get("hide", True) and kt == TPC-1 and qi == NQ-1:
                hid = [f"v_mov_b32 v{vcur}, v{vnxt}", f"v_add_u32 v{vnxt}, s{sNxt}, v{vl16}", f"s_add_u32 s{sNxt}, s{sNxt}, {CH}",
                       f"s_cmp_ge_u32 s{sNxt}, {NSLOT*CH}", f"s_cselect_b32 s{sT1}, {NSLOT*CH}, 0", f"s_sub_u32 s{sNxt}, s{sNxt}, s{sT1}",
                       f"s_sub_u32 s{sCnt}, s{sCnt}, 1", f"s_cmp_lg_u32 s{sCnt}, 0"]
            if EARLY and EARLY > 1 and qi == NQ-1 and kt == EARLY-2: hid = [f"s_cmp_eq_u32 s{sCnt}, {NCH}"]
            for tk in pat:
                if tk == "Q1": seq.append(mf(S[nb], Kb, Q[nq][0], None))
                elif tk == "Q2": seq.append(mf(S[nb], Kb+4, Q[nq][1], S[nb]))
                elif tk == "P1": seq.append(mf(O[pq], Vb, P[nb], O[pq]))
                elif tk == "P2": seq.append(mf(O[pq], Vb+4, P[nb]+4, O[pq]))
                elif tk == "S": seq.append(sm(pq, nb))
                elif tk in ("s0","s1","s2","s3"):
                    z = int(tk[1]); seq.append(f"v_mfma_f32_4x4x4bf16_1k v[{L[pq]}:{L[pq]+3}], v[{vsel}:{vsel+1}], v[{P[nb]+2*z}:{P[nb]+2*z+1}], v[{L[pq]}:{L[pq]+3}]")
                elif tk == "e":
                    seq.append(e(ne)); ne += 1
                    if hid and ne >= 2: seq.append(hid.pop(0))
                    if EQ and kt == 0 and qi < 2 and ne == 16: seq.append(f"s_waitcnt vmcnt({2 - 2*qi})")
                    if HW == 1 and qi == 2 and ne == 16: seq.append("s_waitcnt lgkmcnt(0)")
                    if HW == 2 and qi == 2 and ne == 16: seq.append("s_waitcnt lgkmcnt(2)")
                    if HW == 2 and qi == 0 and ne == 16: seq.append("s_waitcnt lgkmcnt(1)")
                elif tk == "c": seq.append(c(nc)); assert 2*nc+1 < ne; nc += 1
                elif tk == "R": seq += rd
                else: raise Exception(tk)
            assert ne == 16 and nc == 8
            ab = o.get("ablate", "")
            for l in seq:
                if "nosm" in ab and l.startswith("v_smfmac"): continue
                if "nolds" in ab and l.startswith("ds_read"): continue
                if "nocvt" in ab and l.startswith("v_cvt"): continue
                if "noexp" in ab and l.startswith("v_exp"): continue
                if "nopv" in ab and l.startswith(f"v_mfma_f32_32x32x16_bf16 v[{O[pq]}:"): continue
                if "noqk" in ab and l.startswith(f"v_mfma_f32_32x32x16_bf16 v[{S[nb]}:"): continue
                if "nobar" in ab and l.startswith("s_barrier"): l = "s_nop 0"
                if "expsep" in ab and l.startswith("v_exp"):
                    r = l.split()[1].rstrip(","); l = f"v_exp_f32 v{vt2}, {r}"
                A(l)
    if o.get("hide", True): A(f"s_cbranch_scc1 L_{N}_loop")
    else: A(f"""v_mov_b32 v{vcur}, v{vnxt}
    v_add_u32 v{vnxt}, s{sNxt}, v{vl16}
    s_add_u32 s{sNxt}, s{sNxt}, {CH}
    s_cmp_ge_u32 s{sNxt}, {NSLOT*CH}
    s_cselect_b32 s{sT1}, {NSLOT*CH}, 0
    s_sub_u32 s{sNxt}, s{sNxt}, s{sT1}
    s_sub_u32 s{sCnt}, s{sCnt}, 1
    s_cmp_lg_u32 s{sCnt}, 0
    s_cbranch_scc1 L_{N}_loop
    """)
    if EARLY:
        A(f"""s_branch L_{N}_bar2
        L_{N}_bar1:
        s_barrier
        s_branch L_{N}_bar1r
        L_{N}_bar2:""")
    if o.get("stamp"): A("s_memtime s[52:53]\ns_waitcnt lgkmcnt(0)")
    lb = (TPC*NQ-1) & 1
    Vb = V[(TPC-1) % 2]
    A("s_nop 1")
    A(mf(O[NQ-1], Vb, P[lb], O[NQ-1])); A(mf(O[NQ-1], Vb+4, P[lb]+4, O[NQ-1])); A(sm(NQ-1, lb))
    A(f"L_{N}_fin:")
    A("s_nop 7\ns_nop 7")
    vrc, vna, vz = K[0], K[0]+2, K[0]+4
    for r in (vna, vna+1, vz, vz+1): A(f"v_mov_b32 v{r}, 0")
    A(f"s_mov_b32 s{sCnt}, 0")
    for qi in range(NQ):
        if o.get("l4"):
            A(f"v_mov_b32 v{vt0}, v{L[qi]}")
            A(f"v_mov_b32 v{vt1}, v{L[qi]}")
            A("s_nop 1")
            A(f"v_permlane32_swap_b32 v{vt0}, v{vt1}")
            A(f"v_add_f32 v{vt0}, v{vt0}, v{vt1}")
        else:
            A(f"v_add_f32 v{vt0}, v{L[qi]}, v{L[qi]+1}")
        A(f"v_rcp_f32 v{vrc}, v{vt0}")
        A(f"v_mov_b32 v{vt2}, 0x35800000")
        A(f"v_cmp_nle_f32 s[{sT2}:{sT3}], v{vt2}, v{vt0}")
        A(f"v_mov_b32 v{vt2}, 0x71800000")
        A(f"v_cmp_nle_f32 vcc, v{vt0}, v{vt2}")
        A(f"v_mov_b32 v{vrc+1}, v{vrc}")
        for r in range(0, 16, 2):
            A(f"v_pk_mul_f32 v[{O[qi]+r}:{O[qi]+r+1}], v[{O[qi]+r}:{O[qi]+r+1}], v[{vrc}:{vrc+1}]")
        A(f"s_or_b64 vcc, vcc, s[{sT2}:{sT3}]")
        A(f"s_cmp_lg_u64 vcc, 0")
        A(f"s_cselect_b32 s{sT0}, 1, 0")
        A(f"s_or_b32 s{sCnt}, s{sCnt}, s{sT0}")
        if not o.get("latechk", True):
            for r in range(0, 16, 2):
                A(f"v_pk_fma_f32 v[{vna}:{vna+1}], v[{O[qi]+r}:{O[qi]+r+1}], v[{vz}:{vz+1}], v[{vna}:{vna+1}]")
        d = S[qi & 1] + 8*((qi >> 1) & 1)
        for j in range(8):
            A(f"v_cvt_pk_bf16_f32 v{d+j}, v{O[qi]+2*j}, v{O[qi]+2*j+1}")
        A(f"buffer_store_dwordx4 v[{d}:{d+3}], v{vl16}, s[{sW}:{sW+3}], s{sO} offen offset:0 {o.get('stflags','')}")
        A(f"buffer_store_dwordx4 v[{d+4}:{d+7}], v{vl16}, s[{sW}:{sW+3}], s{sO} offen offset:1024 {o.get('stflags','')}")
        A(f"s_add_u32 s{sO}, s{sO}, 65536")
    if o.get("latechk", True):
        for qi in range(NQ):
            for r in range(0, 16, 2):
                A(f"v_pk_fma_f32 v[{vna}:{vna+1}], v[{O[qi]+r}:{O[qi]+r+1}], v[{vz}:{vz+1}], v[{vna}:{vna+1}]")
    A(f"s_sub_u32 s{sO}, s{sO}, {NQ*65536}")
    A(f"""v_add_f32 v{vt3}, v{vna}, v{vna+1}
    v_cmp_u_f32 vcc, v{vt3}, v{vt3}
    s_nop 3
    s_cmp_lg_u64 vcc, 0
    s_cselect_b32 s{sT0}, 1, 0
    s_or_b32 s{sCnt}, s{sCnt}, s{sT0}
    {"s_waitcnt vmcnt(0)" if (FUSED and not WFL) else ""}
    s_cmp_eq_u32 s{sMode}, 1
    s_cbranch_scc1 L_{N}_{"done2" if FUSED else "done"}
    v_mov_b32 v{vt0}, s{sCnt}""")
    if WPRE:
        A(f"""s_lshl_b32 s{sT0}, s{sWave}, 2
        s_add_u32 s{sT0}, s{sT0}, {VOTE_LDS}
        v_mov_b32 v{vt1}, s{sT0}
        ds_write_b32 v{vt1}, v{vt0}
        v_mov_b32 v{vt1}, {VOTE_LDS}
        s_waitcnt lgkmcnt(0)
        s_barrier
        ds_read_b128 v[{K[1]}:{K[1]+3}], v{vt1}
        s_waitcnt lgkmcnt(0)
        v_or3_b32 v{vt0}, v{K[1]}, v{K[1]+1}, v{K[1]+2}
        v_or_b32 v{vt0}, v{vt0}, v{K[1]+3}
        s_nop 1""")
    else:
        A(f"""v_mov_b32 v{vt1}, {FLAG}
        ds_or_b32 v{vt1}, v{vt0}
        s_waitcnt lgkmcnt(0)
        s_barrier
        ds_read_b32 v{vt0}, v{vt1}
        s_waitcnt lgkmcnt(0)""")
    A(f"""v_readfirstlane_b32 s{sT0}, v{vt0}
    s_nop 3
    s_cmp_eq_u32 s{sT0}, 0
    s_cbranch_scc1 L_{N}_done
    """)
    A(f"""s_waitcnt vmcnt(0)
    s_mov_b32 s{sMode}, 1
    s_mov_b32 s{sCnt}, {NCH}
    """)
    init_acc()
    for i in range(NQ): A(f"v_mov_b32 v{vm[i]}, 0xff7fffff")
    A(f"""L_{N}_slow:
    s_barrier
    s_barrier
    v_mov_b32 v{vcur}, v{vl16}
    s_mov_b32 s{sNxt}, {TPC}
    L_{N}_slowt:""")
    for h in range(2): A(rK(0, vcur, 0, h))
    for h in range(2): A(rV(0, vcur, 0, h))
    A(f"v_add_u32 v{vcur}, 2048, v{vcur}")
    A("s_waitcnt lgkmcnt(0)")
    for qi in range(NQ):
        s = S[0]
        A(mf(s, K[0], Q[qi][0], None)); A(mf(s, K[0]+4, Q[qi][1], s))
        A("s_nop 7\ns_nop 3")
        A(f"v_max3_f32 v{vt0}, v{s}, v{s+1}, v{s+2}")
        for j in range(3, 15, 2): A(f"v_max3_f32 v{vt0}, v{vt0}, v{s+j}, v{s+j+1}")
        A(f"v_max_f32 v{vt0}, v{vt0}, v{s+15}")
        A(f"v_mov_b32 v{vt1}, v{vt0}")
        A("s_nop 1")
        A(f"v_permlane32_swap_b32 v{vt0}, v{vt1}")
        A(f"v_max3_f32 v{vt0}, v{vt0}, v{vt1}, v{vm[qi]}")
        A(f"v_sub_f32 v{val}, v{vm[qi]}, v{vt0}")
        A(f"v_exp_f32 v{val}, v{val}")
        A(f"v_mov_b32 v{vm[qi]}, v{vt0}")
        for r in range(16): A(f"v_sub_f32 v{s+r}, v{s+r}, v{vt0}")
        for r in range(16): A(f"v_exp_f32 v{s+r}, v{s+r}")
        for r in range(16): A(f"v_mul_f32 v{O[qi]+r}, v{O[qi]+r}, v{val}")
        for r in range(2): A(f"v_mul_f32 v{L[qi]+r}, v{L[qi]+r}, v{val}")
        for j in range(8): A(f"v_cvt_pk_bf16_f32 v{P[0]+j}, v{s+2*j}, v{s+2*j+1}")
        A("s_nop 1")
        A(mf(O[qi], V[0], P[0], O[qi])); A(mf(O[qi], V[0]+4, P[0]+4, O[qi])); A(sm(qi, 0))
        A("s_nop 7\ns_nop 7")
    A(f"""s_sub_u32 s{sNxt}, s{sNxt}, 1
    s_cmp_lg_u32 s{sNxt}, 0
    s_cbranch_scc1 L_{N}_slowt
    s_sub_u32 s{sCnt}, s{sCnt}, 1
    s_cmp_lg_u32 s{sCnt}, 0
    s_cbranch_scc1 L_{N}_slow
    s_branch L_{N}_fin
    """)
    if FUSED:
        A(f"""L_{N}_done2:
        s_barrier""")
    A(f"""L_{N}_done:""")
    if o.get("stamp"):
        A(f"""s_memtime s[44:45]
        s_memrealtime s[46:47]
        s_waitcnt lgkmcnt(0)
        s_sub_u32 s44, s44, s40
        s_sub_u32 s46, s46, s42
        s_sub_u32 s50, s50, s40
        s_sub_u32 s52, s52, s40
        s_lshr_b32 s50, s50, 2
        s_lshr_b32 s52, s52, 2
        s_lshl_b32 s52, s52, 16
        s_or_b32 s50, s50, s52
        s_lshl_b32 s48, s2, 3
        s_add_u32 s48, s48, s{sWave}
        s_lshl_b32 s48, s48, 4
        s_add_u32 s48, s48, {WS_END+65536}
        v_mov_b32 v{vt0}, s44
        v_mov_b32 v{vt1}, s46
        v_mov_b32 v{vt2}, s42
        v_mov_b32 v{vt3}, s50
        v_mov_b32 v{val}, 0
        buffer_store_dwordx4 v[{vt0}:{vt0+3}], v{val}, s[{sW}:{sW+3}], s48 offen""")
        if o.get("stamp2"):
            A(f"""s_sub_u32 s60, s60, s40
            s_sub_u32 s62, s62, s40
            s_sub_u32 s64, s64, s40
            s_sub_u32 s66, s66, s40
            s_add_u32 s48, s48, 64
            s_nop 1
            v_mov_b32 v{vt0}, s60
            v_mov_b32 v{vt1}, s62
            v_mov_b32 v{vt2}, s64
            v_mov_b32 v{vt3}, s66
            buffer_store_dwordx4 v[{vt0}:{vt0+3}], v{val}, s[{sW}:{sW+3}], s48 offen""")
    if WFL:
        rdn(P[0], vt0)
        flag_srd(A, 92, sWS)
        A(f"""s_lshl_b32 s{sT0}, s29, 4
        s_lshl_b32 s{sT1}, s30, 2
        s_add_u32 s{sT0}, s{sT0}, s{sT1}
        s_add_u32 s{sT0}, s{sT0}, s{sWave}
        s_lshl_b32 s{sT0}, s{sT0}, 5
        s_add_u32 s{sT0}, s{sT0}, s28""")
        if o.get("stamp4"):
            rt_stamp(A, 84); A("s_waitcnt vmcnt(0)"); rt_stamp(A, 85)
        flag_store(A, 92, P[0], vt0, sT0, FLG_A, 1, drain=True)
    elif FUSED:
        A(f"""s_cmp_lg_u32 s{S_WAVE}, 0
        s_cbranch_scc1 L_{N}_end""")
        rdn(S[0], vt0)
        flag_srd(A, 92, sWS)
        A(f"""s_lshl_b32 s{sT0}, s29, 2
        s_add_u32 s{sT0}, s{sT0}, s30
        s_lshl_b32 s{sT0}, s{sT0}, 5
        s_add_u32 s{sT0}, s{sT0}, s28""")
        flag_store(A, 92, S[0], vt0, sT0, FLG_A, 1)
    if FUSED:
        A(f"L_{N}_end:")
        if o.get("stamp3"):
            A(f"""s_lshl_b32 s84, s2, 3
            s_add_u32 s84, s84, s{S_WAVE}
            s_lshl_b32 s84, s84, 4
            s_add_u32 s84, s84, {WS_END + 196608}
            v_mov_b32 v{vt0}, s80
            v_mov_b32 v{vt1}, s81
            v_mov_b32 v{vt2}, s82
            v_mov_b32 v{vt3}, s83
            v_mov_b32 v{vt3+1}, s84
            s_mov_b64 exec, 1
            global_store_dwordx4 v{vt3+1}, v[{vt0}:{vt0+3}], s[{sWS}:{sWS+1}]
            s_mov_b64 exec, -1""")
        return A.text(), dict(name=name, nv=nv, lds=NSLOT*CH + 64)
    A(f"""L_{N}_end:
    s_endpgm""")
    txt = A.text() + kernel_desc(name, nv)
    return txt, dict(name=name, grid=256, block=512, lds=NSLOT*CH + 64, nv=nv)

if __name__ == "__main__":
    import hz
    from build import build
    t, i = gen_attn2(opts=dict(stamp=True))
    print(i)
    ps = hz.check_hazards(t)
    for p in ps[:30]: print(p)
    ws = hz.check_waits(t, i["name"], max_back=1)
    for p in ws[:30]: print(p)
    print(len(ps), len(ws))
    build([(t, i)], "attn2_only.s")
```

```python
class Asm:
    def __init__(self):
        self.lines = []
    def __call__(self, fmt, *a):
        for l in fmt.split("\n"):
            l = l.strip()
            if l: self.lines.append(("" if l.endswith(":") else "  ") + l)
    def label(self, name): self.lines.append(name + ":")
    def raw(self, s): self.lines.append(s)
    def comment(self, s): self.lines.append("  ; " + s)
    def text(self): return "\n".join(self.lines) + "\n"

def vr(base, n=1):
    return f"v{base}" if n == 1 else f"v[{base}:{base+n-1}]"
def sr(base, n=1):
    return f"s{base}" if n == 1 else f"s[{base}:{base+n-1}]"

class VAlloc:
    def __init__(self, start=0, limit=256):
        self.next = start; self.limit = limit; self.names = {}
    def get(self, name, n=1, align=1):
        if n >= 2 and align < 2: align = 2
        b = (self.next + align - 1) // align * align
        self.next = b + n
        assert self.next <= self.limit, f"out of vgprs at {name}"
        self.names[name] = (b, n)
        return b

def kernel_desc(name, vgpr, sgpr=102, accum=None):
    if accum is None: accum = (vgpr + 3) // 4 * 4
    return f""".section .rodata,"a"
.p2align 6
.amdhsa_kernel {name}
  .amdhsa_next_free_vgpr {vgpr}
  .amdhsa_next_free_sgpr {sgpr}
  .amdhsa_accum_offset {accum}
  .amdhsa_group_segment_fixed_size 0
  .amdhsa_kernarg_size 88
  .amdhsa_user_sgpr_count 2
  .amdhsa_user_sgpr_kernarg_segment_ptr 1
  .amdhsa_system_sgpr_workgroup_id_x 1
  .amdhsa_float_denorm_mode_32 3
.end_amdhsa_kernel
.text
"""
def kernel_head(name):
    return f""".globl {name}
.p2align 8
.type {name},@function
{name}:
"""

MB = 1 << 20
WS_QA  = 0
WS_QB  = 4 * MB
WS_KB  = 8 * MB
WS_VB  = 12 * MB
WS_KA  = 16 * MB
WS_VA  = 16 * MB + 131072
WS_OA  = 17 * MB
WS_OB  = 21 * MB
WS_END = 25 * MB
KA_AX, KA_AWQ, KA_AWK, KA_AWV, KA_AWO, KA_BX, KA_BWQKV, KA_BWO, KA_OUT, KA_DBG, KA_WS = [8*i for i in range(11)]

def code_prefetch(A, tag, base_label, nbytes, blk_sgpr, vt, vdum, lane, stmp):
    A(f"""s_getpc_b64 s[{stmp}:{stmp+1}]
    L_cp_{tag}:
    s_sub_u32 s{stmp}, s{stmp}, L_cp_{tag}-{base_label}
    s_subb_u32 s{stmp+1}, s{stmp+1}, 0
    v_lshlrev_b32 v{vt}, 7, v{lane}
    v_lshl_add_u32 v{vt}, s{blk_sgpr}, 13, v{vt}
    v_min_u32 v{vt}, L_code_end-{base_label}-4, v{vt}
    global_load_dword v{vdum}, v{vt}, s[{stmp}:{stmp+1}]""")

WS_FLG = 30 * MB
FLG_A = 262144
FLG_BYTES = FLG_A + 131072
NONCE_LDS = 153600
S_WAVE = 3
def flag_srd(A, srd, ptr):
    A(f"""s_add_u32 s{srd}, s{ptr}, {WS_FLG}
    s_addc_u32 s{srd+1}, s{ptr+1}, 0
    s_and_b32 s{srd+1}, s{srd+1}, 0xffff
    s_mov_b32 s{srd+2}, {FLG_BYTES}
    s_mov_b32 s{srd+3}, 0x20000""")
def read_nonce(A, vn, vt):
    A(f"""v_mov_b32 v{vt}, {NONCE_LDS}
    ds_read_b64 v[{vn}:{vn+1}], v{vt}
    s_waitcnt lgkmcnt(0)""")
FLAG_ST = "sc0 sc1"
FLAG_LD = "sc0 sc1"
def set_flag_policy(st, ld):
    global FLAG_ST, FLAG_LD
    FLAG_ST, FLAG_LD = st, ld
FLAG_COPIES = 8
def set_flag_copies(n):
    global FLAG_COPIES
    FLAG_COPIES = n
def flag_copies(): return FLAG_COPIES
def flag_store(A, srd, vn, vt, st, base, nlines=1, drain=False):
    A(f"""s_mul_i32 s{st}, s{st}, {128*nlines}
    s_add_u32 s{st}, s{st}, {base}
    v_mbcnt_lo_u32_b32 v{vt}, -1, 0
    v_mbcnt_hi_u32_b32 v{vt}, -1, v{vt}
    v_mov_b32 v{vn+2}, v{vn}
    v_mov_b32 v{vn+3}, v{vn+1}
    v_lshlrev_b32 v{vt}, 4, v{vt}""")
    if drain: A("s_waitcnt vmcnt(0)")
    if nlines < 8:
        m = (1 << (8*nlines)) - 1
        A(f"s_mov_b32 exec_lo, {m if m < 0xffffffff else -1}\ns_mov_b32 exec_hi, 0")
    A(f"buffer_store_dwordx4 v[{vn}:{vn+3}], v{vt}, s[{srd}:{srd+3}], s{st} offen {FLAG_ST}")
    if nlines < 8: A("s_mov_b64 exec, -1")
def flag_poll(A, tag, srd, vn, voff, vc, scnt, first=None):
    if first:
        A(f"""s_mov_b32 exec_lo, {first[1]}
        s_mov_b32 exec_hi, {first[0]}
        s_mov_b32 s{scnt}, 400000
        L_poll_{tag}_a:
        buffer_load_dwordx2 v[{vc}:{vc+1}], v{voff}, s[{srd}:{srd+3}], 0 offen {FLAG_LD}
        s_waitcnt vmcnt(0)
        v_cmp_ne_u64 vcc, v[{vc}:{vc+1}], v[{vn}:{vn+1}]
        s_sub_u32 s{scnt}, s{scnt}, 1
        s_nop 2
        s_cmp_eq_u64 vcc, 0
        s_cbranch_scc1 L_poll_{tag}_aok
        s_cmp_lg_u32 s{scnt}, 0
        s_cbranch_scc1 L_poll_{tag}_a
        L_poll_{tag}_aok:
        s_mov_b64 exec, -1""")
    A(f"""s_mov_b32 s{scnt}, 400000
    L_poll_{tag}:
    buffer_load_dwordx2 v[{vc}:{vc+1}], v{voff}, s[{srd}:{srd+3}], 0 offen {FLAG_LD}
    s_waitcnt vmcnt(0)
    v_cmp_ne_u64 vcc, v[{vc}:{vc+1}], v[{vn}:{vn+1}]
    s_sub_u32 s{scnt}, s{scnt}, 1
    s_nop 2
    s_cmp_eq_u64 vcc, 0
    s_cbranch_scc1 L_poll_{tag}_ok
    s_cmp_lg_u32 s{scnt}, 0
    s_cbranch_scc1 L_poll_{tag}
    L_poll_{tag}_ok:""")

def rt_stamp(A, dst):
    A(f"""s_memrealtime s[88:89]
    s_waitcnt lgkmcnt(0)
    s_mov_b32 s{dst}, s88""")

def flag_poll2(A, tag, srd, vn, voff, vres, scnt, R, lds=None, nrd=1):
    A(f"v_mov_b32 v{voff+1}, {NONCE_LDS if lds is None else lds}")
    if lds is not None:
        A(f"ds_write_b64 v{voff+1}, v[{vn}:{vn+1}]")
    for i in range(2*R): A(f"v_mov_b32 v{vres+i}, 0")
    A(f"""s_mov_b32 s{scnt}, {400000 // R}
    L_poll_{tag}:""")
    for i in range(R):
        r = vres + 2*i
        for _ in range(nrd - 1): A(f"ds_read_b64 v[{vn}:{vn+1}], v{voff+1}\ns_waitcnt lgkmcnt(0)")
        A(f"""ds_read_b64 v[{vn}:{vn+1}], v{voff+1}
        s_waitcnt vmcnt({R-1}) lgkmcnt(0)
        v_cmp_ne_u64 vcc, v[{r}:{r+1}], v[{vn}:{vn+1}]
        s_nop 3
        s_and_b64 exec, exec, vcc
        s_cbranch_scc0 L_poll_{tag}_ok
        buffer_load_dwordx2 v[{r}:{r+1}], v{voff}, s[{srd}:{srd+3}], 0 offen {FLAG_LD}""")
    A(f"""s_sub_u32 s{scnt}, s{scnt}, 1
    s_cmp_lg_u32 s{scnt}, 0
    s_cbranch_scc1 L_poll_{tag}
    L_poll_{tag}_ok:
    s_mov_b64 exec, -1""")

S_NONCE = 100
LDS_FULL = 163840
O_XSLOTS, O_WSLOTS, O_WOFF = 4, 6, 65536
def set_orings(nx, nw):
    global O_XSLOTS, O_WSLOTS, O_WOFF
    O_XSLOTS, O_WSLOTS, O_WOFF = nx, nw, nx*16384
def orings(): return O_XSLOTS, O_WSLOTS, O_WOFF
VOTE_LDS = 32768
def nonce_to_sgpr(A, vn, vt):
    A(f"""v_mov_b32 v{vt}, {NONCE_LDS}
    ds_read_b64 v[{vn}:{vn+1}], v{vt}
    s_waitcnt lgkmcnt(0)
    v_readfirstlane_b32 s{S_NONCE}, v{vn}
    v_readfirstlane_b32 s{S_NONCE+1}, v{vn+1}""")
def nonce_from_sgpr(A, vn):
    A(f"""v_mov_b32 v{vn}, s{S_NONCE}
    v_mov_b32 v{vn+1}, s{S_NONCE+1}""")
def ow_srd(A, srd, ptrA, ptrB, t0, t1):
    A(f"""s_bitcmp1_b32 s2, 2
    s_cselect_b32 s{srd}, s{ptrB}, s{ptrA}
    s_cselect_b32 s{srd+1}, s{ptrB+1}, s{ptrA+1}
    s_lshr_b32 s{t0}, s2, 6
    s_and_b32 s{t0}, s{t0}, 3
    s_and_b32 s{t1}, s2, 1
    s_lshl_b32 s{t1}, s{t1}, 2
    s_add_u32 s{t0}, s{t0}, s{t1}
    s_lshl_b32 s{t0}, s{t0}, 8
    s_add_u32 s{srd}, s{srd}, s{t0}
    s_addc_u32 s{srd+1}, s{srd+1}, 0
    s_and_b32 s{srd+1}, s{srd+1}, 0xffff
    s_sub_u32 s{srd+2}, {1024*2048}, s{t0}
    s_mov_b32 s{srd+3}, 0x20000""")
def ow_lanes(A, vLW, l, sw, st, vt0, vt1, vt2):
    for i in range(4):
        A(f"""v_lshrrev_b32 v{vt0}, 4, v{l}
        s_lshl_b32 s{st}, s{sw}, 4
        s_add_u32 s{st}, s{st}, {4*i}
        v_add_u32 v{vt0}, s{st}, v{vt0}
        v_and_b32 v{vt1}, 7, v{vt0}
        v_lshlrev_b32 v{vt1}, 1, v{vt1}
        v_and_b32 v{vt2}, 15, v{l}
        v_xor_b32 v{vt1}, v{vt1}, v{vt2}
        v_lshlrev_b32 v{vt1}, 4, v{vt1}
        v_lshl_add_u32 v{vLW+i}, v{vt0}, 11, v{vt1}""")
def o_rot(A, srot, step):
    A(f"s_bfe_u32 s{srot}, s2, 0x20006\ns_mul_i32 s{srot}, s{srot}, {step}")
def ow_dma(A, srd, vLW, sm0w, st_tmp, ldsoff, stage, srot=None):
    A(f"s_add_u32 m0, s{sm0w}, {ldsoff}")
    if srot is None: A(f"s_mov_b32 s{st_tmp}, {stage*64*2048}")
    else: A(f"s_add_u32 s{st_tmp}, s{srot}, {stage}\ns_and_b32 s{st_tmp}, s{st_tmp}, 15\ns_lshl_b32 s{st_tmp}, s{st_tmp}, 17")
    for i in range(4):
        if i: A("s_add_u32 m0, m0, 1024\ns_nop 0")
        A(f"buffer_load_dwordx4 v{vLW+i}, s[{srd}:{srd+3}], s{st_tmp} offen lds")

def flag_poll3(A, tag, srd, vn, voff, vc, scnt, first=None):
    def loop(t):
        A(f"""s_mov_b32 s{scnt}, 400000
        L_poll_{t}:
        buffer_load_dwordx2 v[{vc}:{vc+1}], v{voff}, s[{srd}:{srd+3}], 0 offen {FLAG_LD}
        s_waitcnt vmcnt(0)
        v_cmp_ne_u64 vcc, v[{vc}:{vc+1}], v[{vn}:{vn+1}]
        s_sub_u32 s{scnt}, s{scnt}, 1
        s_nop 2
        s_and_b64 exec, exec, vcc
        s_cbranch_scc0 L_poll_{t}_ok
        s_cmp_lg_u32 s{scnt}, 0
        s_cbranch_scc1 L_poll_{t}
        L_poll_{t}_ok:""")
    if first:
        A(f"s_mov_b32 exec_lo, {first[1]}\ns_mov_b32 exec_hi, {first[0]}")
        loop(tag + "_a")
        A(f"s_mov_b32 exec_lo, {~first[1] & 0xffffffff}\ns_mov_b32 exec_hi, {~first[0] & 0xffffffff}")
    loop(tag)
    A("s_mov_b64 exec, -1")

def code_touch(A, tag, label, vt, vdum, lane16, sw, stmp, end="L_code_end"):
    A(f"""s_getpc_b64 s[{stmp}:{stmp+1}]
    L_ct_{tag}:
    s_add_u32 s{stmp}, s{stmp}, {label}-L_ct_{tag}
    s_addc_u32 s{stmp+1}, s{stmp+1}, 0
    v_lshlrev_b32 v{vt}, 3, v{lane16}
    v_lshl_add_u32 v{vt}, s{sw}, 13, v{vt}
    v_min_u32 v{vt}, {end}-{label}-4, v{vt}
    global_load_dword v{vdum}, v{vt}, s[{stmp}:{stmp+1}]""")
```

```python
from kgen import *
import struct, math
def f2u(x): return struct.unpack("<I", struct.pack("<f", x))[0]
CSC = f2u(math.log2(math.e) / math.sqrt(32.0))

def gen_proj(name="proj_kernel", opts=None):
    o = opts or {}
    A = Asm()
    SLOT = 51200
    XOFF, WOFF, EOFF = 0, 16384, 49152
    NST = 16
    va = VAlloc(0)
    vtid = va.get("tid"); vt0 = va.get("t0"); vt1 = va.get("t1"); vt2 = va.get("t2"); vt3 = va.get("t3"); vt4 = va.get("t4")
    vXA = [va.get("xa0"), va.get("xa1")]
    vWA = [va.get(f"wa{i}") for i in range(4)]
    vXE = [va.get("xe0"), va.get("xe1")]
    vWE = [va.get("we0"), va.get("we1")]
    vst = va.get("st")
    vdum = va.get("dummy")
    va_pf = va.get("pf", 2, 2)
    va_pfinc = va.get("pfinc")
    vstamp = va.get("stamp")
    vtag = va.get("tag", 4, 2) if (opts or {}).get("fused") else None
    vtagr = va.get("tagr", 2, 2) if (opts or {}).get("fused") else None
    NSP = 3
    acc = [[va.get(f"acc{t}{c}", 4, 4) for c in range(4)] for t in range(8)]
    acce = [va.get(f"acce{i}", 4, 4) for i in range(2)]
    xf = [va.get(f"xf{t}", 4, 4) for t in range(8)]
    xs = [va.get(f"xs{t}", 4, 4) for t in range(NSP)]
    wf = [[va.get(f"wf{b}{c}", 4, 4) for c in range(4)] for b in range(2)]
    xe = [va.get(f"xef{i}", 4, 4) for i in range(2)]
    we = va.get("wef", 4, 4)
    nv = va.next
    vLX = [xf[0] + i for i in range(4)]
    vLW = [xf[1] + i for i in range(4)] + [xf[2] + i for i in range(4)]
    vLE = xf[3]
    sX, sWd, sE, sWS = 8, 12, 16, 20
    sWave, sXcd, sRB, sCB, sType, sLdw = 24, 25, 26, 27, 28, 29
    sT0, sT1, sT2, sT3 = 30, 31, 32, 33
    sCnt, sDelta, sSlot, sXo, sWo, sEo, sM0x, sM0w, sM0e, sOut, sOutE, sCneg, sWstep = 34, 35, 36, 37, 38, 39, 40, 41, 42, 43, 44, 45, 46
    sC = 56
    sP = 48
    N = name
    FUSED = o.get("fused")
    A.raw(kernel_head(o.get("kname", name)).rstrip("\n"))
    if o.get("stamp"): A("s_memtime s[60:61]\ns_memrealtime s[62:63]")
    A(f"""s_cmp_ge_u32 s2, 256
    s_cbranch_scc1 {"L_fused_end" if FUSED else f"L_{N}_end"}
    s_and_b32 s{sXcd}, s2, 7
    s_lshr_b32 s{sT0}, s2, 3
    s_and_b32 s{sRB}, s{sT0}, 7
    s_lshr_b32 s{sCB}, s{sT0}, 3
    s_load_dwordx2 s[{sP+6}:{sP+7}], s[0:1], {KA_WS}
    {f"s_load_dwordx2 s[98:99], s[0:1], {KA_DBG}" if FUSED else ""}
    v_lshrrev_b32 v{vt0}, 6, v{vtid}
    v_and_b32 v{vtid}, 63, v{vtid}
    v_readfirstlane_b32 s{sWave}, v{vt0}
    s_cmp_lt_u32 s{sXcd}, 2
    s_cbranch_scc1 L_{N}_typeA
    s_load_dwordx2 s[{sP}:{sP+1}], s[0:1], {KA_BX}
    s_load_dwordx2 s[{sP+2}:{sP+3}], s[0:1], {KA_BWQKV}
    s_load_dwordx2 s[{sP+4}:{sP+5}], s[0:1], {KA_BWQKV}
    s_sub_u32 s{sT0}, s{sXcd}, 2
    s_and_b32 s{sT1}, s{sT0}, 1
    s_lshl_b32 s{sT1}, s{sT1}, 3
    s_add_u32 s{sRB}, s{sRB}, s{sT1}
    s_lshr_b32 s{sType}, s{sT0}, 1          ; 0 Q, 1 K, 2 V
    s_mov_b32 s{sLdw}, 6144
    s_lshl_b32 s{sT2}, s{sType}, 11
    s_lshl_b32 s{sT3}, s{sCB}, 9
    s_add_u32 s{sT2}, s{sT2}, s{sT3}
    s_mov_b32 s{sT3}, {1024*6144}
    s_mov_b32 s{sEo}, 0
    s_branch L_{N}_typed
    L_{N}_typeA:
    s_load_dwordx2 s[{sP}:{sP+1}], s[0:1], {KA_AX}
    s_load_dwordx2 s[{sP+2}:{sP+3}], s[0:1], {KA_AWQ}
    s_cmp_lt_u32 s{sCB}, 2
    s_cbranch_scc1 L_{N}_typeAK
    s_load_dwordx2 s[{sP+4}:{sP+5}], s[0:1], {KA_AWV}
    s_mov_b32 s{sType}, 4
    s_branch L_{N}_typeA2
    L_{N}_typeAK:
    s_load_dwordx2 s[{sP+4}:{sP+5}], s[0:1], {KA_AWK}
    s_mov_b32 s{sType}, 3
    L_{N}_typeA2:
    s_lshl_b32 s{sT1}, s{sXcd}, 3
    s_add_u32 s{sRB}, s{sRB}, s{sT1}
    s_mov_b32 s{sLdw}, 2048
    s_lshl_b32 s{sT2}, s{sCB}, 9
    s_mov_b32 s{sT3}, {1024*2048}
    s_and_b32 s{sEo}, s{sCB}, 1
    s_lshl_b32 s{sEo}, s{sEo}, 5
    L_{N}_typed:
    s_mov_b32 s47, s{sT2}
    s_mov_b32 s58, s{sT3}
    """)
    LATE = o.get("latesrd", True)
    def srd_ld():
        A(f"""; SRD X: base + rowblock*128*2048, 256KB
        s_lshl_b32 s59, s{sRB}, 18
        s_add_u32 s{sX}, s{sP}, s59
        s_addc_u32 s{sX+1}, s{sP+1}, 0
        s_and_b32 s{sX+1}, s{sX+1}, 0xffff
        s_mov_b32 s{sX+2}, 262144
        s_mov_b32 s{sX+3}, 0x20000
        s_add_u32 s{sWd}, s{sP+2}, s47
        s_addc_u32 s{sWd+1}, s{sP+3}, 0
        s_and_b32 s{sWd+1}, s{sWd+1}, 0xffff
        s_sub_u32 s{sWd+2}, s58, s47
        s_mov_b32 s{sWd+3}, 0x20000
        ; SRD E
        s_mov_b32 s{sE}, s{sP+4}
        s_and_b32 s{sE+1}, s{sP+5}, 0xffff
        s_mov_b32 s{sE+2}, 65536
        s_mov_b32 s{sE+3}, 0x20000""")
    def srd_ws():
        A(f"""; SRD WS
        s_mov_b32 s{sWS}, s{sP+6}
        s_and_b32 s{sWS+1}, s{sP+7}, 0xffff
        s_mov_b32 s{sWS+2}, {WS_END + (262144 if o.get('stamp') else 0)}
        s_mov_b32 s{sWS+3}, 0x20000""")
    if not LATE:
        A("s_waitcnt lgkmcnt(0)")
        srd_ld(); srd_ws()
    if o.get("stamp"): A("s_memtime s[84:85]" + ("" if LATE else "\ns_waitcnt lgkmcnt(0)"))
    if FUSED: A(f"s_mov_b32 s{S_WAVE}, s{sWave}")
    A(f"""s_cmp_lt_u32 s{sWave}, 4
    s_cbranch_scc1 L_{N}_compute""")
    l = vtid
    A(f"L_{N}_loader:")
    LX0, LX1 = vLX[0], vLX[1]
    A(f"""s_sub_u32 s{sWave}, s{sWave}, 4
    v_lshrrev_b32 v{vt0}, 3, v{l}
    v_lshrrev_b32 v{vt1}, 4, v{l}
    v_and_b32 v{vt2}, 7, v{l}
    v_xor_b32 v{vt1}, v{vt1}, v{vt2}
    s_lshl_b32 s{sT0}, s{sWave}, 16
    v_lshlrev_b32 v{vt1}, 4, v{vt1}
    v_lshl_add_u32 v{LX0}, v{vt0}, 11, v{vt1}
    v_add_u32 v{LX0}, s{sT0}, v{LX0}
    v_xor_b32 v{LX1}, 64, v{LX0}
    s_mov_b32 s{sXo}, 0
    s_lshl_b32 s{sM0x}, s{sWave}, 12
    s_mov_b32 s{sSlot}, 0
    v_lshrrev_b32 v{vt0}, 5, v{l}
    v_and_b32 v{vt2}, 31, v{l}
    v_lshlrev_b32 v{vt1}, 1, v{vt0}
    v_xor_b32 v{vt1}, v{vt1}, v{vt2}
    s_lshl_b32 s{sT0}, s{sWave}, 4
    v_add_u32 v{vt0}, s{sT0}, v{vt0}
    v_mul_lo_u32 v{vt0}, v{vt0}, s{sLdw}
    v_lshl_add_u32 v{vLW[0]}, v{vt1}, 4, v{vt0}
    v_xor_b32 v{vLW[1]}, 64, v{vLW[0]}
    v_xor_b32 v{vLW[2]}, 0x80, v{vLW[0]}
    v_xor_b32 v{vLW[3]}, 0xc0, v{vLW[0]}
    s_mov_b32 s{sWo}, 0
    s_lshl_b32 s{sWstep}, s{sLdw}, 6
    s_lshl_b32 s{sT3}, s{sLdw}, 1
    s_lshl_b32 s{sM0w}, s{sWave}, 13
    s_add_u32 s{sM0w}, s{sM0w}, {WOFF}
    """)
    STAG = o.get("stag", "")
    if STAG:
        A(f"""s_bfe_u32 s{sT0}, s{sRB}, {(0x10001 if 'o' in STAG else 0x10000) if 'w' in STAG else 0x1}          ; fw
        s_lshl_b32 s{sT1}, s{sT0}, 7
        v_xor_b32 v{vLW[0]}, s{sT1}, v{vLW[0]}
        v_xor_b32 v{vLW[1]}, s{sT1}, v{vLW[1]}
        v_xor_b32 v{vLW[2]}, s{sT1}, v{vLW[2]}
        v_xor_b32 v{vLW[3]}, s{sT1}, v{vLW[3]}
        s_lshl_b32 s{sT1}, s{sT0}, 12
        s_add_u32 s{sM0w}, s{sM0w}, s{sT1}
        s_mul_i32 s{sT1}, s{sLdw}, 8
        s_mul_i32 s{sWo}, s{sT1}, s{sT0}
        s_mul_i32 s{sT1}, s{sLdw}, -14
        s_cmp_eq_u32 s{sT0}, 0
        s_cselect_b32 s66, s{sT3}, s{sT1}
        s_mov_b32 s{sT1}, -7168
        s_cselect_b32 s67, 0x400, s{sT1}
        s_bfe_u32 s{sT0}, s{sCB}, {0x10001 if 'x' in STAG else 0x1}          ; fx
        s_lshl_b32 s{sT1}, s{sT0}, 6
        v_xor_b32 v{LX0}, s{sT1}, v{LX0}
        v_xor_b32 v{LX1}, s{sT1}, v{LX1}
        s_lshl_b32 s{sT1}, s{sT0}, 11
        s_add_u32 s{sM0x}, s{sM0x}, s{sT1}
        s_lshl_b32 s{sXo}, s{sT0}, 15
        s_mov_b32 s{sT1}, -49152
        s_cmp_eq_u32 s{sT0}, 0
        s_cselect_b32 s64, 0x4000, s{sT1}
        s_mov_b32 s{sT1}, -3072
        s_cselect_b32 s65, 0x400, s{sT1}""")
    W4 = 'q' in STAG
    vWk = [xf[4] + i for i in range(8)]
    if W4:
        A(f"""s_bfe_u32 s82, s{sRB}, 0x20001
        s_lshl_b32 s83, s{sLdw}, 2""")
        for p in range(4):
            A(f"""s_add_u32 s{sT0}, s82, {p}
            s_and_b32 s{sT0}, s{sT0}, 3
            s_lshl_b32 s{73+p}, s{sT0}, 11
            s_mul_i32 s{77+p}, s{sT0}, s83
            s_lshr_b32 s{sT0}, s{sT0}, 1
            s_lshl_b32 s{sT0}, s{sT0}, 7
            v_xor_b32 v{vWk[2*p]}, s{sT0}, v{vLW[0]}
            v_xor_b32 v{vWk[2*p+1]}, s{sT0}, v{vLW[1]}""")
    KR = o.get("krot")
    if KR:
        if KR[0] == "p": A(f"s_add_u32 s69, s{sRB}, s{sCB}\ns_and_b32 s69, s69, 1")
        elif KR[0] == "h": A(f"s_lshr_b32 s69, s{sRB}, 1\ns_lshr_b32 s70, s{sCB}, 1\ns_add_u32 s69, s69, s70\ns_and_b32 s69, s69, 1")
        elif KR[0] == "4": A(f"s_add_u32 s69, s{sRB}, s{sCB}\ns_and_b32 s69, s69, 3")
        elif KR[0] == "8": A(f"s_lshl_b32 s70, s{sCB}, 1\ns_add_u32 s69, s{sRB}, s70\ns_and_b32 s69, s69, 7")
        if len(KR) > 2:
            A(f"s_cmp_ge_u32 s{sType}, 3\ns_cselect_b32 s69, {'s69, 0' if KR[2] == 'A' else '0, s69'}")
        KB = o.get("krotB")
        if KB:
            A(f"""s_mul_i32 s70, s{sType}, {KB[0]}
            s_and_b32 s71, s{sXcd}, 1
            s_mul_i32 s71, s71, {KB[1]}
            s_add_u32 s70, s70, s71
            s_cmp_ge_u32 s{sType}, 3
            s_cselect_b32 s69, s69, s70""")
        A(f"""s_mul_i32 s69, s69, {KR[1]}
        s_lshl_b32 s70, s69, 7
        s_add_u32 s{sXo}, s{sXo}, s70
        s_mul_i32 s70, s69, s{sWstep}
        s_add_u32 s{sWo}, s{sWo}, s70
        s_mul_i32 s71, s{sWstep}, -15
        s_movk_i32 s72, 0x80""")
    A(f"""s_cmp_ge_u32 s{sType}, 3
    s_cbranch_scc0 L_{N}_ldB
    s_lshl_b32 s{sT0}, s{sWave}, 4
    v_lshrrev_b32 v{vt0}, 1, v{l}
    v_and_b32 v{vt0}, 15, v{vt0}
    v_add_u32 v{vt0}, s{sT0}, v{vt0}           ; position p
    v_lshrrev_b32 v{vt1}, 1, v{vt0}
    v_and_b32 v{vt1}, 4, v{vt1}
    v_xor_b32 v{vt0}, v{vt0}, v{vt1}
    v_and_b32 v{vt1}, 1, v{l}
    s_cmp_eq_u32 s{sType}, 3
    s_cselect_b32 s{sT0}, 5, 4
    v_lshlrev_b32 v{vt1}, s{sT0}, v{vt1}
    s_cselect_b32 s{sT0}, 1, 0
    s_lshr_b32 s{sEo}, s{sEo}, s{sT0}
    v_lshl_add_u32 v{vLE}, v{vt0}, 6, v{vt1}
    v_add_u32 v{vLE}, s{sEo}, v{vLE}
    {f"s_lshl_b32 s{sEo}, s69, 12" if KR else f"s_mov_b32 s{sEo}, 0"}
    s_lshl_b32 s{sM0e}, s{sWave}, 9
    s_add_u32 s{sM0e}, s{sM0e}, {EOFF}
    s_branch L_{N}_ldA""")
    def dma(extra, order=0):
        def xpart():
            A(f"s_add_u32 m0, s{sSlot}, s{sM0x}")
            for i in range(4):
                if STAG:
                    if i == 0: A(f"s_mov_b32 s{sT0}, s{sXo}")
                    elif i == 2: A(f"s_add_u32 m0, m0, s65\ns_add_u32 s{sT0}, s{sT0}, s64")
                    else: A(f"s_add_u32 m0, m0, 1024\ns_add_u32 s{sT0}, s{sT0}, 16384")
                else:
                    if i: A("s_add_u32 m0, m0, 1024")
                    A(f"s_add_u32 s{sT0}, s{sXo}, {i*16384}")
                A(f"buffer_load_dwordx4 v{[LX0,LX1][(i ^ (i>>1)) & 1]}, s[{sX}:{sX+3}], s{sT0} offen {o.get('xfl','')} lds")
        def wpart():
            if W4:
                A(f"s_add_u32 s81, s{sSlot}, s{sM0w}")
                for p in range(4):
                    A(f"""s_add_u32 m0, s81, s{73+p}
                    s_add_u32 s{sT0}, s{sWo}, s{77+p}
                    buffer_load_dwordx4 v{vWk[2*p]}, s[{sWd}:{sWd+3}], s{sT0} offen {o.get('wfl','')} lds
                    s_add_u32 m0, m0, 1024
                    s_add_u32 s{sT0}, s{sT0}, s{sT3}
                    buffer_load_dwordx4 v{vWk[2*p+1]}, s[{sWd}:{sWd+3}], s{sT0} offen {o.get('wfl','')} lds""")
                return
            A(f"s_add_u32 m0, s{sSlot}, s{sM0w}")
            A(f"s_mov_b32 s{sT0}, s{sWo}")
            for i in range(8):
                if i == 4 and STAG:
                    A("s_add_u32 m0, m0, s67")
                    A(f"s_add_u32 s{sT0}, s{sT0}, s66")
                elif i:
                    A("s_add_u32 m0, m0, 1024")
                    A(f"s_add_u32 s{sT0}, s{sT0}, s{sT3}")
                A(f"buffer_load_dwordx4 v{vLW[(i&1) + 2*(i>>2)]}, s[{sWd}:{sWd+3}], s{sT0} offen {o.get('wfl','')} lds")
        for part in ((xpart, wpart) if order == 0 else (wpart, xpart)): part()
        if extra:
            A(f"s_add_u32 m0, s{sSlot}, s{sM0e}")
            A("s_mov_b32 exec_hi, 0")
            A(f"buffer_load_dwordx4 v{vLE}, s[{sE}:{sE+3}], s{sEo} offen lds")
            A("s_mov_b32 exec_hi, -1")
            if not KR: A(f"s_add_u32 s{sEo}, s{sEo}, 4096")
        if KR:
            A(f"""s_add_u32 s69, s69, 1
            s_cmp_eq_u32 s69, 16
            s_cselect_b32 s69, 0, s69
            s_cselect_b32 s70, s71, s{sWstep}
            s_add_u32 s{sWo}, s{sWo}, s70
            s_cmp_eq_u32 s69, 0
            s_cselect_b32 s70, 0xfffff880, s72
            s_add_u32 s{sXo}, s{sXo}, s70""")
            if extra: A(f"s_lshl_b32 s{sEo}, s69, 12")
        else:
            A(f"""s_add_u32 s{sXo}, s{sXo}, 128
            s_add_u32 s{sWo}, s{sWo}, s{sWstep}""")
        A(f"""s_add_u32 s{sSlot}, s{sSlot}, {SLOT}
        s_cmp_eq_u32 s{sSlot}, {3*SLOT}
        s_cselect_b32 s{sSlot}, 0, s{sSlot}""")
    ORD = 'o' in STAG
    for tag, extra, order in ([("ldB", False, 0), ("ldB1", False, 1), ("ldA", True, 0), ("ldA1", True, 1)] if ORD else [("ldB", False, 0), ("ldA", True, 0)]):
        PER = 13 if extra else 12
        A(f"L_{N}_{tag}:")
        if ORD and order == 0:
            A(f"s_xor_b32 s{sT0}, s{sRB}, s{sCB}\ns_bitcmp1_b32 s{sT0}, 0\ns_cbranch_scc1 L_{N}_{tag}1")
        _dma = dma
        dma_ = lambda e, order=order: _dma(e, order)
        if LATE:
            A("s_waitcnt lgkmcnt(0)")
            srd_ld()
            if o.get("stamp"): srd_ws()
        pre = o.get("predmaA" if extra else "predmaB", o.get("predma", 1))
        if o.get("pfwait"): A("s_barrier")
        if o.get("stamp"): A("s_memtime s[86:87]")
        for _ in range(pre): dma_(extra)
        if o.get("stamp"): A("s_memtime s[88:89]")
        A(f"s_waitcnt vmcnt({(pre-1)*PER})")
        if o.get("stamp"):
            A(f"""s_memtime s[90:91]
            s_waitcnt lgkmcnt(0)
            s_sub_u32 s84, s84, s60
            s_sub_u32 s86, s86, s60
            s_sub_u32 s88, s88, s60
            s_sub_u32 s90, s90, s60
            v_mov_b32 v{acc[0][0]}, s84
            v_mov_b32 v{acc[0][0]+1}, s86
            v_mov_b32 v{acc[0][0]+2}, s88
            v_mov_b32 v{acc[0][0]+3}, s90
            v_mov_b32 v{vt4}, 0
            s_lshl_b32 s68, s2, 3
            s_add_u32 s68, s68, s{sWave}
            s_add_u32 s68, s68, 4
            s_lshl_b32 s68, s68, 4
            s_add_u32 s68, s68, {WS_END}""")
        A("s_barrier")
        if o.get("stamp"): A(f"buffer_store_dwordx4 v[{acc[0][0]}:{acc[0][0]+3}], v{vt4}, s[{sWS}:{sWS+3}], s68 offen")
        for _ in range(3-pre): dma_(extra)
        A(f"s_mov_b32 s{sCnt}, {NST-3}")
        A(f"L_{N}_{tag}_loop:")
        A(f"s_waitcnt vmcnt({PER})\ns_barrier")
        dma_(extra)
        A(f"""s_sub_u32 s{sCnt}, s{sCnt}, 1
        s_cmp_lg_u32 s{sCnt}, 0
        s_cbranch_scc1 L_{N}_{tag}_loop
        s_waitcnt vmcnt({PER})
        s_barrier
        s_waitcnt vmcnt(0)
        s_barrier""")
        if FUSED and o.get("ctouch"):
            A(f"v_lshlrev_b32 v{vt1}, 4, v{l}")
            code_touch(A, f"{N}_{tag}", "L_attn_code", vt0, vdum, vt1, sWave, 74, end="L_oproj_code")
        A(f"s_branch L_{N}_lend")
    A(f"L_{N}_compute:")
    l = vtid
    def cpf():
        A(f"s_lshr_b32 s{sT0}, s2, 3\ns_and_b32 s{sT0}, s{sT0}, {7 if o.get('wpre') else 3}\ns_cmp_lg_u32 s{sWave}, {o.get('cpwave', 3)}\ns_cbranch_scc1 L_{N}_nocp")
        code_prefetch(A, N, o.get("kname", name), 0, sT0, vt0, vdum, l, 74)
        A(f"L_{N}_nocp:")
    if o.get("codepf", True) and o.get("cpearly"): cpf()
    if LATE:
        A("s_waitcnt lgkmcnt(0)")
        srd_ws()
    if FUSED and o.get("nonce", "store") == "atomic":
        A(f"""s_cmp_lg_u32 s{sWave}, 1
        s_cbranch_scc1 L_{N}_notag
        s_memrealtime s[96:97]
        s_waitcnt lgkmcnt(0)
        s_or_b32 s96, s96, 1
        v_mov_b32 v{vtag}, s96
        v_mov_b32 v{vtag+1}, s97
        v_mov_b32 v{vtag+2}, 0
        v_mov_b32 v{vtag+3}, 0
        v_mov_b32 v{vt0}, 0
        s_mov_b64 exec, 1
        global_atomic_cmpswap_x2 v[{vtagr}:{vtagr+1}], v{vt0}, v[{vtag}:{vtag+3}], s[98:99] sc0
        s_mov_b64 exec, -1
        L_{N}_notag:""")
    elif FUSED:
        A(f"""v_mov_b32 v{vtag+2}, 0
        s_cmp_lg_u32 s{sWave}, 1
        s_cbranch_scc1 L_{N}_notag
        s_cmp_lg_u32 s2, 0
        s_cbranch_scc1 L_{N}_notag
        s_memrealtime s[96:97]
        s_waitcnt lgkmcnt(0)
        s_or_b32 s96, s96, 1
        v_mov_b32 v{vtag}, s96
        v_mov_b32 v{vtag+1}, s97
        s_mov_b64 exec, 1
        global_store_dwordx2 v{vtag+2}, v[{vtag}:{vtag+1}], s[98:99] sc0 sc1
        s_mov_b64 exec, -1
        L_{N}_notag:""")
    PF = o.get("prefetch", True)
    PFD = 4
    sPfN = 79
    vpa = va_pf; vpinc = va_pfinc
    if PF:
        A(f"""s_lshr_b32 s{sT1}, s2, 3              ; j
        s_lshr_b32 s{sT0}, s{sRB}, 3
        s_lshl_b32 s{sT0}, s{sT0}, 21
        s_add_u32 s72, s{sP}, s{sT0}
        s_addc_u32 s73, s{sP+1}, 0
        s_lshl_b32 s{sT0}, s{sType}, 11
        s_cmp_ge_u32 s{sType}, 3
        s_cselect_b32 s{sT0}, 0, s{sT0}
        s_add_u32 s74, s{sP+2}, s{sT0}
        s_addc_u32 s75, s{sP+3}, 0
        s_lshl_b32 s{sT2}, s{sT1}, 5
        v_and_b32 v{vt0}, 31, v{l}
        v_add_u32 v{vt0}, s{sT2}, v{vt0}
        v_lshlrev_b32 v{vt0}, 11, v{vt0}
        s_lshl_b32 s{sT2}, s{sT1}, 1
        v_bfe_u32 v{vt1}, v{l}, 4, 1
        v_add_u32 v{vt1}, s{sT2}, v{vt1}
        v_mul_lo_u32 v{vt1}, v{vt1}, s{sLdw}
        v_and_b32 v{vt2}, 15, v{l}
        v_lshl_add_u32 v{vt1}, v{vt2}, 7, v{vt1}
        s_lshl_b32 s{sT2}, s{sLdw}, 6
        v_mov_b32 v{vpinc}, 0x80
        v_mov_b32 v{vt2}, s{sT2}
        v_mov_b32 v{vt3}, s72
        v_mov_b32 v{vt4}, s73
        v_mov_b32 v{vpa}, s74
        v_mov_b32 v{vpa+1}, s75
        v_cmp_gt_u32 vcc, 32, v{l}
        s_nop 1
        v_cndmask_b32 v{vpinc}, v{vt2}, v{vpinc}, vcc
        v_cndmask_b32 v{vt0}, v{vt1}, v{vt0}, vcc
        v_cndmask_b32 v{vpa}, v{vpa}, v{vt3}, vcc
        v_cndmask_b32 v{vpa+1}, v{vpa+1}, v{vt4}, vcc
        v_mul_lo_u32 v{vt1}, v{vpinc}, s{sWave}
        v_add_u32 v{vt0}, v{vt0}, v{vt1}             ; stage = wave
        v_add_co_u32 v{vpa}, vcc, v{vpa}, v{vt0}
        v_lshlrev_b32 v{vpinc}, 2, v{vpinc}          ; each wave then steps 4 stages
        s_mov_b32 s{sPfN}, 3
        v_addc_co_u32 v{vpa+1}, vcc, 0, v{vpa+1}, vcc
        s_mov_b32 s78, s{sWave}""")
    PM = o.get("pfmask")
    if PF and PM:
        mk = {"x": (0xffffffff, 0), "w": (0, 0xffffffff), "xw": (0xffffffff, 0xffffffff)}
        A(f"""s_cmp_ge_u32 s{sType}, 3
        s_cselect_b32 s76, {mk[PM[0]][0]}, {mk[PM[1]][0]}
        s_cselect_b32 s77, {mk[PM[0]][1]}, {mk[PM[1]][1]}""".replace(str(0xffffffff), "-1"))
    def pf_one():
        if PM: return f"""s_mov_b64 exec, s[76:77]
        global_load_dword v{vdum}, v[{vpa}:{vpa+1}], off {o.get('pfl','')}
        s_mov_b64 exec, -1
        v_add_co_u32 v{vpa}, vcc, v{vpa}, v{vpinc}
        s_nop 1
        v_addc_co_u32 v{vpa+1}, vcc, 0, v{vpa+1}, vcc"""
        return f"""global_load_dword v{vdum}, v[{vpa}:{vpa+1}], off {o.get('pfl','')}
        v_add_co_u32 v{vpa}, vcc, v{vpa}, v{vpinc}
        s_nop 1
        v_addc_co_u32 v{vpa+1}, vcc, 0, v{vpa+1}, vcc"""
    def pf_more():
        m = o.get("pfd8")
        nA = o.get("pfnA", 2 if m in ("A", "all") else 1); nB = o.get("pfnB", 2 if m in ("B", "all") else 1)
        if not PF or (nA <= 1 and nB <= 1): return
        A(f"s_cmp_ge_u32 s{sType}, 3\ns_cbranch_scc1 L_{N}_pfa")
        for _ in range(nB - 1): A(pf_one())
        A(f"s_mov_b32 s{sPfN}, {4 - nB}\ns_branch L_{N}_pfz\nL_{N}_pfa:")
        for _ in range(nA - 1): A(pf_one())
        A(f"s_mov_b32 s{sPfN}, {4 - nA}\nL_{N}_pfz:")
    def pf_first():
        if PF and o.get("pfinit") in ("B", "Bonly"):
            A(f"s_cmp_ge_u32 s{sType}, 3\ns_cbranch_scc1 L_{N}_pfia")
            A(pf_one())
            A(f"""s_branch L_{N}_pfiz
            L_{N}_pfia:
            v_add_co_u32 v{vpa}, vcc, v{vpa}, v{vpinc}
            s_nop 1
            v_addc_co_u32 v{vpa+1}, vcc, 0, v{vpa+1}, vcc
            {f"s_mov_b32 s{sPfN}, 0" if o.get("pfinit") == "Bonly" else ""}
            L_{N}_pfiz:""")
        elif PF and o.get("pfinit") in ("A", "Aonly"):
            A(f"s_cmp_lt_u32 s{sType}, 3\ns_cbranch_scc1 L_{N}_pfia")
            A(pf_one())
            A(f"""s_branch L_{N}_pfiz
            L_{N}_pfia:
            v_add_co_u32 v{vpa}, vcc, v{vpa}, v{vpinc}
            s_nop 1
            v_addc_co_u32 v{vpa+1}, vcc, 0, v{vpa+1}, vcc
            {f"s_mov_b32 s{sPfN}, 0" if o.get("pfinit") == "Aonly" else ""}
            L_{N}_pfiz:""")
        elif PF and o.get("pfinit", True): A(pf_one())
        elif PF: A(f"""v_add_co_u32 v{vpa}, vcc, v{vpa}, v{vpinc}
        s_nop 1
        v_addc_co_u32 v{vpa+1}, vcc, 0, v{vpa+1}, vcc""")
    if o.get("pfpos", "early") == "early": pf_first()
    if o.get("tlb", True) and not FUSED:
        A(f"""s_cmp_lg_u32 s{sWave}, 2
        s_cbranch_scc1 L_{N}_notlb
        s_load_dwordx2 s[74:75], s[0:1], {KA_OUT}
        v_min_u32 v{vt0}, 12, v{l}
        v_lshlrev_b32 v{vt0}, 21, v{vt0}
        global_load_dword v{vdum}, v{vt0}, s[{sP+6}:{sP+7}]
        v_and_b32 v{vt0}, 3, v{l}
        v_lshlrev_b32 v{vt0}, 21, v{vt0}
        s_waitcnt lgkmcnt(0)
        global_load_dword v{vdum}, v{vt0}, s[74:75]
        L_{N}_notlb:""")
    if FUSED and o.get("tlbout", False):
        A(f"""s_cmp_lg_u32 s{sWave}, 2
        s_cbranch_scc1 L_{N}_notlb
        s_load_dwordx2 s[74:75], s[0:1], {KA_OUT}
        v_and_b32 v{vt0}, 3, v{l}
        v_lshlrev_b32 v{vt0}, 21, v{vt0}
        s_waitcnt lgkmcnt(0)
        global_load_dword v{vdum}, v{vt0}, s[74:75]
        L_{N}_notlb:""")
    if o.get("codepf", True) and not o.get("cpearly"): cpf()
    def pf_inloop(tag):
        return [f"""s_cmp_lg_u32 s78, 0
        s_cbranch_scc1 L_{N}_{tag}_pfs
        s_mov_b32 s78, 4
        s_cmp_eq_u32 s{sPfN}, 0
        s_cbranch_scc1 L_{N}_{tag}_pfs
        s_sub_u32 s{sPfN}, s{sPfN}, 1
        {pf_one()}
        L_{N}_{tag}_pfs:
        s_sub_u32 s78, s78, 1"""] if PF else []
    A(f"""v_and_b32 v{vt0}, 15, v{l}          ; n
    v_lshrrev_b32 v{vt1}, 4, v{l}         ; g
    ; ---- store lane offset: (g>>1)*1024 + (g&1)*512 + n*16
    v_lshlrev_b32 v{vst}, 9, v{vt1}
    v_lshl_add_u32 v{vst}, v{vt0}, 4, v{vst}
    v_lshrrev_b32 v{vt2}, 1, v{vt0}
    v_xor_b32 v{vt2}, v{vt2}, v{vt1}
    v_lshlrev_b32 v{vt2}, 4, v{vt2}
    v_lshl_add_u32 v{vt3}, v{vt0}, 7, v{vt2}      ; n*128 + swz*16  ( == (n>>3)*1024 + (n&7)*128 + ..)
    v_and_b32 v{vt2}, 7, v{vt0}
    v_lshrrev_b32 v{vt4}, 1, v{vt2}
    v_xor_b32 v{vt4}, v{vt4}, v{vt1}
    v_lshlrev_b32 v{vt2}, 7, v{vt2}
    v_lshrrev_b32 v{vst+0 if False else vXE[1]}, 3, v{vt0}     ; n>>3
    v_lshlrev_b32 v{vXE[0]}, 2, v{vXE[1]}
    v_xor_b32 v{vt4}, v{vt4}, v{vXE[0]}
    v_lshl_add_u32 v{vt2}, v{vt4}, 4, v{vt2}
    v_lshl_add_u32 v{vt4}, v{vXE[1]}, 11, v{vt2}
    s_lshl_b32 s{sT0}, s{sWave}, 12
    s_cmp_eq_u32 s{sType}, 2
    s_cbranch_scc1 L_{N}_xperm
    v_mov_b32 v{vXA[0]}, v{vt3}
    s_branch L_{N}_xdone
    L_{N}_xperm:
    v_mov_b32 v{vXA[0]}, v{vt4}
    L_{N}_xdone:
    v_xor_b32 v{vXA[1]}, 64, v{vXA[0]}
    s_cmp_eq_u32 s{sType}, 4
    s_cbranch_scc1 L_{N}_eperm
    v_add_u32 v{vXE[0]}, s{sT0}, v{vt3}
    s_branch L_{N}_edone
    L_{N}_eperm:
    v_add_u32 v{vXE[0]}, s{sT0}, v{vt4}
    L_{N}_edone:
    v_xor_b32 v{vXE[1]}, 64, v{vXE[0]}
    v_lshrrev_b32 v{vt2}, 2, v{vt0}               ; i>>2
    v_and_b32 v{vt3}, 1, v{vt1}
    v_lshl_or_b32 v{vt3}, v{vt3}, 2, v{vt2}
    v_lshlrev_b32 v{vt3}, 1, v{vt3}               ; f
    v_lshl_add_u32 v{vt2}, v{vt1}, 3, v{vt2}      ; row
    v_lshlrev_b32 v{vt4}, 9, v{vt2}               ; row*512
    v_and_b32 v{vWE[1]}, 1, v{vt0}
    v_lshl_add_u32 v{vt4}, v{vWE[1]}, 3, v{vt4}   ; + 8*(i&1)
    v_add_u32 v{vt4}, {WOFF}, v{vt4}
    v_bfe_u32 v{vWE[1]}, v{vt0}, 1, 1             ; (i&3)>>1
    s_lshl_b32 s{sT1}, s{sWave}, 3
    v_add_u32 v{vWE[1]}, s{sT1}, v{vWE[1]}
    """)
    for ct in range(4):
        A(f"""v_add_u32 v{vWA[ct]}, {2*ct}, v{vWE[1]}
        v_xor_b32 v{vWA[ct]}, v{vWA[ct]}, v{vt3}
        v_lshl_add_u32 v{vWA[ct]}, v{vWA[ct]}, 4, v{vt4}""")
    A(f"""; ---- WE address: EOFF + row*32 + (i&3)*8 + ((q ^ (g&1))*128)
    v_lshlrev_b32 v{vt4}, 5, v{vt2}
    v_and_b32 v{vt2}, 3, v{vt0}
    v_lshl_add_u32 v{vt4}, v{vt2}, 3, v{vt4}
    v_add_u32 v{vt4}, {EOFF}, v{vt4}
    v_and_b32 v{vt2}, 1, v{vt1}
    v_lshl_add_u32 v{vWE[0]}, v{vt2}, 7, v{vt4}
    v_xor_b32 v{vt2}, 1, v{vt2}
    v_lshl_add_u32 v{vWE[1]}, v{vt2}, 7, v{vt4}
    s_mov_b32 s{sC}, {CSC}
    s_mov_b32 s{sCneg}, {(-2*SLOT) & 0xffffffff}
    """)
    for t in range(8):
        for c in range(4):
            for r in range(4): A(f"v_mov_b32 v{acc[t][c]+r}, 0")
    for i in range(2):
        for r in range(4): A(f"v_mov_b32 v{acce[i]+r}, 0")
    A(f"s_mov_b32 s{sSlot}, 0")
    if o.get("pfpos", "early") == "late": pf_first()
    pf_more()
    if o.get("pfwait"): A("s_waitcnt vmcnt(0)\ns_barrier")
    NAT = o.get("nonceat", "end")
    if FUSED and NAT == "spread":
        A(f"""s_lshr_b32 s77, s2, 3
        s_and_b32 s77, s77, 7
        s_add_u32 s77, s77, 3
        s_cmp_eq_u32 s{S_WAVE}, 0
        s_cselect_b32 s77, s77, 0""")
    A("s_barrier")
    if FUSED and NAT == "p0":
        A(f"""s_cmp_lg_u32 s{S_WAVE}, 0
        s_cbranch_scc1 L_{N}_notag0
        global_load_dwordx2 v[{vtagr}:{vtagr+1}], v{vtag+2}, s[98:99] sc0 sc1
        L_{N}_notag0:""")

    def xreg(tt, par):
        sp = tt - (8 - NSP)
        if sp >= 0 and par == 1: return xs[sp]
        return xf[tt]
    def rdX(tt, ks, par, perm):
        if perm: T, ab = tt >> 1, tt & 1; a = vXA[(ks ^ ab) & 1]; off = XOFF + T*4096 + ab*1024
        else: a = vXA[(ks ^ tt) & 1]; off = XOFF + tt*2048
        r = xreg(tt, par)
        return f"ds_read_b128 v[{r}:{r+3}], v{a} offset:{off}"
    def rdW(ct, q, ks, par):
        r = wf[par][ct] + 2*q
        return f"ds_read_b64_tr_b16 v[{r}:{r+1}], v{vWA[ct]} offset:{ks*16384 + q*2048}"
    def rdXE(i, ks, perm):
        a = vXE[(ks ^ i) & 1]; off = XOFF + (i*1024 if perm else i*2048)
        return f"ds_read_b128 v[{xe[i]}:{xe[i]+3}], v{a} offset:{off}"
    def rdWE(q, ks):
        return f"ds_read_b64_tr_b16 v[{we+2*q}:{we+2*q+1}], v{vWE[q]} offset:{ks*1024}"
    def mf(d, a, b): return f"v_mfma_f32_16x16x32_bf16 v[{d}:{d+3}], v[{a}:{a+3}], v[{b}:{b+3}], v[{d}:{d+3}]"

    def step(ks, vtype, extra, nxt, inter=(), early=()):
        par = ks; npar = ks ^ 1; nks = ks ^ 1
        after = {}
        def put(m, s): after.setdefault(m, []).append(s)
        seq = []
        if extra:
            for i in range(2):
                seq.append(mf(acce[i], we, xe[i]) if extra == "K" else mf(acce[i], xe[i], we))
        ne = len(seq)
        for tt in range(8):
            for ct in range(4):
                x = xreg(tt, par); w = wf[par][ct]
                seq.append(mf(acc[tt][ct], x, w) if vtype else mf(acc[tt][ct], w, x))
        if nxt:
            m = 0
            if extra:
                put(1, rdWE(0, nks)); put(1, rdWE(1, nks)); put(2, rdXE(0, nks, extra == "V")); put(3, rdXE(1, nks, extra == "V"))
            for k in range(8): put(ne + k, rdW(k >> 1, k & 1, nks, npar))
            put(ne+3, rdX(0, nks, npar, vtype)); put(ne+7, rdX(1, nks, npar, vtype))
            put(ne+8, rdX(5, nks, npar, vtype)); put(ne+9, rdX(6, nks, npar, vtype)); put(ne+10, rdX(7, nks, npar, vtype))
            put(ne+11, rdX(2, nks, npar, vtype)); put(ne+15, rdX(3, nks, npar, vtype)); put(ne+19, rdX(4, nks, npar, vtype))
        inter = list(inter); early = list(early)
        for m, s in enumerate(seq):
            A(s)
            for x in after.get(m, []): A(x)
            if early and m >= ne + 12 and len(after.get(m, [])) == 0: A(early.pop(0))
            if inter and m >= ne + 20:
                assert not early
                A(inter.pop(0))
        for x in inter: A(x)

    T2 = o.get("t2", False)
    def t2on(tag): return bool(T2) and (T2 is True or (T2 == "A" and tag in ("av", "ak")) or (T2 == "B" and tag not in ("av", "ak")))
    def compute(tag, vtype, extra):
        for ct in range(4):
            for q in range(2): A(rdW(ct, q, 0, 0))
        A("s_waitcnt lgkmcnt(4)")
        for tt in range(8): A(rdX(tt, 0, 0, vtype))
        if extra:
            A("s_waitcnt lgkmcnt(8)")
            for q in range(2): A(rdWE(q, 0))
            for i in range(2): A(rdXE(i, 0, extra == "V"))
        A(f"s_mov_b32 s{sCnt}, {NST-1}")
        if o.get("stamp"): A("s_memtime s[70:71]")
        A(f".p2align 6\nL_{N}_{tag}_loop:")
        A("s_waitcnt lgkmcnt(0)")
        rot = [f"s_add_u32 s{sSlot}, s{sSlot}, 1", f"s_cmp_eq_u32 s{sSlot}, 3",
               f"s_cselect_b32 s{sDelta}, s{sCneg}, {SLOT}", f"s_cselect_b32 s{sSlot}, 0, s{sSlot}"]
        if not o.get("hide", True):
            for x in rot: A(x)
            rot = []
        regs = vXA + vWA + ((vXE + vWE) if extra else [])
        nl = [f"""s_cmp_lg_u32 s{sCnt}, s77
        s_cbranch_scc1 L_{N}_{tag}_non
        global_load_dwordx2 v[{vtagr}:{vtagr+1}], v{vtag+2}, s[98:99] sc0 sc1
        L_{N}_{tag}_non:"""] if (FUSED and NAT == "spread") else []
        step(0, vtype, extra, "same", [f"v_add_u32 v{r}, s{sDelta}, v{r}" for r in regs] + pf_inloop(tag) + nl, early=rot)
        A("s_waitcnt lgkmcnt(0)\ns_barrier")
        if o.get("stagestamp"):
            A(f"""s_memtime s[80:81]
            s_waitcnt lgkmcnt(0)
            s_sub_u32 s80, s80, s60
            s_sub_u32 s82, 15, s{sCnt}
            s_mov_b32 m0, s82
            v_writelane_b32 v{vdum+0 if False else vstamp}, s80, m0""")
        step(1, vtype, extra, "next", [f"s_sub_u32 s{sCnt}, s{sCnt}, 1", f"s_cmp_lg_u32 s{sCnt}, 0"])
        A(f"s_cbranch_scc1 L_{N}_{tag}_loop")
        if FUSED and o.get("nonce", "store") == "store" and NAT == "end":
            A(f"""s_cmp_lg_u32 s{S_WAVE}, 0
            s_cbranch_scc1 L_{N}_{tag}_notag
            global_load_dwordx2 v[{vtagr}:{vtagr+1}], v{vtag+2}, s[98:99] sc0 sc1
            L_{N}_{tag}_notag:""")
        if t2on(tag): return
        A("s_waitcnt lgkmcnt(0)")
        step(0, vtype, extra, "same")
        A("s_waitcnt lgkmcnt(0)")
        step(1, vtype, extra, None)
        if o.get("stamp"): A("s_memtime s[72:73]\ns_waitcnt lgkmcnt(0)")
        A("s_nop 7")

    def pieces(kind, T, k0):
        out = []; k = k0
        for hh in range(2):
            for th in range(2):
                if kind == "V": srcs = [acc[2*T][2*hh+th], acc[2*T+1][2*hh+th]]
                else: srcs = [acc[2*T+th][2*hh], acc[2*T+th][2*hh+1]]
                d = xf[0] + 4*(k % 4); k += 1
                if th == 0: out.append(f"s_add_u32 s{sT0}, s{sOut}, {(hh*64 + T)*2048}")
                if kind == "Q":
                    for s_ in srcs:
                        out.append(f"v_pk_mul_f32 v[{s_}:{s_+1}], v[{s_}:{s_+1}], s[{sC}:{sC+1}]")
                        out.append(f"v_pk_mul_f32 v[{s_+2}:{s_+3}], v[{s_+2}:{s_+3}], s[{sC}:{sC+1}]")
                for j, s_ in enumerate(srcs):
                    out.append(f"v_cvt_pk_bf16_f32 v{d+2*j}, v{s_}, v{s_+1}")
                    out.append(f"v_cvt_pk_bf16_f32 v{d+2*j+1}, v{s_+2}, v{s_+3}")
                out.append(f"buffer_store_dwordx4 v[{d}:{d+3}], v{vst}, s[{sWS}:{sWS+3}], s{sT0} offen offset:{th*256} {o.get('stflags','')}")
        return out
    def tail(kind, vtype, extra):
        ne = 2 if extra else 0
        def EM(i): return mf(acce[i], we, xe[i]) if extra == "K" else mf(acce[i], xe[i], we)
        def M(tt, ct, par):
            x = xreg(tt, par); w = wf[par][ct]
            return mf(acc[tt][ct], x, w) if vtype else mf(acc[tt][ct], w, x)
        def emit(seq, after, inter=(), waits={}):
            inter = list(inter); n = len(seq); done = 0; tot = len(inter)
            for m, x in enumerate(seq):
                if m in waits: A(f"s_waitcnt lgkmcnt({waits[m]})")
                A(x)
                for y in after.get(m, []): A(y)
                want = (tot*(m+1) + n - 1)//n
                while done < want: A(inter[done]); done += 1
        A("s_waitcnt lgkmcnt(0)")
        seq = ([EM(0), EM(1)] if extra else []) + [M(tt, ct, 0) for tt in range(4) for ct in range(4)]
        after = {}
        def put(m, x): after.setdefault(m, []).append(x)
        if extra:
            put(1, rdWE(0, 1)); put(1, rdWE(1, 1)); put(2, rdXE(0, 1, extra == "V")); put(3, rdXE(1, 1, extra == "V"))
        for k in range(8): put(ne + k, rdW(k >> 1, k & 1, 1, 1))
        put(ne+3, rdX(0, 1, 1, vtype)); put(ne+7, rdX(1, 1, 1, vtype))
        put(ne+8, rdX(5, 1, 1, vtype)); put(ne+9, rdX(6, 1, 1, vtype)); put(ne+10, rdX(7, 1, 1, vtype))
        put(ne+11, rdX(2, 1, 1, vtype)); put(ne+15, rdX(3, 1, 1, vtype))
        emit(seq, after)
        seq = ([EM(0), EM(1)] if extra else []) + [M(tt, ct, 1) for tt in range(4) for ct in range(4)]
        emit(seq, {}, waits={0: 5, ne+8: 1, ne+12: 0})
        seq = [M(tt, ct, 0) for tt in range(4, 8) for ct in range(4)]
        emit(seq, {3: [rdX(4, 1, 1, vtype)]}, inter=pieces(kind, 0, 0))
        seq = [M(tt, ct, 1) for tt in range(4, 8) for ct in range(4)]
        emit(seq, {}, inter=pieces(kind, 1, 4), waits={0: 0})
        if o.get("stamp"): A("s_memtime s[72:73]\ns_waitcnt lgkmcnt(0)")
        A("s_nop 7")
        for x in pieces(kind, 2, 8) + pieces(kind, 3, 12): A(x)
        epilogue(kind, extra, main=False)
    def epilogue(kind, extra, main=True):
        if main and t2on({"V": "av", "K": "ak", None: "b"}[extra]): return tail(kind, kind == "V", extra)
        tmp = xf[0]
        stride = 2048
        for hh in range(2 if main else 0):
            for T in range(4):
                A(f"s_add_u32 s{sT0}, s{sOut}, {(hh*64 + T)*stride}")
                for th in range(2):
                    if kind == "V": srcs = [acc[2*T][2*hh+th], acc[2*T+1][2*hh+th]]
                    else: srcs = [acc[2*T+th][2*hh], acc[2*T+th][2*hh+1]]
                    d = tmp + 4*((T*2+th) % 4)
                    if kind == "Q":
                        for s_ in srcs:
                            A(f"v_pk_mul_f32 v[{s_}:{s_+1}], v[{s_}:{s_+1}], s[{sC}:{sC+1}]")
                            A(f"v_pk_mul_f32 v[{s_+2}:{s_+3}], v[{s_+2}:{s_+3}], s[{sC}:{sC+1}]")
                    for k, s_ in enumerate(srcs):
                        A(f"v_cvt_pk_bf16_f32 v{d+2*k}, v{s_}, v{s_+1}")
                        A(f"v_cvt_pk_bf16_f32 v{d+2*k+1}, v{s_+2}, v{s_+3}")
                    A(f"buffer_store_dwordx4 v[{d}:{d+3}], v{vst}, s[{sWS}:{sWS+3}], s{sT0} offen offset:{th*256} {o.get('stflags','')}")
        if extra == "K":
            d = wf[0][0]
            for th in range(2):
                A(f"v_cvt_pk_bf16_f32 v{d+2*th}, v{acce[th]}, v{acce[th]+1}")
                A(f"v_cvt_pk_bf16_f32 v{d+2*th+1}, v{acce[th]+2}, v{acce[th]+3}")
            A(f"""v_and_b32 v{vt0}, 0x200, v{vst}
            v_lshrrev_b32 v{vt1}, 2, v{vst}
            v_and_b32 v{vt1}, 0x100, v{vt1}
            v_permlane32_swap_b32 v{d}, v{d+2}
            v_permlane32_swap_b32 v{d+1}, v{d+3}
            v_and_b32 v{vt2}, 0xf0, v{vst}
            v_or3_b32 v{vt0}, v{vt0}, v{vt1}, v{vt2}
            buffer_store_dwordx4 v[{d}:{d+3}], v{vt0}, s[{sWS}:{sWS+3}], s{sOutE} offen {o.get('stflags','')}""")
        elif extra == "V":
            d = wf[0][0]
            for k in range(2):
                A(f"v_cvt_pk_bf16_f32 v{d+2*k}, v{acce[k]}, v{acce[k]+1}")
                A(f"v_cvt_pk_bf16_f32 v{d+2*k+1}, v{acce[k]+2}, v{acce[k]+3}")
            A(f"buffer_store_dwordx4 v[{d}:{d+3}], v{vst}, s[{sWS}:{sWS+3}], s{sOutE} offen {o.get('stflags','')}")
        A(f"s_branch L_{N}_done")

    A(f"""s_lshl_b32 s{sT0}, s{sCB}, 3
    s_lshl_b32 s{sT1}, s{sWave}, 1
    s_add_u32 s{sT0}, s{sT0}, s{sT1}        ; head0
    s_lshl_b32 s{sT0}, s{sT0}, 6
    s_lshl_b32 s{sT1}, s{sRB}, 2
    s_add_u32 s{sT0}, s{sT0}, s{sT1}        ; head0*64 + T0
    s_add_u32 s{sT1}, s{sT1}, s{sWave}
    s_lshl_b32 s{sOutE}, s{sT1}, 11
    s_add_u32 s{sOutE}, s{sOutE}, {WS_KA}
    s_mov_b32 s{sC+1}, s{sC}
    s_cmp_eq_u32 s{sType}, 0
    s_cbranch_scc1 L_{N}_cBQ
    s_cmp_eq_u32 s{sType}, 1
    s_cbranch_scc1 L_{N}_cBK
    s_cmp_eq_u32 s{sType}, 2
    s_cbranch_scc1 L_{N}_cBV
    s_lshl_b32 s{sOut}, s{sT0}, 11
    s_add_u32 s{sOut}, s{sOut}, {WS_QA}
    s_cmp_eq_u32 s{sType}, 3
    s_cbranch_scc1 L_{N}_cAK
    s_lshl_b32 s{sT1}, s{sEo}, 3
    s_add_u32 s{sOutE}, s{sOutE}, s{sT1}
    s_add_u32 s{sOutE}, s{sOutE}, {WS_VA-WS_KA}""")
    compute("av", False, "V"); epilogue("Q", "V")
    A(f"""L_{N}_cAK:
    s_lshl_b32 s{sT1}, s{sEo}, 5
    s_add_u32 s{sOutE}, s{sOutE}, s{sT1}""")
    compute("ak", False, "K"); epilogue("Q", "K")
    A(f"""L_{N}_cBQ:
    s_lshl_b32 s{sOut}, s{sT0}, 11
    s_add_u32 s{sOut}, s{sOut}, {WS_QB}""")
    A(f"s_branch L_{N}_cBQK")
    A(f"""L_{N}_cBK:
    s_lshl_b32 s{sOut}, s{sT0}, 11
    s_add_u32 s{sOut}, s{sOut}, {WS_KB}
    L_{N}_cBQK:""")
    compute("bqk", False, None)
    A(f"""s_cmp_eq_u32 s{sType}, 1
    s_cbranch_scc1 L_{N}_eBK""")
    epilogue("Q", None)
    A(f"L_{N}_eBK:")
    epilogue("K", None)
    A(f"""L_{N}_cBV:
    s_lshl_b32 s{sOut}, s{sT0}, 11
    s_add_u32 s{sOut}, s{sOut}, {WS_VB}""")
    compute("bv", True, None); epilogue("V", None)

    A(f"L_{N}_done:")
    if o.get("stamp"):
        A(f"""s_memtime s[64:65]
        s_memrealtime s[66:67]
        s_waitcnt lgkmcnt(0)
        s_sub_u32 s64, s64, s60
        s_sub_u32 s66, s66, s62
        s_lshl_b32 s68, s2, 3
        s_add_u32 s68, s68, s{sWave}
        s_lshl_b32 s68, s68, 4
        s_add_u32 s68, s68, {WS_END}
        v_mov_b32 v{xs[0]}, s64
        v_mov_b32 v{xs[0]+1}, s66
        v_mov_b32 v{xs[0]+2}, s62
        s_sub_u32 s70, s70, s60
        s_sub_u32 s72, s72, s60
        s_lshr_b32 s70, s70, 2
        s_lshr_b32 s72, s72, 2
        s_lshl_b32 s72, s72, 16
        s_or_b32 s70, s70, s72
        v_mov_b32 v{xs[0]+3}, s70
        v_mov_b32 v{vt0}, 0
        buffer_store_dwordx4 v[{xs[0]}:{xs[0]+3}], v{vt0}, s[{sWS}:{sWS+3}], s68 offen""")
        if o.get("stagestamp"):
            A(f"""s_lshl_b32 s68, s2, 2
            s_add_u32 s68, s68, s{sWave}
            s_lshl_b32 s68, s68, 6
            s_add_u32 s68, s68, {WS_END + 196608}
            v_lshlrev_b32 v{vt0}, 2, v{vtid}
            s_mov_b64 exec, 0xffff
            buffer_store_dword v{vstamp}, v{vt0}, s[{sWS}:{sWS+3}], s68 offen
            s_mov_b64 exec, -1""")
    if FUSED and o.get("nonce", "store") == "atomic":
        A(f"""s_waitcnt vmcnt(0)
        s_cmp_lg_u32 s{S_WAVE}, 1
        s_cbranch_scc1 L_{N}_lend
        v_cmp_eq_u64 vcc, 0, v[{vtagr}:{vtagr+1}]
        v_mov_b32 v{vt0}, {NONCE_LDS}
        s_nop 0
        v_cndmask_b32 v{vtag}, v{vtagr}, v{vtag}, vcc
        v_cndmask_b32 v{vtag+1}, v{vtagr+1}, v{vtag+1}, vcc
        s_mov_b64 exec, 1
        ds_write_b64 v{vt0}, v[{vtag}:{vtag+1}]
        s_mov_b64 exec, -1
        s_waitcnt lgkmcnt(0)
        L_{N}_lend:
        s_barrier
        s_cmp_lg_u32 s{S_WAVE}, 0
        s_cbranch_scc1 L_{N}_noflag""")
        read_nonce(A, vtag, vt0)
        flag_srd(A, 92, sP+6)
        A(f"s_mov_b32 s{sT0}, s2")
        flag_store(A, 92, vtag, vt0, sT0, 0, flag_copies())
        A(f"L_{N}_noflag:")
        return A.text(), dict(name=name, nv=nv, lds=3*SLOT)
    if FUSED:
        A("s_waitcnt vmcnt(0)")
        if o.get("stamp3"): rt_stamp(A, 80)
        A(f"""s_cmp_lg_u32 s{S_WAVE}, 0
        s_cbranch_scc1 L_{N}_lend
        s_mov_b32 s{sCnt}, 400000
        L_{N}_tagspin:
        v_cmp_eq_u64 vcc, 0, v[{vtagr}:{vtagr+1}]
        s_sub_u32 s{sCnt}, s{sCnt}, 1
        s_nop 2
        s_cmp_eq_u64 vcc, 0
        s_cbranch_scc1 L_{N}_tagok
        s_cmp_eq_u32 s{sCnt}, 0
        s_cbranch_scc1 L_{N}_tagok
        global_load_dwordx2 v[{vtagr}:{vtagr+1}], v{vtag+2}, s[98:99] sc0 sc1
        s_waitcnt vmcnt(0)
        s_branch L_{N}_tagspin
        L_{N}_tagok:
        v_mov_b32 v{vt0}, {NONCE_LDS}
        s_mov_b64 exec, 1
        ds_write_b64 v{vt0}, v[{vtagr}:{vtagr+1}]
        s_mov_b64 exec, -1""")
        A(f"""s_waitcnt lgkmcnt(0)
        L_{N}_lend:
        s_barrier
        s_cmp_lg_u32 s{S_WAVE}, 0
        s_cbranch_scc1 L_{N}_noflag""")
        flag_srd(A, 92, sP+6)
        A(f"""v_mov_b32 v{vtag}, v{vtagr}
        v_mov_b32 v{vtag+1}, v{vtagr+1}
        s_mov_b32 s{sT0}, s2""")
        flag_store(A, 92, vtag, vt0, sT0, 0, flag_copies())
        if o.get("stamp3"): rt_stamp(A, 81)
        A(f"L_{N}_noflag:")
        if o.get("wpre"): nonce_to_sgpr(A, vtagr, vt0)
        return A.text(), dict(name=name, nv=nv, lds=3*SLOT)
    A(f"""s_waitcnt vmcnt(0)
    L_{N}_lend:
    L_{N}_end:
    s_endpgm""")
    return A.text() + kernel_desc(name, nv), dict(name=name, grid=256, block=512, lds=3*SLOT, nv=nv)

if __name__ == "__main__":
    import hz
    from build import build
    t, i = gen_proj(opts=dict(stamp=True))
    print(i)
    ps = hz.check_hazards(t)
    for p in ps[:30]: print(p)
    ws = hz.check_waits(t, i["name"], max_back=1)
    for p in ws[:30]: print(p)
    print(len(ps), len(ws))
    build([(t, i)], "proj_only.s")
```

```python
from kgen import *
import struct, math
def f2u(x): return struct.unpack("<I", struct.pack("<f", x))[0]
CSC = f2u(math.log2(math.e) / math.sqrt(32.0))

def gen_proj(name="proj_kernel", opts=None):
    o = opts or {}
    A = Asm()
    SLOT = 51200
    XOFF, WOFF, EOFF = 0, 16384, 49152
    NST = 16
    va = VAlloc(0)
    vtid = va.get("tid"); vt0 = va.get("t0"); vt1 = va.get("t1"); vt2 = va.get("t2"); vt3 = va.get("t3"); vt4 = va.get("t4")
    vXA = [va.get("xa0"), va.get("xa1")]
    vWA = [va.get(f"wa{i}") for i in range(4)]
    vXE = [va.get("xe0"), va.get("xe1")]
    vWE = [va.get("we0"), va.get("we1")]
    vst = va.get("st")
    vdum = va.get("dummy")
    va_pf = va.get("pf", 2, 2)
    va_pfinc = va.get("pfinc")
    vstamp = va.get("stamp")
    vtag = va.get("tag", 4, 2) if (opts or {}).get("fused") else None
    vtagr = va.get("tagr", 2, 2) if (opts or {}).get("fused") else None
    NSP = 3
    acc = [[va.get(f"acc{t}{c}", 4, 4) for c in range(4)] for t in range(8)]
    acce = [va.get(f"acce{i}", 4, 4) for i in range(2)]
    xf = [va.get(f"xf{t}", 4, 4) for t in range(8)]
    xs = [va.get(f"xs{t}", 4, 4) for t in range(NSP)]
    wf = [[va.get(f"wf{b}{c}", 4, 4) for c in range(4)] for b in range(2)]
    xe = [va.get(f"xef{i}", 4, 4) for i in range(2)]
    we = va.get("wef", 4, 4)
    nv = va.next
    vLX = [xf[0] + i for i in range(4)]
    vLW = [xf[1] + i for i in range(4)] + [xf[2] + i for i in range(4)]
    vLE = xf[3]
    sX, sWd, sE, sWS = 8, 12, 16, 20
    sWave, sXcd, sRB, sCB, sType, sLdw = 24, 25, 26, 27, 28, 29
    sT0, sT1, sT2, sT3 = 30, 31, 32, 33
    sCnt, sDelta, sSlot, sXo, sWo, sEo, sM0x, sM0w, sM0e, sOut, sOutE, sCneg, sWstep = 34, 35, 36, 37, 38, 39, 40, 41, 42, 43, 44, 45, 46
    sC = 56
    sP = 48
    N = name
    FUSED = o.get("fused")
    A.raw(kernel_head(o.get("kname", name)).rstrip("\n"))
    if o.get("stamp"): A("s_memtime s[60:61]\ns_memrealtime s[62:63]")
    A(f"""s_cmp_ge_u32 s2, 256
    s_cbranch_scc1 {"L_fused_end" if FUSED else f"L_{N}_end"}
    s_and_b32 s{sXcd}, s2, 7
    s_lshr_b32 s{sT0}, s2, 3
    s_and_b32 s{sRB}, s{sT0}, 7
    s_lshr_b32 s{sCB}, s{sT0}, 3
    s_load_dwordx2 s[{sP+6}:{sP+7}], s[0:1], {KA_WS}
    {f"s_load_dwordx2 s[98:99], s[0:1], {KA_DBG}" if FUSED else ""}
    v_lshrrev_b32 v{vt0}, 6, v{vtid}
    v_and_b32 v{vtid}, 63, v{vtid}
    v_readfirstlane_b32 s{sWave}, v{vt0}
    s_cmp_lt_u32 s{sXcd}, 2
    s_cbranch_scc1 L_{N}_typeA
    s_load_dwordx2 s[{sP}:{sP+1}], s[0:1], {KA_BX}
    s_load_dwordx2 s[{sP+2}:{sP+3}], s[0:1], {KA_BWQKV}
    s_load_dwordx2 s[{sP+4}:{sP+5}], s[0:1], {KA_BWQKV}
    s_sub_u32 s{sT0}, s{sXcd}, 2
    s_and_b32 s{sT1}, s{sT0}, 1
    s_lshl_b32 s{sT1}, s{sT1}, 3
    s_add_u32 s{sRB}, s{sRB}, s{sT1}
    s_lshr_b32 s{sType}, s{sT0}, 1          ; 0 Q, 1 K, 2 V
    s_mov_b32 s{sLdw}, 6144
    s_lshl_b32 s{sT2}, s{sType}, 11
    s_lshl_b32 s{sT3}, s{sCB}, 9
    s_add_u32 s{sT2}, s{sT2}, s{sT3}
    s_mov_b32 s{sT3}, {1024*6144}
    s_mov_b32 s{sEo}, 0
    s_branch L_{N}_typed
    L_{N}_typeA:
    s_load_dwordx2 s[{sP}:{sP+1}], s[0:1], {KA_AX}
    s_load_dwordx2 s[{sP+2}:{sP+3}], s[0:1], {KA_AWQ}
    s_cmp_lt_u32 s{sCB}, 2
    s_cbranch_scc1 L_{N}_typeAK
    s_load_dwordx2 s[{sP+4}:{sP+5}], s[0:1], {KA_AWV}
    s_mov_b32 s{sType}, 4
    s_branch L_{N}_typeA2
    L_{N}_typeAK:
    s_load_dwordx2 s[{sP+4}:{sP+5}], s[0:1], {KA_AWK}
    s_mov_b32 s{sType}, 3
    L_{N}_typeA2:
    s_lshl_b32 s{sT1}, s{sXcd}, 3
    s_add_u32 s{sRB}, s{sRB}, s{sT1}
    s_mov_b32 s{sLdw}, 2048
    s_lshl_b32 s{sT2}, s{sCB}, 9
    s_mov_b32 s{sT3}, {1024*2048}
    s_and_b32 s{sEo}, s{sCB}, 1
    s_lshl_b32 s{sEo}, s{sEo}, 5
    L_{N}_typed:
    s_mov_b32 s47, s{sT2}
    s_mov_b32 s58, s{sT3}
    """)
    LATE = o.get("latesrd", True)
    def srd_ld():
        A(f"""; SRD X: base + rowblock*128*2048, 256KB
        s_lshl_b32 s59, s{sRB}, 18
        s_add_u32 s{sX}, s{sP}, s59
        s_addc_u32 s{sX+1}, s{sP+1}, 0
        s_and_b32 s{sX+1}, s{sX+1}, 0xffff
        s_mov_b32 s{sX+2}, 262144
        s_mov_b32 s{sX+3}, 0x20000
        s_add_u32 s{sWd}, s{sP+2}, s47
        s_addc_u32 s{sWd+1}, s{sP+3}, 0
        s_and_b32 s{sWd+1}, s{sWd+1}, 0xffff
        s_sub_u32 s{sWd+2}, s58, s47
        s_mov_b32 s{sWd+3}, 0x20000
        ; SRD E
        s_mov_b32 s{sE}, s{sP+4}
        s_and_b32 s{sE+1}, s{sP+5}, 0xffff
        s_mov_b32 s{sE+2}, 65536
        s_mov_b32 s{sE+3}, 0x20000""")
    def srd_ws():
        A(f"""; SRD WS
        s_mov_b32 s{sWS}, s{sP+6}
        s_and_b32 s{sWS+1}, s{sP+7}, 0xffff
        s_mov_b32 s{sWS+2}, {WS_END + (262144 if o.get('stamp') else 0)}
        s_mov_b32 s{sWS+3}, 0x20000""")
    if not LATE:
        A("s_waitcnt lgkmcnt(0)")
        srd_ld(); srd_ws()
    if o.get("stamp"): A("s_memtime s[84:85]" + ("" if LATE else "\ns_waitcnt lgkmcnt(0)"))
    if FUSED: A(f"s_mov_b32 s{S_WAVE}, s{sWave}")
    A(f"""s_cmp_lt_u32 s{sWave}, 4
    s_cbranch_scc1 L_{N}_compute""")
    l = vtid
    A(f"L_{N}_loader:")
    LX0, LX1 = vLX[0], vLX[1]
    A(f"""s_sub_u32 s{sWave}, s{sWave}, 4
    v_lshrrev_b32 v{vt0}, 3, v{l}
    v_lshrrev_b32 v{vt1}, 4, v{l}
    v_and_b32 v{vt2}, 7, v{l}
    v_xor_b32 v{vt1}, v{vt1}, v{vt2}
    s_lshl_b32 s{sT0}, s{sWave}, 16
    v_lshlrev_b32 v{vt1}, 4, v{vt1}
    v_lshl_add_u32 v{LX0}, v{vt0}, 11, v{vt1}
    v_add_u32 v{LX0}, s{sT0}, v{LX0}
    v_xor_b32 v{LX1}, 64, v{LX0}
    s_mov_b32 s{sXo}, 0
    s_lshl_b32 s{sM0x}, s{sWave}, 12
    s_mov_b32 s{sSlot}, 0
    v_lshrrev_b32 v{vt0}, 5, v{l}
    v_and_b32 v{vt2}, 31, v{l}
    v_lshlrev_b32 v{vt1}, 1, v{vt0}
    v_xor_b32 v{vt1}, v{vt1}, v{vt2}
    s_lshl_b32 s{sT0}, s{sWave}, 4
    v_add_u32 v{vt0}, s{sT0}, v{vt0}
    v_mul_lo_u32 v{vt0}, v{vt0}, s{sLdw}
    v_lshl_add_u32 v{vLW[0]}, v{vt1}, 4, v{vt0}
    v_xor_b32 v{vLW[1]}, 64, v{vLW[0]}
    v_xor_b32 v{vLW[2]}, 0x80, v{vLW[0]}
    v_xor_b32 v{vLW[3]}, 0xc0, v{vLW[0]}
    s_mov_b32 s{sWo}, 0
    s_lshl_b32 s{sWstep}, s{sLdw}, 6
    s_lshl_b32 s{sT3}, s{sLdw}, 1
    s_lshl_b32 s{sM0w}, s{sWave}, 13
    s_add_u32 s{sM0w}, s{sM0w}, {WOFF}
    """)
    STAG = o.get("stag", "")
    if STAG:
        A(f"""s_bfe_u32 s{sT0}, s{sRB}, {(0x10001 if 'o' in STAG else 0x10000) if 'w' in STAG else 0x1}          ; fw
        s_lshl_b32 s{sT1}, s{sT0}, 7
        v_xor_b32 v{vLW[0]}, s{sT1}, v{vLW[0]}
        v_xor_b32 v{vLW[1]}, s{sT1}, v{vLW[1]}
        v_xor_b32 v{vLW[2]}, s{sT1}, v{vLW[2]}
        v_xor_b32 v{vLW[3]}, s{sT1}, v{vLW[3]}
        s_lshl_b32 s{sT1}, s{sT0}, 12
        s_add_u32 s{sM0w}, s{sM0w}, s{sT1}
        s_mul_i32 s{sT1}, s{sLdw}, 8
        s_mul_i32 s{sWo}, s{sT1}, s{sT0}
        s_mul_i32 s{sT1}, s{sLdw}, -14
        s_cmp_eq_u32 s{sT0}, 0
        s_cselect_b32 s66, s{sT3}, s{sT1}
        s_mov_b32 s{sT1}, -7168
        s_cselect_b32 s67, 0x400, s{sT1}
        s_bfe_u32 s{sT0}, s{sCB}, {0x10001 if 'x' in STAG else 0x1}          ; fx
        s_lshl_b32 s{sT1}, s{sT0}, 6
        v_xor_b32 v{LX0}, s{sT1}, v{LX0}
        v_xor_b32 v{LX1}, s{sT1}, v{LX1}
        s_lshl_b32 s{sT1}, s{sT0}, 11
        s_add_u32 s{sM0x}, s{sM0x}, s{sT1}
        s_lshl_b32 s{sXo}, s{sT0}, 15
        s_mov_b32 s{sT1}, -49152
        s_cmp_eq_u32 s{sT0}, 0
        s_cselect_b32 s64, 0x4000, s{sT1}
        s_mov_b32 s{sT1}, -3072
        s_cselect_b32 s65, 0x400, s{sT1}""")
    W4 = 'q' in STAG
    vWk = [xf[4] + i for i in range(8)]
    if W4:
        A(f"""s_bfe_u32 s82, s{sRB}, 0x20001
        s_lshl_b32 s83, s{sLdw}, 2""")
        for p in range(4):
            A(f"""s_add_u32 s{sT0}, s82, {p}
            s_and_b32 s{sT0}, s{sT0}, 3
            s_lshl_b32 s{73+p}, s{sT0}, 11
            s_mul_i32 s{77+p}, s{sT0}, s83
            s_lshr_b32 s{sT0}, s{sT0}, 1
            s_lshl_b32 s{sT0}, s{sT0}, 7
            v_xor_b32 v{vWk[2*p]}, s{sT0}, v{vLW[0]}
            v_xor_b32 v{vWk[2*p+1]}, s{sT0}, v{vLW[1]}""")
    KR = o.get("krot")
    if KR:
        if KR[0] == "p": A(f"s_add_u32 s69, s{sRB}, s{sCB}\ns_and_b32 s69, s69, 1")
        elif KR[0] == "h": A(f"s_lshr_b32 s69, s{sRB}, 1\ns_lshr_b32 s70, s{sCB}, 1\ns_add_u32 s69, s69, s70\ns_and_b32 s69, s69, 1")
        elif KR[0] == "4": A(f"s_add_u32 s69, s{sRB}, s{sCB}\ns_and_b32 s69, s69, 3")
        elif KR[0] == "8": A(f"s_lshl_b32 s70, s{sCB}, 1\ns_add_u32 s69, s{sRB}, s70\ns_and_b32 s69, s69, 7")
        if len(KR) > 2:
            A(f"s_cmp_ge_u32 s{sType}, 3\ns_cselect_b32 s69, {'s69, 0' if KR[2] == 'A' else '0, s69'}")
        KB = o.get("krotB")
        if KB:
            A(f"""s_mul_i32 s70, s{sType}, {KB[0]}
            s_and_b32 s71, s{sXcd}, 1
            s_mul_i32 s71, s71, {KB[1]}
            s_add_u32 s70, s70, s71
            s_cmp_ge_u32 s{sType}, 3
            s_cselect_b32 s69, s69, s70""")
        A(f"""s_mul_i32 s69, s69, {KR[1]}
        s_lshl_b32 s70, s69, 7
        s_add_u32 s{sXo}, s{sXo}, s70
        s_mul_i32 s70, s69, s{sWstep}
        s_add_u32 s{sWo}, s{sWo}, s70
        s_mul_i32 s71, s{sWstep}, -15
        s_movk_i32 s72, 0x80""")
    A(f"""s_cmp_ge_u32 s{sType}, 3
    s_cbranch_scc0 L_{N}_ldB
    s_lshl_b32 s{sT0}, s{sWave}, 4
    v_lshrrev_b32 v{vt0}, 1, v{l}
    v_and_b32 v{vt0}, 15, v{vt0}
    v_add_u32 v{vt0}, s{sT0}, v{vt0}           ; position p
    v_lshrrev_b32 v{vt1}, 1, v{vt0}
    v_and_b32 v{vt1}, 4, v{vt1}
    v_xor_b32 v{vt0}, v{vt0}, v{vt1}
    v_and_b32 v{vt1}, 1, v{l}
    s_cmp_eq_u32 s{sType}, 3
    s_cselect_b32 s{sT0}, 5, 4
    v_lshlrev_b32 v{vt1}, s{sT0}, v{vt1}
    s_cselect_b32 s{sT0}, 1, 0
    s_lshr_b32 s{sEo}, s{sEo}, s{sT0}
    v_lshl_add_u32 v{vLE}, v{vt0}, 6, v{vt1}
    v_add_u32 v{vLE}, s{sEo}, v{vLE}
    {f"s_lshl_b32 s{sEo}, s69, 12" if KR else f"s_mov_b32 s{sEo}, 0"}
    s_lshl_b32 s{sM0e}, s{sWave}, 9
    s_add_u32 s{sM0e}, s{sM0e}, {EOFF}
    s_branch L_{N}_ldA""")
    def dma(extra, order=0):
        def xpart():
            A(f"s_add_u32 m0, s{sSlot}, s{sM0x}")
            for i in range(4):
                if STAG:
                    if i == 0: A(f"s_mov_b32 s{sT0}, s{sXo}")
                    elif i == 2: A(f"s_add_u32 m0, m0, s65\ns_add_u32 s{sT0}, s{sT0}, s64")
                    else: A(f"s_add_u32 m0, m0, 1024\ns_add_u32 s{sT0}, s{sT0}, 16384")
                else:
                    if i: A("s_add_u32 m0, m0, 1024")
                    A(f"s_add_u32 s{sT0}, s{sXo}, {i*16384}")
                A(f"buffer_load_dwordx4 v{[LX0,LX1][(i ^ (i>>1)) & 1]}, s[{sX}:{sX+3}], s{sT0} offen {o.get('xfl','')} lds")
        def wpart():
            if W4:
                A(f"s_add_u32 s81, s{sSlot}, s{sM0w}")
                for p in range(4):
                    A(f"""s_add_u32 m0, s81, s{73+p}
                    s_add_u32 s{sT0}, s{sWo}, s{77+p}
                    buffer_load_dwordx4 v{vWk[2*p]}, s[{sWd}:{sWd+3}], s{sT0} offen {o.get('wfl','')} lds
                    s_add_u32 m0, m0, 1024
                    s_add_u32 s{sT0}, s{sT0}, s{sT3}
                    buffer_load_dwordx4 v{vWk[2*p+1]}, s[{sWd}:{sWd+3}], s{sT0} offen {o.get('wfl','')} lds""")
                return
            A(f"s_add_u32 m0, s{sSlot}, s{sM0w}")
            A(f"s_mov_b32 s{sT0}, s{sWo}")
            for i in range(8):
                if i == 4 and STAG:
                    A("s_add_u32 m0, m0, s67")
                    A(f"s_add_u32 s{sT0}, s{sT0}, s66")
                elif i:
                    A("s_add_u32 m0, m0, 1024")
                    A(f"s_add_u32 s{sT0}, s{sT0}, s{sT3}")
                A(f"buffer_load_dwordx4 v{vLW[(i&1) + 2*(i>>2)]}, s[{sWd}:{sWd+3}], s{sT0} offen {o.get('wfl','')} lds")
        for part in ((xpart, wpart) if order == 0 else (wpart, xpart)): part()
        if extra:
            A(f"s_add_u32 m0, s{sSlot}, s{sM0e}")
            A("s_mov_b32 exec_hi, 0")
            A(f"buffer_load_dwordx4 v{vLE}, s[{sE}:{sE+3}], s{sEo} offen lds")
            A("s_mov_b32 exec_hi, -1")
            if not KR: A(f"s_add_u32 s{sEo}, s{sEo}, 4096")
        if KR:
            A(f"""s_add_u32 s69, s69, 1
            s_cmp_eq_u32 s69, 16
            s_cselect_b32 s69, 0, s69
            s_cselect_b32 s70, s71, s{sWstep}
            s_add_u32 s{sWo}, s{sWo}, s70
            s_cmp_eq_u32 s69, 0
            s_cselect_b32 s70, 0xfffff880, s72
            s_add_u32 s{sXo}, s{sXo}, s70""")
            if extra: A(f"s_lshl_b32 s{sEo}, s69, 12")
        else:
            A(f"""s_add_u32 s{sXo}, s{sXo}, 128
            s_add_u32 s{sWo}, s{sWo}, s{sWstep}""")
        A(f"""s_add_u32 s{sSlot}, s{sSlot}, {SLOT}
        s_cmp_eq_u32 s{sSlot}, {3*SLOT}
        s_cselect_b32 s{sSlot}, 0, s{sSlot}""")
    ORD = 'o' in STAG
    for tag, extra, order in ([("ldB", False, 0), ("ldB1", False, 1), ("ldA", True, 0), ("ldA1", True, 1)] if ORD else [("ldB", False, 0), ("ldA", True, 0)]):
        PER = 13 if extra else 12
        A(f"L_{N}_{tag}:")
        if ORD and order == 0:
            om = o.get("ordmode", 0)
            if om == 0: A(f"s_xor_b32 s{sT0}, s{sRB}, s{sCB}\ns_bitcmp1_b32 s{sT0}, 0\ns_cbranch_scc1 L_{N}_{tag}1")
            elif om == 1: A(f"s_xor_b32 s{sT0}, s{sRB}, s{sCB}\ns_bitcmp0_b32 s{sT0}, 0\ns_cbranch_scc1 L_{N}_{tag}1")
            elif om == 2: A(f"s_bitcmp1_b32 s{sCB}, 0\ns_cbranch_scc1 L_{N}_{tag}1")
            elif om == 3: A(f"s_bitcmp1_b32 s{sRB}, 0\ns_cbranch_scc1 L_{N}_{tag}1")
        _dma = dma
        dma_ = lambda e, order=order: _dma(e, order)
        if LATE:
            A("s_waitcnt lgkmcnt(0)")
            srd_ld()
            if o.get("stamp"): srd_ws()
        pre = o.get("predmaA" if extra else "predmaB", o.get("predma", 1))
        if o.get("pfwait"): A("s_barrier")
        if o.get("stamp"): A("s_memtime s[86:87]")
        for _ in range(pre): dma_(extra)
        if o.get("stamp"): A("s_memtime s[88:89]")
        A(f"s_waitcnt vmcnt({(pre-1)*PER})")
        if o.get("stamp"):
            A(f"""s_memtime s[90:91]
            s_waitcnt lgkmcnt(0)
            s_sub_u32 s84, s84, s60
            s_sub_u32 s86, s86, s60
            s_sub_u32 s88, s88, s60
            s_sub_u32 s90, s90, s60
            v_mov_b32 v{acc[0][0]}, s84
            v_mov_b32 v{acc[0][0]+1}, s86
            v_mov_b32 v{acc[0][0]+2}, s88
            v_mov_b32 v{acc[0][0]+3}, s90
            v_mov_b32 v{vt4}, 0
            s_lshl_b32 s68, s2, 3
            s_add_u32 s68, s68, s{sWave}
            s_add_u32 s68, s68, 4
            s_lshl_b32 s68, s68, 4
            s_add_u32 s68, s68, {WS_END}""")
        A("s_barrier")
        if o.get("stamp"): A(f"buffer_store_dwordx4 v[{acc[0][0]}:{acc[0][0]+3}], v{vt4}, s[{sWS}:{sWS+3}], s68 offen")
        for _ in range(3-pre): dma_(extra)
        A(f"s_mov_b32 s{sCnt}, {NST-3}")
        A(f"L_{N}_{tag}_loop:")
        A(f"s_waitcnt vmcnt({PER})\ns_barrier")
        dma_(extra)
        A(f"""s_sub_u32 s{sCnt}, s{sCnt}, 1
        s_cmp_lg_u32 s{sCnt}, 0
        s_cbranch_scc1 L_{N}_{tag}_loop
        s_waitcnt vmcnt({PER})
        s_barrier
        s_waitcnt vmcnt(0)
        s_barrier""")
        if FUSED and o.get("ctouch"):
            A(f"v_lshlrev_b32 v{vt1}, 4, v{l}")
            code_touch(A, f"{N}_{tag}", "L_attn_code", vt0, vdum, vt1, sWave, 74, end="L_oproj_code")
        A(f"s_branch L_{N}_lend")
    A(f"L_{N}_compute:")
    l = vtid
    def cpf():
        A(f"s_lshr_b32 s{sT0}, s2, 3\ns_and_b32 s{sT0}, s{sT0}, {7 if o.get('wpre') else 3}\ns_cmp_lg_u32 s{sWave}, {o.get('cpwave', 3)}\ns_cbranch_scc1 L_{N}_nocp")
        code_prefetch(A, N, o.get("kname", name), 0, sT0, vt0, vdum, l, 74)
        A(f"L_{N}_nocp:")
    if o.get("codepf", True) and o.get("cpearly"): cpf()
    if LATE:
        A("s_waitcnt lgkmcnt(0)")
        srd_ws()
    if FUSED and o.get("nonce", "store") == "atomic":
        A(f"""s_cmp_lg_u32 s{sWave}, 1
        s_cbranch_scc1 L_{N}_notag
        s_memrealtime s[96:97]
        s_waitcnt lgkmcnt(0)
        s_or_b32 s96, s96, 1
        v_mov_b32 v{vtag}, s96
        v_mov_b32 v{vtag+1}, s97
        v_mov_b32 v{vtag+2}, 0
        v_mov_b32 v{vtag+3}, 0
        v_mov_b32 v{vt0}, 0
        s_mov_b64 exec, 1
        global_atomic_cmpswap_x2 v[{vtagr}:{vtagr+1}], v{vt0}, v[{vtag}:{vtag+3}], s[98:99] sc0
        s_mov_b64 exec, -1
        L_{N}_notag:""")
    elif FUSED:
        A(f"""v_mov_b32 v{vtag+2}, 0
        s_cmp_lg_u32 s{sWave}, 1
        s_cbranch_scc1 L_{N}_notag
        s_cmp_lg_u32 s2, 0
        s_cbranch_scc1 L_{N}_notag
        s_memrealtime s[96:97]
        s_waitcnt lgkmcnt(0)
        s_or_b32 s96, s96, 1
        v_mov_b32 v{vtag}, s96
        v_mov_b32 v{vtag+1}, s97
        s_mov_b64 exec, 1
        global_store_dwordx2 v{vtag+2}, v[{vtag}:{vtag+1}], s[98:99] sc0 sc1
        s_mov_b64 exec, -1
        L_{N}_notag:""")
    PF = o.get("prefetch", True)
    PFD = 4
    sPfN = 79
    vpa = va_pf; vpinc = va_pfinc
    if PF:
        A(f"""s_lshr_b32 s{sT1}, s2, 3              ; j
        s_lshr_b32 s{sT0}, s{sRB}, 3
        s_lshl_b32 s{sT0}, s{sT0}, 21
        s_add_u32 s72, s{sP}, s{sT0}
        s_addc_u32 s73, s{sP+1}, 0
        s_lshl_b32 s{sT0}, s{sType}, 11
        s_cmp_ge_u32 s{sType}, 3
        s_cselect_b32 s{sT0}, 0, s{sT0}
        s_add_u32 s74, s{sP+2}, s{sT0}
        s_addc_u32 s75, s{sP+3}, 0
        s_lshl_b32 s{sT2}, s{sT1}, 5
        v_and_b32 v{vt0}, 31, v{l}
        v_add_u32 v{vt0}, s{sT2}, v{vt0}
        v_lshlrev_b32 v{vt0}, 11, v{vt0}
        s_lshl_b32 s{sT2}, s{sT1}, 1
        v_bfe_u32 v{vt1}, v{l}, 4, 1
        v_add_u32 v{vt1}, s{sT2}, v{vt1}
        v_mul_lo_u32 v{vt1}, v{vt1}, s{sLdw}
        v_and_b32 v{vt2}, 15, v{l}
        v_lshl_add_u32 v{vt1}, v{vt2}, 7, v{vt1}
        s_lshl_b32 s{sT2}, s{sLdw}, 6
        v_mov_b32 v{vpinc}, 0x80
        v_mov_b32 v{vt2}, s{sT2}
        v_mov_b32 v{vt3}, s72
        v_mov_b32 v{vt4}, s73
        v_mov_b32 v{vpa}, s74
        v_mov_b32 v{vpa+1}, s75
        v_cmp_gt_u32 vcc, 32, v{l}
        s_nop 1
        v_cndmask_b32 v{vpinc}, v{vt2}, v{vpinc}, vcc
        v_cndmask_b32 v{vt0}, v{vt1}, v{vt0}, vcc
        v_cndmask_b32 v{vpa}, v{vpa}, v{vt3}, vcc
        v_cndmask_b32 v{vpa+1}, v{vpa+1}, v{vt4}, vcc
        v_mul_lo_u32 v{vt1}, v{vpinc}, s{sWave}
        v_add_u32 v{vt0}, v{vt0}, v{vt1}             ; stage = wave
        v_add_co_u32 v{vpa}, vcc, v{vpa}, v{vt0}
        v_lshlrev_b32 v{vpinc}, 2, v{vpinc}          ; each wave then steps 4 stages
        s_mov_b32 s{sPfN}, 3
        v_addc_co_u32 v{vpa+1}, vcc, 0, v{vpa+1}, vcc
        s_mov_b32 s78, s{sWave}""")
    PM = o.get("pfmask")
    if PF and PM:
        mk = {"x": (0xffffffff, 0), "w": (0, 0xffffffff), "xw": (0xffffffff, 0xffffffff)}
        A(f"""s_cmp_ge_u32 s{sType}, 3
        s_cselect_b32 s76, {mk[PM[0]][0]}, {mk[PM[1]][0]}
        s_cselect_b32 s77, {mk[PM[0]][1]}, {mk[PM[1]][1]}""".replace(str(0xffffffff), "-1"))
    def pf_one():
        if PM: return f"""s_mov_b64 exec, s[76:77]
        global_load_dword v{vdum}, v[{vpa}:{vpa+1}], off {o.get('pfl','')}
        s_mov_b64 exec, -1
        v_add_co_u32 v{vpa}, vcc, v{vpa}, v{vpinc}
        s_nop 1
        v_addc_co_u32 v{vpa+1}, vcc, 0, v{vpa+1}, vcc"""
        return f"""global_load_dword v{vdum}, v[{vpa}:{vpa+1}], off {o.get('pfl','')}
        v_add_co_u32 v{vpa}, vcc, v{vpa}, v{vpinc}
        s_nop 1
        v_addc_co_u32 v{vpa+1}, vcc, 0, v{vpa+1}, vcc"""
    def pf_more():
        m = o.get("pfd8")
        nA = o.get("pfnA", 2 if m in ("A", "all") else 1); nB = o.get("pfnB", 2 if m in ("B", "all") else 1)
        if not PF or (nA <= 1 and nB <= 1): return
        A(f"s_cmp_ge_u32 s{sType}, 3\ns_cbranch_scc1 L_{N}_pfa")
        for _ in range(nB - 1): A(pf_one())
        A(f"s_mov_b32 s{sPfN}, {4 - nB}\ns_branch L_{N}_pfz\nL_{N}_pfa:")
        for _ in range(nA - 1): A(pf_one())
        A(f"s_mov_b32 s{sPfN}, {4 - nA}\nL_{N}_pfz:")
    def pf_first():
        if PF and o.get("pfinit") in ("B", "Bonly"):
            A(f"s_cmp_ge_u32 s{sType}, 3\ns_cbranch_scc1 L_{N}_pfia")
            A(pf_one())
            A(f"""s_branch L_{N}_pfiz
            L_{N}_pfia:
            v_add_co_u32 v{vpa}, vcc, v{vpa}, v{vpinc}
            s_nop 1
            v_addc_co_u32 v{vpa+1}, vcc, 0, v{vpa+1}, vcc
            {f"s_mov_b32 s{sPfN}, 0" if o.get("pfinit") == "Bonly" else ""}
            L_{N}_pfiz:""")
        elif PF and o.get("pfinit") in ("A", "Aonly"):
            A(f"s_cmp_lt_u32 s{sType}, 3\ns_cbranch_scc1 L_{N}_pfia")
            A(pf_one())
            A(f"""s_branch L_{N}_pfiz
            L_{N}_pfia:
            v_add_co_u32 v{vpa}, vcc, v{vpa}, v{vpinc}
            s_nop 1
            v_addc_co_u32 v{vpa+1}, vcc, 0, v{vpa+1}, vcc
            {f"s_mov_b32 s{sPfN}, 0" if o.get("pfinit") == "Aonly" else ""}
            L_{N}_pfiz:""")
        elif PF and o.get("pfinit", True): A(pf_one())
        elif PF: A(f"""v_add_co_u32 v{vpa}, vcc, v{vpa}, v{vpinc}
        s_nop 1
        v_addc_co_u32 v{vpa+1}, vcc, 0, v{vpa+1}, vcc""")
    if o.get("pfpos", "early") == "early": pf_first()
    if o.get("tlb", True) and not FUSED:
        A(f"""s_cmp_lg_u32 s{sWave}, 2
        s_cbranch_scc1 L_{N}_notlb
        s_load_dwordx2 s[74:75], s[0:1], {KA_OUT}
        v_min_u32 v{vt0}, 12, v{l}
        v_lshlrev_b32 v{vt0}, 21, v{vt0}
        global_load_dword v{vdum}, v{vt0}, s[{sP+6}:{sP+7}]
        v_and_b32 v{vt0}, 3, v{l}
        v_lshlrev_b32 v{vt0}, 21, v{vt0}
        s_waitcnt lgkmcnt(0)
        global_load_dword v{vdum}, v{vt0}, s[74:75]
        L_{N}_notlb:""")
    if FUSED and o.get("tlbout", False):
        A(f"""s_cmp_lg_u32 s{sWave}, 2
        s_cbranch_scc1 L_{N}_notlb
        s_load_dwordx2 s[74:75], s[0:1], {KA_OUT}
        v_and_b32 v{vt0}, 3, v{l}
        v_lshlrev_b32 v{vt0}, 21, v{vt0}
        s_waitcnt lgkmcnt(0)
        global_load_dword v{vdum}, v{vt0}, s[74:75]
        L_{N}_notlb:""")
    if o.get("codepf", True) and not o.get("cpearly"): cpf()
    def pf_inloop(tag):
        return [f"""s_cmp_lg_u32 s78, 0
        s_cbranch_scc1 L_{N}_{tag}_pfs
        s_mov_b32 s78, 4
        s_cmp_eq_u32 s{sPfN}, 0
        s_cbranch_scc1 L_{N}_{tag}_pfs
        s_sub_u32 s{sPfN}, s{sPfN}, 1
        {pf_one()}
        L_{N}_{tag}_pfs:
        s_sub_u32 s78, s78, 1"""] if PF else []
    A(f"""v_and_b32 v{vt0}, 15, v{l}          ; n
    v_lshrrev_b32 v{vt1}, 4, v{l}         ; g
    ; ---- store lane offset: (g>>1)*1024 + (g&1)*512 + n*16
    v_lshlrev_b32 v{vst}, 9, v{vt1}
    v_lshl_add_u32 v{vst}, v{vt0}, 4, v{vst}
    v_lshrrev_b32 v{vt2}, 1, v{vt0}
    v_xor_b32 v{vt2}, v{vt2}, v{vt1}
    v_lshlrev_b32 v{vt2}, 4, v{vt2}
    v_lshl_add_u32 v{vt3}, v{vt0}, 7, v{vt2}      ; n*128 + swz*16  ( == (n>>3)*1024 + (n&7)*128 + ..)
    v_and_b32 v{vt2}, 7, v{vt0}
    v_lshrrev_b32 v{vt4}, 1, v{vt2}
    v_xor_b32 v{vt4}, v{vt4}, v{vt1}
    v_lshlrev_b32 v{vt2}, 7, v{vt2}
    v_lshrrev_b32 v{vst+0 if False else vXE[1]}, 3, v{vt0}     ; n>>3
    v_lshlrev_b32 v{vXE[0]}, 2, v{vXE[1]}
    v_xor_b32 v{vt4}, v{vt4}, v{vXE[0]}
    v_lshl_add_u32 v{vt2}, v{vt4}, 4, v{vt2}
    v_lshl_add_u32 v{vt4}, v{vXE[1]}, 11, v{vt2}
    s_lshl_b32 s{sT0}, s{sWave}, 12
    s_cmp_eq_u32 s{sType}, 2
    s_cbranch_scc1 L_{N}_xperm
    v_mov_b32 v{vXA[0]}, v{vt3}
    s_branch L_{N}_xdone
    L_{N}_xperm:
    v_mov_b32 v{vXA[0]}, v{vt4}
    L_{N}_xdone:
    v_xor_b32 v{vXA[1]}, 64, v{vXA[0]}
    s_cmp_eq_u32 s{sType}, 4
    s_cbranch_scc1 L_{N}_eperm
    v_add_u32 v{vXE[0]}, s{sT0}, v{vt3}
    s_branch L_{N}_edone
    L_{N}_eperm:
    v_add_u32 v{vXE[0]}, s{sT0}, v{vt4}
    L_{N}_edone:
    v_xor_b32 v{vXE[1]}, 64, v{vXE[0]}
    v_lshrrev_b32 v{vt2}, 2, v{vt0}               ; i>>2
    v_and_b32 v{vt3}, 1, v{vt1}
    v_lshl_or_b32 v{vt3}, v{vt3}, 2, v{vt2}
    v_lshlrev_b32 v{vt3}, 1, v{vt3}               ; f
    v_lshl_add_u32 v{vt2}, v{vt1}, 3, v{vt2}      ; row
    v_lshlrev_b32 v{vt4}, 9, v{vt2}               ; row*512
    v_and_b32 v{vWE[1]}, 1, v{vt0}
    v_lshl_add_u32 v{vt4}, v{vWE[1]}, 3, v{vt4}   ; + 8*(i&1)
    v_add_u32 v{vt4}, {WOFF}, v{vt4}
    v_bfe_u32 v{vWE[1]}, v{vt0}, 1, 1             ; (i&3)>>1
    s_lshl_b32 s{sT1}, s{sWave}, 3
    v_add_u32 v{vWE[1]}, s{sT1}, v{vWE[1]}
    """)
    for ct in range(4):
        A(f"""v_add_u32 v{vWA[ct]}, {2*ct}, v{vWE[1]}
        v_xor_b32 v{vWA[ct]}, v{vWA[ct]}, v{vt3}
        v_lshl_add_u32 v{vWA[ct]}, v{vWA[ct]}, 4, v{vt4}""")
    A(f"""; ---- WE address: EOFF + row*32 + (i&3)*8 + ((q ^ (g&1))*128)
    v_lshlrev_b32 v{vt4}, 5, v{vt2}
    v_and_b32 v{vt2}, 3, v{vt0}
    v_lshl_add_u32 v{vt4}, v{vt2}, 3, v{vt4}
    v_add_u32 v{vt4}, {EOFF}, v{vt4}
    v_and_b32 v{vt2}, 1, v{vt1}
    v_lshl_add_u32 v{vWE[0]}, v{vt2}, 7, v{vt4}
    v_xor_b32 v{vt2}, 1, v{vt2}
    v_lshl_add_u32 v{vWE[1]}, v{vt2}, 7, v{vt4}
    s_mov_b32 s{sC}, {CSC}
    s_mov_b32 s{sCneg}, {(-2*SLOT) & 0xffffffff}
    """)
    for t in range(8):
        for c in range(4):
            for r in range(4): A(f"v_mov_b32 v{acc[t][c]+r}, 0")
    for i in range(2):
        for r in range(4): A(f"v_mov_b32 v{acce[i]+r}, 0")
    A(f"s_mov_b32 s{sSlot}, 0")
    if o.get("pfpos", "early") == "late": pf_first()
    pf_more()
    if o.get("pfwait"): A("s_waitcnt vmcnt(0)\ns_barrier")
    NAT = o.get("nonceat", "end")
    if FUSED and NAT == "spread":
        A(f"""s_lshr_b32 s77, s2, 3
        s_and_b32 s77, s77, 7
        s_add_u32 s77, s77, 3
        s_cmp_eq_u32 s{S_WAVE}, 0
        s_cselect_b32 s77, s77, 0""")
    A("s_barrier")
    if FUSED and NAT == "p0":
        A(f"""s_cmp_lg_u32 s{S_WAVE}, 0
        s_cbranch_scc1 L_{N}_notag0
        global_load_dwordx2 v[{vtagr}:{vtagr+1}], v{vtag+2}, s[98:99] sc0 sc1
        L_{N}_notag0:""")

    def xreg(tt, par):
        sp = tt - (8 - NSP)
        if sp >= 0 and par == 1: return xs[sp]
        return xf[tt]
    def rdX(tt, ks, par, perm):
        if perm: T, ab = tt >> 1, tt & 1; a = vXA[(ks ^ ab) & 1]; off = XOFF + T*4096 + ab*1024
        else: a = vXA[(ks ^ tt) & 1]; off = XOFF + tt*2048
        r = xreg(tt, par)
        return f"ds_read_b128 v[{r}:{r+3}], v{a} offset:{off}"
    def rdW(ct, q, ks, par):
        r = wf[par][ct] + 2*q
        return f"ds_read_b64_tr_b16 v[{r}:{r+1}], v{vWA[ct]} offset:{ks*16384 + q*2048}"
    def rdXE(i, ks, perm):
        a = vXE[(ks ^ i) & 1]; off = XOFF + (i*1024 if perm else i*2048)
        return f"ds_read_b128 v[{xe[i]}:{xe[i]+3}], v{a} offset:{off}"
    def rdWE(q, ks):
        return f"ds_read_b64_tr_b16 v[{we+2*q}:{we+2*q+1}], v{vWE[q]} offset:{ks*1024}"
    def mf(d, a, b): return f"v_mfma_f32_16x16x32_bf16 v[{d}:{d+3}], v[{a}:{a+3}], v[{b}:{b+3}], v[{d}:{d+3}]"

    def step(ks, vtype, extra, nxt, inter=(), early=()):
        par = ks; npar = ks ^ 1; nks = ks ^ 1
        after = {}
        def put(m, s): after.setdefault(m, []).append(s)
        seq = []
        if extra:
            for i in range(2):
                seq.append(mf(acce[i], we, xe[i]) if extra == "K" else mf(acce[i], xe[i], we))
        ne = len(seq)
        for tt in range(8):
            for ct in range(4):
                x = xreg(tt, par); w = wf[par][ct]
                seq.append(mf(acc[tt][ct], x, w) if vtype else mf(acc[tt][ct], w, x))
        if nxt:
            m = 0
            if extra:
                put(1, rdWE(0, nks)); put(1, rdWE(1, nks)); put(2, rdXE(0, nks, extra == "V")); put(3, rdXE(1, nks, extra == "V"))
            for k in range(8): put(ne + k, rdW(k >> 1, k & 1, nks, npar))
            put(ne+3, rdX(0, nks, npar, vtype)); put(ne+7, rdX(1, nks, npar, vtype))
            put(ne+8, rdX(5, nks, npar, vtype)); put(ne+9, rdX(6, nks, npar, vtype)); put(ne+10, rdX(7, nks, npar, vtype))
            put(ne+11, rdX(2, nks, npar, vtype)); put(ne+15, rdX(3, nks, npar, vtype)); put(ne+19, rdX(4, nks, npar, vtype))
        inter = list(inter); early = list(early)
        for m, s in enumerate(seq):
            A(s)
            for x in after.get(m, []): A(x)
            if early and m >= ne + 12 and len(after.get(m, [])) == 0: A(early.pop(0))
            if inter and m >= ne + 20:
                assert not early
                A(inter.pop(0))
        for x in inter: A(x)

    T2 = o.get("t2", False)
    def t2on(tag):
        if isinstance(T2, (tuple, list)): return tag in T2
        return bool(T2) and (T2 is True or (T2 == "A" and tag in ("av", "ak")) or (T2 == "B" and tag not in ("av", "ak")))
    def compute(tag, vtype, extra):
        for ct in range(4):
            for q in range(2): A(rdW(ct, q, 0, 0))
        A("s_waitcnt lgkmcnt(4)")
        for tt in range(8): A(rdX(tt, 0, 0, vtype))
        if extra:
            A("s_waitcnt lgkmcnt(8)")
            for q in range(2): A(rdWE(q, 0))
            for i in range(2): A(rdXE(i, 0, extra == "V"))
        A(f"s_mov_b32 s{sCnt}, {NST-1}")
        if o.get("stamp"): A("s_memtime s[70:71]")
        A(f".p2align 6\nL_{N}_{tag}_loop:")
        A("s_waitcnt lgkmcnt(0)")
        rot = [f"s_add_u32 s{sSlot}, s{sSlot}, 1", f"s_cmp_eq_u32 s{sSlot}, 3",
               f"s_cselect_b32 s{sDelta}, s{sCneg}, {SLOT}", f"s_cselect_b32 s{sSlot}, 0, s{sSlot}"]
        if not o.get("hide", True):
            for x in rot: A(x)
            rot = []
        regs = vXA + vWA + ((vXE + vWE) if extra else [])
        nl = [f"""s_cmp_lg_u32 s{sCnt}, s77
        s_cbranch_scc1 L_{N}_{tag}_non
        global_load_dwordx2 v[{vtagr}:{vtagr+1}], v{vtag+2}, s[98:99] sc0 sc1
        L_{N}_{tag}_non:"""] if (FUSED and NAT == "spread") else []
        step(0, vtype, extra, "same", [f"v_add_u32 v{r}, s{sDelta}, v{r}" for r in regs] + pf_inloop(tag) + nl, early=rot)
        A("s_waitcnt lgkmcnt(0)\ns_barrier")
        if o.get("stagestamp"):
            A(f"""s_memtime s[80:81]
            s_waitcnt lgkmcnt(0)
            s_sub_u32 s80, s80, s60
            s_sub_u32 s82, 15, s{sCnt}
            s_mov_b32 m0, s82
            v_writelane_b32 v{vdum+0 if False else vstamp}, s80, m0""")
        step(1, vtype, extra, "next", [f"s_sub_u32 s{sCnt}, s{sCnt}, 1", f"s_cmp_lg_u32 s{sCnt}, 0"])
        A(f"s_cbranch_scc1 L_{N}_{tag}_loop")
        if FUSED and o.get("nonce", "store") == "store" and NAT == "end":
            A(f"""s_cmp_lg_u32 s{S_WAVE}, 0
            s_cbranch_scc1 L_{N}_{tag}_notag
            global_load_dwordx2 v[{vtagr}:{vtagr+1}], v{vtag+2}, s[98:99] sc0 sc1
            L_{N}_{tag}_notag:""")
        if t2on(tag): return
        A("s_waitcnt lgkmcnt(0)")
        step(0, vtype, extra, "same")
        A("s_waitcnt lgkmcnt(0)")
        step(1, vtype, extra, None)
        if o.get("stamp"): A("s_memtime s[72:73]\ns_waitcnt lgkmcnt(0)")
        A("s_nop 7")

    def pieces(kind, T, k0):
        out = []; k = k0
        for hh in range(2):
            for th in range(2):
                if kind == "V": srcs = [acc[2*T][2*hh+th], acc[2*T+1][2*hh+th]]
                else: srcs = [acc[2*T+th][2*hh], acc[2*T+th][2*hh+1]]
                d = xf[0] + 4*(k % 4); k += 1
                if th == 0: out.append(f"s_add_u32 s{sT0}, s{sOut}, {(hh*64 + T)*2048}")
                if kind == "Q":
                    for s_ in srcs:
                        out.append(f"v_pk_mul_f32 v[{s_}:{s_+1}], v[{s_}:{s_+1}], s[{sC}:{sC+1}]")
                        out.append(f"v_pk_mul_f32 v[{s_+2}:{s_+3}], v[{s_+2}:{s_+3}], s[{sC}:{sC+1}]")
                for j, s_ in enumerate(srcs):
                    out.append(f"v_cvt_pk_bf16_f32 v{d+2*j}, v{s_}, v{s_+1}")
                    out.append(f"v_cvt_pk_bf16_f32 v{d+2*j+1}, v{s_+2}, v{s_+3}")
                out.append(f"buffer_store_dwordx4 v[{d}:{d+3}], v{vst}, s[{sWS}:{sWS+3}], s{sT0} offen offset:{th*256} {o.get('stflags','')}")
        return out
    def tail(kind, vtype, extra):
        ne = 2 if extra else 0
        def EM(i): return mf(acce[i], we, xe[i]) if extra == "K" else mf(acce[i], xe[i], we)
        def M(tt, ct, par):
            x = xreg(tt, par); w = wf[par][ct]
            return mf(acc[tt][ct], x, w) if vtype else mf(acc[tt][ct], w, x)
        def emit(seq, after, inter=(), waits={}):
            inter = list(inter); n = len(seq); done = 0; tot = len(inter)
            for m, x in enumerate(seq):
                if m in waits: A(f"s_waitcnt lgkmcnt({waits[m]})")
                A(x)
                for y in after.get(m, []): A(y)
                want = (tot*(m+1) + n - 1)//n
                while done < want: A(inter[done]); done += 1
        A("s_waitcnt lgkmcnt(0)")
        seq = ([EM(0), EM(1)] if extra else []) + [M(tt, ct, 0) for tt in range(4) for ct in range(4)]
        after = {}
        def put(m, x): after.setdefault(m, []).append(x)
        if extra:
            put(1, rdWE(0, 1)); put(1, rdWE(1, 1)); put(2, rdXE(0, 1, extra == "V")); put(3, rdXE(1, 1, extra == "V"))
        for k in range(8): put(ne + k, rdW(k >> 1, k & 1, 1, 1))
        put(ne+3, rdX(0, 1, 1, vtype)); put(ne+7, rdX(1, 1, 1, vtype))
        put(ne+8, rdX(5, 1, 1, vtype)); put(ne+9, rdX(6, 1, 1, vtype)); put(ne+10, rdX(7, 1, 1, vtype))
        put(ne+11, rdX(2, 1, 1, vtype)); put(ne+15, rdX(3, 1, 1, vtype))
        emit(seq, after)
        seq = ([EM(0), EM(1)] if extra else []) + [M(tt, ct, 1) for tt in range(4) for ct in range(4)]
        emit(seq, {}, waits={0: 5, ne+8: 1, ne+12: 0})
        seq = [M(tt, ct, 0) for tt in range(4, 8) for ct in range(4)]
        emit(seq, {3: [rdX(4, 1, 1, vtype)]}, inter=pieces(kind, 0, 0))
        seq = [M(tt, ct, 1) for tt in range(4, 8) for ct in range(4)]
        emit(seq, {}, inter=pieces(kind, 1, 4), waits={0: 0})
        if o.get("stamp"): A("s_memtime s[72:73]\ns_waitcnt lgkmcnt(0)")
        A("s_nop 7")
        for x in pieces(kind, 2, 8) + pieces(kind, 3, 12): A(x)
        epilogue(kind, extra, main=False)
    def epilogue(kind, extra, main=True):
        if main and t2on({"V": "av", "K": "ak", None: ("bv" if kind == "V" else "bqk")}[extra]): return tail(kind, kind == "V", extra)
        tmp = xf[0]
        stride = 2048
        for hh in range(2 if main else 0):
            for T in range(4):
                A(f"s_add_u32 s{sT0}, s{sOut}, {(hh*64 + T)*stride}")
                for th in range(2):
                    if kind == "V": srcs = [acc[2*T][2*hh+th], acc[2*T+1][2*hh+th]]
                    else: srcs = [acc[2*T+th][2*hh], acc[2*T+th][2*hh+1]]
                    d = tmp + 4*((T*2+th) % 4)
                    if kind == "Q":
                        for s_ in srcs:
                            A(f"v_pk_mul_f32 v[{s_}:{s_+1}], v[{s_}:{s_+1}], s[{sC}:{sC+1}]")
                            A(f"v_pk_mul_f32 v[{s_+2}:{s_+3}], v[{s_+2}:{s_+3}], s[{sC}:{sC+1}]")
                    for k, s_ in enumerate(srcs):
                        A(f"v_cvt_pk_bf16_f32 v{d+2*k}, v{s_}, v{s_+1}")
                        A(f"v_cvt_pk_bf16_f32 v{d+2*k+1}, v{s_+2}, v{s_+3}")
                    A(f"buffer_store_dwordx4 v[{d}:{d+3}], v{vst}, s[{sWS}:{sWS+3}], s{sT0} offen offset:{th*256} {o.get('stflags','')}")
        if extra == "K":
            d = wf[0][0]
            for th in range(2):
                A(f"v_cvt_pk_bf16_f32 v{d+2*th}, v{acce[th]}, v{acce[th]+1}")
                A(f"v_cvt_pk_bf16_f32 v{d+2*th+1}, v{acce[th]+2}, v{acce[th]+3}")
            A(f"""v_and_b32 v{vt0}, 0x200, v{vst}
            v_lshrrev_b32 v{vt1}, 2, v{vst}
            v_and_b32 v{vt1}, 0x100, v{vt1}
            v_permlane32_swap_b32 v{d}, v{d+2}
            v_permlane32_swap_b32 v{d+1}, v{d+3}
            v_and_b32 v{vt2}, 0xf0, v{vst}
            v_or3_b32 v{vt0}, v{vt0}, v{vt1}, v{vt2}
            buffer_store_dwordx4 v[{d}:{d+3}], v{vt0}, s[{sWS}:{sWS+3}], s{sOutE} offen {o.get('stflags','')}""")
        elif extra == "V":
            d = wf[0][0]
            for k in range(2):
                A(f"v_cvt_pk_bf16_f32 v{d+2*k}, v{acce[k]}, v{acce[k]+1}")
                A(f"v_cvt_pk_bf16_f32 v{d+2*k+1}, v{acce[k]+2}, v{acce[k]+3}")
            A(f"buffer_store_dwordx4 v[{d}:{d+3}], v{vst}, s[{sWS}:{sWS+3}], s{sOutE} offen {o.get('stflags','')}")
        A(f"s_branch L_{N}_done")

    A(f"""s_lshl_b32 s{sT0}, s{sCB}, 3
    s_lshl_b32 s{sT1}, s{sWave}, 1
    s_add_u32 s{sT0}, s{sT0}, s{sT1}        ; head0
    s_lshl_b32 s{sT0}, s{sT0}, 6
    s_lshl_b32 s{sT1}, s{sRB}, 2
    s_add_u32 s{sT0}, s{sT0}, s{sT1}        ; head0*64 + T0
    s_add_u32 s{sT1}, s{sT1}, s{sWave}
    s_lshl_b32 s{sOutE}, s{sT1}, 11
    s_add_u32 s{sOutE}, s{sOutE}, {WS_KA}
    s_mov_b32 s{sC+1}, s{sC}
    s_cmp_eq_u32 s{sType}, 0
    s_cbranch_scc1 L_{N}_cBQ
    s_cmp_eq_u32 s{sType}, 1
    s_cbranch_scc1 L_{N}_cBK
    s_cmp_eq_u32 s{sType}, 2
    s_cbranch_scc1 L_{N}_cBV
    s_lshl_b32 s{sOut}, s{sT0}, 11
    s_add_u32 s{sOut}, s{sOut}, {WS_QA}
    s_cmp_eq_u32 s{sType}, 3
    s_cbranch_scc1 L_{N}_cAK
    s_lshl_b32 s{sT1}, s{sEo}, 3
    s_add_u32 s{sOutE}, s{sOutE}, s{sT1}
    s_add_u32 s{sOutE}, s{sOutE}, {WS_VA-WS_KA}""")
    compute("av", False, "V"); epilogue("Q", "V")
    A(f"""L_{N}_cAK:
    s_lshl_b32 s{sT1}, s{sEo}, 5
    s_add_u32 s{sOutE}, s{sOutE}, s{sT1}""")
    compute("ak", False, "K"); epilogue("Q", "K")
    A(f"""L_{N}_cBQ:
    s_lshl_b32 s{sOut}, s{sT0}, 11
    s_add_u32 s{sOut}, s{sOut}, {WS_QB}""")
    A(f"s_branch L_{N}_cBQK")
    A(f"""L_{N}_cBK:
    s_lshl_b32 s{sOut}, s{sT0}, 11
    s_add_u32 s{sOut}, s{sOut}, {WS_KB}
    L_{N}_cBQK:""")
    compute("bqk", False, None)
    A(f"""s_cmp_eq_u32 s{sType}, 1
    s_cbranch_scc1 L_{N}_eBK""")
    epilogue("Q", None)
    A(f"L_{N}_eBK:")
    epilogue("K", None)
    A(f"""L_{N}_cBV:
    s_lshl_b32 s{sOut}, s{sT0}, 11
    s_add_u32 s{sOut}, s{sOut}, {WS_VB}""")
    compute("bv", True, None); epilogue("V", None)

    A(f"L_{N}_done:")
    if o.get("stamp"):
        A(f"""s_memtime s[64:65]
        s_memrealtime s[66:67]
        s_waitcnt lgkmcnt(0)
        s_sub_u32 s64, s64, s60
        s_sub_u32 s66, s66, s62
        s_lshl_b32 s68, s2, 3
        s_add_u32 s68, s68, s{sWave}
        s_lshl_b32 s68, s68, 4
        s_add_u32 s68, s68, {WS_END}
        v_mov_b32 v{xs[0]}, s64
        v_mov_b32 v{xs[0]+1}, s66
        v_mov_b32 v{xs[0]+2}, s62
        s_sub_u32 s70, s70, s60
        s_sub_u32 s72, s72, s60
        s_lshr_b32 s70, s70, 2
        s_lshr_b32 s72, s72, 2
        s_lshl_b32 s72, s72, 16
        s_or_b32 s70, s70, s72
        v_mov_b32 v{xs[0]+3}, s70
        v_mov_b32 v{vt0}, 0
        buffer_store_dwordx4 v[{xs[0]}:{xs[0]+3}], v{vt0}, s[{sWS}:{sWS+3}], s68 offen""")
        if o.get("stagestamp"):
            A(f"""s_lshl_b32 s68, s2, 2
            s_add_u32 s68, s68, s{sWave}
            s_lshl_b32 s68, s68, 6
            s_add_u32 s68, s68, {WS_END + 196608}
            v_lshlrev_b32 v{vt0}, 2, v{vtid}
            s_mov_b64 exec, 0xffff
            buffer_store_dword v{vstamp}, v{vt0}, s[{sWS}:{sWS+3}], s68 offen
            s_mov_b64 exec, -1""")
    if FUSED and o.get("nonce", "store") == "atomic":
        A(f"""s_waitcnt vmcnt(0)
        s_cmp_lg_u32 s{S_WAVE}, 1
        s_cbranch_scc1 L_{N}_lend
        v_cmp_eq_u64 vcc, 0, v[{vtagr}:{vtagr+1}]
        v_mov_b32 v{vt0}, {NONCE_LDS}
        s_nop 0
        v_cndmask_b32 v{vtag}, v{vtagr}, v{vtag}, vcc
        v_cndmask_b32 v{vtag+1}, v{vtagr+1}, v{vtag+1}, vcc
        s_mov_b64 exec, 1
        ds_write_b64 v{vt0}, v[{vtag}:{vtag+1}]
        s_mov_b64 exec, -1
        s_waitcnt lgkmcnt(0)
        L_{N}_lend:
        s_barrier
        s_cmp_lg_u32 s{S_WAVE}, 0
        s_cbranch_scc1 L_{N}_noflag""")
        read_nonce(A, vtag, vt0)
        flag_srd(A, 92, sP+6)
        A(f"s_mov_b32 s{sT0}, s2")
        flag_store(A, 92, vtag, vt0, sT0, 0, flag_copies())
        A(f"L_{N}_noflag:")
        return A.text(), dict(name=name, nv=nv, lds=3*SLOT)
    if FUSED:
        A("s_waitcnt vmcnt(0)")
        if o.get("stamp3"): rt_stamp(A, 80)
        A(f"""s_cmp_lg_u32 s{S_WAVE}, 0
        s_cbranch_scc1 L_{N}_lend
        s_mov_b32 s{sCnt}, 400000
        L_{N}_tagspin:
        v_cmp_eq_u64 vcc, 0, v[{vtagr}:{vtagr+1}]
        s_sub_u32 s{sCnt}, s{sCnt}, 1
        s_nop 2
        s_cmp_eq_u64 vcc, 0
        s_cbranch_scc1 L_{N}_tagok
        s_cmp_eq_u32 s{sCnt}, 0
        s_cbranch_scc1 L_{N}_tagok
        global_load_dwordx2 v[{vtagr}:{vtagr+1}], v{vtag+2}, s[98:99] sc0 sc1
        s_waitcnt vmcnt(0)
        s_branch L_{N}_tagspin
        L_{N}_tagok:
        v_mov_b32 v{vt0}, {NONCE_LDS}
        s_mov_b64 exec, 1
        ds_write_b64 v{vt0}, v[{vtagr}:{vtagr+1}]
        s_mov_b64 exec, -1""")
        A(f"""s_waitcnt lgkmcnt(0)
        L_{N}_lend:
        s_barrier
        s_cmp_lg_u32 s{S_WAVE}, 0
        s_cbranch_scc1 L_{N}_noflag""")
        flag_srd(A, 92, sP+6)
        A(f"""v_mov_b32 v{vtag}, v{vtagr}
        v_mov_b32 v{vtag+1}, v{vtagr+1}
        s_mov_b32 s{sT0}, s2""")
        flag_store(A, 92, vtag, vt0, sT0, 0, flag_copies())
        if o.get("stamp3"): rt_stamp(A, 81)
        A(f"L_{N}_noflag:")
        if o.get("wpre"): nonce_to_sgpr(A, vtagr, vt0)
        return A.text(), dict(name=name, nv=nv, lds=3*SLOT)
    A(f"""s_waitcnt vmcnt(0)
    L_{N}_lend:
    L_{N}_end:
    s_endpgm""")
    return A.text() + kernel_desc(name, nv), dict(name=name, grid=256, block=512, lds=3*SLOT, nv=nv)

if __name__ == "__main__":
    import hz
    from build import build
    t, i = gen_proj(opts=dict(stamp=True))
    print(i)
    ps = hz.check_hazards(t)
    for p in ps[:30]: print(p)
    ws = hz.check_waits(t, i["name"], max_back=1)
    for p in ws[:30]: print(p)
    print(len(ps), len(ws))
    build([(t, i)], "proj_only.s")
```

```python
import sys; sys.path.insert(0,"dev")
from build_all import *
import copy
BASE = dict(po=dict(stflags="sc0 sc1", pfl="", predma=2, pfpos="late"), ao=dict(stflags="sc0 sc1"), oo=dict(stflags="nt"))
import kgen
def var(name, fused=True, fst="sc0 sc1", fld="sc0 sc1", stamp=False, rings=(4,6), check=False, fcop=8, **kw):
    kgen.set_flag_copies(fcop)
    kgen.set_orings(*rings)
    kgen.set_flag_policy(fst, fld)
    c = copy.deepcopy(BASE)
    c["stamp"] = stamp
    for k, v in kw.items():
        p, key = k.split("_", 1)
        c[p][key] = v
    (make_fused if fused else make)(f"h_{name}.s", check=check, **c)
for line in open(sys.argv[1]):
    line = line.strip()
    if line: exec(line)
```

```python
from kgen import *

def gen_attn2(name="attn_kernel", NSLOT=3, TPC=8, opts=None):
    o = opts or {}
    A = Asm()
    NQ = 4
    CH = TPC * 4096
    NCH = 64 // TPC
    FLAG = NSLOT * CH
    va = VAlloc(0)
    vtid = va.get("tid")
    vl16 = va.get("l16")
    vcur = va.get("cur"); vnxt = va.get("nxt")
    vt0 = va.get("t0", 1, 4); vt1 = va.get("t1"); vt2 = va.get("t2"); vt3 = va.get("t3")
    vidx = va.get("idx")
    val = va.get("alpha")
    vdum = va.get("dummy")
    vm = [va.get(f"m{i}") for i in range(NQ)]
    vsel = va.get("sel", 4, 4)
    Q = [[va.get(f"q{i}{h}", 4, 4) for h in range(2)] for i in range(NQ)]
    O = [va.get(f"o{i}", 16, 4) for i in range(NQ)]
    L = [va.get(f"l{i}", 4, 4) for i in range(NQ)]
    S = [va.get(f"s{i}", 16, 4) for i in range(2)]
    P = [va.get(f"p{i}", 8, 4) for i in range(2)]
    K = [va.get(f"k{i}", 8, 4) for i in range(2)]
    V = [va.get(f"v{i}", 8, 4) for i in range(2)]
    nv = va.next
    vdma = Q[0][0]
    sWS, sKV, sW = 4, 8, 12
    sWave, sSoff, sM0, sCnt, sQ, sO, sNxt, sMode, sT0, sT1 = 16, 17, 18, 19, 20, 21, 22, 23, 24, 25
    sT2, sT3 = 26, 27
    N = name
    PER = CH // 4 // 1024
    FUSED = o.get("fused")
    WPRE = FUSED and o.get("wpre")
    WFL = WPRE and o.get("wflag")
    O_XSLOTS, O_WSLOTS, O_WOFF = orings()
    rdn = (lambda vn, vt: nonce_from_sgpr(A, vn)) if WPRE else (lambda vn, vt: read_nonce(A, vn, vt))
    if not FUSED: A.raw(kernel_head(name).rstrip("\n"))
    else: A("L_attn_code:")
    if o.get("stamp"): A("s_memtime s[40:41]\ns_memrealtime s[42:43]")
    if FUSED:
        A(f"""s_load_dwordx2 s[{sWS}:{sWS+1}], s[0:1], {KA_WS}
        v_and_b32 v{vl16}, 63, v{vtid}
        s_mov_b32 s{sWave}, s{S_WAVE}""")
    else:
        A(f"""s_cmp_ge_u32 s2, 256
        s_cbranch_scc1 L_{N}_end
        s_load_dwordx2 s[{sWS}:{sWS+1}], s[0:1], {KA_WS}
        v_lshrrev_b32 v{vt0}, 6, v{vtid}
        v_and_b32 v{vl16}, 63, v{vtid}
        v_readfirstlane_b32 s{sWave}, v{vt0}""")
    A(f"""v_lshlrev_b32 v{vl16}, 4, v{vl16}
    s_and_b32 s{sT0}, s2, 7
    s_lshr_b32 s{sT1}, s2, 3
    s_lshl_b32 s{sT0}, s{sT0}, 3
    s_lshr_b32 s{sT2}, s{sT1}, 2
    s_add_u32 s{sT0}, s{sT0}, s{sT2}      ; bh
    s_and_b32 s{sT1}, s{sT1}, 3           ; qb
    s_and_b32 s{sT2}, s{sT0}, 31          ; head
    s_lshr_b32 s{sT0}, s{sT0}, 5          ; branch
    s_mov_b32 s28, s{sT2}
    s_mov_b32 s29, s{sT0}
    s_mov_b32 s30, s{sT1}
    s_cmp_lt_u32 s{sWave}, 4
    s_cbranch_scc1 L_{N}_compute""")
    A(f"""L_{N}_loader:
    s_sub_u32 s{sWave}, s{sWave}, 4
    s_lshl_b32 s{sT2}, s{sT2}, 17         ; head*128KB
    s_add_u32 s{sT2}, s{sT2}, {WS_KB}
    s_cmp_eq_u32 s{sT0}, 0
    s_cselect_b32 s{sT2}, {WS_KA}, s{sT2}
    s_mov_b32 s{sT3}, {WS_VB-WS_KB}
    s_cselect_b32 s{sT3}, {WS_VA-WS_KA}, s{sT3}
    s_cmp_ge_u32 s{sWave}, 2
    s_cselect_b32 s{sT3}, s{sT3}, 0
    s_add_u32 s{sT2}, s{sT2}, s{sT3}
    s_and_b32 s{sT1}, s{sWave}, 1
    s_mul_i32 s{sT1}, s{sT1}, {PER*1024}
    v_add_u32 v{vdma}, s{sT1}, v{vl16}
    s_mul_i32 s{sM0}, s{sWave}, {PER*1024}
    s_mov_b32 s{sQ}, s{sM0}
    s_mov_b32 s{sSoff}, 0
    s_waitcnt lgkmcnt(0)
    s_add_u32 s{sKV}, s{sWS}, s{sT2}
    s_addc_u32 s{sKV+1}, s{sWS+1}, 0
    s_and_b32 s{sKV+1}, s{sKV+1}, 0xffff
    s_mov_b32 s{sKV+2}, 131072
    s_mov_b32 s{sKV+3}, 0x20000
    """)
    if FUSED:
        vn, vc, vo = S[0], S[0]+2, S[0]+4
        if o.get("stamp3"): rt_stamp(A, 80)
        A(f"""s_cmp_lg_u32 s{sWave}, 0
        s_cbranch_scc1 L_{N}_nopoll""")
        rdn(vn, vt0)
        flag_srd(A, 92, sWS)
        A(f"""v_lshrrev_b32 v{vt0}, 4, v{vl16}          ; lane
        s_cmp_eq_u32 s29, 0
        s_cbranch_scc0 L_{N}_pollB
        v_and_b32 v{vt1}, 1, v{vt0}
        v_lshrrev_b32 v{vt2}, 1, v{vt0}
        v_lshl_add_u32 v{vo}, v{vt2}, 3, v{vt1}
        s_branch L_{N}_pollgo
        L_{N}_pollB:
        {f"v_mov_b32 v{vt3+1}, {o.get('bwait')}" if o.get("bwait") is not None else ""}
        v_and_b32 v{vt1}, 15, v{vt0}
        s_lshl_b32 s{sT1}, s30, 2
        v_and_b32 v{vt2}, 3, v{vt0}
        v_add_u32 v{vt2}, s{sT1}, v{vt2}
        v_cmp_gt_u32 vcc, 32, v{vt0}
        s_nop 1
        v_cndmask_b32 v{vt1}, v{vt2}, v{vt1}, vcc      ; rb
        v_lshrrev_b32 v{vt2}, 4, v{vt0}                ; 0 K, 1 V, 2/3 Q
        v_lshlrev_b32 v{vt2}, 1, v{vt2}
        v_add_u32 v{vt2}, 4, v{vt2}                    ; 4, 6, ..
        v_cndmask_b32 v{vt2}, 2, v{vt2}, vcc
        v_lshrrev_b32 v{vt3}, 3, v{vt1}
        v_add_u32 v{vt2}, v{vt2}, v{vt3}               ; xcd
        v_and_b32 v{vt1}, 7, v{vt1}
        s_lshr_b32 s{sT1}, s28, 3                      ; cb
        s_lshl_b32 s{sT1}, s{sT1}, 3
        v_add_u32 v{vt1}, s{sT1}, v{vt1}               ; sl
        v_lshl_add_u32 v{vo}, v{vt1}, 3, v{vt2}
        {f"v_cmp_eq_u32 vcc, 63, v{vt0}" if o.get("bwait") is not None else ""}
        {"s_nop 1" if o.get("bwait") is not None else ""}
        {f"v_cndmask_b32 v{vo}, v{vo}, v{vt3+1}, vcc" if o.get("bwait") is not None else ""}
        L_{N}_pollgo:
        s_and_b32 s{sT1}, s2, {flag_copies()-1}
        s_lshl_b32 s{sT1}, s{sT1}, 7
        v_mul_u32_u24 v{vo}, {128*flag_copies()}, v{vo}
        v_add_u32 v{vo}, s{sT1}, v{vo}""")
        if o.get("pollr", 0): flag_poll2(A, N, 92, vn, vo, S[0]+8, sCnt, o["pollr"], lds=(NONCE_LDS if WPRE else None), nrd=o.get("pollrd", 1))
        elif o.get("poll3"): flag_poll3(A, N, 92, vn, vo, vc, sCnt, first=o.get("pollfirst"))
        else: flag_poll(A, N, 92, vn, vo, vc, sCnt, first=o.get("pollfirst"))
        if o.get("stamp3"):
            rt_stamp(A, 81); A(f"s_mov_b32 s82, s{sCnt}")
        A(f"""L_{N}_nopoll:
        s_barrier""")
    def dma(rot=True):
        A(f"s_mov_b32 m0, s{sM0}")
        if rot: A(f"s_add_u32 s{sM0}, s{sM0}, {CH}")
        else: A("s_nop 0")
        for i in range(PER):
            if i == 4:
                A("s_add_u32 m0, m0, 4096")
                A(f"s_add_u32 s{sT3}, s{sSoff}, 4096")
            A(f"buffer_load_dwordx4 v{vdma}, s[{sKV}:{sKV+3}], s{sSoff if i < 4 else sT3} offen offset:{(i&3)*1024} lds")
        A(f"s_add_u32 s{sSoff}, s{sSoff}, {CH//2}")
        if rot:
            A(f"s_cmp_ge_u32 s{sM0}, {NSLOT*CH}")
            A(f"s_cselect_b32 s{sT1}, {NSLOT*CH}, 0")
            A(f"s_sub_u32 s{sM0}, s{sM0}, s{sT1}")
    EARLY = o.get("early", 0) if WPRE else 0
    def dma_part(lo, hi):
        for i in range(lo, hi):
            if i == lo or i == 4:
                A(f"s_add_u32 m0, s{sM0}, {4096 if i >= 4 else 0}")
                A(f"s_add_u32 s{sT3}, s{sSoff}, {4096 if i >= 4 else 0}")
            A(f"buffer_load_dwordx4 v{vdma}, s[{sKV}:{sKV+3}], s{sT3} offen offset:{(i&3)*1024} lds")
    if EARLY:
        assert EARLY <= 4 and PER == 8
        A(f"s_bitcmp1_b32 s{sWave}, 0\ns_cbranch_scc1 L_{N}_odd0")
        dma_part(0, 2*EARLY)
        A("s_waitcnt vmcnt(0)")
        if o.get("stamp3"): rt_stamp(A, 83)
        A("s_barrier")
        dma_part(2*EARLY, PER)
        A(f"s_branch L_{N}_odd1\nL_{N}_odd0:\ns_barrier")
        dma_part(0, PER)
        A(f"""L_{N}_odd1:
        s_add_u32 s{sM0}, s{sM0}, {CH}
        s_add_u32 s{sSoff}, s{sSoff}, {CH//2}""")
        if o.get("early_c1", True):
            dma()
            A(f"s_waitcnt vmcnt({PER})\ns_barrier")
        else:
            A("s_waitcnt vmcnt(0)\ns_barrier")
            dma()
    else:
        dma()
        if WPRE: A("s_waitcnt vmcnt(0)")
        else: A(f"""v_mov_b32 v{vt0}, 0
        v_mov_b32 v{vt1}, {FLAG}
        ds_write_b32 v{vt1}, v{vt0}
        s_waitcnt vmcnt(0) lgkmcnt(0)""")
        if o.get("stamp3"): rt_stamp(A, 83)
        A("s_barrier")
        for c in range(NSLOT-2): dma()
    if o.get("prefetch", True):
        sPW = 56
        A(f"""s_load_dwordx2 s[{sPW+4}:{sPW+5}], s[0:1], {KA_AWO}
        s_load_dwordx2 s[{sPW+6}:{sPW+7}], s[0:1], {KA_BWO}
        s_lshr_b32 s{sT0}, s2, 3
        s_lshl_b32 s{sT0}, s{sT0}, 5
        s_lshl_b32 s{sT1}, s{sWave}, 3
        s_add_u32 s{sT0}, s{sT0}, s{sT1}
        s_lshl_b32 s{sT0}, s{sT0}, 11
        s_and_b32 s{sT1}, s2, 1
        s_lshl_b32 s{sT1}, s{sT1}, 10
        s_add_u32 s{sT0}, s{sT0}, s{sT1}
        v_lshrrev_b32 v{vt0}, 7, v{vl16}
        v_lshlrev_b32 v{vt0}, 11, v{vt0}
        v_bfe_u32 v{vt1}, v{vl16}, 4, 3
        v_lshl_add_u32 v{vt0}, v{vt1}, 7, v{vt0}
        s_bitcmp1_b32 s2, 2
        s_waitcnt lgkmcnt(0)
        s_cselect_b32 s{sPW}, s{sPW+6}, s{sPW+4}
        s_cselect_b32 s{sPW+1}, s{sPW+7}, s{sPW+5}
        s_and_b32 s{sPW+1}, s{sPW+1}, 0xffff
        s_mov_b32 s{sPW+2}, {1024*2048}
        s_mov_b32 s{sPW+3}, 0x20000""")
        WT = o.get("wotouch_at")
        if WT is None: A(f"buffer_load_dword v{vdum}, v{vt0}, s[{sPW}:{sPW+3}], s{sT0} offen")
        else: A(f"s_mov_b32 s74, s{sT0}\nv_mov_b32 v{S[1]+8}, v{vt0}")
    if WPRE:
        sOW, vOW = 64, S[1]
        A(f"""s_load_dwordx2 s[68:69], s[0:1], {KA_AWO}
        s_load_dwordx2 s[70:71], s[0:1], {KA_BWO}
        v_lshrrev_b32 v{vOW+4}, 4, v{vl16}
        s_lshl_b32 s72, s{sWave}, 12
        s_add_u32 s72, s72, {O_WOFF}
        s_waitcnt lgkmcnt(0)""")
        ow_srd(A, sOW, 68, 70, sT0, sT1)
        ow_lanes(A, vOW, vOW+4, sWave, sT0, vt0, vt1, vt2)
    A(f"s_mov_b32 s{sCnt}, {NCH-2 if WPRE else NCH}")
    A(f"""L_{N}_ldloop:
    s_waitcnt vmcnt({(NSLOT-3)*PER})
    {"s_nop 0" if "nobar" in o.get("ablate","") else "s_barrier"}""")
    dma()
    if o.get("prefetch", True) and o.get("wotouch_at") is not None:
        A(f"""s_cmp_lg_u32 s{sCnt}, {o["wotouch_at"]}
        s_cbranch_scc1 L_{N}_nowt
        buffer_load_dword v{vdum}, v{S[1]+8}, s[56:59], s74 offen
        L_{N}_nowt:""")
    A(f"""s_sub_u32 s{sCnt}, s{sCnt}, 1
    s_cmp_lg_u32 s{sCnt}, 0
    s_cbranch_scc1 L_{N}_ldloop""")
    if WPRE:
        A("s_waitcnt vmcnt(0)\ns_barrier")
        if o.get("orot"): o_rot(A, 73, o["orot"])
        for st in range(O_WSLOTS): ow_dma(A, sOW, vOW, 72, sT0, st*16384, st, 73 if o.get("orot") else None)
        if o.get("ctouch"): code_touch(A, N, "L_oproj_code", vt0, vdum, vl16, sWave, 74)
        A("s_barrier")
        A(f"""s_barrier
        v_mov_b32 v{vt1}, {VOTE_LDS}
        ds_read_b128 v[{vOW+4}:{vOW+7}], v{vt1}
        s_waitcnt lgkmcnt(0)
        v_or3_b32 v{vt0}, v{vOW+4}, v{vOW+5}, v{vOW+6}
        v_or_b32 v{vt0}, v{vt0}, v{vOW+7}
        s_nop 1""")
    else:
        A(f"""s_waitcnt vmcnt(0)
        s_barrier
        v_mov_b32 v{vt1}, {FLAG}
        ds_read_b32 v{vt0}, v{vt1}
        s_waitcnt lgkmcnt(0)""")
    A(f"""v_readfirstlane_b32 s{sT0}, v{vt0}
    s_nop 3
    s_cmp_eq_u32 s{sT0}, 0
    s_cbranch_scc1 L_{N}_end
    s_mov_b32 s{sCnt}, {NCH}
    s_mov_b32 s{sSoff}, 0
    s_mov_b32 s{sM0}, s{sQ}
    L_{N}_ldslow:
    s_barrier""")
    dma(rot=False)
    A(f"""s_waitcnt vmcnt(0)
    s_barrier
    s_sub_u32 s{sCnt}, s{sCnt}, 1
    s_cmp_lg_u32 s{sCnt}, 0
    s_cbranch_scc1 L_{N}_ldslow
    {"s_barrier" if FUSED else ""}
    s_branch L_{N}_end
""")
    A(f"""L_{N}_compute:
    s_lshl_b32 s{sT1}, s{sT1}, 4
    s_lshl_b32 s{sT3}, s{sWave}, 2
    s_add_u32 s{sT1}, s{sT1}, s{sT3}
    s_lshl_b32 s{sQ}, s{sT2}, 6
    s_add_u32 s{sQ}, s{sQ}, s{sT1}
    s_lshl_b32 s{sQ}, s{sQ}, 11           ; (head*64+T)*2048
    s_lshl_b32 s{sO}, s{sT1}, 5
    s_add_u32 s{sO}, s{sO}, s{sT2}
    s_lshl_b32 s{sO}, s{sO}, 11           ; (T*32+head)*2048
    s_mul_i32 s{sT3}, s{sT0}, {WS_QB-WS_QA}
    s_add_u32 s{sQ}, s{sQ}, s{sT3}
    s_add_u32 s{sO}, s{sO}, s{sT3}
    s_add_u32 s{sO}, s{sO}, {WS_OA}
    s_waitcnt lgkmcnt(0)
    {"s_memtime s[60:61]" if o.get('stamp2') else ""}
    s_mov_b32 s{sW}, s{sWS}
    s_and_b32 s{sW+1}, s{sWS+1}, 0xffff
    s_mov_b32 s{sW+2}, {WS_END + (262144 if o.get('stamp') else 0)}
    s_mov_b32 s{sW+3}, 0x20000
    """)
    assert WS_OB - WS_OA == WS_QB - WS_QA
    def q_loads():
        for i in range(NQ):
            if i == 2: A(f"s_add_u32 s{sQ}, s{sQ}, 4096")
            for h in range(2):
                A(f"buffer_load_dwordx4 v[{Q[i][h]}:{Q[i][h]+3}], v{vl16}, s[{sW}:{sW+3}], s{sQ} offen offset:{(i&1)*2048+h*1024}")
    if not FUSED: q_loads()
    def init_acc():
        for i in range(NQ):
            for r in range(16): A(f"v_mov_b32 v{O[i]+r}, 0")
            for r in range(2): A(f"v_mov_b32 v{L[i]+r}, 0")
    init_acc()
    for i in range(NQ):
        for r in range(2,4): A(f"v_mov_b32 v{L[i]+r}, 0")
    for r in range(8):
        A(f"v_mov_b32 v{P[1]+r}, 0")
        A(f"v_mov_b32 v{V[1]+r}, 0")
    A(f"""v_lshrrev_b32 v{vt0}, 4, v{vl16}      ; lane
    v_and_b32 v{vt1}, 2, v{vt0}           ; r>=2 -> nonzero
    v_and_b32 v{vt2}, 4, v{vt0}           ; qhalf
    v_mov_b32 v{vt3}, 0x3f803f80
    v_cmp_eq_u32 vcc, 0, v{vt1}
    s_nop 1
    v_cndmask_b32 v{vt3}, 0, v{vt3}, vcc
    v_cmp_eq_u32 vcc, 0, v{vt2}
    s_nop 1
    v_cndmask_b32 v{vsel}, 0, v{vt3}, vcc
    v_cndmask_b32 v{vsel+1}, 0, v{vt3}, vcc
    v_cndmask_b32 v{vsel+2}, v{vt3}, 0, vcc
    v_cndmask_b32 v{vsel+3}, v{vt3}, 0, vcc
    v_and_b32 v{vt1}, 1, v{vt0}
    v_mov_b32 v{vt2}, 0x44444444
    v_mov_b32 v{vt3}, 0xeeeeeeee
    v_cmp_eq_u32 vcc, 0, v{vt1}
    s_nop 1
    v_cndmask_b32 v{vidx}, v{vt3}, v{vt2}, vcc
    {f"v_and_b32 v{vt1}, 3, v{vt0}" if o.get("l4") else ""}
    {f"v_mov_b32 v{vt3}, 0x3f803f80" if o.get("l4") else ""}
    {f"v_cmp_eq_u32 vcc, 0, v{vt1}" if o.get("l4") else ""}
    {"s_nop 1" if o.get("l4") else ""}
    {f"v_cndmask_b32 v{vsel}, 0, v{vt3}, vcc" if o.get("l4") else ""}
    {f"v_cndmask_b32 v{vsel+1}, 0, v{vt3}, vcc" if o.get("l4") else ""}
    v_mov_b32 v{vcur}, v{vl16}
    v_add_u32 v{vnxt}, {CH}, v{vl16}
    s_mov_b32 s{sNxt}, {2*CH}
    s_mov_b32 s{sMode}, 0
    s_mov_b32 s{sCnt}, {NCH}""")
    QP = WPRE and o.get("qpoll")
    if QP:
        vn_, vc_ = P[0], P[0] + 2
        nonce_from_sgpr(A, vn_)
        flag_srd(A, 92, sWS)
        A(f"""s_lshl_b32 s{sT0}, s30, 2
        s_add_u32 s{sT0}, s{sT0}, s{sWave}
        s_lshr_b32 s{sT1}, s{sT0}, 3
        s_lshl_b32 s{sT2}, s29, 1
        s_add_u32 s{sT1}, s{sT1}, s{sT2}
        s_and_b32 s{sT0}, s{sT0}, 7
        s_lshr_b32 s{sT2}, s28, 3
        s_lshl_b32 s{sT2}, s{sT2}, 3
        s_add_u32 s{sT0}, s{sT0}, s{sT2}
        s_lshl_b32 s{sT0}, s{sT0}, 3
        s_add_u32 s{sT0}, s{sT0}, s{sT1}
        s_mul_i32 s{sT0}, s{sT0}, {128*flag_copies()}
        s_and_b32 s{sT1}, s2, {flag_copies()-1}
        s_lshl_b32 s{sT1}, s{sT1}, 7
        s_add_u32 s{sT0}, s{sT0}, s{sT1}
        v_mov_b32 v{vt0}, s{sT0}""")
        A("s_mov_b64 exec, 1")
        A(f"""s_mov_b32 s{sT3}, 400000
        L_qpoll_{N}:
        buffer_load_dwordx2 v[{vc_}:{vc_+1}], v{vt0}, s[92:95], 0 offen sc0 sc1
        s_waitcnt vmcnt(0)
        v_cmp_ne_u64 vcc, v[{vc_}:{vc_+1}], v[{vn_}:{vn_+1}]
        s_sub_u32 s{sT3}, s{sT3}, 1
        s_nop 2
        s_cmp_eq_u64 vcc, 0
        s_cbranch_scc1 L_qpoll_{N}_ok
        s_cmp_lg_u32 s{sT3}, 0
        s_cbranch_scc1 L_qpoll_{N}
        L_qpoll_{N}_ok:
        s_mov_b64 exec, -1""")
        q_loads()
        A("s_barrier")
    elif FUSED:
        A("s_barrier")
        if o.get("stamp3"): rt_stamp(A, 82)
        q_loads()
        if o.get("stamp3"):
            A("s_waitcnt vmcnt(0)"); rt_stamp(A, 83)
    EQ = FUSED and o.get("earlyq")
    A(f"""{"s_memtime s[62:63]" if o.get('stamp2') else ""}
    s_waitcnt vmcnt({4 if EQ else 0})
    {"s_memtime s[64:65]" if o.get('stamp2') else ""}
    s_barrier
    {"s_memtime s[66:67]" if o.get('stamp2') else ""}
    """)
    def rK(buf, base, t, h): return f"ds_read_b128 v[{K[buf]+4*h}:{K[buf]+4*h+3}], v{base} offset:{t*2048+h*1024}"
    def rV(buf, base, t, h): return f"ds_read_b128 v[{V[buf]+4*h}:{V[buf]+4*h+3}], v{base} offset:{CH//2+t*2048+h*1024}"
    def mf(d, a, b, c):
        cs = "0" if c is None else f"v[{c}:{c+15}]"
        return f"v_mfma_f32_32x32x16_bf16 v[{d}:{d+15}], v[{a}:{a+3}], v[{b}:{b+3}], {cs}"
    def sm(qi, pb):
        if o.get("l4"):
            return "\n".join(f"v_mfma_f32_4x4x4bf16_1k v[{L[qi]}:{L[qi]+3}], v[{vsel}:{vsel+1}], v[{P[pb]+2*z}:{P[pb]+2*z+1}], v[{L[qi]}:{L[qi]+3}]\ns_nop 1" for z in range(4))
        return f"v_smfmac_f32_16x16x64_bf16 v[{L[qi]}:{L[qi]+3}], v[{vsel}:{vsel+3}], v[{P[pb]}:{P[pb]+7}], v{vidx}"
    for h in range(2): A(rK(0, vcur, 0, h))
    for h in range(2): A(rV(0, vcur, 0, h))
    A("s_waitcnt lgkmcnt(0)")
    A(mf(S[0], K[0], Q[0][0], None)); A(mf(S[0], K[0]+4, Q[0][1], S[0]))
    A("s_nop 7\ns_nop 3")
    if o.get("stamp"): A("s_memtime s[50:51]\ns_waitcnt lgkmcnt(0)")
    A(f".p2align 6\nL_{N}_loop:")
    pat = o.get("pat", "Q1 e e e P1 e e e Q2 e e c c P2 e e c c S R e e c e e c e e c c").split()
    for kt in range(TPC):
        for qi in range(NQ):
            u = kt*NQ + qi
            nk, nq = (kt, qi+1) if qi+1 < NQ else (kt+1, 0)
            pk, pq = (kt, qi-1) if qi > 0 else (kt-1, NQ-1)
            sb = u & 1; nb = sb ^ 1
            e = lambda j: f"v_exp_f32 v{S[sb]+j}, v{S[sb]+j}"
            c = lambda j: f"v_cvt_pk_bf16_f32 v{P[sb]+j}, v{S[sb]+2*j}, v{S[sb]+2*j+1}"
            Kb = K[nk % 2]; Vb = V[pk % 2]
            pre = []
            HW = o.get("hidew", 0)
            if qi == 3 and not HW: pre.append("s_waitcnt lgkmcnt(0)")
            if qi == 0 and kt == TPC-1: pre.append("s_barrier")
            if EARLY and qi == 0 and kt == EARLY-1:
                pre.append(f"s_cbranch_scc1 L_{N}_bar1"); pre.append(f"L_{N}_bar1r:")
            base, t = (vcur, kt+1) if kt+1 < TPC else (vnxt, 0)
            b2 = (kt+1) % 2
            rd = {0: [rK(b2, base, t, 0)], 1: [rK(b2, base, t, 1)], 2: [rV(b2, base, t, 0), rV(b2, base, t, 1)], 3: []}[qi]
            seq = list(pre); ne = nc = 0
            hid = []
            if o.get("hide", True) and kt == TPC-1 and qi == NQ-1:
                hid = [f"v_mov_b32 v{vcur}, v{vnxt}", f"v_add_u32 v{vnxt}, s{sNxt}, v{vl16}", f"s_add_u32 s{sNxt}, s{sNxt}, {CH}",
                       f"s_cmp_ge_u32 s{sNxt}, {NSLOT*CH}", f"s_cselect_b32 s{sT1}, {NSLOT*CH}, 0", f"s_sub_u32 s{sNxt}, s{sNxt}, s{sT1}",
                       f"s_sub_u32 s{sCnt}, s{sCnt}, 1", f"s_cmp_lg_u32 s{sCnt}, 0"]
            if EARLY and EARLY > 1 and qi == NQ-1 and kt == EARLY-2: hid = [f"s_cmp_eq_u32 s{sCnt}, {NCH}"]
            for tk in pat:
                if tk == "Q1": seq.append(mf(S[nb], Kb, Q[nq][0], None))
                elif tk == "Q2": seq.append(mf(S[nb], Kb+4, Q[nq][1], S[nb]))
                elif tk == "P1": seq.append(mf(O[pq], Vb, P[nb], O[pq]))
                elif tk == "P2": seq.append(mf(O[pq], Vb+4, P[nb]+4, O[pq]))
                elif tk == "S": seq.append(sm(pq, nb))
                elif tk in ("s0","s1","s2","s3"):
                    z = int(tk[1]); seq.append(f"v_mfma_f32_4x4x4bf16_1k v[{L[pq]}:{L[pq]+3}], v[{vsel}:{vsel+1}], v[{P[nb]+2*z}:{P[nb]+2*z+1}], v[{L[pq]}:{L[pq]+3}]")
                elif tk == "e":
                    seq.append(e(ne)); ne += 1
                    if hid and ne >= 2: seq.append(hid.pop(0))
                    if EQ and kt == 0 and qi < 2 and ne == 16: seq.append(f"s_waitcnt vmcnt({2 - 2*qi})")
                    if HW == 1 and qi == 2 and ne == 16: seq.append("s_waitcnt lgkmcnt(0)")
                    if HW == 2 and qi == 2 and ne == 16: seq.append("s_waitcnt lgkmcnt(2)")
                    if HW == 2 and qi == 0 and ne == 16: seq.append("s_waitcnt lgkmcnt(1)")
                elif tk == "c": seq.append(c(nc)); assert 2*nc+1 < ne; nc += 1
                elif tk == "R": seq += rd
                else: raise Exception(tk)
            assert ne == 16 and nc == 8
            ab = o.get("ablate", "")
            for l in seq:
                if "nosm" in ab and l.startswith("v_smfmac"): continue
                if "nolds" in ab and l.startswith("ds_read"): continue
                if "nocvt" in ab and l.startswith("v_cvt"): continue
                if "noexp" in ab and l.startswith("v_exp"): continue
                if "nopv" in ab and l.startswith(f"v_mfma_f32_32x32x16_bf16 v[{O[pq]}:"): continue
                if "noqk" in ab and l.startswith(f"v_mfma_f32_32x32x16_bf16 v[{S[nb]}:"): continue
                if "nobar" in ab and l.startswith("s_barrier"): l = "s_nop 0"
                if "expsep" in ab and l.startswith("v_exp"):
                    r = l.split()[1].rstrip(","); l = f"v_exp_f32 v{vt2}, {r}"
                A(l)
    if o.get("hide", True): A(f"s_cbranch_scc1 L_{N}_loop")
    else: A(f"""v_mov_b32 v{vcur}, v{vnxt}
    v_add_u32 v{vnxt}, s{sNxt}, v{vl16}
    s_add_u32 s{sNxt}, s{sNxt}, {CH}
    s_cmp_ge_u32 s{sNxt}, {NSLOT*CH}
    s_cselect_b32 s{sT1}, {NSLOT*CH}, 0
    s_sub_u32 s{sNxt}, s{sNxt}, s{sT1}
    s_sub_u32 s{sCnt}, s{sCnt}, 1
    s_cmp_lg_u32 s{sCnt}, 0
    s_cbranch_scc1 L_{N}_loop
    """)
    if EARLY:
        A(f"""s_branch L_{N}_bar2
        L_{N}_bar1:
        s_barrier
        s_branch L_{N}_bar1r
        L_{N}_bar2:""")
    if o.get("stamp"): A("s_memtime s[52:53]\ns_waitcnt lgkmcnt(0)")
    lb = (TPC*NQ-1) & 1
    Vb = V[(TPC-1) % 2]
    A("s_nop 1")
    A(mf(O[NQ-1], Vb, P[lb], O[NQ-1])); A(mf(O[NQ-1], Vb+4, P[lb]+4, O[NQ-1])); A(sm(NQ-1, lb))
    A(f"L_{N}_fin:")
    A("s_nop 7\ns_nop 7")
    vrc, vna, vz = K[0], K[0]+2, K[0]+4
    for r in (vna, vna+1, vz, vz+1): A(f"v_mov_b32 v{r}, 0")
    A(f"s_mov_b32 s{sCnt}, 0")
    for qi in range(NQ):
        if o.get("l4"):
            A(f"v_mov_b32 v{vt0}, v{L[qi]}")
            A(f"v_mov_b32 v{vt1}, v{L[qi]}")
            A("s_nop 1")
            A(f"v_permlane32_swap_b32 v{vt0}, v{vt1}")
            A(f"v_add_f32 v{vt0}, v{vt0}, v{vt1}")
        else:
            A(f"v_add_f32 v{vt0}, v{L[qi]}, v{L[qi]+1}")
        A(f"v_rcp_f32 v{vrc}, v{vt0}")
        A(f"v_mov_b32 v{vt2}, 0x35800000")
        A(f"v_cmp_nle_f32 s[{sT2}:{sT3}], v{vt2}, v{vt0}")
        A(f"v_mov_b32 v{vt2}, 0x71800000")
        A(f"v_cmp_nle_f32 vcc, v{vt0}, v{vt2}")
        A(f"v_mov_b32 v{vrc+1}, v{vrc}")
        for r in range(0, 16, 2):
            A(f"v_pk_mul_f32 v[{O[qi]+r}:{O[qi]+r+1}], v[{O[qi]+r}:{O[qi]+r+1}], v[{vrc}:{vrc+1}]")
        A(f"s_or_b64 vcc, vcc, s[{sT2}:{sT3}]")
        A(f"s_cmp_lg_u64 vcc, 0")
        A(f"s_cselect_b32 s{sT0}, 1, 0")
        A(f"s_or_b32 s{sCnt}, s{sCnt}, s{sT0}")
        if not o.get("latechk", True):
            for r in range(0, 16, 2):
                A(f"v_pk_fma_f32 v[{vna}:{vna+1}], v[{O[qi]+r}:{O[qi]+r+1}], v[{vz}:{vz+1}], v[{vna}:{vna+1}]")
        d = S[qi & 1] + 8*((qi >> 1) & 1)
        for j in range(8):
            A(f"v_cvt_pk_bf16_f32 v{d+j}, v{O[qi]+2*j}, v{O[qi]+2*j+1}")
        A(f"buffer_store_dwordx4 v[{d}:{d+3}], v{vl16}, s[{sW}:{sW+3}], s{sO} offen offset:0 {o.get('stflags','')}")
        A(f"buffer_store_dwordx4 v[{d+4}:{d+7}], v{vl16}, s[{sW}:{sW+3}], s{sO} offen offset:1024 {o.get('stflags','')}")
        A(f"s_add_u32 s{sO}, s{sO}, 65536")
    if o.get("latechk", True):
        for qi in range(NQ):
            for r in range(0, 16, 2):
                A(f"v_pk_fma_f32 v[{vna}:{vna+1}], v[{O[qi]+r}:{O[qi]+r+1}], v[{vz}:{vz+1}], v[{vna}:{vna+1}]")
    A(f"s_sub_u32 s{sO}, s{sO}, {NQ*65536}")
    A(f"""v_add_f32 v{vt3}, v{vna}, v{vna+1}
    v_cmp_u_f32 vcc, v{vt3}, v{vt3}
    s_nop 3
    s_cmp_lg_u64 vcc, 0
    s_cselect_b32 s{sT0}, 1, 0
    s_or_b32 s{sCnt}, s{sCnt}, s{sT0}
    {"s_waitcnt vmcnt(0)" if (FUSED and not WFL) else ""}
    s_cmp_eq_u32 s{sMode}, 1
    s_cbranch_scc1 L_{N}_{"done2" if FUSED else "done"}
    v_mov_b32 v{vt0}, s{sCnt}""")
    if WPRE:
        A(f"""s_lshl_b32 s{sT0}, s{sWave}, 2
        s_add_u32 s{sT0}, s{sT0}, {VOTE_LDS}
        v_mov_b32 v{vt1}, s{sT0}
        ds_write_b32 v{vt1}, v{vt0}
        v_mov_b32 v{vt1}, {VOTE_LDS}
        s_waitcnt lgkmcnt(0)
        s_barrier
        ds_read_b128 v[{K[1]}:{K[1]+3}], v{vt1}
        s_waitcnt lgkmcnt(0)
        v_or3_b32 v{vt0}, v{K[1]}, v{K[1]+1}, v{K[1]+2}
        v_or_b32 v{vt0}, v{vt0}, v{K[1]+3}
        s_nop 1""")
    else:
        A(f"""v_mov_b32 v{vt1}, {FLAG}
        ds_or_b32 v{vt1}, v{vt0}
        s_waitcnt lgkmcnt(0)
        s_barrier
        ds_read_b32 v{vt0}, v{vt1}
        s_waitcnt lgkmcnt(0)""")
    A(f"""v_readfirstlane_b32 s{sT0}, v{vt0}
    s_nop 3
    s_cmp_eq_u32 s{sT0}, 0
    s_cbranch_scc1 L_{N}_done
    """)
    A(f"""s_waitcnt vmcnt(0)
    s_mov_b32 s{sMode}, 1
    s_mov_b32 s{sCnt}, {NCH}
    """)
    init_acc()
    for i in range(NQ): A(f"v_mov_b32 v{vm[i]}, 0xff7fffff")
    A(f"""L_{N}_slow:
    s_barrier
    s_barrier
    v_mov_b32 v{vcur}, v{vl16}
    s_mov_b32 s{sNxt}, {TPC}
    L_{N}_slowt:""")
    for h in range(2): A(rK(0, vcur, 0, h))
    for h in range(2): A(rV(0, vcur, 0, h))
    A(f"v_add_u32 v{vcur}, 2048, v{vcur}")
    A("s_waitcnt lgkmcnt(0)")
    for qi in range(NQ):
        s = S[0]
        A(mf(s, K[0], Q[qi][0], None)); A(mf(s, K[0]+4, Q[qi][1], s))
        A("s_nop 7\ns_nop 3")
        A(f"v_max3_f32 v{vt0}, v{s}, v{s+1}, v{s+2}")
        for j in range(3, 15, 2): A(f"v_max3_f32 v{vt0}, v{vt0}, v{s+j}, v{s+j+1}")
        A(f"v_max_f32 v{vt0}, v{vt0}, v{s+15}")
        A(f"v_mov_b32 v{vt1}, v{vt0}")
        A("s_nop 1")
        A(f"v_permlane32_swap_b32 v{vt0}, v{vt1}")
        A(f"v_max3_f32 v{vt0}, v{vt0}, v{vt1}, v{vm[qi]}")
        A(f"v_sub_f32 v{val}, v{vm[qi]}, v{vt0}")
        A(f"v_exp_f32 v{val}, v{val}")
        A(f"v_mov_b32 v{vm[qi]}, v{vt0}")
        for r in range(16): A(f"v_sub_f32 v{s+r}, v{s+r}, v{vt0}")
        for r in range(16): A(f"v_exp_f32 v{s+r}, v{s+r}")
        for r in range(16): A(f"v_mul_f32 v{O[qi]+r}, v{O[qi]+r}, v{val}")
        for r in range(2): A(f"v_mul_f32 v{L[qi]+r}, v{L[qi]+r}, v{val}")
        for j in range(8): A(f"v_cvt_pk_bf16_f32 v{P[0]+j}, v{s+2*j}, v{s+2*j+1}")
        A("s_nop 1")
        A(mf(O[qi], V[0], P[0], O[qi])); A(mf(O[qi], V[0]+4, P[0]+4, O[qi])); A(sm(qi, 0))
        A("s_nop 7\ns_nop 7")
    A(f"""s_sub_u32 s{sNxt}, s{sNxt}, 1
    s_cmp_lg_u32 s{sNxt}, 0
    s_cbranch_scc1 L_{N}_slowt
    s_sub_u32 s{sCnt}, s{sCnt}, 1
    s_cmp_lg_u32 s{sCnt}, 0
    s_cbranch_scc1 L_{N}_slow
    s_branch L_{N}_fin
    """)
    if FUSED:
        A(f"""L_{N}_done2:
        s_barrier""")
    A(f"""L_{N}_done:""")
    if o.get("stamp"):
        A(f"""s_memtime s[44:45]
        s_memrealtime s[46:47]
        s_waitcnt lgkmcnt(0)
        s_sub_u32 s44, s44, s40
        s_sub_u32 s46, s46, s42
        s_sub_u32 s50, s50, s40
        s_sub_u32 s52, s52, s40
        s_lshr_b32 s50, s50, 2
        s_lshr_b32 s52, s52, 2
        s_lshl_b32 s52, s52, 16
        s_or_b32 s50, s50, s52
        s_lshl_b32 s48, s2, 3
        s_add_u32 s48, s48, s{sWave}
        s_lshl_b32 s48, s48, 4
        s_add_u32 s48, s48, {WS_END+65536}
        v_mov_b32 v{vt0}, s44
        v_mov_b32 v{vt1}, s46
        v_mov_b32 v{vt2}, s42
        v_mov_b32 v{vt3}, s50
        v_mov_b32 v{val}, 0
        buffer_store_dwordx4 v[{vt0}:{vt0+3}], v{val}, s[{sW}:{sW+3}], s48 offen""")
        if o.get("stamp2"):
            A(f"""s_sub_u32 s60, s60, s40
            s_sub_u32 s62, s62, s40
            s_sub_u32 s64, s64, s40
            s_sub_u32 s66, s66, s40
            s_add_u32 s48, s48, 64
            s_nop 1
            v_mov_b32 v{vt0}, s60
            v_mov_b32 v{vt1}, s62
            v_mov_b32 v{vt2}, s64
            v_mov_b32 v{vt3}, s66
            buffer_store_dwordx4 v[{vt0}:{vt0+3}], v{val}, s[{sW}:{sW+3}], s48 offen""")
    if WFL:
        rdn(P[0], vt0)
        flag_srd(A, 92, sWS)
        A(f"""s_lshl_b32 s{sT0}, s29, 4
        s_lshl_b32 s{sT1}, s30, 2
        s_add_u32 s{sT0}, s{sT0}, s{sT1}
        s_add_u32 s{sT0}, s{sT0}, s{sWave}
        s_lshl_b32 s{sT0}, s{sT0}, 5
        s_add_u32 s{sT0}, s{sT0}, s28""")
        if o.get("stamp4"):
            rt_stamp(A, 84); A("s_waitcnt vmcnt(0)"); rt_stamp(A, 85)
        flag_store(A, 92, P[0], vt0, sT0, FLG_A, 1, drain=True)
    elif FUSED:
        A(f"""s_cmp_lg_u32 s{S_WAVE}, 0
        s_cbranch_scc1 L_{N}_end""")
        rdn(S[0], vt0)
        flag_srd(A, 92, sWS)
        A(f"""s_lshl_b32 s{sT0}, s29, 2
        s_add_u32 s{sT0}, s{sT0}, s30
        s_lshl_b32 s{sT0}, s{sT0}, 5
        s_add_u32 s{sT0}, s{sT0}, s28""")
        flag_store(A, 92, S[0], vt0, sT0, FLG_A, 1)
    if FUSED:
        A(f"L_{N}_end:")
        if o.get("stamp3"):
            A(f"""s_lshl_b32 s84, s2, 3
            s_add_u32 s84, s84, s{S_WAVE}
            s_lshl_b32 s84, s84, 4
            s_add_u32 s84, s84, {WS_END + 196608}
            v_mov_b32 v{vt0}, s80
            v_mov_b32 v{vt1}, s81
            v_mov_b32 v{vt2}, s82
            v_mov_b32 v{vt3}, s83
            v_mov_b32 v{vt3+1}, s84
            s_mov_b64 exec, 1
            global_store_dwordx4 v{vt3+1}, v[{vt0}:{vt0+3}], s[{sWS}:{sWS+1}]
            s_mov_b64 exec, -1""")
        return A.text(), dict(name=name, nv=nv, lds=NSLOT*CH + 64)
    A(f"""L_{N}_end:
    s_endpgm""")
    txt = A.text() + kernel_desc(name, nv)
    return txt, dict(name=name, grid=256, block=512, lds=NSLOT*CH + 64, nv=nv)

if __name__ == "__main__":
    import hz
    from build import build
    t, i = gen_attn2(opts=dict(stamp=True))
    print(i)
    ps = hz.check_hazards(t)
    for p in ps[:30]: print(p)
    ws = hz.check_waits(t, i["name"], max_back=1)
    for p in ws[:30]: print(p)
    print(len(ps), len(ws))
    build([(t, i)], "attn2_only.s")
```

```python
class Asm:
    def __init__(self):
        self.lines = []
    def __call__(self, fmt, *a):
        for l in fmt.split("\n"):
            l = l.strip()
            if l: self.lines.append(("" if l.endswith(":") else "  ") + l)
    def label(self, name): self.lines.append(name + ":")
    def raw(self, s): self.lines.append(s)
    def comment(self, s): self.lines.append("  ; " + s)
    def text(self): return "\n".join(self.lines) + "\n"

def vr(base, n=1):
    return f"v{base}" if n == 1 else f"v[{base}:{base+n-1}]"
def sr(base, n=1):
    return f"s{base}" if n == 1 else f"s[{base}:{base+n-1}]"

class VAlloc:
    def __init__(self, start=0, limit=256):
        self.next = start; self.limit = limit; self.names = {}
    def get(self, name, n=1, align=1):
        if n >= 2 and align < 2: align = 2
        b = (self.next + align - 1) // align * align
        self.next = b + n
        assert self.next <= self.limit, f"out of vgprs at {name}"
        self.names[name] = (b, n)
        return b

def kernel_desc(name, vgpr, sgpr=102, accum=None):
    if accum is None: accum = (vgpr + 3) // 4 * 4
    return f""".section .rodata,"a"
.p2align 6
.amdhsa_kernel {name}
  .amdhsa_next_free_vgpr {vgpr}
  .amdhsa_next_free_sgpr {sgpr}
  .amdhsa_accum_offset {accum}
  .amdhsa_group_segment_fixed_size 0
  .amdhsa_kernarg_size 88
  .amdhsa_user_sgpr_count 2
  .amdhsa_user_sgpr_kernarg_segment_ptr 1
  .amdhsa_system_sgpr_workgroup_id_x 1
  .amdhsa_float_denorm_mode_32 3
.end_amdhsa_kernel
.text
"""
def kernel_head(name):
    return f""".globl {name}
.p2align 8
.type {name},@function
{name}:
"""

MB = 1 << 20
WS_QA  = 0
WS_QB  = 4 * MB
WS_KB  = 8 * MB
WS_VB  = 12 * MB
WS_KA  = 16 * MB
WS_VA  = 16 * MB + 131072
WS_OA  = 17 * MB
WS_OB  = 21 * MB
WS_END = 25 * MB
KA_AX, KA_AWQ, KA_AWK, KA_AWV, KA_AWO, KA_BX, KA_BWQKV, KA_BWO, KA_OUT, KA_DBG, KA_WS = [8*i for i in range(11)]

def code_prefetch(A, tag, base_label, nbytes, blk_sgpr, vt, vdum, lane, stmp):
    A(f"""s_getpc_b64 s[{stmp}:{stmp+1}]
    L_cp_{tag}:
    s_sub_u32 s{stmp}, s{stmp}, L_cp_{tag}-{base_label}
    s_subb_u32 s{stmp+1}, s{stmp+1}, 0
    v_lshlrev_b32 v{vt}, 7, v{lane}
    v_lshl_add_u32 v{vt}, s{blk_sgpr}, 13, v{vt}
    v_min_u32 v{vt}, L_code_end-{base_label}-4, v{vt}
    global_load_dword v{vdum}, v{vt}, s[{stmp}:{stmp+1}]""")

WS_FLG = 30 * MB
FLG_A = 262144
FLG_BYTES = FLG_A + 131072
NONCE_LDS = 153600
S_WAVE = 3
def flag_srd(A, srd, ptr):
    A(f"""s_add_u32 s{srd}, s{ptr}, {WS_FLG}
    s_addc_u32 s{srd+1}, s{ptr+1}, 0
    s_and_b32 s{srd+1}, s{srd+1}, 0xffff
    s_mov_b32 s{srd+2}, {FLG_BYTES}
    s_mov_b32 s{srd+3}, 0x20000""")
def read_nonce(A, vn, vt):
    A(f"""v_mov_b32 v{vt}, {NONCE_LDS}
    ds_read_b64 v[{vn}:{vn+1}], v{vt}
    s_waitcnt lgkmcnt(0)""")
FLAG_ST = "sc0 sc1"
FLAG_LD = "sc0 sc1"
def set_flag_policy(st, ld):
    global FLAG_ST, FLAG_LD
    FLAG_ST, FLAG_LD = st, ld
FLAG_COPIES = 8
def set_flag_copies(n):
    global FLAG_COPIES
    FLAG_COPIES = n
def flag_copies(): return FLAG_COPIES
def flag_store(A, srd, vn, vt, st, base, nlines=1, drain=False):
    A(f"""s_mul_i32 s{st}, s{st}, {128*nlines}
    s_add_u32 s{st}, s{st}, {base}
    v_mbcnt_lo_u32_b32 v{vt}, -1, 0
    v_mbcnt_hi_u32_b32 v{vt}, -1, v{vt}
    v_mov_b32 v{vn+2}, v{vn}
    v_mov_b32 v{vn+3}, v{vn+1}
    v_lshlrev_b32 v{vt}, 4, v{vt}""")
    if drain: A("s_waitcnt vmcnt(0)")
    if nlines < 8:
        m = (1 << (8*nlines)) - 1
        A(f"s_mov_b32 exec_lo, {m if m < 0xffffffff else -1}\ns_mov_b32 exec_hi, 0")
    A(f"buffer_store_dwordx4 v[{vn}:{vn+3}], v{vt}, s[{srd}:{srd+3}], s{st} offen {FLAG_ST}")
    if nlines < 8: A("s_mov_b64 exec, -1")
def flag_poll(A, tag, srd, vn, voff, vc, scnt, first=None, only_first=False):
    if first:
        if len(first) == 2: A(f"s_mov_b32 exec_lo, {first[1]}\ns_mov_b32 exec_hi, {first[0]}")
        else:
            A(f"""s_cmp_eq_u32 s{first[4]}, 0
            s_mov_b32 s{scnt}, {first[3]}
            s_cselect_b32 exec_lo, {first[1]}, s{scnt}
            s_mov_b32 s{scnt}, {first[2]}
            s_cselect_b32 exec_hi, {first[0]}, s{scnt}""")
        A(f"""s_mov_b32 s{scnt}, 400000
        L_poll_{tag}_a:
        buffer_load_dwordx2 v[{vc}:{vc+1}], v{voff}, s[{srd}:{srd+3}], 0 offen {FLAG_LD}
        s_waitcnt vmcnt(0)
        v_cmp_ne_u64 vcc, v[{vc}:{vc+1}], v[{vn}:{vn+1}]
        s_sub_u32 s{scnt}, s{scnt}, 1
        s_nop 2
        s_cmp_eq_u64 vcc, 0
        s_cbranch_scc1 L_poll_{tag}_aok
        s_cmp_lg_u32 s{scnt}, 0
        s_cbranch_scc1 L_poll_{tag}_a
        L_poll_{tag}_aok:
        s_mov_b64 exec, -1""")
        if only_first: return
    A(f"""s_mov_b32 s{scnt}, 400000
    L_poll_{tag}:
    buffer_load_dwordx2 v[{vc}:{vc+1}], v{voff}, s[{srd}:{srd+3}], 0 offen {FLAG_LD}
    s_waitcnt vmcnt(0)
    v_cmp_ne_u64 vcc, v[{vc}:{vc+1}], v[{vn}:{vn+1}]
    s_sub_u32 s{scnt}, s{scnt}, 1
    s_nop 2
    s_cmp_eq_u64 vcc, 0
    s_cbranch_scc1 L_poll_{tag}_ok
    s_cmp_lg_u32 s{scnt}, 0
    s_cbranch_scc1 L_poll_{tag}
    L_poll_{tag}_ok:""")

def rt_stamp(A, dst):
    A(f"""s_memrealtime s[88:89]
    s_waitcnt lgkmcnt(0)
    s_mov_b32 s{dst}, s88""")

def flag_poll2(A, tag, srd, vn, voff, vres, scnt, R, lds=None, nrd=1):
    A(f"v_mov_b32 v{voff+1}, {NONCE_LDS if lds is None else lds}")
    if lds is not None:
        A(f"ds_write_b64 v{voff+1}, v[{vn}:{vn+1}]")
    for i in range(2*R): A(f"v_mov_b32 v{vres+i}, 0")
    A(f"""s_mov_b32 s{scnt}, {400000 // R}
    L_poll_{tag}:""")
    for i in range(R):
        r = vres + 2*i
        for _ in range(nrd - 1): A(f"ds_read_b64 v[{vn}:{vn+1}], v{voff+1}\ns_waitcnt lgkmcnt(0)")
        A(f"""ds_read_b64 v[{vn}:{vn+1}], v{voff+1}
        s_waitcnt vmcnt({R-1}) lgkmcnt(0)
        v_cmp_ne_u64 vcc, v[{r}:{r+1}], v[{vn}:{vn+1}]
        s_nop 3
        s_and_b64 exec, exec, vcc
        s_cbranch_scc0 L_poll_{tag}_ok
        buffer_load_dwordx2 v[{r}:{r+1}], v{voff}, s[{srd}:{srd+3}], 0 offen {FLAG_LD}""")
    A(f"""s_sub_u32 s{scnt}, s{scnt}, 1
    s_cmp_lg_u32 s{scnt}, 0
    s_cbranch_scc1 L_poll_{tag}
    L_poll_{tag}_ok:
    s_mov_b64 exec, -1""")

S_NONCE = 100
LDS_FULL = 163840
O_XSLOTS, O_WSLOTS, O_WOFF = 4, 6, 65536
def set_orings(nx, nw):
    global O_XSLOTS, O_WSLOTS, O_WOFF
    O_XSLOTS, O_WSLOTS, O_WOFF = nx, nw, nx*16384
def orings(): return O_XSLOTS, O_WSLOTS, O_WOFF
VOTE_LDS = 32768
def nonce_to_sgpr(A, vn, vt):
    A(f"""v_mov_b32 v{vt}, {NONCE_LDS}
    ds_read_b64 v[{vn}:{vn+1}], v{vt}
    s_waitcnt lgkmcnt(0)
    v_readfirstlane_b32 s{S_NONCE}, v{vn}
    v_readfirstlane_b32 s{S_NONCE+1}, v{vn+1}""")
def nonce_from_sgpr(A, vn):
    A(f"""v_mov_b32 v{vn}, s{S_NONCE}
    v_mov_b32 v{vn+1}, s{S_NONCE+1}""")
def ow_srd(A, srd, ptrA, ptrB, t0, t1):
    A(f"""s_bitcmp1_b32 s2, 2
    s_cselect_b32 s{srd}, s{ptrB}, s{ptrA}
    s_cselect_b32 s{srd+1}, s{ptrB+1}, s{ptrA+1}
    s_lshr_b32 s{t0}, s2, 6
    s_and_b32 s{t0}, s{t0}, 3
    s_and_b32 s{t1}, s2, 1
    s_lshl_b32 s{t1}, s{t1}, 2
    s_add_u32 s{t0}, s{t0}, s{t1}
    s_lshl_b32 s{t0}, s{t0}, 8
    s_add_u32 s{srd}, s{srd}, s{t0}
    s_addc_u32 s{srd+1}, s{srd+1}, 0
    s_and_b32 s{srd+1}, s{srd+1}, 0xffff
    s_sub_u32 s{srd+2}, {1024*2048}, s{t0}
    s_mov_b32 s{srd+3}, 0x20000""")
def ow_lanes(A, vLW, l, sw, st, vt0, vt1, vt2):
    for i in range(4):
        A(f"""v_lshrrev_b32 v{vt0}, 4, v{l}
        s_lshl_b32 s{st}, s{sw}, 4
        s_add_u32 s{st}, s{st}, {4*i}
        v_add_u32 v{vt0}, s{st}, v{vt0}
        v_and_b32 v{vt1}, 7, v{vt0}
        v_lshlrev_b32 v{vt1}, 1, v{vt1}
        v_and_b32 v{vt2}, 15, v{l}
        v_xor_b32 v{vt1}, v{vt1}, v{vt2}
        v_lshlrev_b32 v{vt1}, 4, v{vt1}
        v_lshl_add_u32 v{vLW+i}, v{vt0}, 11, v{vt1}""")
def o_rot(A, srot, step):
    A(f"s_bfe_u32 s{srot}, s2, 0x20006\ns_mul_i32 s{srot}, s{srot}, {step}")
def ow_dma(A, srd, vLW, sm0w, st_tmp, ldsoff, stage, srot=None):
    A(f"s_add_u32 m0, s{sm0w}, {ldsoff}")
    if srot is None: A(f"s_mov_b32 s{st_tmp}, {stage*64*2048}")
    else: A(f"s_add_u32 s{st_tmp}, s{srot}, {stage}\ns_and_b32 s{st_tmp}, s{st_tmp}, 15\ns_lshl_b32 s{st_tmp}, s{st_tmp}, 17")
    for i in range(4):
        if i: A("s_add_u32 m0, m0, 1024\ns_nop 0")
        A(f"buffer_load_dwordx4 v{vLW+i}, s[{srd}:{srd+3}], s{st_tmp} offen lds")

def flag_poll3(A, tag, srd, vn, voff, vc, scnt, first=None):
    def loop(t):
        A(f"""s_mov_b32 s{scnt}, 400000
        L_poll_{t}:
        buffer_load_dwordx2 v[{vc}:{vc+1}], v{voff}, s[{srd}:{srd+3}], 0 offen {FLAG_LD}
        s_waitcnt vmcnt(0)
        v_cmp_ne_u64 vcc, v[{vc}:{vc+1}], v[{vn}:{vn+1}]
        s_sub_u32 s{scnt}, s{scnt}, 1
        s_nop 2
        s_and_b64 exec, exec, vcc
        s_cbranch_scc0 L_poll_{t}_ok
        s_cmp_lg_u32 s{scnt}, 0
        s_cbranch_scc1 L_poll_{t}
        L_poll_{t}_ok:""")
    if first:
        A(f"s_mov_b32 exec_lo, {first[1]}\ns_mov_b32 exec_hi, {first[0]}")
        loop(tag + "_a")
        A(f"s_mov_b32 exec_lo, {~first[1] & 0xffffffff}\ns_mov_b32 exec_hi, {~first[0] & 0xffffffff}")
    loop(tag)
    A("s_mov_b64 exec, -1")

def code_touch(A, tag, label, vt, vdum, lane16, sw, stmp, end="L_code_end"):
    A(f"""s_getpc_b64 s[{stmp}:{stmp+1}]
    L_ct_{tag}:
    s_add_u32 s{stmp}, s{stmp}, {label}-L_ct_{tag}
    s_addc_u32 s{stmp+1}, s{stmp+1}, 0
    v_lshlrev_b32 v{vt}, 3, v{lane16}
    v_lshl_add_u32 v{vt}, s{sw}, 13, v{vt}
    v_min_u32 v{vt}, {end}-{label}-4, v{vt}
    global_load_dword v{vdum}, v{vt}, s[{stmp}:{stmp+1}]""")
```

```python
from kgen import *
import struct, math
def f2u(x): return struct.unpack("<I", struct.pack("<f", x))[0]
CSC = f2u(math.log2(math.e) / math.sqrt(32.0))

def gen_proj(name="proj_kernel", opts=None):
    o = opts or {}
    A = Asm()
    SLOT = 51200
    XOFF, WOFF, EOFF = 0, 16384, 49152
    NST = 16
    va = VAlloc(0)
    vtid = va.get("tid"); vt0 = va.get("t0"); vt1 = va.get("t1"); vt2 = va.get("t2"); vt3 = va.get("t3"); vt4 = va.get("t4")
    vXA = [va.get("xa0"), va.get("xa1")]
    vWA = [va.get(f"wa{i}") for i in range(4)]
    vXE = [va.get("xe0"), va.get("xe1")]
    vWE = [va.get("we0"), va.get("we1")]
    vst = va.get("st")
    vdum = va.get("dummy")
    va_pf = va.get("pf", 2, 2)
    va_pfinc = va.get("pfinc")
    vstamp = va.get("stamp")
    vtag = va.get("tag", 4, 2) if (opts or {}).get("fused") else None
    vtagr = va.get("tagr", 2, 2) if (opts or {}).get("fused") else None
    NSP = 3
    acc = [[va.get(f"acc{t}{c}", 4, 4) for c in range(4)] for t in range(8)]
    acce = [va.get(f"acce{i}", 4, 4) for i in range(2)]
    xf = [va.get(f"xf{t}", 4, 4) for t in range(8)]
    xs = [va.get(f"xs{t}", 4, 4) for t in range(NSP)]
    wf = [[va.get(f"wf{b}{c}", 4, 4) for c in range(4)] for b in range(2)]
    xe = [va.get(f"xef{i}", 4, 4) for i in range(2)]
    we = va.get("wef", 4, 4)
    nv = va.next
    vLX = [xf[0] + i for i in range(4)]
    vLW = [xf[1] + i for i in range(4)] + [xf[2] + i for i in range(4)]
    vLE = xf[3]
    sX, sWd, sE, sWS = 8, 12, 16, 20
    sWave, sXcd, sRB, sCB, sType, sLdw = 24, 25, 26, 27, 28, 29
    sT0, sT1, sT2, sT3 = 30, 31, 32, 33
    sCnt, sDelta, sSlot, sXo, sWo, sEo, sM0x, sM0w, sM0e, sOut, sOutE, sCneg, sWstep = 34, 35, 36, 37, 38, 39, 40, 41, 42, 43, 44, 45, 46
    sC = 56
    sP = 48
    N = name
    FUSED = o.get("fused")
    A.raw(kernel_head(o.get("kname", name)).rstrip("\n"))
    if o.get("stamp"): A("s_memtime s[60:61]\ns_memrealtime s[62:63]")
    A(f"""s_cmp_ge_u32 s2, 256
    s_cbranch_scc1 {"L_fused_end" if FUSED else f"L_{N}_end"}
    s_and_b32 s{sXcd}, s2, 7
    s_lshr_b32 s{sT0}, s2, 3
    s_and_b32 s{sRB}, s{sT0}, 7
    s_lshr_b32 s{sCB}, s{sT0}, 3
    s_load_dwordx2 s[{sP+6}:{sP+7}], s[0:1], {KA_WS}
    {f"s_load_dwordx2 s[98:99], s[0:1], {KA_DBG}" if FUSED else ""}
    v_lshrrev_b32 v{vt0}, 6, v{vtid}
    v_and_b32 v{vtid}, 63, v{vtid}
    v_readfirstlane_b32 s{sWave}, v{vt0}
    s_cmp_lt_u32 s{sXcd}, 2
    s_cbranch_scc1 L_{N}_typeA
    s_load_dwordx2 s[{sP}:{sP+1}], s[0:1], {KA_BX}
    s_load_dwordx2 s[{sP+2}:{sP+3}], s[0:1], {KA_BWQKV}
    s_load_dwordx2 s[{sP+4}:{sP+5}], s[0:1], {KA_BWQKV}
    s_sub_u32 s{sT0}, s{sXcd}, 2
    s_and_b32 s{sT1}, s{sT0}, 1
    s_lshl_b32 s{sT1}, s{sT1}, 3
    s_add_u32 s{sRB}, s{sRB}, s{sT1}
    s_lshr_b32 s{sType}, s{sT0}, 1          ; 0 Q, 1 K, 2 V
    s_mov_b32 s{sLdw}, 6144
    s_lshl_b32 s{sT2}, s{sType}, 11
    s_lshl_b32 s{sT3}, s{sCB}, 9
    s_add_u32 s{sT2}, s{sT2}, s{sT3}
    s_mov_b32 s{sT3}, {1024*6144}
    s_mov_b32 s{sEo}, 0
    s_branch L_{N}_typed
    L_{N}_typeA:
    s_load_dwordx2 s[{sP}:{sP+1}], s[0:1], {KA_AX}
    s_load_dwordx2 s[{sP+2}:{sP+3}], s[0:1], {KA_AWQ}
    s_cmp_lt_u32 s{sCB}, 2
    s_cbranch_scc1 L_{N}_typeAK
    s_load_dwordx2 s[{sP+4}:{sP+5}], s[0:1], {KA_AWV}
    s_mov_b32 s{sType}, 4
    s_branch L_{N}_typeA2
    L_{N}_typeAK:
    s_load_dwordx2 s[{sP+4}:{sP+5}], s[0:1], {KA_AWK}
    s_mov_b32 s{sType}, 3
    L_{N}_typeA2:
    s_lshl_b32 s{sT1}, s{sXcd}, 3
    s_add_u32 s{sRB}, s{sRB}, s{sT1}
    s_mov_b32 s{sLdw}, 2048
    s_lshl_b32 s{sT2}, s{sCB}, 9
    s_mov_b32 s{sT3}, {1024*2048}
    s_and_b32 s{sEo}, s{sCB}, 1
    s_lshl_b32 s{sEo}, s{sEo}, 5
    L_{N}_typed:
    s_mov_b32 s47, s{sT2}
    s_mov_b32 s58, s{sT3}
    """)
    LATE = o.get("latesrd", True)
    def srd_ld():
        A(f"""; SRD X: base + rowblock*128*2048, 256KB
        s_lshl_b32 s59, s{sRB}, 18
        s_add_u32 s{sX}, s{sP}, s59
        s_addc_u32 s{sX+1}, s{sP+1}, 0
        s_and_b32 s{sX+1}, s{sX+1}, 0xffff
        s_mov_b32 s{sX+2}, 262144
        s_mov_b32 s{sX+3}, 0x20000
        s_add_u32 s{sWd}, s{sP+2}, s47
        s_addc_u32 s{sWd+1}, s{sP+3}, 0
        s_and_b32 s{sWd+1}, s{sWd+1}, 0xffff
        s_sub_u32 s{sWd+2}, s58, s47
        s_mov_b32 s{sWd+3}, 0x20000
        ; SRD E
        s_mov_b32 s{sE}, s{sP+4}
        s_and_b32 s{sE+1}, s{sP+5}, 0xffff
        s_mov_b32 s{sE+2}, 65536
        s_mov_b32 s{sE+3}, 0x20000""")
    def srd_ws():
        A(f"""; SRD WS
        s_mov_b32 s{sWS}, s{sP+6}
        s_and_b32 s{sWS+1}, s{sP+7}, 0xffff
        s_mov_b32 s{sWS+2}, {WS_END + (262144 if o.get('stamp') else 0)}
        s_mov_b32 s{sWS+3}, 0x20000""")
    if not LATE:
        A("s_waitcnt lgkmcnt(0)")
        srd_ld(); srd_ws()
    if o.get("stamp"): A("s_memtime s[84:85]" + ("" if LATE else "\ns_waitcnt lgkmcnt(0)"))
    if FUSED: A(f"s_mov_b32 s{S_WAVE}, s{sWave}")
    A(f"""s_cmp_lt_u32 s{sWave}, 4
    s_cbranch_scc1 L_{N}_compute""")
    l = vtid
    A(f"L_{N}_loader:")
    if o.get("prioL"): A(f"s_setprio {o['prioL']}")
    LX0, LX1 = vLX[0], vLX[1]
    A(f"""s_sub_u32 s{sWave}, s{sWave}, 4
    v_lshrrev_b32 v{vt0}, 3, v{l}
    v_lshrrev_b32 v{vt1}, 4, v{l}
    v_and_b32 v{vt2}, 7, v{l}
    v_xor_b32 v{vt1}, v{vt1}, v{vt2}
    s_lshl_b32 s{sT0}, s{sWave}, 16
    v_lshlrev_b32 v{vt1}, 4, v{vt1}
    v_lshl_add_u32 v{LX0}, v{vt0}, 11, v{vt1}
    v_add_u32 v{LX0}, s{sT0}, v{LX0}
    v_xor_b32 v{LX1}, 64, v{LX0}
    s_mov_b32 s{sXo}, 0
    s_lshl_b32 s{sM0x}, s{sWave}, 12
    s_mov_b32 s{sSlot}, 0
    v_lshrrev_b32 v{vt0}, 5, v{l}
    v_and_b32 v{vt2}, 31, v{l}
    v_lshlrev_b32 v{vt1}, 1, v{vt0}
    v_xor_b32 v{vt1}, v{vt1}, v{vt2}
    s_lshl_b32 s{sT0}, s{sWave}, 4
    v_add_u32 v{vt0}, s{sT0}, v{vt0}
    v_mul_lo_u32 v{vt0}, v{vt0}, s{sLdw}
    v_lshl_add_u32 v{vLW[0]}, v{vt1}, 4, v{vt0}
    v_xor_b32 v{vLW[1]}, 64, v{vLW[0]}
    v_xor_b32 v{vLW[2]}, 0x80, v{vLW[0]}
    v_xor_b32 v{vLW[3]}, 0xc0, v{vLW[0]}
    s_mov_b32 s{sWo}, 0
    s_lshl_b32 s{sWstep}, s{sLdw}, 6
    s_lshl_b32 s{sT3}, s{sLdw}, 1
    s_lshl_b32 s{sM0w}, s{sWave}, 13
    s_add_u32 s{sM0w}, s{sM0w}, {WOFF}
    """)
    STAG = o.get("stag", "")
    if STAG:
        SB = o.get("stagB", STAG)
        def fld(st): return ((0x10001 if 'o' in st else 0x10000) if 'w' in st else 0x1)
        A(f"""s_cmp_ge_u32 s{sType}, 3
        s_mov_b32 s{sT1}, {fld(SB)}
        s_cselect_b32 s{sT1}, {fld(STAG)}, s{sT1}
        s_bfe_u32 s{sT0}, s{sRB}, s{sT1}          ; fw
        s_lshl_b32 s{sT1}, s{sT0}, 7
        v_xor_b32 v{vLW[0]}, s{sT1}, v{vLW[0]}
        v_xor_b32 v{vLW[1]}, s{sT1}, v{vLW[1]}
        v_xor_b32 v{vLW[2]}, s{sT1}, v{vLW[2]}
        v_xor_b32 v{vLW[3]}, s{sT1}, v{vLW[3]}
        s_lshl_b32 s{sT1}, s{sT0}, 12
        s_add_u32 s{sM0w}, s{sM0w}, s{sT1}
        s_mul_i32 s{sT1}, s{sLdw}, 8
        s_mul_i32 s{sWo}, s{sT1}, s{sT0}
        s_mul_i32 s{sT1}, s{sLdw}, -14
        s_cmp_eq_u32 s{sT0}, 0
        s_cselect_b32 s66, s{sT3}, s{sT1}
        s_mov_b32 s{sT1}, -7168
        s_cselect_b32 s67, 0x400, s{sT1}
        s_cmp_ge_u32 s{sType}, 3
        s_mov_b32 s{sT1}, {0x10001 if 'x' in SB else 0x1}
        s_cselect_b32 s{sT1}, {0x10001 if 'x' in STAG else 0x1}, s{sT1}
        s_bfe_u32 s{sT0}, s{sCB}, s{sT1}          ; fx
        s_lshl_b32 s{sT1}, s{sT0}, 6
        v_xor_b32 v{LX0}, s{sT1}, v{LX0}
        v_xor_b32 v{LX1}, s{sT1}, v{LX1}
        s_lshl_b32 s{sT1}, s{sT0}, 11
        s_add_u32 s{sM0x}, s{sM0x}, s{sT1}
        s_lshl_b32 s{sXo}, s{sT0}, 15
        s_mov_b32 s{sT1}, -49152
        s_cmp_eq_u32 s{sT0}, 0
        s_cselect_b32 s64, 0x4000, s{sT1}
        s_mov_b32 s{sT1}, -3072
        s_cselect_b32 s65, 0x400, s{sT1}""")
    W4 = 'q' in STAG
    vWk = [xf[4] + i for i in range(8)]
    if W4:
        A(f"""s_bfe_u32 s82, s{sRB}, 0x20001
        s_lshl_b32 s83, s{sLdw}, 2""")
        for p in range(4):
            A(f"""s_add_u32 s{sT0}, s82, {p}
            s_and_b32 s{sT0}, s{sT0}, 3
            s_lshl_b32 s{73+p}, s{sT0}, 11
            s_mul_i32 s{77+p}, s{sT0}, s83
            s_lshr_b32 s{sT0}, s{sT0}, 1
            s_lshl_b32 s{sT0}, s{sT0}, 7
            v_xor_b32 v{vWk[2*p]}, s{sT0}, v{vLW[0]}
            v_xor_b32 v{vWk[2*p+1]}, s{sT0}, v{vLW[1]}""")
    KR = o.get("krot")
    if KR:
        if KR[0] == "p": A(f"s_add_u32 s69, s{sRB}, s{sCB}\ns_and_b32 s69, s69, 1")
        elif KR[0] == "h": A(f"s_lshr_b32 s69, s{sRB}, 1\ns_lshr_b32 s70, s{sCB}, 1\ns_add_u32 s69, s69, s70\ns_and_b32 s69, s69, 1")
        elif KR[0] == "4": A(f"s_add_u32 s69, s{sRB}, s{sCB}\ns_and_b32 s69, s69, 3")
        elif KR[0] == "8": A(f"s_lshl_b32 s70, s{sCB}, 1\ns_add_u32 s69, s{sRB}, s70\ns_and_b32 s69, s69, 7")
        if len(KR) > 2:
            A(f"s_cmp_ge_u32 s{sType}, 3\ns_cselect_b32 s69, {'s69, 0' if KR[2] == 'A' else '0, s69'}")
        KB = o.get("krotB")
        if KB:
            A(f"""s_mul_i32 s70, s{sType}, {KB[0]}
            s_and_b32 s71, s{sXcd}, 1
            s_mul_i32 s71, s71, {KB[1]}
            s_add_u32 s70, s70, s71
            s_cmp_ge_u32 s{sType}, 3
            s_cselect_b32 s69, s69, s70""")
        A(f"""s_mul_i32 s69, s69, {KR[1]}
        s_lshl_b32 s70, s69, 7
        s_add_u32 s{sXo}, s{sXo}, s70
        s_mul_i32 s70, s69, s{sWstep}
        s_add_u32 s{sWo}, s{sWo}, s70
        s_mul_i32 s71, s{sWstep}, -15
        s_movk_i32 s72, 0x80""")
    A(f"""s_cmp_ge_u32 s{sType}, 3
    s_cbranch_scc0 L_{N}_ldB
    s_lshl_b32 s{sT0}, s{sWave}, 4
    v_lshrrev_b32 v{vt0}, 1, v{l}
    v_and_b32 v{vt0}, 15, v{vt0}
    v_add_u32 v{vt0}, s{sT0}, v{vt0}           ; position p
    v_lshrrev_b32 v{vt1}, 1, v{vt0}
    v_and_b32 v{vt1}, 4, v{vt1}
    v_xor_b32 v{vt0}, v{vt0}, v{vt1}
    v_and_b32 v{vt1}, 1, v{l}
    s_cmp_eq_u32 s{sType}, 3
    s_cselect_b32 s{sT0}, 5, 4
    v_lshlrev_b32 v{vt1}, s{sT0}, v{vt1}
    s_cselect_b32 s{sT0}, 1, 0
    s_lshr_b32 s{sEo}, s{sEo}, s{sT0}
    v_lshl_add_u32 v{vLE}, v{vt0}, 6, v{vt1}
    v_add_u32 v{vLE}, s{sEo}, v{vLE}
    {f"s_lshl_b32 s{sEo}, s69, 12" if KR else f"s_mov_b32 s{sEo}, 0"}
    s_lshl_b32 s{sM0e}, s{sWave}, 9
    s_add_u32 s{sM0e}, s{sM0e}, {EOFF}
    s_branch L_{N}_ldA""")
    def dma(extra, order=0):
        def xpart():
            A(f"s_add_u32 m0, s{sSlot}, s{sM0x}")
            for i in range(4):
                if STAG:
                    if i == 0: A(f"s_mov_b32 s{sT0}, s{sXo}")
                    elif i == 2: A(f"s_add_u32 m0, m0, s65\ns_add_u32 s{sT0}, s{sT0}, s64")
                    else: A(f"s_add_u32 m0, m0, 1024\ns_add_u32 s{sT0}, s{sT0}, 16384")
                else:
                    if i: A("s_add_u32 m0, m0, 1024")
                    A(f"s_add_u32 s{sT0}, s{sXo}, {i*16384}")
                A(f"buffer_load_dwordx4 v{[LX0,LX1][(i ^ (i>>1)) & 1]}, s[{sX}:{sX+3}], s{sT0} offen {o.get('xfl','')} lds")
        def wpart():
            if W4:
                A(f"s_add_u32 s81, s{sSlot}, s{sM0w}")
                for p in range(4):
                    A(f"""s_add_u32 m0, s81, s{73+p}
                    s_add_u32 s{sT0}, s{sWo}, s{77+p}
                    buffer_load_dwordx4 v{vWk[2*p]}, s[{sWd}:{sWd+3}], s{sT0} offen {o.get('wfl','')} lds
                    s_add_u32 m0, m0, 1024
                    s_add_u32 s{sT0}, s{sT0}, s{sT3}
                    buffer_load_dwordx4 v{vWk[2*p+1]}, s[{sWd}:{sWd+3}], s{sT0} offen {o.get('wfl','')} lds""")
                return
            A(f"s_add_u32 m0, s{sSlot}, s{sM0w}")
            A(f"s_mov_b32 s{sT0}, s{sWo}")
            for i in range(8):
                if i == 4 and STAG:
                    A("s_add_u32 m0, m0, s67")
                    A(f"s_add_u32 s{sT0}, s{sT0}, s66")
                elif i:
                    A("s_add_u32 m0, m0, 1024")
                    A(f"s_add_u32 s{sT0}, s{sT0}, s{sT3}")
                A(f"buffer_load_dwordx4 v{vLW[(i&1) + 2*(i>>2)]}, s[{sWd}:{sWd+3}], s{sT0} offen {o.get('wfl','')} lds")
        for part in ((xpart, wpart) if order == 0 else (wpart, xpart)): part()
        if extra:
            A(f"s_add_u32 m0, s{sSlot}, s{sM0e}")
            A("s_mov_b32 exec_hi, 0")
            A(f"buffer_load_dwordx4 v{vLE}, s[{sE}:{sE+3}], s{sEo} offen lds")
            A("s_mov_b32 exec_hi, -1")
            if not KR: A(f"s_add_u32 s{sEo}, s{sEo}, 4096")
        if KR:
            A(f"""s_add_u32 s69, s69, 1
            s_cmp_eq_u32 s69, 16
            s_cselect_b32 s69, 0, s69
            s_cselect_b32 s70, s71, s{sWstep}
            s_add_u32 s{sWo}, s{sWo}, s70
            s_cmp_eq_u32 s69, 0
            s_cselect_b32 s70, 0xfffff880, s72
            s_add_u32 s{sXo}, s{sXo}, s70""")
            if extra: A(f"s_lshl_b32 s{sEo}, s69, 12")
        else:
            A(f"""s_add_u32 s{sXo}, s{sXo}, 128
            s_add_u32 s{sWo}, s{sWo}, s{sWstep}""")
        A(f"""s_add_u32 s{sSlot}, s{sSlot}, {SLOT}
        s_cmp_eq_u32 s{sSlot}, {3*SLOT}
        s_cselect_b32 s{sSlot}, 0, s{sSlot}""")
    ORD = 'o' in STAG
    for tag, extra, order in ([("ldB", False, 0), ("ldB1", False, 1), ("ldA", True, 0), ("ldA1", True, 1)] if ORD else [("ldB", False, 0), ("ldA", True, 0)]):
        PER = 13 if extra else 12
        A(f"L_{N}_{tag}:")
        if ORD and order == 0 and (extra or 'o' in o.get("stagB", STAG)):
            om = o.get("ordmode", 0)
            if om == 0: A(f"s_xor_b32 s{sT0}, s{sRB}, s{sCB}\ns_bitcmp1_b32 s{sT0}, 0\ns_cbranch_scc1 L_{N}_{tag}1")
            elif om == 1: A(f"s_xor_b32 s{sT0}, s{sRB}, s{sCB}\ns_bitcmp0_b32 s{sT0}, 0\ns_cbranch_scc1 L_{N}_{tag}1")
            elif om == 2: A(f"s_bitcmp1_b32 s{sCB}, 0\ns_cbranch_scc1 L_{N}_{tag}1")
            elif om == 3: A(f"s_bitcmp1_b32 s{sRB}, 0\ns_cbranch_scc1 L_{N}_{tag}1")
        _dma = dma
        dma_ = lambda e, order=order: _dma(e, order)
        if LATE:
            A("s_waitcnt lgkmcnt(0)")
            srd_ld()
            if o.get("stamp"): srd_ws()
        pre = o.get("predmaA" if extra else "predmaB", o.get("predma", 1))
        if o.get("pfwait"): A("s_barrier")
        if o.get("stamp"): A("s_memtime s[86:87]")
        for _ in range(pre): dma_(extra)
        if o.get("stamp"): A("s_memtime s[88:89]")
        A(f"s_waitcnt vmcnt({(pre-1)*PER})")
        if o.get("stamp"):
            A(f"""s_memtime s[90:91]
            s_waitcnt lgkmcnt(0)
            s_sub_u32 s84, s84, s60
            s_sub_u32 s86, s86, s60
            s_sub_u32 s88, s88, s60
            s_sub_u32 s90, s90, s60
            v_mov_b32 v{acc[0][0]}, s84
            v_mov_b32 v{acc[0][0]+1}, s86
            v_mov_b32 v{acc[0][0]+2}, s88
            v_mov_b32 v{acc[0][0]+3}, s90
            v_mov_b32 v{vt4}, 0
            s_lshl_b32 s68, s2, 3
            s_add_u32 s68, s68, s{sWave}
            s_add_u32 s68, s68, 4
            s_lshl_b32 s68, s68, 4
            s_add_u32 s68, s68, {WS_END}""")
        A("s_barrier")
        if o.get("stamp"): A(f"buffer_store_dwordx4 v[{acc[0][0]}:{acc[0][0]+3}], v{vt4}, s[{sWS}:{sWS+3}], s68 offen")
        for _ in range(3-pre): dma_(extra)
        A(f"s_mov_b32 s{sCnt}, {NST-3}")
        A(f"L_{N}_{tag}_loop:")
        A(f"s_waitcnt vmcnt({PER})\ns_barrier")
        dma_(extra)
        A(f"""s_sub_u32 s{sCnt}, s{sCnt}, 1
        s_cmp_lg_u32 s{sCnt}, 0
        s_cbranch_scc1 L_{N}_{tag}_loop
        s_waitcnt vmcnt({PER})
        s_barrier
        s_waitcnt vmcnt(0)
        s_barrier""")
        if FUSED and o.get("ctouch"):
            A(f"v_lshlrev_b32 v{vt1}, 4, v{l}")
            code_touch(A, f"{N}_{tag}", "L_attn_code", vt0, vdum, vt1, sWave, 74, end="L_oproj_code")
        A(f"s_branch L_{N}_lend")
    A(f"L_{N}_compute:")
    if o.get("prioC"): A(f"s_setprio {o['prioC']}")
    l = vtid
    def cpf():
        A(f"s_lshr_b32 s{sT0}, s2, 3\ns_and_b32 s{sT0}, s{sT0}, {7 if o.get('wpre') else 3}\ns_cmp_lg_u32 s{sWave}, {o.get('cpwave', 3)}\ns_cbranch_scc1 L_{N}_nocp")
        code_prefetch(A, N, o.get("kname", name), 0, sT0, vt0, vdum, l, 74)
        A(f"L_{N}_nocp:")
    if o.get("codepf", True) and o.get("cpearly"): cpf()
    if LATE:
        A("s_waitcnt lgkmcnt(0)")
        srd_ws()
    if FUSED and o.get("nonce", "store") == "atomic":
        A(f"""s_cmp_lg_u32 s{sWave}, 1
        s_cbranch_scc1 L_{N}_notag
        s_memrealtime s[96:97]
        s_waitcnt lgkmcnt(0)
        s_or_b32 s96, s96, 1
        v_mov_b32 v{vtag}, s96
        v_mov_b32 v{vtag+1}, s97
        v_mov_b32 v{vtag+2}, 0
        v_mov_b32 v{vtag+3}, 0
        v_mov_b32 v{vt0}, 0
        s_mov_b64 exec, 1
        global_atomic_cmpswap_x2 v[{vtagr}:{vtagr+1}], v{vt0}, v[{vtag}:{vtag+3}], s[98:99] sc0
        s_mov_b64 exec, -1
        L_{N}_notag:""")
    elif FUSED:
        A(f"""v_mov_b32 v{vtag+2}, 0
        s_cmp_lg_u32 s{sWave}, 1
        s_cbranch_scc1 L_{N}_notag
        s_cmp_lg_u32 s2, 0
        s_cbranch_scc1 L_{N}_notag
        s_memrealtime s[96:97]
        s_waitcnt lgkmcnt(0)
        s_or_b32 s96, s96, 1
        v_mov_b32 v{vtag}, s96
        v_mov_b32 v{vtag+1}, s97
        s_mov_b64 exec, 1
        global_store_dwordx2 v{vtag+2}, v[{vtag}:{vtag+1}], s[98:99] sc0 sc1
        s_mov_b64 exec, -1
        L_{N}_notag:""")
    PF = o.get("prefetch", True)
    PFD = 4
    sPfN = 79
    vpa = va_pf; vpinc = va_pfinc
    if PF:
        A(f"""s_lshr_b32 s{sT1}, s2, 3              ; j
        s_lshr_b32 s{sT0}, s{sRB}, 3
        s_lshl_b32 s{sT0}, s{sT0}, 21
        s_add_u32 s72, s{sP}, s{sT0}
        s_addc_u32 s73, s{sP+1}, 0
        s_lshl_b32 s{sT0}, s{sType}, 11
        s_cmp_ge_u32 s{sType}, 3
        s_cselect_b32 s{sT0}, 0, s{sT0}
        s_add_u32 s74, s{sP+2}, s{sT0}
        s_addc_u32 s75, s{sP+3}, 0
        s_lshl_b32 s{sT2}, s{sT1}, 5
        v_and_b32 v{vt0}, 31, v{l}
        v_add_u32 v{vt0}, s{sT2}, v{vt0}
        v_lshlrev_b32 v{vt0}, 11, v{vt0}
        s_lshl_b32 s{sT2}, s{sT1}, 1
        v_bfe_u32 v{vt1}, v{l}, 4, 1
        v_add_u32 v{vt1}, s{sT2}, v{vt1}
        v_mul_lo_u32 v{vt1}, v{vt1}, s{sLdw}
        v_and_b32 v{vt2}, 15, v{l}
        v_lshl_add_u32 v{vt1}, v{vt2}, 7, v{vt1}
        s_lshl_b32 s{sT2}, s{sLdw}, 6
        v_mov_b32 v{vpinc}, 0x80
        v_mov_b32 v{vt2}, s{sT2}
        v_mov_b32 v{vt3}, s72
        v_mov_b32 v{vt4}, s73
        v_mov_b32 v{vpa}, s74
        v_mov_b32 v{vpa+1}, s75
        v_cmp_gt_u32 vcc, 32, v{l}
        s_nop 1
        v_cndmask_b32 v{vpinc}, v{vt2}, v{vpinc}, vcc
        v_cndmask_b32 v{vt0}, v{vt1}, v{vt0}, vcc
        v_cndmask_b32 v{vpa}, v{vpa}, v{vt3}, vcc
        v_cndmask_b32 v{vpa+1}, v{vpa+1}, v{vt4}, vcc
        v_mul_lo_u32 v{vt1}, v{vpinc}, s{sWave}
        v_add_u32 v{vt0}, v{vt0}, v{vt1}             ; stage = wave
        v_add_co_u32 v{vpa}, vcc, v{vpa}, v{vt0}
        v_lshlrev_b32 v{vpinc}, 2, v{vpinc}          ; each wave then steps 4 stages
        s_mov_b32 s{sPfN}, 3
        v_addc_co_u32 v{vpa+1}, vcc, 0, v{vpa+1}, vcc
        s_mov_b32 s78, s{sWave}""")
    PM = o.get("pfmask")
    if PF and PM:
        mk = {"x": (0xffffffff, 0), "w": (0, 0xffffffff), "xw": (0xffffffff, 0xffffffff)}
        A(f"""s_cmp_ge_u32 s{sType}, 3
        s_cselect_b32 s76, {mk[PM[0]][0]}, {mk[PM[1]][0]}
        s_cselect_b32 s77, {mk[PM[0]][1]}, {mk[PM[1]][1]}""".replace(str(0xffffffff), "-1"))
    def pf_one():
        if PM: return f"""s_mov_b64 exec, s[76:77]
        global_load_dword v{vdum}, v[{vpa}:{vpa+1}], off {o.get('pfl','')}
        s_mov_b64 exec, -1
        v_add_co_u32 v{vpa}, vcc, v{vpa}, v{vpinc}
        s_nop 1
        v_addc_co_u32 v{vpa+1}, vcc, 0, v{vpa+1}, vcc"""
        return f"""global_load_dword v{vdum}, v[{vpa}:{vpa+1}], off {o.get('pfl','')}
        v_add_co_u32 v{vpa}, vcc, v{vpa}, v{vpinc}
        s_nop 1
        v_addc_co_u32 v{vpa+1}, vcc, 0, v{vpa+1}, vcc"""
    def pf_more():
        m = o.get("pfd8")
        nA = o.get("pfnA", 2 if m in ("A", "all") else 1); nB = o.get("pfnB", 2 if m in ("B", "all") else 1)
        if not PF or (nA <= 1 and nB <= 1): return
        A(f"s_cmp_ge_u32 s{sType}, 3\ns_cbranch_scc1 L_{N}_pfa")
        for _ in range(nB - 1): A(pf_one())
        A(f"s_mov_b32 s{sPfN}, {4 - nB}\ns_branch L_{N}_pfz\nL_{N}_pfa:")
        for _ in range(nA - 1): A(pf_one())
        A(f"s_mov_b32 s{sPfN}, {4 - nA}\nL_{N}_pfz:")
    def pf_first():
        if PF and o.get("pfinit") in ("B", "Bonly"):
            A(f"s_cmp_ge_u32 s{sType}, 3\ns_cbranch_scc1 L_{N}_pfia")
            A(pf_one())
            A(f"""s_branch L_{N}_pfiz
            L_{N}_pfia:
            v_add_co_u32 v{vpa}, vcc, v{vpa}, v{vpinc}
            s_nop 1
            v_addc_co_u32 v{vpa+1}, vcc, 0, v{vpa+1}, vcc
            {f"s_mov_b32 s{sPfN}, 0" if o.get("pfinit") == "Bonly" else ""}
            L_{N}_pfiz:""")
        elif PF and o.get("pfinit") in ("A", "Aonly"):
            A(f"s_cmp_lt_u32 s{sType}, 3\ns_cbranch_scc1 L_{N}_pfia")
            A(pf_one())
            A(f"""s_branch L_{N}_pfiz
            L_{N}_pfia:
            v_add_co_u32 v{vpa}, vcc, v{vpa}, v{vpinc}
            s_nop 1
            v_addc_co_u32 v{vpa+1}, vcc, 0, v{vpa+1}, vcc
            {f"s_mov_b32 s{sPfN}, 0" if o.get("pfinit") == "Aonly" else ""}
            L_{N}_pfiz:""")
        elif PF and o.get("pfinit", True): A(pf_one())
        elif PF: A(f"""v_add_co_u32 v{vpa}, vcc, v{vpa}, v{vpinc}
        s_nop 1
        v_addc_co_u32 v{vpa+1}, vcc, 0, v{vpa+1}, vcc""")
    if o.get("pfpos", "early") == "early": pf_first()
    if o.get("tlb", True) and not FUSED:
        A(f"""s_cmp_lg_u32 s{sWave}, 2
        s_cbranch_scc1 L_{N}_notlb
        s_load_dwordx2 s[74:75], s[0:1], {KA_OUT}
        v_min_u32 v{vt0}, 12, v{l}
        v_lshlrev_b32 v{vt0}, 21, v{vt0}
        global_load_dword v{vdum}, v{vt0}, s[{sP+6}:{sP+7}]
        v_and_b32 v{vt0}, 3, v{l}
        v_lshlrev_b32 v{vt0}, 21, v{vt0}
        s_waitcnt lgkmcnt(0)
        global_load_dword v{vdum}, v{vt0}, s[74:75]
        L_{N}_notlb:""")
    if FUSED and o.get("tlbout", False):
        A(f"""s_cmp_lg_u32 s{sWave}, 2
        s_cbranch_scc1 L_{N}_notlb
        s_load_dwordx2 s[74:75], s[0:1], {KA_OUT}
        v_and_b32 v{vt0}, 3, v{l}
        v_lshlrev_b32 v{vt0}, 21, v{vt0}
        s_waitcnt lgkmcnt(0)
        global_load_dword v{vdum}, v{vt0}, s[74:75]
        L_{N}_notlb:""")
    if o.get("codepf", True) and not o.get("cpearly"): cpf()
    def pf_inloop(tag):
        return [f"""s_cmp_lg_u32 s78, 0
        s_cbranch_scc1 L_{N}_{tag}_pfs
        s_mov_b32 s78, 4
        s_cmp_eq_u32 s{sPfN}, 0
        s_cbranch_scc1 L_{N}_{tag}_pfs
        s_sub_u32 s{sPfN}, s{sPfN}, 1
        {pf_one()}
        L_{N}_{tag}_pfs:
        s_sub_u32 s78, s78, 1"""] if PF else []
    A(f"""v_and_b32 v{vt0}, 15, v{l}          ; n
    v_lshrrev_b32 v{vt1}, 4, v{l}         ; g
    ; ---- store lane offset: (g>>1)*1024 + (g&1)*512 + n*16
    v_lshlrev_b32 v{vst}, 9, v{vt1}
    v_lshl_add_u32 v{vst}, v{vt0}, 4, v{vst}
    v_lshrrev_b32 v{vt2}, 1, v{vt0}
    v_xor_b32 v{vt2}, v{vt2}, v{vt1}
    v_lshlrev_b32 v{vt2}, 4, v{vt2}
    v_lshl_add_u32 v{vt3}, v{vt0}, 7, v{vt2}      ; n*128 + swz*16  ( == (n>>3)*1024 + (n&7)*128 + ..)
    v_and_b32 v{vt2}, 7, v{vt0}
    v_lshrrev_b32 v{vt4}, 1, v{vt2}
    v_xor_b32 v{vt4}, v{vt4}, v{vt1}
    v_lshlrev_b32 v{vt2}, 7, v{vt2}
    v_lshrrev_b32 v{vst+0 if False else vXE[1]}, 3, v{vt0}     ; n>>3
    v_lshlrev_b32 v{vXE[0]}, 2, v{vXE[1]}
    v_xor_b32 v{vt4}, v{vt4}, v{vXE[0]}
    v_lshl_add_u32 v{vt2}, v{vt4}, 4, v{vt2}
    v_lshl_add_u32 v{vt4}, v{vXE[1]}, 11, v{vt2}
    s_lshl_b32 s{sT0}, s{sWave}, 12
    s_cmp_eq_u32 s{sType}, 2
    s_cbranch_scc1 L_{N}_xperm
    v_mov_b32 v{vXA[0]}, v{vt3}
    s_branch L_{N}_xdone
    L_{N}_xperm:
    v_mov_b32 v{vXA[0]}, v{vt4}
    L_{N}_xdone:
    v_xor_b32 v{vXA[1]}, 64, v{vXA[0]}
    s_cmp_eq_u32 s{sType}, 4
    s_cbranch_scc1 L_{N}_eperm
    v_add_u32 v{vXE[0]}, s{sT0}, v{vt3}
    s_branch L_{N}_edone
    L_{N}_eperm:
    v_add_u32 v{vXE[0]}, s{sT0}, v{vt4}
    L_{N}_edone:
    v_xor_b32 v{vXE[1]}, 64, v{vXE[0]}
    v_lshrrev_b32 v{vt2}, 2, v{vt0}               ; i>>2
    v_and_b32 v{vt3}, 1, v{vt1}
    v_lshl_or_b32 v{vt3}, v{vt3}, 2, v{vt2}
    v_lshlrev_b32 v{vt3}, 1, v{vt3}               ; f
    v_lshl_add_u32 v{vt2}, v{vt1}, 3, v{vt2}      ; row
    v_lshlrev_b32 v{vt4}, 9, v{vt2}               ; row*512
    v_and_b32 v{vWE[1]}, 1, v{vt0}
    v_lshl_add_u32 v{vt4}, v{vWE[1]}, 3, v{vt4}   ; + 8*(i&1)
    v_add_u32 v{vt4}, {WOFF}, v{vt4}
    v_bfe_u32 v{vWE[1]}, v{vt0}, 1, 1             ; (i&3)>>1
    s_lshl_b32 s{sT1}, s{sWave}, 3
    v_add_u32 v{vWE[1]}, s{sT1}, v{vWE[1]}
    """)
    for ct in range(4):
        A(f"""v_add_u32 v{vWA[ct]}, {2*ct}, v{vWE[1]}
        v_xor_b32 v{vWA[ct]}, v{vWA[ct]}, v{vt3}
        v_lshl_add_u32 v{vWA[ct]}, v{vWA[ct]}, 4, v{vt4}""")
    A(f"""; ---- WE address: EOFF + row*32 + (i&3)*8 + ((q ^ (g&1))*128)
    v_lshlrev_b32 v{vt4}, 5, v{vt2}
    v_and_b32 v{vt2}, 3, v{vt0}
    v_lshl_add_u32 v{vt4}, v{vt2}, 3, v{vt4}
    v_add_u32 v{vt4}, {EOFF}, v{vt4}
    v_and_b32 v{vt2}, 1, v{vt1}
    v_lshl_add_u32 v{vWE[0]}, v{vt2}, 7, v{vt4}
    v_xor_b32 v{vt2}, 1, v{vt2}
    v_lshl_add_u32 v{vWE[1]}, v{vt2}, 7, v{vt4}
    s_mov_b32 s{sC}, {CSC}
    s_mov_b32 s{sCneg}, {(-2*SLOT) & 0xffffffff}
    """)
    for t in range(8):
        for c in range(4):
            for r in range(4): A(f"v_mov_b32 v{acc[t][c]+r}, 0")
    for i in range(2):
        for r in range(4): A(f"v_mov_b32 v{acce[i]+r}, 0")
    A(f"s_mov_b32 s{sSlot}, 0")
    if o.get("pfpos", "early") == "late": pf_first()
    pf_more()
    if o.get("pfwait"): A("s_waitcnt vmcnt(0)\ns_barrier")
    NAT = o.get("nonceat", "end")
    if FUSED and NAT == "spread":
        A(f"""s_lshr_b32 s77, s2, 3
        s_and_b32 s77, s77, 7
        s_add_u32 s77, s77, 3
        s_cmp_eq_u32 s{S_WAVE}, 0
        s_cselect_b32 s77, s77, 0""")
    A("s_barrier")
    if FUSED and NAT == "p0":
        A(f"""s_cmp_lg_u32 s{S_WAVE}, 0
        s_cbranch_scc1 L_{N}_notag0
        global_load_dwordx2 v[{vtagr}:{vtagr+1}], v{vtag+2}, s[98:99] sc0 sc1
        L_{N}_notag0:""")

    def xreg(tt, par):
        sp = tt - (8 - NSP)
        if sp >= 0 and par == 1: return xs[sp]
        return xf[tt]
    def rdX(tt, ks, par, perm):
        if perm: T, ab = tt >> 1, tt & 1; a = vXA[(ks ^ ab) & 1]; off = XOFF + T*4096 + ab*1024
        else: a = vXA[(ks ^ tt) & 1]; off = XOFF + tt*2048
        r = xreg(tt, par)
        return f"ds_read_b128 v[{r}:{r+3}], v{a} offset:{off}"
    def rdW(ct, q, ks, par):
        r = wf[par][ct] + 2*q
        return f"ds_read_b64_tr_b16 v[{r}:{r+1}], v{vWA[ct]} offset:{ks*16384 + q*2048}"
    def rdXE(i, ks, perm):
        a = vXE[(ks ^ i) & 1]; off = XOFF + (i*1024 if perm else i*2048)
        return f"ds_read_b128 v[{xe[i]}:{xe[i]+3}], v{a} offset:{off}"
    def rdWE(q, ks):
        return f"ds_read_b64_tr_b16 v[{we+2*q}:{we+2*q+1}], v{vWE[q]} offset:{ks*1024}"
    def mf(d, a, b): return f"v_mfma_f32_16x16x32_bf16 v[{d}:{d+3}], v[{a}:{a+3}], v[{b}:{b+3}], v[{d}:{d+3}]"

    def step(ks, vtype, extra, nxt, inter=(), early=()):
        par = ks; npar = ks ^ 1; nks = ks ^ 1
        after = {}
        def put(m, s): after.setdefault(m, []).append(s)
        seq = []
        if extra:
            for i in range(2):
                seq.append(mf(acce[i], we, xe[i]) if extra == "K" else mf(acce[i], xe[i], we))
        ne = len(seq)
        for tt in range(8):
            for ct in range(4):
                x = xreg(tt, par); w = wf[par][ct]
                seq.append(mf(acc[tt][ct], x, w) if vtype else mf(acc[tt][ct], w, x))
        if nxt:
            m = 0
            if extra:
                put(1, rdWE(0, nks)); put(1, rdWE(1, nks)); put(2, rdXE(0, nks, extra == "V")); put(3, rdXE(1, nks, extra == "V"))
            for k in range(8): put(ne + k, rdW(k >> 1, k & 1, nks, npar))
            put(ne+3, rdX(0, nks, npar, vtype)); put(ne+7, rdX(1, nks, npar, vtype))
            put(ne+8, rdX(5, nks, npar, vtype)); put(ne+9, rdX(6, nks, npar, vtype)); put(ne+10, rdX(7, nks, npar, vtype))
            put(ne+11, rdX(2, nks, npar, vtype)); put(ne+15, rdX(3, nks, npar, vtype)); put(ne+19, rdX(4, nks, npar, vtype))
        inter = list(inter); early = list(early)
        for m, s in enumerate(seq):
            A(s)
            for x in after.get(m, []): A(x)
            if early and m >= ne + 12 and len(after.get(m, [])) == 0: A(early.pop(0))
            if inter and m >= ne + 20:
                assert not early
                A(inter.pop(0))
        for x in inter: A(x)

    T2 = o.get("t2", False)
    def t2on(tag):
        if isinstance(T2, (tuple, list)): return tag in T2
        return bool(T2) and (T2 is True or (T2 == "A" and tag in ("av", "ak")) or (T2 == "B" and tag not in ("av", "ak")))
    def compute(tag, vtype, extra):
        for ct in range(4):
            for q in range(2): A(rdW(ct, q, 0, 0))
        A("s_waitcnt lgkmcnt(4)")
        for tt in range(8): A(rdX(tt, 0, 0, vtype))
        if extra:
            A("s_waitcnt lgkmcnt(8)")
            for q in range(2): A(rdWE(q, 0))
            for i in range(2): A(rdXE(i, 0, extra == "V"))
        A(f"s_mov_b32 s{sCnt}, {NST-1}")
        if o.get("stamp"): A("s_memtime s[70:71]")
        A(f".p2align 6\nL_{N}_{tag}_loop:")
        A("s_waitcnt lgkmcnt(0)")
        rot = [f"s_add_u32 s{sSlot}, s{sSlot}, 1", f"s_cmp_eq_u32 s{sSlot}, 3",
               f"s_cselect_b32 s{sDelta}, s{sCneg}, {SLOT}", f"s_cselect_b32 s{sSlot}, 0, s{sSlot}"]
        if not o.get("hide", True):
            for x in rot: A(x)
            rot = []
        regs = vXA + vWA + ((vXE + vWE) if extra else [])
        nl = [f"""s_cmp_lg_u32 s{sCnt}, s77
        s_cbranch_scc1 L_{N}_{tag}_non
        global_load_dwordx2 v[{vtagr}:{vtagr+1}], v{vtag+2}, s[98:99] sc0 sc1
        L_{N}_{tag}_non:"""] if (FUSED and NAT == "spread") else []
        step(0, vtype, extra, "same", [f"v_add_u32 v{r}, s{sDelta}, v{r}" for r in regs] + pf_inloop(tag) + nl, early=rot)
        A("s_waitcnt lgkmcnt(0)\ns_barrier")
        if o.get("stagestamp"):
            A(f"""s_memtime s[80:81]
            s_waitcnt lgkmcnt(0)
            s_sub_u32 s80, s80, s60
            s_sub_u32 s82, 15, s{sCnt}
            s_mov_b32 m0, s82
            v_writelane_b32 v{vdum+0 if False else vstamp}, s80, m0""")
        step(1, vtype, extra, "next", [f"s_sub_u32 s{sCnt}, s{sCnt}, 1", f"s_cmp_lg_u32 s{sCnt}, 0"])
        A(f"s_cbranch_scc1 L_{N}_{tag}_loop")
        if FUSED and o.get("nonce", "store") == "store" and NAT == "end":
            A(f"""s_cmp_lg_u32 s{S_WAVE}, 0
            s_cbranch_scc1 L_{N}_{tag}_notag
            global_load_dwordx2 v[{vtagr}:{vtagr+1}], v{vtag+2}, s[98:99] sc0 sc1
            L_{N}_{tag}_notag:""")
        if t2on(tag): return
        A("s_waitcnt lgkmcnt(0)")
        step(0, vtype, extra, "same")
        A("s_waitcnt lgkmcnt(0)")
        step(1, vtype, extra, None)
        if o.get("stamp"): A("s_memtime s[72:73]\ns_waitcnt lgkmcnt(0)")
        A("s_nop 7")

    def pieces(kind, T, k0):
        out = []; k = k0
        for hh in range(2):
            for th in range(2):
                if kind == "V": srcs = [acc[2*T][2*hh+th], acc[2*T+1][2*hh+th]]
                else: srcs = [acc[2*T+th][2*hh], acc[2*T+th][2*hh+1]]
                d = xf[0] + 4*(k % 4); k += 1
                if th == 0: out.append(f"s_add_u32 s{sT0}, s{sOut}, {(hh*64 + T)*2048}")
                if kind == "Q":
                    for s_ in srcs:
                        out.append(f"v_pk_mul_f32 v[{s_}:{s_+1}], v[{s_}:{s_+1}], s[{sC}:{sC+1}]")
                        out.append(f"v_pk_mul_f32 v[{s_+2}:{s_+3}], v[{s_+2}:{s_+3}], s[{sC}:{sC+1}]")
                for j, s_ in enumerate(srcs):
                    out.append(f"v_cvt_pk_bf16_f32 v{d+2*j}, v{s_}, v{s_+1}")
                    out.append(f"v_cvt_pk_bf16_f32 v{d+2*j+1}, v{s_+2}, v{s_+3}")
                out.append(f"buffer_store_dwordx4 v[{d}:{d+3}], v{vst}, s[{sWS}:{sWS+3}], s{sT0} offen offset:{th*256} {o.get('stflags','')}")
        return out
    def tail(kind, vtype, extra):
        ne = 2 if extra else 0
        def EM(i): return mf(acce[i], we, xe[i]) if extra == "K" else mf(acce[i], xe[i], we)
        def M(tt, ct, par):
            x = xreg(tt, par); w = wf[par][ct]
            return mf(acc[tt][ct], x, w) if vtype else mf(acc[tt][ct], w, x)
        def emit(seq, after, inter=(), waits={}):
            inter = list(inter); n = len(seq); done = 0; tot = len(inter)
            for m, x in enumerate(seq):
                if m in waits: A(f"s_waitcnt lgkmcnt({waits[m]})")
                A(x)
                for y in after.get(m, []): A(y)
                want = (tot*(m+1) + n - 1)//n
                while done < want: A(inter[done]); done += 1
        A("s_waitcnt lgkmcnt(0)")
        seq = ([EM(0), EM(1)] if extra else []) + [M(tt, ct, 0) for tt in range(4) for ct in range(4)]
        after = {}
        def put(m, x): after.setdefault(m, []).append(x)
        if extra:
            put(1, rdWE(0, 1)); put(1, rdWE(1, 1)); put(2, rdXE(0, 1, extra == "V")); put(3, rdXE(1, 1, extra == "V"))
        for k in range(8): put(ne + k, rdW(k >> 1, k & 1, 1, 1))
        put(ne+3, rdX(0, 1, 1, vtype)); put(ne+7, rdX(1, 1, 1, vtype))
        put(ne+8, rdX(5, 1, 1, vtype)); put(ne+9, rdX(6, 1, 1, vtype)); put(ne+10, rdX(7, 1, 1, vtype))
        put(ne+11, rdX(2, 1, 1, vtype)); put(ne+15, rdX(3, 1, 1, vtype))
        emit(seq, after)
        seq = ([EM(0), EM(1)] if extra else []) + [M(tt, ct, 1) for tt in range(4) for ct in range(4)]
        emit(seq, {}, waits={0: 5, ne+8: 1, ne+12: 0})
        seq = [M(tt, ct, 0) for tt in range(4, 8) for ct in range(4)]
        emit(seq, {3: [rdX(4, 1, 1, vtype)]}, inter=pieces(kind, 0, 0))
        seq = [M(tt, ct, 1) for tt in range(4, 8) for ct in range(4)]
        emit(seq, {}, inter=pieces(kind, 1, 4), waits={0: 0})
        if o.get("stamp"): A("s_memtime s[72:73]\ns_waitcnt lgkmcnt(0)")
        A("s_nop 7")
        for x in pieces(kind, 2, 8) + pieces(kind, 3, 12): A(x)
        epilogue(kind, extra, main=False)
    def epilogue(kind, extra, main=True):
        if main and t2on({"V": "av", "K": "ak", None: ("bv" if kind == "V" else "bqk")}[extra]): return tail(kind, kind == "V", extra)
        tmp = xf[0]
        stride = 2048
        for hh in range(2 if main else 0):
            for T in range(4):
                A(f"s_add_u32 s{sT0}, s{sOut}, {(hh*64 + T)*stride}")
                for th in range(2):
                    if kind == "V": srcs = [acc[2*T][2*hh+th], acc[2*T+1][2*hh+th]]
                    else: srcs = [acc[2*T+th][2*hh], acc[2*T+th][2*hh+1]]
                    d = tmp + 4*((T*2+th) % 4)
                    if kind == "Q":
                        for s_ in srcs:
                            A(f"v_pk_mul_f32 v[{s_}:{s_+1}], v[{s_}:{s_+1}], s[{sC}:{sC+1}]")
                            A(f"v_pk_mul_f32 v[{s_+2}:{s_+3}], v[{s_+2}:{s_+3}], s[{sC}:{sC+1}]")
                    for k, s_ in enumerate(srcs):
                        A(f"v_cvt_pk_bf16_f32 v{d+2*k}, v{s_}, v{s_+1}")
                        A(f"v_cvt_pk_bf16_f32 v{d+2*k+1}, v{s_+2}, v{s_+3}")
                    A(f"buffer_store_dwordx4 v[{d}:{d+3}], v{vst}, s[{sWS}:{sWS+3}], s{sT0} offen offset:{th*256} {o.get('stflags','')}")
        if extra == "K":
            d = wf[0][0]
            for th in range(2):
                A(f"v_cvt_pk_bf16_f32 v{d+2*th}, v{acce[th]}, v{acce[th]+1}")
                A(f"v_cvt_pk_bf16_f32 v{d+2*th+1}, v{acce[th]+2}, v{acce[th]+3}")
            A(f"""v_and_b32 v{vt0}, 0x200, v{vst}
            v_lshrrev_b32 v{vt1}, 2, v{vst}
            v_and_b32 v{vt1}, 0x100, v{vt1}
            v_permlane32_swap_b32 v{d}, v{d+2}
            v_permlane32_swap_b32 v{d+1}, v{d+3}
            v_and_b32 v{vt2}, 0xf0, v{vst}
            v_or3_b32 v{vt0}, v{vt0}, v{vt1}, v{vt2}
            buffer_store_dwordx4 v[{d}:{d+3}], v{vt0}, s[{sWS}:{sWS+3}], s{sOutE} offen {o.get('stflags','')}""")
        elif extra == "V":
            d = wf[0][0]
            for k in range(2):
                A(f"v_cvt_pk_bf16_f32 v{d+2*k}, v{acce[k]}, v{acce[k]+1}")
                A(f"v_cvt_pk_bf16_f32 v{d+2*k+1}, v{acce[k]+2}, v{acce[k]+3}")
            A(f"buffer_store_dwordx4 v[{d}:{d+3}], v{vst}, s[{sWS}:{sWS+3}], s{sOutE} offen {o.get('stflags','')}")
        A(f"s_branch L_{N}_done")

    A(f"""s_lshl_b32 s{sT0}, s{sCB}, 3
    s_lshl_b32 s{sT1}, s{sWave}, 1
    s_add_u32 s{sT0}, s{sT0}, s{sT1}        ; head0
    s_lshl_b32 s{sT0}, s{sT0}, 6
    s_lshl_b32 s{sT1}, s{sRB}, 2
    s_add_u32 s{sT0}, s{sT0}, s{sT1}        ; head0*64 + T0
    s_add_u32 s{sT1}, s{sT1}, s{sWave}
    s_lshl_b32 s{sOutE}, s{sT1}, 11
    s_add_u32 s{sOutE}, s{sOutE}, {WS_KA}
    s_mov_b32 s{sC+1}, s{sC}
    s_cmp_eq_u32 s{sType}, 0
    s_cbranch_scc1 L_{N}_cBQ
    s_cmp_eq_u32 s{sType}, 1
    s_cbranch_scc1 L_{N}_cBK
    s_cmp_eq_u32 s{sType}, 2
    s_cbranch_scc1 L_{N}_cBV
    s_lshl_b32 s{sOut}, s{sT0}, 11
    s_add_u32 s{sOut}, s{sOut}, {WS_QA}
    s_cmp_eq_u32 s{sType}, 3
    s_cbranch_scc1 L_{N}_cAK
    s_lshl_b32 s{sT1}, s{sEo}, 3
    s_add_u32 s{sOutE}, s{sOutE}, s{sT1}
    s_add_u32 s{sOutE}, s{sOutE}, {WS_VA-WS_KA}""")
    compute("av", False, "V"); epilogue("Q", "V")
    A(f"""L_{N}_cAK:
    s_lshl_b32 s{sT1}, s{sEo}, 5
    s_add_u32 s{sOutE}, s{sOutE}, s{sT1}""")
    compute("ak", False, "K"); epilogue("Q", "K")
    A(f"""L_{N}_cBQ:
    s_lshl_b32 s{sOut}, s{sT0}, 11
    s_add_u32 s{sOut}, s{sOut}, {WS_QB}""")
    A(f"s_branch L_{N}_cBQK")
    A(f"""L_{N}_cBK:
    s_lshl_b32 s{sOut}, s{sT0}, 11
    s_add_u32 s{sOut}, s{sOut}, {WS_KB}
    L_{N}_cBQK:""")
    compute("bqk", False, None)
    A(f"""s_cmp_eq_u32 s{sType}, 1
    s_cbranch_scc1 L_{N}_eBK""")
    epilogue("Q", None)
    A(f"L_{N}_eBK:")
    epilogue("K", None)
    A(f"""L_{N}_cBV:
    s_lshl_b32 s{sOut}, s{sT0}, 11
    s_add_u32 s{sOut}, s{sOut}, {WS_VB}""")
    compute("bv", True, None); epilogue("V", None)

    A(f"L_{N}_done:")
    if o.get("stamp"):
        A(f"""s_memtime s[64:65]
        s_memrealtime s[66:67]
        s_waitcnt lgkmcnt(0)
        s_sub_u32 s64, s64, s60
        s_sub_u32 s66, s66, s62
        s_lshl_b32 s68, s2, 3
        s_add_u32 s68, s68, s{sWave}
        s_lshl_b32 s68, s68, 4
        s_add_u32 s68, s68, {WS_END}
        v_mov_b32 v{xs[0]}, s64
        v_mov_b32 v{xs[0]+1}, s66
        v_mov_b32 v{xs[0]+2}, s62
        s_sub_u32 s70, s70, s60
        s_sub_u32 s72, s72, s60
        s_lshr_b32 s70, s70, 2
        s_lshr_b32 s72, s72, 2
        s_lshl_b32 s72, s72, 16
        s_or_b32 s70, s70, s72
        v_mov_b32 v{xs[0]+3}, s70
        v_mov_b32 v{vt0}, 0
        buffer_store_dwordx4 v[{xs[0]}:{xs[0]+3}], v{vt0}, s[{sWS}:{sWS+3}], s68 offen""")
        if o.get("stagestamp"):
            A(f"""s_lshl_b32 s68, s2, 2
            s_add_u32 s68, s68, s{sWave}
            s_lshl_b32 s68, s68, 6
            s_add_u32 s68, s68, {WS_END + 196608}
            v_lshlrev_b32 v{vt0}, 2, v{vtid}
            s_mov_b64 exec, 0xffff
            buffer_store_dword v{vstamp}, v{vt0}, s[{sWS}:{sWS+3}], s68 offen
            s_mov_b64 exec, -1""")
    if FUSED and o.get("nonce", "store") == "atomic":
        A(f"""s_waitcnt vmcnt(0)
        s_cmp_lg_u32 s{S_WAVE}, 1
        s_cbranch_scc1 L_{N}_lend
        v_cmp_eq_u64 vcc, 0, v[{vtagr}:{vtagr+1}]
        v_mov_b32 v{vt0}, {NONCE_LDS}
        s_nop 0
        v_cndmask_b32 v{vtag}, v{vtagr}, v{vtag}, vcc
        v_cndmask_b32 v{vtag+1}, v{vtagr+1}, v{vtag+1}, vcc
        s_mov_b64 exec, 1
        ds_write_b64 v{vt0}, v[{vtag}:{vtag+1}]
        s_mov_b64 exec, -1
        s_waitcnt lgkmcnt(0)
        L_{N}_lend:
        s_barrier
        s_cmp_lg_u32 s{S_WAVE}, 0
        s_cbranch_scc1 L_{N}_noflag""")
        read_nonce(A, vtag, vt0)
        flag_srd(A, 92, sP+6)
        A(f"s_mov_b32 s{sT0}, s2")
        flag_store(A, 92, vtag, vt0, sT0, 0, flag_copies())
        A(f"L_{N}_noflag:")
        return A.text(), dict(name=name, nv=nv, lds=3*SLOT)
    if FUSED:
        A("s_waitcnt vmcnt(0)")
        if o.get("stamp3"): rt_stamp(A, 80)
        A(f"""s_cmp_lg_u32 s{S_WAVE}, 0
        s_cbranch_scc1 L_{N}_lend
        s_mov_b32 s{sCnt}, 400000
        L_{N}_tagspin:
        v_cmp_eq_u64 vcc, 0, v[{vtagr}:{vtagr+1}]
        s_sub_u32 s{sCnt}, s{sCnt}, 1
        s_nop 2
        s_cmp_eq_u64 vcc, 0
        s_cbranch_scc1 L_{N}_tagok
        s_cmp_eq_u32 s{sCnt}, 0
        s_cbranch_scc1 L_{N}_tagok
        global_load_dwordx2 v[{vtagr}:{vtagr+1}], v{vtag+2}, s[98:99] sc0 sc1
        s_waitcnt vmcnt(0)
        s_branch L_{N}_tagspin
        L_{N}_tagok:
        v_mov_b32 v{vt0}, {NONCE_LDS}
        s_mov_b64 exec, 1
        ds_write_b64 v{vt0}, v[{vtagr}:{vtagr+1}]
        s_mov_b64 exec, -1""")
        A(f"""s_waitcnt lgkmcnt(0)
        L_{N}_lend:
        s_barrier
        s_cmp_lg_u32 s{S_WAVE}, 0
        s_cbranch_scc1 L_{N}_noflag""")
        flag_srd(A, 92, sP+6)
        A(f"""v_mov_b32 v{vtag}, v{vtagr}
        v_mov_b32 v{vtag+1}, v{vtagr+1}
        s_mov_b32 s{sT0}, s2""")
        flag_store(A, 92, vtag, vt0, sT0, 0, flag_copies())
        if o.get("stamp3"): rt_stamp(A, 81)
        A(f"L_{N}_noflag:")
        if o.get("wpre"): nonce_to_sgpr(A, vtagr, vt0)
        return A.text(), dict(name=name, nv=nv, lds=3*SLOT)
    A(f"""s_waitcnt vmcnt(0)
    L_{N}_lend:
    L_{N}_end:
    s_endpgm""")
    return A.text() + kernel_desc(name, nv), dict(name=name, grid=256, block=512, lds=3*SLOT, nv=nv)

if __name__ == "__main__":
    import hz
    from build import build
    t, i = gen_proj(opts=dict(stamp=True))
    print(i)
    ps = hz.check_hazards(t)
    for p in ps[:30]: print(p)
    ws = hz.check_waits(t, i["name"], max_back=1)
    for p in ws[:30]: print(p)
    print(len(ps), len(ws))
    build([(t, i)], "proj_only.s")
```

```python
from kgen import *

def gen_attn2(name="attn_kernel", NSLOT=3, TPC=8, opts=None):
    o = opts or {}
    A = Asm()
    NQ = 4
    CH = TPC * 4096
    NCH = 64 // TPC
    FLAG = NSLOT * CH
    va = VAlloc(0)
    vtid = va.get("tid")
    vl16 = va.get("l16")
    vcur = va.get("cur"); vnxt = va.get("nxt")
    vt0 = va.get("t0", 1, 4); vt1 = va.get("t1"); vt2 = va.get("t2"); vt3 = va.get("t3")
    vidx = va.get("idx")
    val = va.get("alpha")
    vdum = va.get("dummy")
    vm = [va.get(f"m{i}") for i in range(NQ)]
    vsel = va.get("sel", 4, 4)
    Q = [[va.get(f"q{i}{h}", 4, 4) for h in range(2)] for i in range(NQ)]
    O = [va.get(f"o{i}", 16, 4) for i in range(NQ)]
    L = [va.get(f"l{i}", 4, 4) for i in range(NQ)]
    S = [va.get(f"s{i}", 16, 4) for i in range(2)]
    P = [va.get(f"p{i}", 8, 4) for i in range(2)]
    K = [va.get(f"k{i}", 8, 4) for i in range(2)]
    V = [va.get(f"v{i}", 8, 4) for i in range(2)]
    nv = va.next
    vdma = Q[0][0]
    sWS, sKV, sW = 4, 8, 12
    sWave, sSoff, sM0, sCnt, sQ, sO, sNxt, sMode, sT0, sT1 = 16, 17, 18, 19, 20, 21, 22, 23, 24, 25
    sT2, sT3 = 26, 27
    N = name
    PER = CH // 4 // 1024
    FUSED = o.get("fused")
    WPRE = FUSED and o.get("wpre")
    WFL = WPRE and o.get("wflag")
    O_XSLOTS, O_WSLOTS, O_WOFF = orings()
    rdn = (lambda vn, vt: nonce_from_sgpr(A, vn)) if WPRE else (lambda vn, vt: read_nonce(A, vn, vt))
    if not FUSED: A.raw(kernel_head(name).rstrip("\n"))
    else: A("L_attn_code:")
    if o.get("stamp"): A("s_memtime s[40:41]\ns_memrealtime s[42:43]")
    if FUSED:
        A(f"""s_load_dwordx2 s[{sWS}:{sWS+1}], s[0:1], {KA_WS}
        v_and_b32 v{vl16}, 63, v{vtid}
        s_mov_b32 s{sWave}, s{S_WAVE}""")
    else:
        A(f"""s_cmp_ge_u32 s2, 256
        s_cbranch_scc1 L_{N}_end
        s_load_dwordx2 s[{sWS}:{sWS+1}], s[0:1], {KA_WS}
        v_lshrrev_b32 v{vt0}, 6, v{vtid}
        v_and_b32 v{vl16}, 63, v{vtid}
        v_readfirstlane_b32 s{sWave}, v{vt0}""")
    A(f"""v_lshlrev_b32 v{vl16}, 4, v{vl16}
    s_and_b32 s{sT0}, s2, 7
    s_lshr_b32 s{sT1}, s2, 3
    s_lshl_b32 s{sT0}, s{sT0}, 3
    s_lshr_b32 s{sT2}, s{sT1}, 2
    s_add_u32 s{sT0}, s{sT0}, s{sT2}      ; bh
    s_and_b32 s{sT1}, s{sT1}, 3           ; qb
    s_and_b32 s{sT2}, s{sT0}, 31          ; head
    s_lshr_b32 s{sT0}, s{sT0}, 5          ; branch
    s_mov_b32 s28, s{sT2}
    s_mov_b32 s29, s{sT0}
    s_mov_b32 s30, s{sT1}
    s_cmp_lt_u32 s{sWave}, 4
    s_cbranch_scc1 L_{N}_compute""")
    A(f"""L_{N}_loader:
    s_sub_u32 s{sWave}, s{sWave}, 4
    s_lshl_b32 s{sT2}, s{sT2}, 17         ; head*128KB
    s_add_u32 s{sT2}, s{sT2}, {WS_KB}
    s_cmp_eq_u32 s{sT0}, 0
    s_cselect_b32 s{sT2}, {WS_KA}, s{sT2}
    s_mov_b32 s{sT3}, {WS_VB-WS_KB}
    s_cselect_b32 s{sT3}, {WS_VA-WS_KA}, s{sT3}
    s_cmp_ge_u32 s{sWave}, 2
    s_cselect_b32 s{sT3}, s{sT3}, 0
    s_add_u32 s{sT2}, s{sT2}, s{sT3}
    s_and_b32 s{sT1}, s{sWave}, 1
    s_mul_i32 s{sT1}, s{sT1}, {PER*1024}
    v_add_u32 v{vdma}, s{sT1}, v{vl16}
    s_mul_i32 s{sM0}, s{sWave}, {PER*1024}
    s_mov_b32 s{sQ}, s{sM0}
    s_mov_b32 s{sSoff}, 0
    s_waitcnt lgkmcnt(0)
    s_add_u32 s{sKV}, s{sWS}, s{sT2}
    s_addc_u32 s{sKV+1}, s{sWS+1}, 0
    s_and_b32 s{sKV+1}, s{sKV+1}, 0xffff
    s_mov_b32 s{sKV+2}, 131072
    s_mov_b32 s{sKV+3}, 0x20000
    """)
    if FUSED:
        vn, vc, vo = S[0], S[0]+2, S[0]+4
        KVF = WPRE and o.get("kvfirst") and o.get("early")
        if o.get("stamp3"): rt_stamp(A, 80)
        if not KVF: A(f"""s_cmp_lg_u32 s{sWave}, 0
        s_cbranch_scc1 L_{N}_nopoll""")
        rdn(vn, vt0)
        flag_srd(A, 92, sWS)
        A(f"""v_lshrrev_b32 v{vt0}, 4, v{vl16}          ; lane
        s_cmp_eq_u32 s29, 0
        s_cbranch_scc0 L_{N}_pollB
        v_and_b32 v{vt1}, 1, v{vt0}
        v_lshrrev_b32 v{vt2}, 1, v{vt0}
        v_lshl_add_u32 v{vo}, v{vt2}, 3, v{vt1}
        s_branch L_{N}_pollgo
        L_{N}_pollB:
        {f"v_mov_b32 v{vt3+1}, {o.get('bwait')}" if o.get("bwait") is not None else ""}
        v_and_b32 v{vt1}, 15, v{vt0}
        s_lshl_b32 s{sT1}, s30, 2
        v_and_b32 v{vt2}, 3, v{vt0}
        v_add_u32 v{vt2}, s{sT1}, v{vt2}
        v_cmp_gt_u32 vcc, 32, v{vt0}
        s_nop 1
        v_cndmask_b32 v{vt1}, v{vt2}, v{vt1}, vcc      ; rb
        v_lshrrev_b32 v{vt2}, 4, v{vt0}                ; 0 K, 1 V, 2/3 Q
        v_lshlrev_b32 v{vt2}, 1, v{vt2}
        v_add_u32 v{vt2}, 4, v{vt2}                    ; 4, 6, ..
        v_cndmask_b32 v{vt2}, 2, v{vt2}, vcc
        v_lshrrev_b32 v{vt3}, 3, v{vt1}
        v_add_u32 v{vt2}, v{vt2}, v{vt3}               ; xcd
        v_and_b32 v{vt1}, 7, v{vt1}
        s_lshr_b32 s{sT1}, s28, 3                      ; cb
        s_lshl_b32 s{sT1}, s{sT1}, 3
        v_add_u32 v{vt1}, s{sT1}, v{vt1}               ; sl
        v_lshl_add_u32 v{vo}, v{vt1}, 3, v{vt2}
        {f"v_cmp_eq_u32 vcc, 63, v{vt0}" if o.get("bwait") is not None else ""}
        {"s_nop 1" if o.get("bwait") is not None else ""}
        {f"v_cndmask_b32 v{vo}, v{vo}, v{vt3+1}, vcc" if o.get("bwait") is not None else ""}
        L_{N}_pollgo:
        s_and_b32 s{sT1}, s2, {flag_copies()-1}
        s_lshl_b32 s{sT1}, s{sT1}, 7
        v_mul_u32_u24 v{vo}, {128*flag_copies()}, v{vo}
        v_add_u32 v{vo}, s{sT1}, v{vo}""")
        if KVF:
            A(f"s_cmp_lg_u32 s{sWave}, 0\ns_cbranch_scc1 L_{N}_nopoll")
            flag_poll(A, N, 92, vn, vo, vc, sCnt, first=(0x00050005, 0x00050005, 0, 0x00030003, 29), only_first=True)
        elif o.get("pollr", 0): flag_poll2(A, N, 92, vn, vo, S[0]+8, sCnt, o["pollr"], lds=(NONCE_LDS if WPRE else None), nrd=o.get("pollrd", 1))
        elif o.get("poll3"): flag_poll3(A, N, 92, vn, vo, vc, sCnt, first=o.get("pollfirst"))
        else: flag_poll(A, N, 92, vn, vo, vc, sCnt, first=o.get("pollfirst"))
        if o.get("stamp3"):
            rt_stamp(A, 81); A(f"s_mov_b32 s82, s{sCnt}")
        A(f"""L_{N}_nopoll:
        s_barrier""")
    def dma(rot=True):
        A(f"s_mov_b32 m0, s{sM0}")
        if rot: A(f"s_add_u32 s{sM0}, s{sM0}, {CH}")
        else: A("s_nop 0")
        for i in range(PER):
            if i == 4:
                A("s_add_u32 m0, m0, 4096")
                A(f"s_add_u32 s{sT3}, s{sSoff}, 4096")
            A(f"buffer_load_dwordx4 v{vdma}, s[{sKV}:{sKV+3}], s{sSoff if i < 4 else sT3} offen offset:{(i&3)*1024} lds")
        A(f"s_add_u32 s{sSoff}, s{sSoff}, {CH//2}")
        if rot:
            A(f"s_cmp_ge_u32 s{sM0}, {NSLOT*CH}")
            A(f"s_cselect_b32 s{sT1}, {NSLOT*CH}, 0")
            A(f"s_sub_u32 s{sM0}, s{sM0}, s{sT1}")
    EARLY = o.get("early", 0) if WPRE else 0
    def dma_part(lo, hi):
        for i in range(lo, hi):
            if i == lo or i == 4:
                A(f"s_add_u32 m0, s{sM0}, {4096 if i >= 4 else 0}")
                A(f"s_add_u32 s{sT3}, s{sSoff}, {4096 if i >= 4 else 0}")
            A(f"buffer_load_dwordx4 v{vdma}, s[{sKV}:{sKV+3}], s{sT3} offen offset:{(i&3)*1024} lds")
    if EARLY:
        assert EARLY <= 4 and PER == 8
        A(f"s_bitcmp1_b32 s{sWave}, 0\ns_cbranch_scc1 L_{N}_odd0")
        dma_part(0, 2*EARLY)
        A("s_waitcnt vmcnt(0)")
        if o.get("stamp3"): rt_stamp(A, 83)
        A("s_barrier")
        dma_part(2*EARLY, PER)
        A(f"s_branch L_{N}_odd1\nL_{N}_odd0:\ns_barrier")
        dma_part(0, PER)
        A(f"""L_{N}_odd1:
        s_add_u32 s{sM0}, s{sM0}, {CH}
        s_add_u32 s{sSoff}, s{sSoff}, {CH//2}""")
        if KVF:
            A("s_waitcnt vmcnt(0)\ns_barrier")
            flag_poll(A, N + "_all", 92, vn, vo, vc, sCnt)
            dma()
        elif o.get("early_c1", True):
            dma()
            A(f"s_waitcnt vmcnt({PER})\ns_barrier")
        else:
            A("s_waitcnt vmcnt(0)\ns_barrier")
            dma()
    else:
        dma()
        if WPRE: A("s_waitcnt vmcnt(0)")
        else: A(f"""v_mov_b32 v{vt0}, 0
        v_mov_b32 v{vt1}, {FLAG}
        ds_write_b32 v{vt1}, v{vt0}
        s_waitcnt vmcnt(0) lgkmcnt(0)""")
        if o.get("stamp3"): rt_stamp(A, 83)
        A("s_barrier")
        for c in range(NSLOT-2): dma()
    if o.get("prefetch", True):
        sPW = 56
        A(f"""s_load_dwordx2 s[{sPW+4}:{sPW+5}], s[0:1], {KA_AWO}
        s_load_dwordx2 s[{sPW+6}:{sPW+7}], s[0:1], {KA_BWO}
        s_lshr_b32 s{sT0}, s2, 3
        s_lshl_b32 s{sT0}, s{sT0}, 5
        s_lshl_b32 s{sT1}, s{sWave}, 3
        s_add_u32 s{sT0}, s{sT0}, s{sT1}
        s_lshl_b32 s{sT0}, s{sT0}, 11
        s_and_b32 s{sT1}, s2, 1
        s_lshl_b32 s{sT1}, s{sT1}, 10
        s_add_u32 s{sT0}, s{sT0}, s{sT1}
        v_lshrrev_b32 v{vt0}, 7, v{vl16}
        v_lshlrev_b32 v{vt0}, 11, v{vt0}
        v_bfe_u32 v{vt1}, v{vl16}, 4, 3
        v_lshl_add_u32 v{vt0}, v{vt1}, 7, v{vt0}
        s_bitcmp1_b32 s2, 2
        s_waitcnt lgkmcnt(0)
        s_cselect_b32 s{sPW}, s{sPW+6}, s{sPW+4}
        s_cselect_b32 s{sPW+1}, s{sPW+7}, s{sPW+5}
        s_and_b32 s{sPW+1}, s{sPW+1}, 0xffff
        s_mov_b32 s{sPW+2}, {1024*2048}
        s_mov_b32 s{sPW+3}, 0x20000""")
        WT = o.get("wotouch_at")
        if WT is None: A(f"buffer_load_dword v{vdum}, v{vt0}, s[{sPW}:{sPW+3}], s{sT0} offen")
        else: A(f"s_mov_b32 s74, s{sT0}\nv_mov_b32 v{S[1]+8}, v{vt0}")
    if WPRE:
        sOW, vOW = 64, S[1]
        A(f"""s_load_dwordx2 s[68:69], s[0:1], {KA_AWO}
        s_load_dwordx2 s[70:71], s[0:1], {KA_BWO}
        v_lshrrev_b32 v{vOW+4}, 4, v{vl16}
        s_lshl_b32 s72, s{sWave}, 12
        s_add_u32 s72, s72, {O_WOFF}
        s_waitcnt lgkmcnt(0)""")
        ow_srd(A, sOW, 68, 70, sT0, sT1)
        ow_lanes(A, vOW, vOW+4, sWave, sT0, vt0, vt1, vt2)
    A(f"s_mov_b32 s{sCnt}, {NCH-2 if WPRE else NCH}")
    A(f"""L_{N}_ldloop:
    s_waitcnt vmcnt({(NSLOT-3)*PER})
    {"s_nop 0" if "nobar" in o.get("ablate","") else "s_barrier"}""")
    dma()
    if o.get("prefetch", True) and o.get("wotouch_at") is not None:
        A(f"""s_cmp_lg_u32 s{sCnt}, {o["wotouch_at"]}
        s_cbranch_scc1 L_{N}_nowt
        buffer_load_dword v{vdum}, v{S[1]+8}, s[56:59], s74 offen
        L_{N}_nowt:""")
    A(f"""s_sub_u32 s{sCnt}, s{sCnt}, 1
    s_cmp_lg_u32 s{sCnt}, 0
    s_cbranch_scc1 L_{N}_ldloop""")
    if WPRE:
        A("s_waitcnt vmcnt(0)\ns_barrier")
        if o.get("orot"): o_rot(A, 73, o["orot"])
        for st in range(O_WSLOTS): ow_dma(A, sOW, vOW, 72, sT0, st*16384, st, 73 if o.get("orot") else None)
        if o.get("ctouch"): code_touch(A, N, "L_oproj_code", vt0, vdum, vl16, sWave, 74)
        A("s_barrier")
        A(f"""s_barrier
        v_mov_b32 v{vt1}, {VOTE_LDS}
        ds_read_b128 v[{vOW+4}:{vOW+7}], v{vt1}
        s_waitcnt lgkmcnt(0)
        v_or3_b32 v{vt0}, v{vOW+4}, v{vOW+5}, v{vOW+6}
        v_or_b32 v{vt0}, v{vt0}, v{vOW+7}
        s_nop 1""")
    else:
        A(f"""s_waitcnt vmcnt(0)
        s_barrier
        v_mov_b32 v{vt1}, {FLAG}
        ds_read_b32 v{vt0}, v{vt1}
        s_waitcnt lgkmcnt(0)""")
    A(f"""v_readfirstlane_b32 s{sT0}, v{vt0}
    s_nop 3
    s_cmp_eq_u32 s{sT0}, 0
    s_cbranch_scc1 L_{N}_end
    s_mov_b32 s{sCnt}, {NCH}
    s_mov_b32 s{sSoff}, 0
    s_mov_b32 s{sM0}, s{sQ}
    L_{N}_ldslow:
    s_barrier""")
    dma(rot=False)
    A(f"""s_waitcnt vmcnt(0)
    s_barrier
    s_sub_u32 s{sCnt}, s{sCnt}, 1
    s_cmp_lg_u32 s{sCnt}, 0
    s_cbranch_scc1 L_{N}_ldslow
    {"s_barrier" if FUSED else ""}
    s_branch L_{N}_end
""")
    A(f"""L_{N}_compute:
    s_lshl_b32 s{sT1}, s{sT1}, 4
    s_lshl_b32 s{sT3}, s{sWave}, 2
    s_add_u32 s{sT1}, s{sT1}, s{sT3}
    s_lshl_b32 s{sQ}, s{sT2}, 6
    s_add_u32 s{sQ}, s{sQ}, s{sT1}
    s_lshl_b32 s{sQ}, s{sQ}, 11           ; (head*64+T)*2048
    s_lshl_b32 s{sO}, s{sT1}, 5
    s_add_u32 s{sO}, s{sO}, s{sT2}
    s_lshl_b32 s{sO}, s{sO}, 11           ; (T*32+head)*2048
    s_mul_i32 s{sT3}, s{sT0}, {WS_QB-WS_QA}
    s_add_u32 s{sQ}, s{sQ}, s{sT3}
    s_add_u32 s{sO}, s{sO}, s{sT3}
    s_add_u32 s{sO}, s{sO}, {WS_OA}
    s_waitcnt lgkmcnt(0)
    {"s_memtime s[60:61]" if o.get('stamp2') else ""}
    s_mov_b32 s{sW}, s{sWS}
    s_and_b32 s{sW+1}, s{sWS+1}, 0xffff
    s_mov_b32 s{sW+2}, {WS_END + (262144 if o.get('stamp') else 0)}
    s_mov_b32 s{sW+3}, 0x20000
    """)
    assert WS_OB - WS_OA == WS_QB - WS_QA
    def q_loads():
        for i in range(NQ):
            if i == 2: A(f"s_add_u32 s{sQ}, s{sQ}, 4096")
            for h in range(2):
                A(f"buffer_load_dwordx4 v[{Q[i][h]}:{Q[i][h]+3}], v{vl16}, s[{sW}:{sW+3}], s{sQ} offen offset:{(i&1)*2048+h*1024}")
    if not FUSED: q_loads()
    def init_acc():
        for i in range(NQ):
            for r in range(16): A(f"v_mov_b32 v{O[i]+r}, 0")
            for r in range(2): A(f"v_mov_b32 v{L[i]+r}, 0")
    init_acc()
    for i in range(NQ):
        for r in range(2,4): A(f"v_mov_b32 v{L[i]+r}, 0")
    for r in range(8):
        A(f"v_mov_b32 v{P[1]+r}, 0")
        A(f"v_mov_b32 v{V[1]+r}, 0")
    A(f"""v_lshrrev_b32 v{vt0}, 4, v{vl16}      ; lane
    v_and_b32 v{vt1}, 2, v{vt0}           ; r>=2 -> nonzero
    v_and_b32 v{vt2}, 4, v{vt0}           ; qhalf
    v_mov_b32 v{vt3}, 0x3f803f80
    v_cmp_eq_u32 vcc, 0, v{vt1}
    s_nop 1
    v_cndmask_b32 v{vt3}, 0, v{vt3}, vcc
    v_cmp_eq_u32 vcc, 0, v{vt2}
    s_nop 1
    v_cndmask_b32 v{vsel}, 0, v{vt3}, vcc
    v_cndmask_b32 v{vsel+1}, 0, v{vt3}, vcc
    v_cndmask_b32 v{vsel+2}, v{vt3}, 0, vcc
    v_cndmask_b32 v{vsel+3}, v{vt3}, 0, vcc
    v_and_b32 v{vt1}, 1, v{vt0}
    v_mov_b32 v{vt2}, 0x44444444
    v_mov_b32 v{vt3}, 0xeeeeeeee
    v_cmp_eq_u32 vcc, 0, v{vt1}
    s_nop 1
    v_cndmask_b32 v{vidx}, v{vt3}, v{vt2}, vcc
    {f"v_and_b32 v{vt1}, 3, v{vt0}" if o.get("l4") else ""}
    {f"v_mov_b32 v{vt3}, 0x3f803f80" if o.get("l4") else ""}
    {f"v_cmp_eq_u32 vcc, 0, v{vt1}" if o.get("l4") else ""}
    {"s_nop 1" if o.get("l4") else ""}
    {f"v_cndmask_b32 v{vsel}, 0, v{vt3}, vcc" if o.get("l4") else ""}
    {f"v_cndmask_b32 v{vsel+1}, 0, v{vt3}, vcc" if o.get("l4") else ""}
    v_mov_b32 v{vcur}, v{vl16}
    v_add_u32 v{vnxt}, {CH}, v{vl16}
    s_mov_b32 s{sNxt}, {2*CH}
    s_mov_b32 s{sMode}, 0
    s_mov_b32 s{sCnt}, {NCH}""")
    QP = WPRE and o.get("qpoll")
    if QP:
        vn_, vc_ = P[0], P[0] + 2
        nonce_from_sgpr(A, vn_)
        flag_srd(A, 92, sWS)
        A(f"""s_lshl_b32 s{sT0}, s30, 2
        s_add_u32 s{sT0}, s{sT0}, s{sWave}
        s_lshr_b32 s{sT1}, s{sT0}, 3
        s_lshl_b32 s{sT2}, s29, 1
        s_add_u32 s{sT1}, s{sT1}, s{sT2}
        s_and_b32 s{sT0}, s{sT0}, 7
        s_lshr_b32 s{sT2}, s28, 3
        s_lshl_b32 s{sT2}, s{sT2}, 3
        s_add_u32 s{sT0}, s{sT0}, s{sT2}
        s_lshl_b32 s{sT0}, s{sT0}, 3
        s_add_u32 s{sT0}, s{sT0}, s{sT1}
        s_mul_i32 s{sT0}, s{sT0}, {128*flag_copies()}
        s_and_b32 s{sT1}, s2, {flag_copies()-1}
        s_lshl_b32 s{sT1}, s{sT1}, 7
        s_add_u32 s{sT0}, s{sT0}, s{sT1}
        v_mov_b32 v{vt0}, s{sT0}""")
        A("s_mov_b64 exec, 1")
        A(f"""s_mov_b32 s{sT3}, 400000
        L_qpoll_{N}:
        buffer_load_dwordx2 v[{vc_}:{vc_+1}], v{vt0}, s[92:95], 0 offen sc0 sc1
        s_waitcnt vmcnt(0)
        v_cmp_ne_u64 vcc, v[{vc_}:{vc_+1}], v[{vn_}:{vn_+1}]
        s_sub_u32 s{sT3}, s{sT3}, 1
        s_nop 2
        s_cmp_eq_u64 vcc, 0
        s_cbranch_scc1 L_qpoll_{N}_ok
        s_cmp_lg_u32 s{sT3}, 0
        s_cbranch_scc1 L_qpoll_{N}
        L_qpoll_{N}_ok:
        s_mov_b64 exec, -1""")
        q_loads()
        A("s_barrier")
    elif FUSED:
        A("s_barrier")
        if o.get("stamp3"): rt_stamp(A, 82)
        q_loads()
        if o.get("stamp3"):
            A("s_waitcnt vmcnt(0)"); rt_stamp(A, 83)
    EQ = FUSED and o.get("earlyq")
    A(f"""{"s_memtime s[62:63]" if o.get('stamp2') else ""}
    s_waitcnt vmcnt({4 if EQ else 0})
    {"s_memtime s[64:65]" if o.get('stamp2') else ""}
    s_barrier
    {"s_memtime s[66:67]" if o.get('stamp2') else ""}
    """)
    def rK(buf, base, t, h): return f"ds_read_b128 v[{K[buf]+4*h}:{K[buf]+4*h+3}], v{base} offset:{t*2048+h*1024}"
    def rV(buf, base, t, h): return f"ds_read_b128 v[{V[buf]+4*h}:{V[buf]+4*h+3}], v{base} offset:{CH//2+t*2048+h*1024}"
    def mf(d, a, b, c):
        cs = "0" if c is None else f"v[{c}:{c+15}]"
        return f"v_mfma_f32_32x32x16_bf16 v[{d}:{d+15}], v[{a}:{a+3}], v[{b}:{b+3}], {cs}"
    def sm(qi, pb):
        if o.get("l4"):
            return "\n".join(f"v_mfma_f32_4x4x4bf16_1k v[{L[qi]}:{L[qi]+3}], v[{vsel}:{vsel+1}], v[{P[pb]+2*z}:{P[pb]+2*z+1}], v[{L[qi]}:{L[qi]+3}]\ns_nop 1" for z in range(4))
        return f"v_smfmac_f32_16x16x64_bf16 v[{L[qi]}:{L[qi]+3}], v[{vsel}:{vsel+3}], v[{P[pb]}:{P[pb]+7}], v{vidx}"
    for h in range(2): A(rK(0, vcur, 0, h))
    for h in range(2): A(rV(0, vcur, 0, h))
    A("s_waitcnt lgkmcnt(0)")
    A(mf(S[0], K[0], Q[0][0], None)); A(mf(S[0], K[0]+4, Q[0][1], S[0]))
    A("s_nop 7\ns_nop 3")
    if o.get("stamp"): A("s_memtime s[50:51]\ns_waitcnt lgkmcnt(0)")
    A(f".p2align 6\nL_{N}_loop:")
    pat = o.get("pat", "Q1 e e e P1 e e e Q2 e e c c P2 e e c c S R e e c e e c e e c c").split()
    for kt in range(TPC):
        for qi in range(NQ):
            u = kt*NQ + qi
            nk, nq = (kt, qi+1) if qi+1 < NQ else (kt+1, 0)
            pk, pq = (kt, qi-1) if qi > 0 else (kt-1, NQ-1)
            sb = u & 1; nb = sb ^ 1
            e = lambda j: f"v_exp_f32 v{S[sb]+j}, v{S[sb]+j}"
            c = lambda j: f"v_cvt_pk_bf16_f32 v{P[sb]+j}, v{S[sb]+2*j}, v{S[sb]+2*j+1}"
            Kb = K[nk % 2]; Vb = V[pk % 2]
            pre = []
            HW = o.get("hidew", 0)
            if qi == 3 and not HW: pre.append("s_waitcnt lgkmcnt(0)")
            if qi == 0 and kt == TPC-1: pre.append("s_barrier")
            if EARLY and qi == 0 and kt == EARLY-1:
                pre.append(f"s_cbranch_scc1 L_{N}_bar1"); pre.append(f"L_{N}_bar1r:")
            base, t = (vcur, kt+1) if kt+1 < TPC else (vnxt, 0)
            b2 = (kt+1) % 2
            rd = {0: [rK(b2, base, t, 0)], 1: [rK(b2, base, t, 1)], 2: [rV(b2, base, t, 0), rV(b2, base, t, 1)], 3: []}[qi]
            seq = list(pre); ne = nc = 0
            hid = []
            if o.get("hide", True) and kt == TPC-1 and qi == NQ-1:
                hid = [f"v_mov_b32 v{vcur}, v{vnxt}", f"v_add_u32 v{vnxt}, s{sNxt}, v{vl16}", f"s_add_u32 s{sNxt}, s{sNxt}, {CH}",
                       f"s_cmp_ge_u32 s{sNxt}, {NSLOT*CH}", f"s_cselect_b32 s{sT1}, {NSLOT*CH}, 0", f"s_sub_u32 s{sNxt}, s{sNxt}, s{sT1}",
                       f"s_sub_u32 s{sCnt}, s{sCnt}, 1", f"s_cmp_lg_u32 s{sCnt}, 0"]
            if EARLY and EARLY > 1 and qi == NQ-1 and kt == EARLY-2: hid = [f"s_cmp_eq_u32 s{sCnt}, {NCH}"]
            for tk in pat:
                if tk == "Q1": seq.append(mf(S[nb], Kb, Q[nq][0], None))
                elif tk == "Q2": seq.append(mf(S[nb], Kb+4, Q[nq][1], S[nb]))
                elif tk == "P1": seq.append(mf(O[pq], Vb, P[nb], O[pq]))
                elif tk == "P2": seq.append(mf(O[pq], Vb+4, P[nb]+4, O[pq]))
                elif tk == "S": seq.append(sm(pq, nb))
                elif tk in ("s0","s1","s2","s3"):
                    z = int(tk[1]); seq.append(f"v_mfma_f32_4x4x4bf16_1k v[{L[pq]}:{L[pq]+3}], v[{vsel}:{vsel+1}], v[{P[nb]+2*z}:{P[nb]+2*z+1}], v[{L[pq]}:{L[pq]+3}]")
                elif tk == "e":
                    seq.append(e(ne)); ne += 1
                    if hid and ne >= 2: seq.append(hid.pop(0))
                    if EQ and kt == 0 and qi < 2 and ne == 16: seq.append(f"s_waitcnt vmcnt({2 - 2*qi})")
                    if HW == 1 and qi == 2 and ne == 16: seq.append("s_waitcnt lgkmcnt(0)")
                    if HW == 2 and qi == 2 and ne == 16: seq.append("s_waitcnt lgkmcnt(2)")
                    if HW == 2 and qi == 0 and ne == 16: seq.append("s_waitcnt lgkmcnt(1)")
                elif tk == "c": seq.append(c(nc)); assert 2*nc+1 < ne; nc += 1
                elif tk == "R": seq += rd
                else: raise Exception(tk)
            assert ne == 16 and nc == 8
            ab = o.get("ablate", "")
            for l in seq:
                if "nosm" in ab and l.startswith("v_smfmac"): continue
                if "nolds" in ab and l.startswith("ds_read"): continue
                if "nocvt" in ab and l.startswith("v_cvt"): continue
                if "noexp" in ab and l.startswith("v_exp"): continue
                if "nopv" in ab and l.startswith(f"v_mfma_f32_32x32x16_bf16 v[{O[pq]}:"): continue
                if "noqk" in ab and l.startswith(f"v_mfma_f32_32x32x16_bf16 v[{S[nb]}:"): continue
                if "nobar" in ab and l.startswith("s_barrier"): l = "s_nop 0"
                if "expsep" in ab and l.startswith("v_exp"):
                    r = l.split()[1].rstrip(","); l = f"v_exp_f32 v{vt2}, {r}"
                A(l)
    if o.get("hide", True): A(f"s_cbranch_scc1 L_{N}_loop")
    else: A(f"""v_mov_b32 v{vcur}, v{vnxt}
    v_add_u32 v{vnxt}, s{sNxt}, v{vl16}
    s_add_u32 s{sNxt}, s{sNxt}, {CH}
    s_cmp_ge_u32 s{sNxt}, {NSLOT*CH}
    s_cselect_b32 s{sT1}, {NSLOT*CH}, 0
    s_sub_u32 s{sNxt}, s{sNxt}, s{sT1}
    s_sub_u32 s{sCnt}, s{sCnt}, 1
    s_cmp_lg_u32 s{sCnt}, 0
    s_cbranch_scc1 L_{N}_loop
    """)
    if EARLY:
        A(f"""s_branch L_{N}_bar2
        L_{N}_bar1:
        s_barrier
        s_branch L_{N}_bar1r
        L_{N}_bar2:""")
    if o.get("stamp"): A("s_memtime s[52:53]\ns_waitcnt lgkmcnt(0)")
    lb = (TPC*NQ-1) & 1
    Vb = V[(TPC-1) % 2]
    A("s_nop 1")
    A(mf(O[NQ-1], Vb, P[lb], O[NQ-1])); A(mf(O[NQ-1], Vb+4, P[lb]+4, O[NQ-1])); A(sm(NQ-1, lb))
    A(f"L_{N}_fin:")
    A("s_nop 7\ns_nop 7")
    vrc, vna, vz = K[0], K[0]+2, K[0]+4
    for r in (vna, vna+1, vz, vz+1): A(f"v_mov_b32 v{r}, 0")
    A(f"s_mov_b32 s{sCnt}, 0")
    for qi in range(NQ):
        if o.get("l4"):
            A(f"v_mov_b32 v{vt0}, v{L[qi]}")
            A(f"v_mov_b32 v{vt1}, v{L[qi]}")
            A("s_nop 1")
            A(f"v_permlane32_swap_b32 v{vt0}, v{vt1}")
            A(f"v_add_f32 v{vt0}, v{vt0}, v{vt1}")
        else:
            A(f"v_add_f32 v{vt0}, v{L[qi]}, v{L[qi]+1}")
        A(f"v_rcp_f32 v{vrc}, v{vt0}")
        A(f"v_mov_b32 v{vt2}, 0x35800000")
        A(f"v_cmp_nle_f32 s[{sT2}:{sT3}], v{vt2}, v{vt0}")
        A(f"v_mov_b32 v{vt2}, 0x71800000")
        A(f"v_cmp_nle_f32 vcc, v{vt0}, v{vt2}")
        A(f"v_mov_b32 v{vrc+1}, v{vrc}")
        for r in range(0, 16, 2):
            A(f"v_pk_mul_f32 v[{O[qi]+r}:{O[qi]+r+1}], v[{O[qi]+r}:{O[qi]+r+1}], v[{vrc}:{vrc+1}]")
        A(f"s_or_b64 vcc, vcc, s[{sT2}:{sT3}]")
        A(f"s_cmp_lg_u64 vcc, 0")
        A(f"s_cselect_b32 s{sT0}, 1, 0")
        A(f"s_or_b32 s{sCnt}, s{sCnt}, s{sT0}")
        if not o.get("latechk", True):
            for r in range(0, 16, 2):
                A(f"v_pk_fma_f32 v[{vna}:{vna+1}], v[{O[qi]+r}:{O[qi]+r+1}], v[{vz}:{vz+1}], v[{vna}:{vna+1}]")
        d = S[qi & 1] + 8*((qi >> 1) & 1)
        for j in range(8):
            A(f"v_cvt_pk_bf16_f32 v{d+j}, v{O[qi]+2*j}, v{O[qi]+2*j+1}")
        A(f"buffer_store_dwordx4 v[{d}:{d+3}], v{vl16}, s[{sW}:{sW+3}], s{sO} offen offset:0 {o.get('stflags','')}")
        A(f"buffer_store_dwordx4 v[{d+4}:{d+7}], v{vl16}, s[{sW}:{sW+3}], s{sO} offen offset:1024 {o.get('stflags','')}")
        A(f"s_add_u32 s{sO}, s{sO}, 65536")
    if o.get("latechk", True):
        for qi in range(NQ):
            for r in range(0, 16, 2):
                A(f"v_pk_fma_f32 v[{vna}:{vna+1}], v[{O[qi]+r}:{O[qi]+r+1}], v[{vz}:{vz+1}], v[{vna}:{vna+1}]")
    A(f"s_sub_u32 s{sO}, s{sO}, {NQ*65536}")
    A(f"""v_add_f32 v{vt3}, v{vna}, v{vna+1}
    v_cmp_u_f32 vcc, v{vt3}, v{vt3}
    s_nop 3
    s_cmp_lg_u64 vcc, 0
    s_cselect_b32 s{sT0}, 1, 0
    s_or_b32 s{sCnt}, s{sCnt}, s{sT0}
    {"s_waitcnt vmcnt(0)" if (FUSED and not WFL) else ""}
    s_cmp_eq_u32 s{sMode}, 1
    s_cbranch_scc1 L_{N}_{"done2" if FUSED else "done"}
    v_mov_b32 v{vt0}, s{sCnt}""")
    if WPRE:
        A(f"""s_lshl_b32 s{sT0}, s{sWave}, 2
        s_add_u32 s{sT0}, s{sT0}, {VOTE_LDS}
        v_mov_b32 v{vt1}, s{sT0}
        ds_write_b32 v{vt1}, v{vt0}
        v_mov_b32 v{vt1}, {VOTE_LDS}
        s_waitcnt lgkmcnt(0)
        s_barrier
        ds_read_b128 v[{K[1]}:{K[1]+3}], v{vt1}
        s_waitcnt lgkmcnt(0)
        v_or3_b32 v{vt0}, v{K[1]}, v{K[1]+1}, v{K[1]+2}
        v_or_b32 v{vt0}, v{vt0}, v{K[1]+3}
        s_nop 1""")
    else:
        A(f"""v_mov_b32 v{vt1}, {FLAG}
        ds_or_b32 v{vt1}, v{vt0}
        s_waitcnt lgkmcnt(0)
        s_barrier
        ds_read_b32 v{vt0}, v{vt1}
        s_waitcnt lgkmcnt(0)""")
    A(f"""v_readfirstlane_b32 s{sT0}, v{vt0}
    s_nop 3
    s_cmp_eq_u32 s{sT0}, 0
    s_cbranch_scc1 L_{N}_done
    """)
    A(f"""s_waitcnt vmcnt(0)
    s_mov_b32 s{sMode}, 1
    s_mov_b32 s{sCnt}, {NCH}
    """)
    init_acc()
    for i in range(NQ): A(f"v_mov_b32 v{vm[i]}, 0xff7fffff")
    A(f"""L_{N}_slow:
    s_barrier
    s_barrier
    v_mov_b32 v{vcur}, v{vl16}
    s_mov_b32 s{sNxt}, {TPC}
    L_{N}_slowt:""")
    for h in range(2): A(rK(0, vcur, 0, h))
    for h in range(2): A(rV(0, vcur, 0, h))
    A(f"v_add_u32 v{vcur}, 2048, v{vcur}")
    A("s_waitcnt lgkmcnt(0)")
    for qi in range(NQ):
        s = S[0]
        A(mf(s, K[0], Q[qi][0], None)); A(mf(s, K[0]+4, Q[qi][1], s))
        A("s_nop 7\ns_nop 3")
        A(f"v_max3_f32 v{vt0}, v{s}, v{s+1}, v{s+2}")
        for j in range(3, 15, 2): A(f"v_max3_f32 v{vt0}, v{vt0}, v{s+j}, v{s+j+1}")
        A(f"v_max_f32 v{vt0}, v{vt0}, v{s+15}")
        A(f"v_mov_b32 v{vt1}, v{vt0}")
        A("s_nop 1")
        A(f"v_permlane32_swap_b32 v{vt0}, v{vt1}")
        A(f"v_max3_f32 v{vt0}, v{vt0}, v{vt1}, v{vm[qi]}")
        A(f"v_sub_f32 v{val}, v{vm[qi]}, v{vt0}")
        A(f"v_exp_f32 v{val}, v{val}")
        A(f"v_mov_b32 v{vm[qi]}, v{vt0}")
        for r in range(16): A(f"v_sub_f32 v{s+r}, v{s+r}, v{vt0}")
        for r in range(16): A(f"v_exp_f32 v{s+r}, v{s+r}")
        for r in range(16): A(f"v_mul_f32 v{O[qi]+r}, v{O[qi]+r}, v{val}")
        for r in range(2): A(f"v_mul_f32 v{L[qi]+r}, v{L[qi]+r}, v{val}")
        for j in range(8): A(f"v_cvt_pk_bf16_f32 v{P[0]+j}, v{s+2*j}, v{s+2*j+1}")
        A("s_nop 1")
        A(mf(O[qi], V[0], P[0], O[qi])); A(mf(O[qi], V[0]+4, P[0]+4, O[qi])); A(sm(qi, 0))
        A("s_nop 7\ns_nop 7")
    A(f"""s_sub_u32 s{sNxt}, s{sNxt}, 1
    s_cmp_lg_u32 s{sNxt}, 0
    s_cbranch_scc1 L_{N}_slowt
    s_sub_u32 s{sCnt}, s{sCnt}, 1
    s_cmp_lg_u32 s{sCnt}, 0
    s_cbranch_scc1 L_{N}_slow
    s_branch L_{N}_fin
    """)
    if FUSED:
        A(f"""L_{N}_done2:
        s_barrier""")
    A(f"""L_{N}_done:""")
    if o.get("stamp"):
        A(f"""s_memtime s[44:45]
        s_memrealtime s[46:47]
        s_waitcnt lgkmcnt(0)
        s_sub_u32 s44, s44, s40
        s_sub_u32 s46, s46, s42
        s_sub_u32 s50, s50, s40
        s_sub_u32 s52, s52, s40
        s_lshr_b32 s50, s50, 2
        s_lshr_b32 s52, s52, 2
        s_lshl_b32 s52, s52, 16
        s_or_b32 s50, s50, s52
        s_lshl_b32 s48, s2, 3
        s_add_u32 s48, s48, s{sWave}
        s_lshl_b32 s48, s48, 4
        s_add_u32 s48, s48, {WS_END+65536}
        v_mov_b32 v{vt0}, s44
        v_mov_b32 v{vt1}, s46
        v_mov_b32 v{vt2}, s42
        v_mov_b32 v{vt3}, s50
        v_mov_b32 v{val}, 0
        buffer_store_dwordx4 v[{vt0}:{vt0+3}], v{val}, s[{sW}:{sW+3}], s48 offen""")
        if o.get("stamp2"):
            A(f"""s_sub_u32 s60, s60, s40
            s_sub_u32 s62, s62, s40
            s_sub_u32 s64, s64, s40
            s_sub_u32 s66, s66, s40
            s_add_u32 s48, s48, 64
            s_nop 1
            v_mov_b32 v{vt0}, s60
            v_mov_b32 v{vt1}, s62
            v_mov_b32 v{vt2}, s64
            v_mov_b32 v{vt3}, s66
            buffer_store_dwordx4 v[{vt0}:{vt0+3}], v{val}, s[{sW}:{sW+3}], s48 offen""")
    if WFL:
        rdn(P[0], vt0)
        flag_srd(A, 92, sWS)
        A(f"""s_lshl_b32 s{sT0}, s29, 4
        s_lshl_b32 s{sT1}, s30, 2
        s_add_u32 s{sT0}, s{sT0}, s{sT1}
        s_add_u32 s{sT0}, s{sT0}, s{sWave}
        s_lshl_b32 s{sT0}, s{sT0}, 5
        s_add_u32 s{sT0}, s{sT0}, s28""")
        if o.get("stamp4"):
            rt_stamp(A, 84); A("s_waitcnt vmcnt(0)"); rt_stamp(A, 85)
        flag_store(A, 92, P[0], vt0, sT0, FLG_A, 1, drain=True)
    elif FUSED:
        A(f"""s_cmp_lg_u32 s{S_WAVE}, 0
        s_cbranch_scc1 L_{N}_end""")
        rdn(S[0], vt0)
        flag_srd(A, 92, sWS)
        A(f"""s_lshl_b32 s{sT0}, s29, 2
        s_add_u32 s{sT0}, s{sT0}, s30
        s_lshl_b32 s{sT0}, s{sT0}, 5
        s_add_u32 s{sT0}, s{sT0}, s28""")
        flag_store(A, 92, S[0], vt0, sT0, FLG_A, 1)
    if FUSED:
        A(f"L_{N}_end:")
        if o.get("stamp3"):
            A(f"""s_lshl_b32 s84, s2, 3
            s_add_u32 s84, s84, s{S_WAVE}
            s_lshl_b32 s84, s84, 4
            s_add_u32 s84, s84, {WS_END + 196608}
            v_mov_b32 v{vt0}, s80
            v_mov_b32 v{vt1}, s81
            v_mov_b32 v{vt2}, s82
            v_mov_b32 v{vt3}, s83
            v_mov_b32 v{vt3+1}, s84
            s_mov_b64 exec, 1
            global_store_dwordx4 v{vt3+1}, v[{vt0}:{vt0+3}], s[{sWS}:{sWS+1}]
            s_mov_b64 exec, -1""")
        return A.text(), dict(name=name, nv=nv, lds=NSLOT*CH + 64)
    A(f"""L_{N}_end:
    s_endpgm""")
    txt = A.text() + kernel_desc(name, nv)
    return txt, dict(name=name, grid=256, block=512, lds=NSLOT*CH + 64, nv=nv)

if __name__ == "__main__":
    import hz
    from build import build
    t, i = gen_attn2(opts=dict(stamp=True))
    print(i)
    ps = hz.check_hazards(t)
    for p in ps[:30]: print(p)
    ws = hz.check_waits(t, i["name"], max_back=1)
    for p in ws[:30]: print(p)
    print(len(ps), len(ws))
    build([(t, i)], "attn2_only.s")
```
